```python
import torch

def _softmax(x, axis=-1):
    return torch.softmax(x, dim=axis)
def _gelu(x):
    return torch.nn.functional.gelu(x, approximate="tanh")
def _silu(x):
    return torch.nn.functional.silu(x)
def _sigmoid(x):
    return torch.sigmoid(x)
def _layernorm(x, axis=-1, eps=1e-5):
    m = x.mean(dim=axis, keepdim=True)
    v = x.var(dim=axis, keepdim=True, unbiased=False)
    return (x - m) / torch.sqrt(v + eps)
def _scatter_add(tgt, idx, src, axis=0):
    return tgt.clone().index_add_(axis, idx, src)
def _segment_sum(src, seg, n):
    out = torch.zeros((n,) + src.shape[1:], dtype=src.dtype)
    return out.index_add_(0, seg, src)
def _pad(x, pw):
    flat = tuple(v for pair in reversed(pw) for v in pair)
    return torch.nn.functional.pad(x, flat)

kernel_name = 'gated_mix__ssm_conv_s5__swiglu_ffn__prompt'

def setup_inputs():

    _w = (lambda a: (lambda t: t.to(torch.bfloat16) if t.is_floating_point() else t)(torch.as_tensor(a)))
    def _A_setup():
        B, S, D = 1, 2048, 512
        P = D
        Lambda_re = -0.5 * (lambda _x: torch.exp(torch.as_tensor(_x)))((lambda *s: torch.randn(*s, dtype=torch.bfloat16) * 0.2)(P))
        Lambda_im = (lambda *s: torch.randn(*s, dtype=torch.bfloat16) * 0.4)(P) * 1.0
        B_re = (lambda *s: torch.randn(*s, dtype=torch.bfloat16) * 0.2)(P, D) * (D ** -0.5)
        B_im = (lambda *s: torch.randn(*s, dtype=torch.bfloat16) * 0.2)(P, D) * (D ** -0.5)
        C_re = (lambda *s: torch.randn(*s, dtype=torch.bfloat16) * 0.2)(D, P) * (P ** -0.5)
        C_im = (lambda *s: torch.randn(*s, dtype=torch.bfloat16) * 0.2)(D, P) * (P ** -0.5)
        log_dt = (lambda *s: torch.randn(*s, dtype=torch.bfloat16) * 0.2)(P) * 0.3 - 2.0
        Dskip = (lambda *s: torch.randn(*s, dtype=torch.bfloat16) * 0.05)(D)
        return {
            "x": _w((lambda *s: torch.randn(*s, dtype=torch.bfloat16) * 0.05)(B, S, D)),
            "Lambda_re": _w(Lambda_re),
            "Lambda_im": _w(Lambda_im),
            "B_re": _w(B_re),
            "B_im": _w(B_im),
            "C_re": _w(C_re),
            "C_im": _w(C_im),
            "log_dt": _w(log_dt),
            "Dskip": _w(Dskip),
        }
    _A_in = _A_setup()

    def _B_setup():
        B, S, D, F = 1, 2048, 512, 1376
        return {
            "x": _w((lambda *s: torch.randn(*s, dtype=torch.bfloat16) * 0.05)(B, S, D)),
            "w_gate": _w((lambda *s: torch.randn(*s, dtype=torch.bfloat16) * 0.05)(D, F)),
            "w_up": _w((lambda *s: torch.randn(*s, dtype=torch.bfloat16) * 0.05)(D, F)),
            "w_down": _w((lambda *s: torch.randn(*s, dtype=torch.bfloat16) * 0.05)(F, D)),
        }
    _B_in = _B_setup()

    return {
        "A_x": _A_in["x"],
        "A_Lambda_re": _A_in["Lambda_re"],
        "A_Lambda_im": _A_in["Lambda_im"],
        "A_B_re": _A_in["B_re"],
        "A_B_im": _A_in["B_im"],
        "A_C_re": _A_in["C_re"],
        "A_C_im": _A_in["C_im"],
        "A_log_dt": _A_in["log_dt"],
        "A_Dskip": _A_in["Dskip"],
        "B_x": _B_in["x"],
        "B_w_gate": _B_in["w_gate"],
        "B_w_up": _B_in["w_up"],
        "B_w_down": _B_in["w_down"],
        "gate_w": _w((lambda *s: torch.randn(*s, dtype=torch.bfloat16) * 0.05)(512) * 16.0),
    }

def reference(A_x, A_Lambda_re, A_Lambda_im, A_B_re, A_B_im, A_C_re, A_C_im, A_log_dt, A_Dskip, B_x, B_w_gate, B_w_up, B_w_down, gate_w):
    def _A_ref(x, Lambda_re, Lambda_im, B_re, B_im, C_re, C_im, log_dt, Dskip):
        Bsz, L, H = x.shape
        Lam = Lambda_re + 1j * Lambda_im
        Bmat = B_re + 1j * B_im
        Cmat = C_re + 1j * C_im
        dt = torch.exp(log_dt)
        Lam_bar = torch.exp(dt * Lam)
        B_bar = ((Lam_bar - 1.0) / Lam)[:, None] * Bmat
        Bu = torch.einsum("bld,pd->blp", x + 0j, B_bar)
        h = torch.zeros_like(Bu[:, 0, :])
        hs = []
        for t in range(L):
            h = Lam_bar[None, :] * h + Bu[:, t, :]
            hs.append(h)
        hseq = torch.stack(hs, 1)
        y = 2.0 * torch.einsum("blp,dp->bld", hseq, Cmat).real + x * Dskip[None, None, :]
        return y

    def _B_ref(x, w_gate, w_up, w_down):
        g = _silu(x @ w_gate)
        u = x @ w_up
        return (g * u) @ w_down

    x = A_x
    g = _sigmoid((x * gate_w).sum(-1, keepdims=True))
    a = _A_ref(x, A_Lambda_re, A_Lambda_im, A_B_re, A_B_im, A_C_re, A_C_im, A_log_dt, A_Dskip)
    b = _B_ref(x, B_w_gate, B_w_up, B_w_down)
    return g * a + (1 - g) * b
```

```python
import re

TRANS = ('v_exp_f32', 'v_log_f32', 'v_rcp_f32', 'v_rsq_f32', 'v_sqrt_f32', 'v_sin_f32', 'v_cos_f32')


def vr(a, n=1):
    return f'v{a}' if n == 1 else f'v[{a}:{a + n - 1}]'


def sr(a, n=1):
    return f's{a}' if n == 1 else f's[{a}:{a + n - 1}]'


class Stream:
    def __init__(self):
        self.lines = []
        self.vm = []
        self.lg = []

    def __call__(self, text):
        for ln in text.split('\n'):
            ln = ln.strip()
            if ln:
                self.lines.append(ln)

    def label(self, name):
        self.lines.append(name + ':')

    def comment(self, t):
        self.lines.append('; ' + t)

    def vmem(self, text, tag=None):
        self(text)
        self.vm.append(tag)

    def wait_vm(self, tag):
        idx = [i for i, t in enumerate(self.vm) if t == tag]
        if not idx:
            return
        n = len(self.vm) - 1 - idx[-1]
        assert n <= 63, (tag, n)
        self(f's_waitcnt vmcnt({n})')
        self.vm = self.vm[idx[-1] + 1:]

    def wait_vm_all(self):
        self('s_waitcnt vmcnt(0)')
        self.vm = []

    def ds(self, text, tag=None):
        self(text)
        self.lg.append(tag)

    def wait_lg(self, tag):
        idx = [i for i, t in enumerate(self.lg) if t == tag]
        if not idx:
            return
        n = len(self.lg) - 1 - idx[-1]
        n = min(n, 15)
        self(f's_waitcnt lgkmcnt({n})')
        self.lg = self.lg[len(self.lg) - n:] if n else []

    def wait_lg_all(self):
        self('s_waitcnt lgkmcnt(0)')
        self.lg = []

    def text(self):
        out = []
        for ln in self.lines:
            out.append(ln if ln.endswith(':') else '    ' + ln)
        return '\n'.join(out) + '\n'


_REG = re.compile(r'(?<![\w])(-?)(?:abs\()?([vs])(?:(\d+)|\[(\d+):(\d+)\])')


def _regs(op):
    op = op.strip()
    res = set()
    if op in ('vcc', 'vcc_lo', 'vcc_hi'):
        return {'vcc'}
    if op in ('exec', 'exec_lo', 'exec_hi'):
        return {'exec'}
    if op == 'm0':
        return {'m0'}
    m = _REG.match(op)
    if m:
        k = m.group(2)
        if m.group(3) is not None:
            res.add(k + m.group(3))
        else:
            for i in range(int(m.group(4)), int(m.group(5)) + 1):
                res.add(k + str(i))
    return res


def _split_ops(rest):
    ops, depth, cur = [], 0, ''
    for ch in rest:
        if ch == '[':
            depth += 1
        if ch == ']':
            depth -= 1
        if ch == ',' and depth == 0:
            ops.append(cur.strip())
            cur = ''
        else:
            cur += ch
    if cur.strip():
        ops.append(cur.strip())
    if ops:
        parts = ops[-1].split()
        ops[-1] = parts[0]
        mods = parts[1:]
    else:
        mods = []
    return ops, mods


class Ins:
    def __init__(self, ln):
        self.ln = ln
        t = ln.split(';')[0].strip()
        sp = t.split(None, 1)
        self.mn = sp[0]
        ops, self.mods = _split_ops(sp[1]) if len(sp) > 1 else ([], [])
        self.ops = ops
        mn = self.mn
        self.w, self.r = set(), set()
        R = [_regs(o) for o in ops]
        self.is_mfma = mn.startswith('v_mfma')
        self.is_valu = mn.startswith('v_') and not self.is_mfma
        self.is_salu = mn.startswith('s_')
        self.is_vmem = mn.startswith(('buffer_', 'global_'))
        self.is_ds = mn.startswith('ds_')
        self.is_trans = mn.replace('_e32', '').replace('_e64', '') in TRANS
        self.is_dot = mn.startswith('v_dot')
        self.states = 1
        self.store_data = set()
        if mn == 's_nop':
            self.states = int(ops[0], 0) + 1
        if self.is_mfma:
            self.w = R[0]
            self.a, self.b, self.c = R[1], R[2], R[3]
            self.r = R[1] | R[2] | R[3]
            self.passes = 8 if '32x32x16' in mn else 4
        elif self.is_valu:
            if mn.startswith('v_permlane32_swap') or mn.startswith('v_permlane16_swap'):
                self.w = R[0] | R[1]
                self.r = R[0] | R[1]
            elif mn.startswith(('v_add_co', 'v_sub_co', 'v_addc_co')):
                self.w = R[0] | R[1]
                for x in R[2:]:
                    self.r |= x
            else:
                self.w = R[0]
                for x in R[1:]:
                    self.r |= x
                if mn.startswith(('v_fmac', 'v_dot2c')):
                    self.r |= R[0]
        elif self.is_ds:
            if mn.startswith('ds_read'):
                self.w = R[0]
                self.r = R[1]
            else:
                for x in R:
                    self.r |= x
        elif self.is_vmem:
            lds = 'lds' in self.mods
            if '_load_' in mn and not lds:
                self.w = R[0]
                for x in R[1:]:
                    self.r |= x
            else:
                for x in R:
                    self.r |= x
                if lds:
                    self.r.add('m0')
                if '_store_' in mn and mn.endswith(('x3', 'x4')):
                    self.store_data = R[0] if mn.startswith('buffer_') else R[1]
        elif self.is_salu:
            if mn.startswith(('s_cmp', 's_cbranch', 's_branch', 's_waitcnt', 's_barrier', 's_nop', 's_setprio', 's_endpgm', 's_sleep')):
                for x in R:
                    self.r |= x
            else:
                if R:
                    self.w = R[0]
                for x in R[1:]:
                    self.r |= x
                if 'saveexec' in mn:
                    self.w |= {'exec'}


def check_hazards(lines, name=''):
    ins = [Ins(l) for l in lines if not l.endswith(':') and not l.startswith((';', '.'))]
    probs = []
    for i, c in enumerate(ins):
        dist = 0
        for j in range(i - 1, max(-1, i - 24), -1):
            p = ins[j]
            need = 0
            vw = {x for x in p.w if x[0] == 'v' and x != 'vcc'}
            sw = {x for x in p.w if x[0] == 's' or x == 'vcc'}
            if p.is_valu:
                if c.is_mfma and vw & c.r:
                    need = max(need, 2)
                if p.is_trans and c.is_valu and not c.is_trans and vw & c.r:
                    need = max(need, 1)
                if c.is_vmem and sw & c.r:
                    need = max(need, 5)
                if c.is_valu and sw & c.r:
                    need = max(need, 2)
                if c.mn.startswith(('v_readfirstlane', 'v_readlane')) and vw & c.r:
                    need = max(need, 1)
                if c.mn.startswith('v_permlane') and vw & c.r:
                    need = max(need, 2)
                if p.is_dot and vw & (c.r | c.w) and not (c.mn == p.mn and not (vw & (_regs(c.ops[1]) | _regs(c.ops[2])))):
                    need = max(need, 3)
            if p.is_salu and 'm0' in p.w and c.is_vmem and 'm0' in c.r:
                need = max(need, 1)
            if p.is_mfma:
                big = 12 if p.passes == 8 else 8
                if c.is_mfma:
                    if p.w & (c.a | c.b):
                        need = max(need, big)
                    if p.w & c.c and not (p.w == c.c and p.passes == c.passes):
                        need = max(need, big - 2)
                elif (c.is_valu or c.is_vmem or c.is_ds) and p.w & (c.r | c.w):
                    need = max(need, big)
                if c.is_valu and p.c & c.w:
                    need = max(need, 7 if p.passes == 8 else 3)
            if p.store_data and c.is_valu and p.store_data & c.w:
                need = max(need, 2)
            if p.store_data and (c.is_ds or c.is_vmem) and p.store_data & c.w:
                need = max(need, 1)
            if need > dist:
                probs.append(f'{name}: need {need} have {dist}: [{p.ln}] -> [{c.ln}]')
            dist += p.states
            if dist >= 20:
                break
    return probs
```

```python
import sys, os
sys.path.insert(0, os.path.dirname(os.path.abspath(__file__)))
from asmlib import Stream, vr, sr, check_hazards

K = 'gated_mix__ssm_conv_s5__swiglu_ffn__prompt_kernel'

ACT = 0
KSP = 160
AGG = 0xA00000
GAT = 0xA20000
HF = 0xA30000
GF = 0xA31000
GW = 0xA32000
WS_SIZE = 0xA40000
STAMP = 0xF000000
OOB = 0x40000000
SLOT = 24576
P2B = 4 * SLOT
XB = 6 * SLOT
X_TR, X_EX, X_EX2, X_G, X_OMG = XB, XB + 8192, XB + 9216, XB + 10240, XB + 10752
LDS = XB + 16384
S_RT, S_CG, S_M2, S_N2, S_W, S_TAG = 38, 39, 40, 41, 42, 43
R_WS, R_X, R_B, R_WG, R_WU, R_E, R_O = 44, 48, 52, 56, 60, 64, 68
S_OA, S_OW = 72, 73
S_K4 = 73
T0, T1, T2, T3 = 3, 81, 0, 1
S_MB = 82
S_MB2 = 83
S_C0 = 84
S_C1 = 86
S_CNT = 88
S_ST0 = 90
LOG2E = 0x3fb8aa3b
NLOG2E = 0xbfb8aa3b
INV2PI = 0x3e22f983


class Cfg:
    mapping = '48'
    stamps = False
    D = 3
    DF = 5
    x1_at = 17
    poll_after_piece = 5
    spin = 1 << 15
    code_pf = True
    out_flags = ''
    prio = True


class WS(Stream):
    def __init__(self, cfg, vst):
        super().__init__()
        self.cfg, self.vst = cfg, vst
        self.pend, self.names, self.nst = [], [], 0

    def stamp(self, name):
        if not self.cfg.stamps:
            return
        if len(self.pend) == 6:
            self('s_waitcnt lgkmcnt(0)')
            self.lg = []
            self.flush()
        used = {p for p, _ in self.pend}
        p = [x for x in range(6) if x not in used][0]
        self(f's_memtime {sr(S_ST0 + 2 * p, 2)}')
        self.pend.append((p, self.nst))
        self.names.append(name)
        self.nst += 1

    def flush(self):
        for p, i in self.pend:
            self(f'v_writelane_b32 {vr(self.vst)}, {sr(S_ST0 + 2 * p)}, {i}')
        self.pend = []

    def wait_lg_all(self):
        super().wait_lg_all()
        self.flush()

    def dump_stamps(self, role):
        if not self.cfg.stamps:
            return
        self(f's_memrealtime {sr(S_C0, 2)}')
        self.wait_lg_all()
        self(f'v_writelane_b32 {vr(self.vst)}, {sr(S_C0)}, 62')
        self(f'v_writelane_b32 {vr(self.vst)}, s89, 63')
        self(f's_lshl_b32 {sr(T0)}, s2, 3\ns_add_u32 {sr(T0)}, {sr(T0)}, {sr(S_W)}\ns_add_u32 {sr(T0)}, {sr(T0)}, {4 * role}')
        self(f's_lshl_b32 {sr(T0)}, {sr(T0)}, 8\ns_add_u32 {sr(T0)}, {sr(T0)}, {STAMP}')
        self(f's_add_u32 s36, s36, {sr(T0)}\ns_addc_u32 s37, s37, 0')
        self('v_lshlrev_b32 v1, 2, v0')
        self(f'global_store_dword v1, {vr(self.vst)}, s[36:37]')


def srd(A, r, ptr, size):
    A(f's_mov_b32 {sr(r)}, {sr(ptr)}\ns_mov_b32 {sr(r + 1)}, {sr(ptr + 1)}\ns_mov_b32 {sr(r + 2)}, {size}\ns_mov_b32 {sr(r + 3)}, 0x20000')


def k4(k):
    return '0' if k == 0 else sr(S_K4 + k)


def swz_consts(A, vq8, vcA, vcB, t):
    A(f'v_lshrrev_b32 {vr(vq8)}, 3, v0')
    A(f'v_lshrrev_b32 {vr(t)}, 4, v0')
    A(f'v_and_b32 {vr(vcA)}, 7, v0')
    A(f'v_xor_b32 {vr(vcA)}, {vr(vcA)}, {vr(t)}')
    A(f'v_lshlrev_b32 {vr(vcA)}, 4, {vr(vcA)}')
    A(f'v_xor_b32 {vr(vcB)}, 64, {vr(vcA)}')


def frag_addr(A, a0, t):
    A(f'v_and_b32 {vr(a0)}, 31, v0')
    A(f'v_bfe_u32 {vr(t)}, v0, 1, 3')
    A(f'v_lshrrev_b32 {vr(a0 + 1)}, 5, v0')
    A(f'v_xor_b32 {vr(t)}, {vr(t)}, {vr(a0 + 1)}')
    A(f'v_lshlrev_b32 {vr(t)}, 4, {vr(t)}')
    A(f'v_lshl_add_u32 {vr(a0)}, {vr(a0)}, 7, {vr(t)}')
    for s in (1, 2, 3):
        A(f'v_xor_b32 {vr(a0 + s)}, {s << 5}, {vr(a0)}')


def wffn_voffs(A, vw, t):
    A(f's_mul_i32 {sr(T0)}, {sr(S_W)}, {16 * 2752}\ns_mul_i32 {sr(T1)}, {sr(S_CG)}, 192\ns_add_u32 {sr(T0)}, {sr(T0)}, {sr(T1)}')
    A(f's_mul_i32 {sr(T1)}, {sr(S_CG)}, 12\ns_sub_i32 {sr(T1)}, 172, {sr(T1)}')
    A(f'v_mov_b32 {vr(t + 3)}, {OOB}')
    for j in range(3):
        A(f'v_add_u32 {vr(t)}, {64 * j}, v0')
        A(f'v_mul_u32_u24 {vr(t + 1)}, 171, {vr(t)}')
        A(f'v_lshrrev_b32 {vr(t + 1)}, 11, {vr(t + 1)}')
        A(f'v_mul_u32_u24 {vr(t + 2)}, 12, {vr(t + 1)}')
        A(f'v_sub_u32 {vr(t)}, {vr(t)}, {vr(t + 2)}')
        A(f'v_cmp_gt_i32 vcc, {sr(T1)}, {vr(t)}')
        A(f'v_mul_u32_u24 {vr(t + 1)}, 2752, {vr(t + 1)}')
        A(f'v_lshl_add_u32 {vr(t + 1)}, {vr(t)}, 4, {vr(t + 1)}')
        if j:
            A(f'v_subrev_u32 {vr(t + 1)}, {1024 * j}, {vr(t + 1)}')
        A(f'v_add_u32 {vr(t + 1)}, {sr(T0)}, {vr(t + 1)}')
        A(f'v_cndmask_b32 {vr(vw + j)}, {vr(t + 3)}, {vr(t + 1)}, vcc')


def issue_a(A, b, vx, vb):
    sl = (b % 6) * SLOT
    A(f's_add_u32 m0, {sr(S_MB)}, {sl}')
    if b:
        A(f's_add_u32 {sr(S_OA)}, {sr(S_OA)}, 128')
    else:
        A(f's_mov_b32 {sr(S_OA)}, 0')
    for j in range(4):
        A.vmem(f'buffer_load_dwordx4 {vr(vx + j)}, {sr(R_X, 4)}, {sr(S_OA)} offen offset:{1024 * j} lds', f'blk{b}')
    A(f's_add_u32 m0, {sr(S_MB2)}, {sl + 16384}\ns_nop 0')
    for j in range(2):
        A.vmem(f'buffer_load_dwordx4 {vr(vb + j)}, {sr(R_B, 4)}, {sr(S_OA)} offen offset:{1024 * j} lds', f'blk{b}')


def issue_w(A, b, vw, smb):
    sl = (b % 6) * SLOT
    A(f's_add_u32 m0, {sr(smb)}, {sl}')
    A(f's_mov_b32 {sr(S_OW)}, {(b - 8) * 64 * 2752}')
    for j in range(3):
        A.vmem(f'buffer_load_dwordx4 {vr(vw + j)}, {sr(R_WG, 4)}, {sr(S_OW)} offen offset:{1024 * j} lds', f'blk{b}')
    A(f's_add_u32 m0, {sr(smb)}, {sl + 12288}\ns_nop 0')
    for j in range(3):
        A.vmem(f'buffer_load_dwordx4 {vr(vw + j)}, {sr(R_WU, 4)}, {sr(S_OW)} offen offset:{1024 * j} lds', f'blk{b}')


def spin(A, name, loads, check, cfg):
    A(f's_mov_b32 {sr(S_CNT)}, {cfg.spin}')
    A.label(f'L_{name}_chk')
    check()
    A(f's_cbranch_scc1 L_{name}_ok')
    A(f's_sub_u32 {sr(S_CNT)}, {sr(S_CNT)}, 1\ns_cmp_eq_u32 {sr(S_CNT)}, 0\ns_cbranch_scc1 L_{name}_ok')
    saved = list(A.vm)
    loads()
    A('s_waitcnt vmcnt(0)')
    A.vm = saved
    A(f's_branch L_{name}_chk')
    A.label(f'L_{name}_ok')


def mfma(A, d, a, b, first):
    A(f'v_mfma_f32_32x32x16_bf16 {vr(d, 16)}, {vr(a, 4)}, {vr(b, 4)}, {"0" if first else vr(d, 16)}')


def gen_entry(cfg):
    A = Stream()
    A('s_cmp_ge_u32 s2, 256\ns_cbranch_scc1 L_end')
    A('s_load_dwordx16 s[4:19], s[0:1], 0\ns_load_dwordx16 s[20:35], s[0:1], 64\ns_load_dwordx2 s[36:37], s[0:1], 128')
    if cfg.stamps:
        A('s_memrealtime s[88:89]')
    A('v_lshrrev_b32 v1, 6, v0\nv_and_b32 v0, 63, v0\nv_readfirstlane_b32 s3, v1')
    A('s_and_b32 s81, s2, 7\ns_lshr_b32 s82, s2, 3')
    if cfg.mapping == '48':
        A(f's_lshr_b32 {sr(S_RT)}, s81, 1\ns_lshl_b32 {sr(S_RT)}, {sr(S_RT)}, 2\ns_and_b32 s83, s82, 3\ns_add_u32 {sr(S_RT)}, {sr(S_RT)}, s83')
        A(f's_and_b32 {sr(S_CG)}, s81, 1\ns_lshl_b32 {sr(S_CG)}, {sr(S_CG)}, 3\ns_lshr_b32 s83, s82, 2\ns_add_u32 {sr(S_CG)}, {sr(S_CG)}, s83')
    else:
        A(f's_and_b32 {sr(S_RT)}, s81, 1\ns_lshl_b32 {sr(S_RT)}, {sr(S_RT)}, 3\ns_and_b32 s83, s82, 7\ns_add_u32 {sr(S_RT)}, {sr(S_RT)}, s83')
        A(f's_lshr_b32 {sr(S_CG)}, s81, 1\ns_lshl_b32 {sr(S_CG)}, {sr(S_CG)}, 2\ns_lshr_b32 s83, s82, 3\ns_add_u32 {sr(S_CG)}, {sr(S_CG)}, s83')
    A(f's_lshl_b32 {sr(S_M2)}, s81, 2\ns_lshr_b32 s83, s82, 3\ns_add_u32 {sr(S_M2)}, {sr(S_M2)}, s83\ns_and_b32 {sr(S_N2)}, s82, 7')
    A(f's_and_b32 {sr(S_W)}, s3, 3')
    A('s_cmp_ge_u32 s3, 4\ns_cbranch_scc1 L_p2')
    return A


def load_tag(A):
    if A.cfg.stamps:
        A('s_mov_b32 s89, s88')
    A(f's_add_u32 {sr(T2)}, s36, {GW}\ns_addc_u32 {sr(T3)}, s37, 0')
    A(f's_load_dword {sr(S_TAG)}, {sr(T2, 2)}, 0')


def consts(A):
    for k in range(1, 8):
        A(f's_mov_b32 {sr(S_K4 + k)}, {4096 * k}')


def gen_p1(cfg):
    A = WS(cfg, 7)
    TB = 1
    WB = 8
    ACC = 32
    XR = 128
    VX, VB, VW, AX, TMP = 32, 36, 38, 44, 48
    D = cfg.D
    if cfg.stamps:
        A('v_mov_b32 v7, 0')
    A.stamp('start')
    swz_consts(A, TMP, TMP + 1, TMP + 2, TMP + 3)
    A(f's_lshl_b32 {sr(T1)}, {sr(S_RT)}, 2\ns_add_u32 {sr(T1)}, {sr(T1)}, {sr(S_W)}\ns_lshl_b32 {sr(T1)}, {sr(T1)}, 15')
    A(f'v_lshrrev_b32 {vr(TMP + 3)}, 5, v0')
    A(f'v_and_b32 {vr(TMP + 4)}, 3, {vr(TMP)}')
    A(f'v_lshl_add_u32 {vr(TMP + 3)}, {vr(TMP + 3)}, 4, {vr(TMP + 4)}')
    A(f'v_lshl_add_u32 {vr(TMP + 3)}, {vr(TMP + 3)}, 10, {sr(T1)}')
    A(f'v_add_u32 {vr(VX)}, {vr(TMP + 3)}, {vr(TMP + 1)}')
    A(f'v_add_u32 {vr(VX + 1)}, {vr(TMP + 3)}, {vr(TMP + 2)}')
    A(f'v_add_u32 {vr(VX + 2)}, {2 * 3072}, {vr(VX)}')
    A(f'v_add_u32 {vr(VX + 3)}, {3 * 3072}, {vr(VX + 1)}')
    A(f'v_add_u32 {vr(VX + 1)}, 3072, {vr(VX + 1)}')
    A(f's_and_b32 {sr(T0)}, {sr(S_W)}, 1\ns_lshl_b32 {sr(T1)}, {sr(S_CG)}, 1\ns_add_u32 {sr(T1)}, {sr(T1)}, {sr(T0)}\ns_lshl_b32 {sr(T1)}, {sr(T1)}, 14')
    A(f'v_lshl_add_u32 {vr(TMP + 3)}, {vr(TMP)}, 10, {sr(T1)}')
    A(f'v_add_u32 {vr(VB)}, {vr(TMP + 3)}, {vr(TMP + 1)}')
    A(f'v_add_u32 {vr(VB + 1)}, {vr(TMP + 3)}, {vr(TMP + 2)}')
    A(f'v_add_u32 {vr(VB + 1)}, 7168, {vr(VB + 1)}')
    A(f's_lshl_b32 {sr(S_MB)}, {sr(S_W)}, 12\ns_lshl_b32 {sr(S_MB2)}, {sr(S_W)}, 11')
    A(f's_cmp_ge_u32 {sr(S_W)}, 2')
    A.wait_lg_all()
    A(f's_cselect_b32 {sr(R_B)}, s12, s10\ns_cselect_b32 {sr(R_B + 1)}, s13, s11\ns_mov_b32 {sr(R_B + 2)}, {512 * 1024}\ns_mov_b32 {sr(R_B + 3)}, 0x20000')
    srd(A, R_X, 4, 2048 * 1024)
    for b in range(D):
        issue_a(A, b, VX, VB)
        if b == 0:
            load_tag(A)
    A.stamp('issued0')
    srd(A, R_WG, 24, 512 * 2752)
    srd(A, R_WU, 26, 512 * 2752)
    srd(A, R_WS, 36, WS_SIZE)
    srd(A, R_E, 28, 1376 * 1024)
    srd(A, R_O, 32, 2048 * 2048)
    consts(A)
    wffn_voffs(A, VW, TMP)
    frag_addr(A, AX, TMP)
    for s in range(4):
        A(f'v_add_u32 {vr(AX + s)}, {sr(S_MB)}, {vr(AX + s)}')
    A(f'v_lshrrev_b32 {vr(TMP)}, 5, v0\nv_bfe_u32 {vr(TMP + 1)}, v0, 2, 2\nv_lshl_add_u32 {vr(TMP)}, {vr(TMP)}, 3, {vr(TMP + 1)}')
    A(f'v_mul_u32_u24 {vr(TMP)}, 192, {vr(TMP)}\nv_bfe_u32 {vr(TMP + 1)}, v0, 4, 1\nv_lshl_add_u32 {vr(TMP)}, {vr(TMP + 1)}, 5, {vr(TMP)}')
    A(f'v_and_b32 {vr(TMP + 1)}, 3, v0\nv_lshl_add_u32 {vr(TB)}, {vr(TMP + 1)}, 3, {vr(TMP)}')
    A(f'v_add_u32 {vr(TB + 1)}, {2 * SLOT}, {vr(TB)}\nv_add_u32 {vr(TB + 2)}, {4 * SLOT}, {vr(TB)}')
    A(f's_mul_i32 {sr(S_C1)}, {sr(S_W)}, 3072')
    A.wait_lg_all()
    A(f's_add_u32 {sr(S_TAG)}, {sr(S_TAG)}, 0x9E3779B1')
    for i in range(8):
        A.wait_vm(f'blk{i}')
        A.wait_lg_all()
        A('s_barrier')
        A.stamp(f'A{i}')
        if i in (2, 4):
            for s in range(4):
                A(f'v_add_u32 {vr(AX + s)}, {2 * SLOT}, {vr(AX + s)}')
        if i == 6:
            for s in range(4):
                A(f'v_subrev_u32 {vr(AX + s)}, {4 * SLOT}, {vr(AX + s)}')
        for s in range(4):
            A.ds(f'ds_read_b128 {vr(XR + 16 * i + 4 * s, 4)}, {vr(AX + s)} offset:{(i % 2) * SLOT}', 'x')
        b = i + D
        if b < 8:
            issue_a(A, b, VX, VB)
        else:
            issue_w(A, b, VW, S_C1)
    A.wait_lg_all()
    A(f's_cmp_eq_u32 {sr(S_CG)}, 15\ns_cbranch_scc1 L_p1_gate')
    vm_at_split = list(A.vm)
    if cfg.prio:
        A('s_setprio 1')

    def rd(n):
        b, s, j = n // 24, (n // 6) % 4, n % 6
        u, mat = j // 2, j % 2
        if n % 24 == 0:
            A.wait_vm(f'blk{8 + b}')
            A('s_barrier')
            if b in (0, 2, 4, 7):
                A.stamp(f'B{b}')
        slot = (8 + b) % 6
        for r in range(2):
            off = (slot % 2) * SLOT + mat * 12288 + s * 3072 + r * 768 + u * 64
            A.ds(f'ds_read_b64_tr_b16 {vr(WB + 4 * j + 2 * r, 2)}, {vr(TB + slot // 2)} offset:{off}', f'w{n}')
    for n in range(6):
        rd(n)
    for n in range(192):
        ks, j = n // 6, n % 6
        A.wait_lg(f'w{n}')
        mfma(A, ACC + 16 * j, WB + 4 * j, XR + 4 * ks, ks == 0)
        if n + 6 < 192:
            rd(n + 6)
    A('s_barrier')
    A.stamp('E')
    VST = 1
    A(f's_lshl_b32 {sr(T1)}, {sr(S_RT)}, 2\ns_add_u32 {sr(T1)}, {sr(T1)}, {sr(S_W)}\ns_mul_i32 {sr(T1)}, {sr(T1)}, {KSP}')
    A(f's_mul_i32 {sr(T0)}, {sr(S_CG)}, 6\ns_add_u32 {sr(T1)}, {sr(T1)}, {sr(T0)}\ns_add_u32 {sr(T1)}, {sr(T1)}, 64\ns_lshl_b32 {sr(T1)}, {sr(T1)}, 10')
    A(f'v_lshl_add_u32 {vr(VST)}, v0, 4, {sr(T1)}')
    A(f's_mov_b32 {sr(S_C0)}, {NLOG2E}\ns_mov_b32 {sr(S_C0 + 1)}, {NLOG2E}\ns_mov_b32 {sr(S_C1)}, 1.0\ns_mov_b32 {sr(S_C1 + 1)}, 1.0')
    for u in range(3):
        G, U, P = ACC + 32 * u, ACC + 32 * u + 16, XR + 8 * u
        for r in range(0, 16, 2):
            A(f'v_pk_mul_f32 {vr(U + r, 2)}, {vr(G + r, 2)}, {vr(U + r, 2)}')
        for r in range(0, 16, 2):
            A(f'v_pk_mul_f32 {vr(G + r, 2)}, {vr(G + r, 2)}, {sr(S_C0, 2)}')
        for r in range(16):
            A(f'v_exp_f32 {vr(G + r)}, {vr(G + r)}')
        for r in range(0, 16, 2):
            A(f'v_pk_add_f32 {vr(G + r, 2)}, {vr(G + r, 2)}, {sr(S_C1, 2)}')
        for r in range(16):
            A(f'v_rcp_f32 {vr(G + r)}, {vr(G + r)}')
        for r in range(0, 16, 2):
            A(f'v_pk_mul_f32 {vr(U + r, 2)}, {vr(G + r, 2)}, {vr(U + r, 2)}')
        for r in range(0, 16, 2):
            A(f'v_cvt_pk_bf16_f32 {vr(P + r // 2)}, {vr(U + r)}, {vr(U + r + 1)}')
        for j in range(2):
            n = 2 * u + j
            A.vmem(f'buffer_store_dwordx4 {vr(P + 4 * j, 4)}, {vr(VST)}, {sr(R_WS, 4)}, {k4(n // 4)} offen offset:{1024 * (n % 4)} sc1', 'gu')
    A.stamp('epi')
    A(f's_lshr_b32 {sr(T0)}, {sr(S_W)}, 1\ns_lshl_b32 {sr(T1)}, {sr(S_RT)}, 1\ns_add_u32 {sr(T1)}, {sr(T1)}, {sr(T0)}\ns_lshl_b32 {sr(T1)}, {sr(T1)}, 4')
    A(f's_add_u32 {sr(T1)}, {sr(T1)}, {sr(S_CG)}\ns_lshl_b32 {sr(T1)}, {sr(T1)}, 1\ns_and_b32 {sr(T0)}, {sr(S_W)}, 1\ns_add_u32 {sr(T1)}, {sr(T1)}, {sr(T0)}')
    A(f's_lshl_b32 {sr(T1)}, {sr(T1)}, 2\ns_add_u32 {sr(T1)}, {sr(T1)}, {GF}')
    A(f'v_mov_b32 v2, {sr(S_TAG)}\nv_mov_b32 v3, 0')
    A.wait_vm_all()
    A('s_mov_b64 exec, 1')
    A.vmem(f'buffer_store_dword v2, v3, {sr(R_WS, 4)}, {sr(T1)} offen sc1', 'fl')
    A('s_mov_b64 exec, -1')
    if cfg.prio:
        A('s_setprio 0')
    A.label('L_p1_join')
    A.stamp('guflag')
    VD, AW, VA, VP = 96, 1, 3, 5
    ACC2 = 32
    AB = 100
    TMP = 8
    A(f'v_lshrrev_b32 {vr(TMP)}, 3, v0\nv_bfe_u32 {vr(TMP + 1)}, v0, 4, 1\nv_lshlrev_b32 {vr(TMP + 1)}, 2, {vr(TMP + 1)}')
    A(f'v_and_b32 {vr(TMP + 2)}, 7, v0\nv_xor_b32 {vr(TMP + 1)}, {vr(TMP + 1)}, {vr(TMP + 2)}\nv_lshlrev_b32 {vr(TMP + 1)}, 4, {vr(TMP + 1)}')
    A(f'v_lshl_add_u32 {vr(TMP)}, {vr(TMP)}, 10, {vr(TMP + 1)}')
    A(f's_mul_i32 {sr(T0)}, {sr(S_W)}, {352 * 1024}\ns_lshl_b32 {sr(T1)}, {sr(S_N2)}, 7\ns_add_u32 {sr(T0)}, {sr(T0)}, {sr(T1)}')
    A(f'v_add_u32 {vr(VD)}, {sr(T0)}, {vr(TMP)}')
    for j in (1, 2, 3):
        A(f'v_add_u32 {vr(VD + j)}, {7168 * j}, {vr(VD)}')
    A(f's_mul_i32 {sr(S_MB)}, {sr(S_W)}, {SLOT}')

    def dma_wd(t):
        A(f's_add_u32 m0, {sr(S_MB)}, {(t % 12) * 2048}')
        if t == 20:
            A(f's_mov_b32 {sr(S_OW)}, 0')
            for j in range(4):
                A(f'v_add_u32 {vr(VD + j)}, {t * 16384}, {vr(VD + j)}')
        else:
            A(f's_mov_b32 {sr(S_OW)}, {t * 16384}')
        for j in range(4):
            A.vmem(f'buffer_load_dwordx4 {vr(VD + j)}, {sr(R_E, 4)}, {sr(S_OW)} offen offset:{1024 * j} lds', f'wd{t + j // 2}')
    for t in range(0, 12, 2):
        dma_wd(t)
    A(f'v_lshrrev_b32 {vr(TMP)}, 5, v0\nv_bfe_u32 {vr(TMP + 1)}, v0, 2, 2\nv_lshl_add_u32 {vr(TMP)}, {vr(TMP)}, 2, {vr(TMP + 1)}')
    A(f's_and_b32 {sr(T0)}, {sr(S_W)}, 1\nv_bfe_u32 {vr(TMP + 1)}, v0, 3, 1\nv_xor_b32 {vr(TMP + 1)}, {sr(T0)}, {vr(TMP + 1)}')
    A(f'v_lshlrev_b32 {vr(TMP + 1)}, 6, {vr(TMP + 1)}\nv_lshl_add_u32 {vr(TMP)}, {vr(TMP)}, 7, {vr(TMP + 1)}')
    A(f'v_bfe_u32 {vr(TMP + 1)}, v0, 4, 1\nv_lshl_add_u32 {vr(TMP)}, {vr(TMP + 1)}, 5, {vr(TMP)}')
    A(f'v_and_b32 {vr(TMP + 1)}, 3, v0\nv_lshl_add_u32 {vr(TMP)}, {vr(TMP + 1)}, 3, {vr(TMP)}')
    A(f'v_add_u32 {vr(AW)}, {sr(S_MB)}, {vr(TMP)}\nv_xor_b32 {vr(AW + 1)}, 64, {vr(AW)}')
    A(f's_lshr_b32 {sr(T0)}, {sr(S_W)}, 1\ns_lshl_b32 {sr(T1)}, {sr(S_M2)}, 1\ns_add_u32 {sr(T2)}, {sr(T1)}, {sr(T0)}\ns_xor_b32 {sr(T3)}, {sr(T2)}, 1')
    A(f's_mul_i32 {sr(T0)}, {sr(S_W)}, 22\ns_add_u32 {sr(T0)}, {sr(T0)}, 64')
    for ma, t in ((0, T2), (1, T3)):
        A(f's_mul_i32 {sr(t)}, {sr(t)}, {KSP}\ns_add_u32 {sr(t)}, {sr(t)}, {sr(T0)}\ns_lshl_b32 {sr(t)}, {sr(t)}, 10')
        A(f'v_lshl_add_u32 {vr(VA + ma)}, v0, 4, {sr(t)}')
    A(f's_mul_i32 {sr(T0)}, {sr(S_W)}, 11\ns_add_u32 {sr(T1)}, {sr(T0)}, 10\ns_mul_i32 {sr(T0)}, {sr(T0)}, 43\ns_lshr_b32 {sr(T0)}, {sr(T0)}, 7')
    A(f's_mul_i32 {sr(T1)}, {sr(T1)}, 43\ns_lshr_b32 {sr(T1)}, {sr(T1)}, 7\ns_lshl_b32 {sr(T0)}, {sr(T0)}, 1\ns_lshl_b32 {sr(T1)}, {sr(T1)}, 1\ns_add_u32 {sr(T1)}, {sr(T1)}, 1')
    A(f'v_add_u32 {vr(VP)}, {sr(T0)}, v0\nv_min_u32 {vr(VP)}, {sr(T1)}, {vr(VP)}')
    A(f's_lshl_b32 {sr(T0)}, {sr(S_M2)}, 7\ns_add_u32 {sr(T0)}, {sr(T0)}, {GF}')
    A(f'v_lshl_add_u32 {vr(VP)}, {vr(VP)}, 2, {sr(T0)}')

    def pl():
        A.vmem(f'buffer_load_dword v6, {vr(VP)}, {sr(R_WS, 4)}, 0 offen sc1', 'poll')

    def ck():
        A(f'v_cmp_eq_u32 vcc, {sr(S_TAG)}, v6\ns_cmp_eq_u64 vcc, -1')
    pl()
    A.wait_vm('poll')
    spin(A, 'gu', pl, ck, cfg)
    A.stamp('gupoll')
    NB = 19

    def ld_act(t):
        for ma in range(2):
            A.vmem(f'buffer_load_dwordx4 {vr(AB + 8 * (t % NB) + 4 * ma, 4)}, {vr(VA + ma)}, {sr(R_WS, 4)}, {k4(t // 4)} offen offset:{1024 * (t % 4)} sc1', f'act{t}')

    def rd_wd(t):
        A.wait_vm(f'wd{t}')
        for na in range(2):
            for r in range(2):
                A.ds(f'ds_read_b64_tr_b16 {vr(WB + 8 * (t % 3) + 4 * na + 2 * r, 2)}, {vr(AW + na)} offset:{(t % 12) * 2048 + r * 1024}', f'wf{t}')
    DF = cfg.DF
    for t in range(DF):
        ld_act(t)
    rd_wd(0)
    for t in range(22):
        if t + DF < 22:
            ld_act(t + DF)
        if t + 1 < 22:
            rd_wd(t + 1)
        if t == cfg.x1_at:
            A('s_barrier')
        A.wait_vm(f'act{t}')
        A.wait_lg(f'wf{t}')
        for ma in range(2):
            for na in range(2):
                mfma(A, ACC2 + 16 * (2 * ma + na), AB + 8 * (t % NB) + 4 * ma, WB + 8 * (t % 3) + 4 * na, t == 0)
        if t % 2 == 1 and t + 11 < 22:
            dma_wd(t + 11)
        if t in (0, 11):
            A.stamp(f'F{t}')
    A.stamp('Fend')
    A(f'v_lshl_add_u32 v1, v0, 4, {sr(S_MB)}')
    for a in (1, 2, 3):
        A(f's_xor_b32 {sr(T0)}, {sr(S_W)}, {a}\ns_mul_i32 {sr(T0)}, {sr(T0)}, {SLOT}')
        A(f'v_lshl_add_u32 {vr(1 + a)}, v0, 4, {sr(T0)}')
    A(f's_xor_b32 {sr(T0)}, {sr(S_W)}, 1\ns_lshl_b32 {sr(T0)}, {sr(T0)}, 12\ns_add_u32 {sr(T0)}, {sr(T0)}, {P2B}')
    A(f'v_lshl_add_u32 v5, v0, 4, {sr(T0)}')
    for a in (1, 2, 3):
        for j in range(4):
            A.ds(f'ds_write_b128 v1, {vr(ACC2 + 16 * a + 4 * j, 4)} offset:{(a - 1) * 4096 + j * 1024}')
    A(f's_lshl_b32 {sr(T0)}, {sr(S_W)}, 7\ns_add_u32 {sr(T0)}, {sr(T0)}, {X_OMG}')
    A(f'v_lshrrev_b32 v6, 5, v0\nv_lshl_add_u32 v6, v6, 6, {sr(T0)}')
    A(f's_lshr_b32 {sr(T0)}, {sr(S_W)}, 1\ns_lshl_b32 {sr(T1)}, {sr(S_M2)}, 1\ns_add_u32 {sr(T0)}, {sr(T0)}, {sr(T1)}\ns_lshl_b32 {sr(T0)}, {sr(T0)}, 16')
    A(f's_and_b32 {sr(T1)}, {sr(S_W)}, 1\ns_lshl_b32 {sr(T2)}, {sr(S_N2)}, 1\ns_add_u32 {sr(T1)}, {sr(T1)}, {sr(T2)}\ns_lshl_b32 {sr(T1)}, {sr(T1)}, 7\ns_add_u32 {sr(T0)}, {sr(T0)}, {sr(T1)}')
    A(f'v_lshrrev_b32 v8, 5, v0\nv_and_b32 v9, 31, v0\nv_lshlrev_b32 v9, 2, v9\nv_lshl_add_u32 v8, v8, 15, v9\nv_add_u32 v8, {sr(T0)}, v8')
    A.wait_lg_all()
    A('s_barrier')
    A.stamp('X2')
    PB = 100
    for j in range(4):
        for a in (1, 2, 3):
            A.ds(f'ds_read_b128 {vr(PB + 16 * (a - 1) + 4 * j, 4)}, {vr(1 + a)} offset:{(a - 1) * 4096 + j * 1024}', f'r{j}')
        A.ds(f'ds_read_b128 {vr(PB + 48 + 4 * j, 4)}, v5 offset:{j * 1024}', f'r{j}')
        A.ds(f'ds_read_b128 {vr(PB + 64 + 4 * j, 4)}, v6 offset:{j * 16}', f'r{j}')
    for j in range(4):
        A.wait_lg(f'r{j}')
        for r in range(4 * j, 4 * j + 4, 2):
            A(f'v_pk_add_f32 {vr(ACC2 + r, 2)}, {vr(ACC2 + r, 2)}, {vr(PB + r, 2)}')
            A(f'v_pk_add_f32 {vr(PB + 16 + r, 2)}, {vr(PB + 16 + r, 2)}, {vr(PB + 32 + r, 2)}')
        for r in range(4 * j, 4 * j + 4, 2):
            A(f'v_pk_add_f32 {vr(ACC2 + r, 2)}, {vr(ACC2 + r, 2)}, {vr(PB + 16 + r, 2)}')
        for r in range(4 * j, 4 * j + 4, 2):
            A(f'v_pk_fma_f32 {vr(ACC2 + r, 2)}, {vr(ACC2 + r, 2)}, {vr(PB + 64 + r, 2)}, {vr(PB + 48 + r, 2)}')
        for r in range(4 * j, 4 * j + 4):
            A.vmem(f'buffer_store_dword {vr(ACC2 + r)}, v8, {sr(R_O, 4)}, {k4(r // 2)} offen offset:{2048 * (r % 2)} {cfg.out_flags}')
    A.stamp('stored')
    if cfg.stamps:
        A.wait_vm_all()
        A.stamp('done')
    A.dump_stamps(0)
    A('s_endpgm')

    A.label('L_p1_gate')
    A.vm = vm_at_split
    A.wait_vm_all()
    A('s_barrier')
    A('v_lshrrev_b32 v1, 5, v0\nv_lshlrev_b32 v1, 4, v1')
    for a in range(4):
        A(f'v_mov_b32 {vr(8 + a)}, 0')
    for half in range(2):
        for s in range(16):
            A.vmem(f'global_load_dwordx4 {vr(32 + 4 * s, 4)}, v1, s[30:31] offset:{32 * (16 * half + s)}')
        A.wait_vm_all()
        for s in range(16):
            for e in range(4):
                A(f'v_dot2c_f32_bf16 {vr(8 + e)}, {vr(XR + 4 * (16 * half + s) + e)}, {vr(32 + 4 * s + e)}')
    A('s_nop 2')
    A('v_add_f32 v8, v8, v9\nv_add_f32 v10, v10, v11\nv_add_f32 v8, v8, v10\nv_mov_b32 v9, v8\ns_nop 1')
    A('v_permlane32_swap_b32 v8, v9\nv_add_f32 v8, v8, v9')
    A('v_cvt_pk_bf16_f32 v8, v8, v8\nv_lshlrev_b32 v8, 16, v8')
    A(f'v_mul_f32 v8, {NLOG2E}, v8\nv_exp_f32 v8, v8\ns_nop 0\nv_add_f32 v8, 1.0, v8\nv_rcp_f32 v8, v8\ns_nop 0')
    A(f'v_cvt_pk_bf16_f32 v8, v8, v8\nv_lshlrev_b32 v8, 16, v8\nv_mov_b32 v9, {sr(S_TAG)}')
    A('v_bfe_u32 v10, v0, 2, 1\nv_bfe_u32 v11, v0, 3, 2\nv_and_b32 v12, 3, v0\nv_lshl_add_u32 v11, v11, 2, v12\nv_lshl_add_u32 v10, v10, 4, v11')
    A(f's_lshl_b32 {sr(T1)}, {sr(S_RT)}, 2\ns_add_u32 {sr(T1)}, {sr(T1)}, {sr(S_W)}\ns_lshl_b32 {sr(T1)}, {sr(T1)}, 8\ns_add_u32 {sr(T1)}, {sr(T1)}, {GAT}')
    A(f'v_lshlrev_b32 v10, 3, v10')
    A('s_mov_b32 exec_hi, 0')
    A(f'buffer_store_dwordx2 v[8:9], v10, {sr(R_WS, 4)}, {sr(T1)} offen sc1')
    A('s_mov_b64 exec, -1')
    for b in range(8):
        A('s_barrier')
    A('s_branch L_p1_join')
    return A


def gen_p2(cfg):
    A = WS(cfg, 31)
    D = cfg.D
    LR, LI, L16R, L16I, L32R, L32I, KR, KI = 1, 2, 3, 4, 5, 6, 7, 8
    WQ = 9
    WSR, WSI, LCR, LCI = 13, 14, 15, 16
    VW = 17
    VC = 20
    AC = 24
    VPQ = 28
    VEX = 30
    U, V = 32, 48
    XF, BF = 64, 80
    TMP = 112
    AX = 128
    CR = 128
    A.label('L_p2')
    if cfg.stamps:
        A('v_mov_b32 v31, 0')
    A.stamp('start')
    if cfg.code_pf:
        A(f's_and_b32 s83, s82, 3\ns_cmp_lg_u32 s83, {sr(S_W)}\ns_cbranch_scc1 L_nopf')
        A('s_getpc_b64 s[84:85]')
        A.label('L_pc')
        A(f's_sub_u32 s84, s84, L_pc-{K}\ns_subb_u32 s85, s85, 0')
        A(f's_lshl_b32 s83, s83, 13\nv_lshl_add_u32 v1, v0, 7, s83')
        A(f'v_min_u32 v1, L_codeend-{K}-4, v1')
        A('global_load_dword v2, v1, s[84:85]')
        A.label('L_nopf')
    A(f's_lshl_b32 {sr(T1)}, {sr(S_CG)}, 6')
    A(f'v_and_b32 {vr(TMP)}, 31, v0\nv_lshl_add_u32 {vr(TMP)}, {vr(TMP)}, 1, {sr(T1)}')
    A.wait_lg_all()
    A.vmem(f'global_load_ushort {vr(TMP + 1)}, {vr(TMP)}, s[6:7]')
    A.vmem(f'global_load_ushort {vr(TMP + 2)}, {vr(TMP)}, s[8:9]')
    A.vmem(f'global_load_ushort {vr(TMP + 3)}, {vr(TMP)}, s[18:19]')
    load_tag(A)
    srd(A, R_WG, 24, 512 * 2752)
    srd(A, R_WU, 26, 512 * 2752)
    srd(A, R_WS, 36, WS_SIZE)
    srd(A, R_X, 4, 2048 * 1024)
    srd(A, R_B, 14, 512 * 1024)
    srd(A, R_E, 16, 512 * 1024)
    consts(A)
    wffn_voffs(A, VW, TMP + 4)
    frag_addr(A, AC, TMP + 4)
    A(f's_lshl_b32 {sr(S_MB)}, {sr(S_W)}, 12')
    for s in range(4):
        A(f'v_add_u32 {vr(AX + s)}, {sr(S_MB)}, {vr(AC + s)}')
    A(f's_mul_i32 {sr(S_MB2)}, {sr(S_W)}, 3072')
    swz_consts(A, TMP + 4, TMP + 5, TMP + 6, TMP + 7)
    A(f's_lshl_b32 {sr(T0)}, {sr(S_N2)}, 16\ns_lshl_b32 {sr(T1)}, {sr(S_W)}, 8\ns_add_u32 {sr(T0)}, {sr(T0)}, {sr(T1)}')
    A(f'v_lshl_add_u32 {vr(TMP + 4)}, {vr(TMP + 4)}, 10, {sr(T0)}')
    A(f'v_add_u32 {vr(VC)}, {vr(TMP + 4)}, {vr(TMP + 5)}\nv_add_u32 {vr(VC + 1)}, {vr(TMP + 4)}, {vr(TMP + 6)}')
    A(f'v_add_u32 {vr(VC + 2)}, {2 * 7168}, {vr(VC)}\nv_add_u32 {vr(VC + 3)}, {3 * 7168}, {vr(VC + 1)}\nv_add_u32 {vr(VC + 1)}, 7168, {vr(VC + 1)}')
    A(f'v_and_b32 {vr(VEX)}, 31, v0\nv_lshlrev_b32 {vr(VEX)}, 3, {vr(VEX)}\nv_add_u32 {vr(VEX)}, {X_EX}, {vr(VEX)}')
    N0, N1, NS = TMP + 4, TMP + 5, TMP + 6
    A(f's_lshl_b32 {sr(T0)}, {sr(S_W)}, 2\ns_lshl_b32 {sr(T1)}, {sr(S_CG)}, 13\ns_add_u32 {sr(T1)}, {sr(T1)}, {AGG}')
    A(f'v_lshrrev_b32 {vr(TMP + 7)}, 5, v0\nv_and_b32 {vr(TMP + 8)}, 31, v0\nv_lshl_add_u32 {vr(TMP + 8)}, {vr(TMP + 8)}, 4, {sr(T1)}')
    A(f'v_mov_b32 {vr(TMP + 10)}, {OOB}')
    for j in range(2):
        A(f'v_add_u32 {vr(TMP + 9)}, {sr(T0)}, {vr(TMP + 7)}')
        if j:
            A(f'v_add_u32 {vr(TMP + 9)}, 2, {vr(TMP + 9)}')
        A(f'v_cmp_gt_u32 vcc, {sr(S_RT)}, {vr(TMP + 9)}')
        A(f'v_lshl_add_u32 {vr(VPQ + j)}, {vr(TMP + 9)}, 9, {vr(TMP + 8)}')
        A(f'v_sub_u32 {vr(N0 + j)}, {sr(S_RT)}, {vr(TMP + 9)}')
        A(f'v_cndmask_b32 {vr(VPQ + j)}, {vr(TMP + 10)}, {vr(VPQ + j)}, vcc')
        A(f'v_add_u32 {vr(N0 + j)}, -1, {vr(N0 + j)}\nv_max_i32 {vr(N0 + j)}, 0, {vr(N0 + j)}\nv_lshlrev_b32 {vr(N0 + j)}, 7, {vr(N0 + j)}\nv_cvt_f32_i32 {vr(N0 + j)}, {vr(N0 + j)}')
    A(f's_lshl_b32 {sr(T0)}, {sr(S_W)}, 5\nv_lshl_add_u32 {vr(NS)}, {vr(TMP + 7)}, 4, {sr(T0)}\nv_cvt_f32_i32 {vr(NS)}, {vr(NS)}')
    A.wait_vm_all()
    LRE, LIM, DT, A2, BR = TMP + 1, TMP + 2, TMP + 3, TMP + 7, TMP + 8
    t0, t1, t2 = TMP + 9, TMP + 10, TMP + 11
    for r in (LRE, LIM, DT):
        A(f'v_lshlrev_b32 {vr(r)}, 16, {vr(r)}')
    A(f'v_mul_f32 {vr(DT)}, {LOG2E}, {vr(DT)}\nv_exp_f32 {vr(DT)}, {vr(DT)}\ns_nop 0')
    A(f'v_cvt_pk_bf16_f32 {vr(DT)}, {vr(DT)}, {vr(DT)}\nv_lshlrev_b32 {vr(DT)}, 16, {vr(DT)}')
    A(f'v_mul_f32 {vr(A2)}, {vr(DT)}, {vr(LRE)}\nv_mul_f32 {vr(BR)}, {vr(DT)}, {vr(LIM)}')
    A(f'v_mul_f32 {vr(A2)}, {LOG2E}, {vr(A2)}\nv_mul_f32 {vr(BR)}, {INV2PI}, {vr(BR)}')

    def cpow(dr, di, n):
        A(f'v_mul_f32 {vr(t0)}, {n}, {vr(A2)}\nv_mul_f32 {vr(t1)}, {n}, {vr(BR)}')
        A(f'v_exp_f32 {vr(t0)}, {vr(t0)}\nv_fract_f32 {vr(t1)}, {vr(t1)}')
        A(f'v_cos_f32 {vr(dr)}, {vr(t1)}\nv_sin_f32 {vr(di)}, {vr(t1)}')
        A(f'v_mul_f32 {vr(dr)}, {vr(t0)}, {vr(dr)}\nv_mul_f32 {vr(di)}, {vr(t0)}, {vr(di)}')
    cpow(LR, LI, '1.0')
    cpow(L16R, L16I, '0x41800000')
    cpow(L32R, L32I, '0x42000000')
    cpow(WQ, WQ + 1, vr(N0))
    cpow(WQ + 2, WQ + 3, vr(N1))
    cpow(WSR, WSI, vr(NS))
    A(f'v_mul_f32 {vr(t0)}, {vr(LRE)}, {vr(LRE)}\nv_fmac_f32 {vr(t0)}, {vr(LIM)}, {vr(LIM)}\nv_rcp_f32 {vr(t0)}, {vr(t0)}')
    A(f'v_add_f32 {vr(t1)}, -1.0, {vr(LR)}\nv_add_f32 {vr(t0)}, {vr(t0)}, {vr(t0)}')
    A(f'v_mul_f32 {vr(KR)}, {vr(t1)}, {vr(LRE)}\nv_fmac_f32 {vr(KR)}, {vr(LI)}, {vr(LIM)}')
    A(f'v_mul_f32 {vr(KI)}, {vr(LI)}, {vr(LRE)}\nv_fma_f32 {vr(KI)}, -{vr(t1)}, {vr(LIM)}, {vr(KI)}')
    A(f'v_mul_f32 {vr(KR)}, {vr(t0)}, {vr(KR)}\nv_mul_f32 {vr(KI)}, {vr(t0)}, {vr(KI)}')
    A.wait_lg_all()
    A(f's_add_u32 {sr(S_TAG)}, {sr(S_TAG)}, 0x9E3779B1')
    A.stamp('setup')
    for i in range(8):
        A('s_barrier')
        if i in (2, 4):
            for s in range(4):
                A(f'v_add_u32 {vr(AX + s)}, {2 * SLOT}, {vr(AX + s)}\nv_add_u32 {vr(AC + s)}, {2 * SLOT}, {vr(AC + s)}')
        if i == 6:
            for s in range(4):
                A(f'v_subrev_u32 {vr(AX + s)}, {4 * SLOT}, {vr(AX + s)}\nv_subrev_u32 {vr(AC + s)}, {4 * SLOT}, {vr(AC + s)}')
        so = (i % 2) * SLOT
        for s in range(4):
            A.ds(f'ds_read_b128 {vr(XF + 4 * s, 4)}, {vr(AX + s)} offset:{so}', f'a{s}')
            A.ds(f'ds_read_b128 {vr(BF + 8 * s, 4)}, {vr(AC + s)} offset:{so + 16384}', f'a{s}')
            A.ds(f'ds_read_b128 {vr(BF + 8 * s + 4, 4)}, {vr(AC + s)} offset:{so + 20480}', f'b{s}')
        for s in range(4):
            A.wait_lg(f'a{s}')
            mfma(A, U, XF + 4 * s, BF + 8 * s, i == 0 and s == 0)
            A.wait_lg(f'b{s}')
            mfma(A, V, XF + 4 * s, BF + 8 * s + 4, i == 0 and s == 0)
    A.flush()
    A.stamp('Aend')
    A(f's_add_u32 {sr(S_MB)}, {sr(S_MB)}, {P2B}')
    for s in range(4):
        A(f'v_add_u32 {vr(AC + s)}, {sr(S_MB)}, {vr(AC + s)}')
    A(f's_lshl_b32 {sr(T0)}, {sr(S_W)}, 8\nv_add_u32 {vr(TMP + 8)}, {sr(T0)}, {vr(VEX)}')
    A('s_nop 4')

    def cfma(dr, di, ar, ai, br, bi, cr, ci):
        A(f'v_fma_f32 {vr(dr)}, {vr(ar)}, {vr(br)}, {vr(cr)}\nv_fma_f32 {vr(di)}, {vr(ar)}, {vr(bi)}, {vr(ci)}')
        A(f'v_fma_f32 {vr(dr)}, -{vr(ai)}, {vr(bi)}, {vr(dr)}\nv_fma_f32 {vr(di)}, {vr(ai)}, {vr(br)}, {vr(di)}')
    pr, pi = U, V
    for r in range(1, 16):
        dr, di = TMP + 2 * (r % 2), TMP + 2 * (r % 2) + 1
        cfma(dr, di, LR, LI, pr, pi, U + r, V + r)
        pr, pi = dr, di
    E0R, E0I, E1R, E1I = TMP + 2, TMP + 3, TMP + 4, TMP + 5
    assert (pr, pi) == (E0R, E0I)
    A(f'v_mov_b32 {vr(E1R)}, {vr(E0R)}\nv_mov_b32 {vr(E1I)}, {vr(E0I)}\ns_nop 1')
    A(f'v_permlane32_swap_b32 {vr(E0R)}, {vr(E1R)}\nv_permlane32_swap_b32 {vr(E0I)}, {vr(E1I)}')
    cfma(TMP + 6, TMP + 7, L16R, L16I, E0R, E0I, E1R, E1I)
    A.ds(f'ds_write_b64 {vr(TMP + 8)}, {vr(TMP + 6, 2)}')
    A.wait_lg_all()
    A.stamp('pass1')
    A('s_barrier')
    EW = XF
    for w in range(4):
        A.ds(f'ds_read_b64 {vr(EW + 2 * w, 2)}, {vr(VEX)} offset:{256 * w}')
    A(f's_lshl_b32 {sr(T0)}, {sr(S_CG)}, 4\ns_add_u32 {sr(T0)}, {sr(T0)}, {sr(S_RT)}\ns_lshl_b32 {sr(T0)}, {sr(T0)}, 9\ns_add_u32 {sr(T0)}, {sr(T0)}, {AGG}')
    A(f's_cmp_eq_u32 {sr(S_W)}, 0\ns_cselect_b32 {sr(T0)}, {sr(T0)}, {OOB}')
    A(f'v_lshl_add_u32 {vr(TMP + 9)}, v0, 4, {sr(T0)}')
    PA = XF + 8
    GR = XF + 12
    A(f'v_mov_b32 {vr(GR + 1)}, {sr(S_TAG)}\nv_mov_b32 {vr(GR + 3)}, {sr(S_TAG)}')
    A.wait_lg_all()
    cfma(PA, PA + 1, L32R, L32I, EW, EW + 1, EW + 2, EW + 3)
    cfma(PA + 2, PA + 3, L32R, L32I, PA, PA + 1, EW + 4, EW + 5)
    cfma(GR, GR + 2, L32R, L32I, PA + 2, PA + 3, EW + 6, EW + 7)
    A('s_mov_b32 exec_hi, 0')
    A.vmem(f'buffer_store_dwordx4 {vr(GR, 4)}, {vr(TMP + 9)}, {sr(R_WS, 4)}, 0 offen sc1')
    A('s_mov_b64 exec, -1')
    A.stamp('pub')
    issue_w(A, 8 + D, VW, S_MB2)
    PW = TMP + 10
    A(f'v_mov_b32 {vr(PW)}, 0\nv_mov_b32 {vr(PW + 1)}, 0')
    for w, src in ((1, EW), (2, PA), (3, PA + 2)):
        A(f's_cmp_eq_u32 {sr(S_W)}, {w}\ns_cselect_b64 vcc, -1, 0')
        A(f'v_cndmask_b32 {vr(PW)}, {vr(PW)}, {vr(src)}, vcc\nv_cndmask_b32 {vr(PW + 1)}, {vr(PW + 1)}, {vr(src + 1)}, vcc')
    cfma(LCR, LCI, L16R, L16I, PW, PW + 1, E0R, E0I)
    A('s_mov_b32 vcc_lo, -1\ns_mov_b32 vcc_hi, 0')
    A(f'v_cndmask_b32 {vr(LCR)}, {vr(LCR)}, {vr(PW)}, vcc\nv_cndmask_b32 {vr(LCI)}, {vr(LCI)}, {vr(PW + 1)}, vcc')

    def scale(rs):
        for r in rs:
            A(f'v_mul_f32 {vr(TMP)}, {vr(KI)}, {vr(V + r)}\nv_mul_f32 {vr(V + r)}, {vr(KR)}, {vr(V + r)}')
            A(f'v_fmac_f32 {vr(V + r)}, {vr(KI)}, {vr(U + r)}\nv_fma_f32 {vr(U + r)}, {vr(KR)}, {vr(U + r)}, -{vr(TMP)}')
    PQ = XF

    def pl_agg():
        for j in range(2):
            A.vmem(f'buffer_load_dwordx4 {vr(PQ + 4 * j, 4)}, {vr(VPQ + j)}, {sr(R_WS, 4)}, 0 offen sc1', 'pagg')

    def ck_agg():
        for j in range(2):
            A(f'v_cmp_eq_u32 {sr(S_C0, 2)}, {sr(S_TAG)}, {vr(PQ + 4 * j + 1)}\nv_cmp_eq_u32 {sr(S_C1, 2)}, {sr(S_TAG)}, {vr(PQ + 4 * j + 3)}')
            A(f'v_cmp_eq_u32 vcc, {OOB}, {vr(VPQ + j)}')
            A(f's_and_b64 {sr(S_C0, 2)}, {sr(S_C0, 2)}, {sr(S_C1, 2)}\ns_or_b64 {sr(S_C0, 2)}, {sr(S_C0, 2)}, vcc')
            if j == 0:
                A(f's_mov_b64 {sr(T2, 2)}, {sr(S_C0, 2)}')
        A(f's_and_b64 {sr(S_C0, 2)}, {sr(S_C0, 2)}, {sr(T2, 2)}\ns_cmp_eq_u64 {sr(S_C0, 2)}, -1')
    for e in range(9, 13):
        A.wait_vm(f'blk{e}')
        A('s_barrier')
        if e + D <= 15:
            issue_w(A, e + D, VW, S_MB2)
        if e == 9:
            scale(range(16))
        if e == 10:
            pl_agg()
    for b in range(13 + D, 16):
        raise AssertionError('D too small for this schedule')
    A.wait_vm('pagg')
    spin(A, 'agg', pl_agg, ck_agg, cfg)
    A.stamp('aggok')
    Q = TMP
    A(f'v_mul_f32 {vr(Q)}, {vr(WQ)}, {vr(PQ)}\nv_mul_f32 {vr(Q + 1)}, {vr(WQ)}, {vr(PQ + 2)}')
    A(f'v_fma_f32 {vr(Q)}, -{vr(WQ + 1)}, {vr(PQ + 2)}, {vr(Q)}\nv_fmac_f32 {vr(Q + 1)}, {vr(WQ + 1)}, {vr(PQ)}')
    cfma(Q, Q + 1, WQ + 2, WQ + 3, PQ + 4, PQ + 6, Q, Q + 1)
    A(f'v_mov_b32 {vr(Q + 2)}, {vr(Q)}\nv_mov_b32 {vr(Q + 3)}, {vr(Q + 1)}\ns_nop 1')
    A(f'v_permlane32_swap_b32 {vr(Q)}, {vr(Q + 2)}\nv_permlane32_swap_b32 {vr(Q + 1)}, {vr(Q + 3)}')
    A(f'v_add_f32 {vr(Q)}, {vr(Q)}, {vr(Q + 2)}\nv_add_f32 {vr(Q + 1)}, {vr(Q + 1)}, {vr(Q + 3)}')
    A.ds(f'ds_write_b64 {vr(TMP + 8)}, {vr(Q, 2)} offset:1024')
    A.wait_vm('blk13')
    A.wait_lg_all()
    A('s_barrier')
    A.stamp('B5')
    for w in range(4):
        A.ds(f'ds_read_b64 {vr(EW + 2 * w, 2)}, {vr(VEX)} offset:{1024 + 256 * w}')
    AWR, ARD, VST = TMP + 4, TMP + 5, TMP + 6
    A(f's_lshl_b32 {sr(T0)}, {sr(S_W)}, 11\ns_add_u32 {sr(T0)}, {sr(T0)}, {X_TR}')
    A(f'v_and_b32 {vr(AWR)}, 31, v0\nv_lshrrev_b32 {vr(TMP)}, 5, v0\nv_lshl_add_u32 {vr(AWR)}, {vr(AWR)}, 1, {vr(TMP)}\nv_lshl_add_u32 {vr(AWR)}, {vr(AWR)}, 5, {sr(T0)}')
    A(f'v_bfe_u32 {vr(TMP + 1)}, v0, 2, 2\nv_lshl_add_u32 {vr(TMP)}, {vr(TMP)}, 3, {vr(TMP + 1)}\nv_lshl_add_u32 {vr(ARD)}, {vr(TMP)}, 6, {sr(T0)}')
    A(f'v_and_b32 {vr(TMP)}, 1, v0\nv_lshl_add_u32 {vr(ARD)}, {vr(TMP)}, 5, {vr(ARD)}')
    A(f'v_bfe_u32 {vr(TMP)}, v0, 4, 1\nv_lshl_add_u32 {vr(ARD)}, {vr(TMP)}, 4, {vr(ARD)}\nv_bfe_u32 {vr(TMP)}, v0, 1, 1\nv_lshl_add_u32 {vr(ARD)}, {vr(TMP)}, 3, {vr(ARD)}')
    A(f's_lshl_b32 {sr(T1)}, {sr(S_RT)}, 2\ns_add_u32 {sr(T1)}, {sr(T1)}, {sr(S_W)}\ns_mul_i32 {sr(T1)}, {sr(T1)}, {KSP}')
    A(f's_lshl_b32 {sr(T0)}, {sr(S_CG)}, 2\ns_add_u32 {sr(T1)}, {sr(T1)}, {sr(T0)}\ns_lshl_b32 {sr(T1)}, {sr(T1)}, 10')
    A(f'v_lshl_add_u32 {vr(VST)}, v0, 4, {sr(T1)}')
    A.wait_lg_all()
    A(f'v_pk_add_f32 {vr(EW, 2)}, {vr(EW, 2)}, {vr(EW + 2, 2)}\nv_pk_add_f32 {vr(EW + 4, 2)}, {vr(EW + 4, 2)}, {vr(EW + 6, 2)}\nv_pk_add_f32 {vr(EW, 2)}, {vr(EW, 2)}, {vr(EW + 4, 2)}')
    cfma(LCR, LCI, WSR, WSI, EW, EW + 1, LCR, LCI)
    A(f'v_mul_f32 {vr(TMP)}, {vr(KR)}, {vr(LCR)}\nv_mul_f32 {vr(TMP + 1)}, {vr(KR)}, {vr(LCI)}')
    A(f'v_fma_f32 {vr(TMP)}, -{vr(KI)}, {vr(LCI)}, {vr(TMP)}\nv_fmac_f32 {vr(TMP + 1)}, {vr(KI)}, {vr(LCR)}')
    pr, pi = TMP, TMP + 1
    PK = XF
    for r in range(16):
        cfma(U + r, V + r, LR, LI, pr, pi, U + r, V + r)
        pr, pi = U + r, V + r
        if r % 2:
            A(f'v_cvt_pk_bf16_f32 {vr(PK + r // 2)}, {vr(U + r - 1)}, {vr(U + r)}')
            A(f'v_cvt_pk_bf16_f32 {vr(PK + 8 + r // 2)}, -{vr(V + r - 1)}, -{vr(V + r)}')
    HFR = BF
    for part in range(2):
        for j in range(2):
            A.ds(f'ds_write_b128 {vr(AWR)}, {vr(PK + 8 * part + 4 * j, 4)} offset:{16 * j}')
        for cj in range(2):
            for rd in range(2):
                A.ds(f'ds_read_b64_tr_b16 {vr(HFR + 8 * part + 4 * cj + 2 * rd, 2)}, {vr(ARD)} offset:{(16 * cj + 4 * rd) * 64}', f'h{part}{cj}')
    for part in range(2):
        for cj in range(2):
            A.wait_lg(f'h{part}{cj}')
            A.vmem(f'buffer_store_dwordx4 {vr(HFR + 8 * part + 4 * cj, 4)}, {vr(VST)}, {sr(R_WS, 4)}, 0 offen offset:{1024 * (2 * part + cj)} sc1', 'h')
    A.flush()
    A.stamp('hst')
    A(f's_and_b32 {sr(T0)}, {sr(S_W)}, 1\ns_lshl_b32 {sr(S_C0)}, {sr(T0)}, 15\ns_xor_b32 {sr(S_C0 + 1)}, {sr(S_C0)}, 0x8000')

    def dma_c(pc):
        blk, part, na = pc >> 2, (pc >> 1) & 1, pc & 1
        A(f's_add_u32 m0, {sr(S_MB)}, {(pc % 3) * 16384}')
        A(f's_add_u32 {sr(S_OA)}, {sr(S_C0 + na)}, {blk * 128}')
        for j in range(4):
            A.vmem(f'buffer_load_dwordx4 {vr(VC + j)}, {sr(R_E if part else R_B, 4)}, {sr(S_OA)} offen offset:{1024 * j} lds', f'c{pc}')

    def creg(t, na):
        return CR + 8 * t + 4 * na

    def mov_c(pc):
        na = pc & 1
        A.wait_vm(f'c{pc}')
        for s in range(4):
            A.ds(f'ds_read_b128 {vr(creg((pc >> 1) * 4 + s, na), 4)}, {vr(AC + s)} offset:{(pc % 3) * 16384}', f'mc{pc}')
        if pc + 3 < 8:
            A.wait_lg_all()
            dma_c(pc + 3)
    dma_c(0)
    dma_c(1)
    A.wait_vm('blk14')
    A('s_barrier')
    dma_c(2)
    A(f's_lshr_b32 {sr(T0)}, {sr(S_W)}, 1\ns_lshl_b32 {sr(T1)}, {sr(S_RT)}, 1\ns_add_u32 {sr(T1)}, {sr(T1)}, {sr(T0)}\ns_lshl_b32 {sr(T1)}, {sr(T1)}, 4')
    A(f's_add_u32 {sr(T1)}, {sr(T1)}, {sr(S_CG)}\ns_lshl_b32 {sr(T1)}, {sr(T1)}, 1\ns_and_b32 {sr(T0)}, {sr(S_W)}, 1\ns_add_u32 {sr(T1)}, {sr(T1)}, {sr(T0)}')
    A(f's_lshl_b32 {sr(T1)}, {sr(T1)}, 2\ns_add_u32 {sr(T1)}, {sr(T1)}, {HF}')
    A(f'v_mov_b32 {vr(TMP)}, {sr(S_TAG)}\nv_mov_b32 {vr(TMP + 1)}, 0')
    A.wait_vm('blk15')
    A('s_barrier')
    A.wait_vm('h')
    A('s_mov_b64 exec, 1')
    A.vmem(f'buffer_store_dword {vr(TMP)}, {vr(TMP + 1)}, {sr(R_WS, 4)}, {sr(T1)} offen sc1', 'fl')
    A('s_mov_b64 exec, -1')
    A.stamp('hflag')
    VA, VP, VG, VXS, PD, PG, DS = 1, 3, 4, 5, 6, 8, 10
    A(f's_lshr_b32 {sr(T0)}, {sr(S_W)}, 1\ns_lshl_b32 {sr(T1)}, {sr(S_M2)}, 1\ns_add_u32 {sr(T2)}, {sr(T1)}, {sr(T0)}\ns_xor_b32 {sr(T3)}, {sr(T2)}, 1')
    A(f's_lshl_b32 {sr(T1)}, {sr(T2)}, 8\ns_add_u32 {sr(T1)}, {sr(T1)}, {GAT}\nv_and_b32 {vr(VG)}, 31, v0\nv_lshl_add_u32 {vr(VG)}, {vr(VG)}, 3, {sr(T1)}')
    A(f's_and_b32 {sr(T0)}, {sr(S_W)}, 1\ns_lshl_b32 {sr(T1)}, {sr(S_N2)}, 1\ns_add_u32 {sr(T0)}, {sr(T0)}, {sr(T1)}\ns_lshl_b32 {sr(T0)}, {sr(T0)}, 6')
    A(f'v_and_b32 {vr(DS)}, 31, v0\nv_lshl_add_u32 {vr(DS)}, {vr(DS)}, 1, {sr(T0)}')
    A(f's_lshl_b32 {sr(T1)}, {sr(T2)}, 15\nv_lshrrev_b32 {vr(VXS)}, 5, v0\nv_lshl_add_u32 {vr(VXS)}, {vr(VXS)}, 14, {vr(DS)}\nv_add_u32 {vr(VXS)}, {sr(T1)}, {vr(VXS)}')
    A(f's_lshl_b32 {sr(T0)}, {sr(S_W)}, 4')
    for ma, t in ((0, T2), (1, T3)):
        A(f's_mul_i32 {sr(t)}, {sr(t)}, {KSP}\ns_add_u32 {sr(t)}, {sr(t)}, {sr(T0)}\ns_lshl_b32 {sr(t)}, {sr(t)}, 10')
        A(f'v_lshl_add_u32 {vr(VA + ma)}, v0, 4, {sr(t)}')
    A(f's_lshl_b32 {sr(T0)}, {sr(S_M2)}, 7\ns_lshl_b32 {sr(T1)}, {sr(S_W)}, 5\ns_add_u32 {sr(T0)}, {sr(T0)}, {sr(T1)}\ns_add_u32 {sr(T0)}, {sr(T0)}, {HF}')
    A(f'v_and_b32 {vr(VP)}, 7, v0\nv_lshl_add_u32 {vr(VP)}, {vr(VP)}, 2, {sr(T0)}')
    mov_c(0)
    mov_c(1)
    A('s_barrier')
    if cfg.prio:
        A('s_setprio 2')

    def pl_h():
        A.vmem(f'buffer_load_dword {vr(PD)}, {vr(VP)}, {sr(R_WS, 4)}, 0 offen sc1', 'ph')
        A.vmem(f'buffer_load_dwordx2 {vr(PG, 2)}, {vr(VG)}, {sr(R_WS, 4)}, 0 offen sc1', 'ph')

    def ck_h():
        A(f'v_cmp_eq_u32 vcc, {sr(S_TAG)}, {vr(PD)}\nv_cmp_eq_u32 {sr(S_C1, 2)}, {sr(S_TAG)}, {vr(PG + 1)}')
        A(f's_and_b64 vcc, vcc, {sr(S_C1, 2)}\ns_cmp_eq_u64 vcc, -1')
    ACC2 = 32
    free = [96, 104, 112, 120]
    areg = {}

    def kk(t):
        blk, part, s = t >> 3, (t >> 2) & 1, t & 3
        return 8 * blk + 4 * (s >> 1) + 2 * part + (s & 1)

    def ld_act(t):
        areg[t] = free.pop(0)
        for ma in range(2):
            A.vmem(f'buffer_load_dwordx4 {vr(areg[t] + 4 * ma, 4)}, {vr(VA + ma)}, {sr(R_WS, 4)}, {k4(kk(t) // 4)} offen offset:{1024 * (kk(t) % 4)} sc1', f'act{t}')
    pa = cfg.poll_after_piece
    for pc in range(2, 8):
        mov_c(pc)
        if pc + 3 == pa:
            pl_h()
        if pc == pa:
            A.wait_vm('ph')
            spin(A, 'h', pl_h, ck_h, cfg)
            A.stamp('hpoll')
            for t in range(4):
                ld_act(t)
    A.vmem(f'global_load_ushort {vr(DS)}, {vr(DS)}, s[20:21]', 'xs')
    A(f's_lshl_b32 {sr(T0)}, {sr(S_W)}, 7\ns_add_u32 {sr(T0)}, {sr(T0)}, {X_G}')
    A(f'v_and_b32 {vr(VP)}, 31, v0\nv_lshl_add_u32 {vr(VP)}, {vr(VP)}, 2, {sr(T0)}')
    A(f'v_lshrrev_b32 {vr(VG)}, 5, v0\nv_lshl_add_u32 {vr(VG)}, {vr(VG)}, 6, {sr(T0)}')
    A(f'v_sub_f32 {vr(PG + 1)}, 1.0, {vr(PG)}')
    A.ds(f'ds_write_b32 {vr(VP)}, {vr(PG)}')
    A.ds(f'ds_write_b32 {vr(VP)}, {vr(PG + 1)} offset:{X_OMG - X_G}')
    A.wait_lg_all()
    nxt = 4
    XS = None
    for t in range(16):
        A.wait_vm(f'act{t}')
        for ma in range(2):
            for na in range(2):
                mfma(A, ACC2 + 16 * (2 * ma + na), areg[t] + 4 * ma, creg(t, na), t == 0)
        free += [areg[t], creg(t, 0)]
        for _ in range(2):
            if nxt < 16:
                ld_act(nxt)
                nxt += 1
        if t == 9:
            XS = creg(8, 0)
            free.remove(creg(8, 0))
            free.remove(creg(9, 0))
            for r in range(16):
                A.vmem(f'buffer_load_ushort {vr(XS + r)}, {vr(VXS)}, {sr(R_X, 4)}, {k4(r // 4)} offen offset:{1024 * (r % 4)}', 'xs')
        if t == 0:
            A.stamp('S0')
    A.stamp('Send')
    A(f'v_lshl_add_u32 v11, v0, 4, {sr(S_MB)}')
    for a in (1, 2, 3):
        A(f's_xor_b32 {sr(T0)}, {sr(S_W)}, {a}\ns_lshl_b32 {sr(T0)}, {sr(T0)}, 12\ns_add_u32 {sr(T0)}, {sr(T0)}, {P2B}')
        A(f'v_lshl_add_u32 {vr(11 + a)}, v0, 4, {sr(T0)}')
    for a in (1, 2, 3):
        for j in range(4):
            A.ds(f'ds_write_b128 v11, {vr(ACC2 + 16 * a + 4 * j, 4)} offset:{(a - 1) * 16384 + j * 1024}')
    GV = 96
    for j in range(4):
        A.ds(f'ds_read_b128 {vr(GV + 4 * j, 4)}, {vr(VG)} offset:{16 * j}')
    A.wait_vm('xs')
    A(f'v_lshlrev_b32 {vr(DS)}, 16, {vr(DS)}')
    for r in range(16):
        A(f'v_lshlrev_b32 {vr(XS + r)}, 16, {vr(XS + r)}')
        A(f'v_fmac_f32 {vr(ACC2 + r)}, {vr(XS + r)}, {vr(DS)}')
    A.wait_lg_all()
    A('s_barrier')
    A.stamp('X1')
    PB = 128
    for a in (1, 2, 3):
        for j in range(4):
            A.ds(f'ds_read_b128 {vr(PB + 16 * (a - 1) + 4 * j, 4)}, {vr(11 + a)} offset:{(a - 1) * 16384 + j * 1024}', f'r{a}')
    for a in (1, 2, 3):
        A.wait_lg(f'r{a}')
        for r in range(0, 16, 2):
            A(f'v_pk_add_f32 {vr(ACC2 + r, 2)}, {vr(ACC2 + r, 2)}, {vr(PB + 16 * (a - 1) + r, 2)}')
    for r in range(0, 16, 2):
        A(f'v_pk_mul_f32 {vr(ACC2 + r, 2)}, {vr(ACC2 + r, 2)}, {vr(GV + r, 2)}')
    for j in range(4):
        A.ds(f'ds_write_b128 v12, {vr(ACC2 + 4 * j, 4)} offset:{j * 1024}')
    A.wait_lg_all()
    A.stamp('Sfin')
    A('s_barrier')
    A(f's_lshl_b32 {sr(T0)}, {sr(S_M2)}, 5\ns_lshl_b32 {sr(T1)}, {sr(S_N2)}, 2\ns_add_u32 {sr(T0)}, {sr(T0)}, {sr(T1)}\ns_add_u32 {sr(T0)}, {sr(T0)}, {sr(S_W)}')
    A(f's_cmp_lg_u32 {sr(T0)}, {31 << 5}\ns_cbranch_scc1 L_p2_done')
    A(f'v_mov_b32 v1, {sr(S_TAG)}\nv_mov_b32 v2, {GW}\ns_mov_b64 exec, 1')
    A(f'buffer_store_dword v1, v2, {sr(R_WS, 4)}, 0 offen\ns_mov_b64 exec, -1')
    A.label('L_p2_done')
    A.dump_stamps(1)
    A.label('L_end')
    A('s_endpgm')
    A.label('L_codeend')
    return A


HEADER = open(os.path.join(os.path.dirname(os.path.abspath(__file__)), '..', 'cdna_kernels',
                           'gated_mix__ssm_conv_s5__swiglu_ffn__prompt.s.ref')).read().split('; Override launch')[0]


def generate(cfg):
    e, p1, p2 = gen_entry(cfg), gen_p1(cfg), gen_p2(cfg)
    probs = check_hazards(e.lines + p1.lines, 'p1') + check_hazards(e.lines + p2.lines, 'p2')
    for p in probs:
        print('HAZARD', p, file=sys.stderr)
    assert not probs
    nb1 = sum(l == 's_barrier' for l in p1.lines[:p1.lines.index('L_p1_gate:')])
    nb2 = sum(l == 's_barrier' for l in p2.lines)
    assert nb1 == nb2, (nb1, nb2)
    txt = HEADER + f'; @launch grid=(256,1,1) block=(512,1,1) lds={LDS}\n'
    txt += f'.amdgcn_target "amdgcn-amd-amdhsa--gfx950"\n.text\n.globl {K}\n.p2align 8\n.type {K},@function\n{K}:\n'
    txt += e.text() + p1.text() + p2.text()
    txt += f'''.section .rodata,"a"
.p2align 6
.amdhsa_kernel {K}
  .amdhsa_next_free_vgpr 256
  .amdhsa_next_free_sgpr 102
  .amdhsa_accum_offset 256
  .amdhsa_group_segment_fixed_size 0
  .amdhsa_kernarg_size 136
  .amdhsa_user_sgpr_count 2
  .amdhsa_user_sgpr_kernarg_segment_ptr 1
  .amdhsa_system_sgpr_workgroup_id_x 1
.end_amdhsa_kernel
'''
    return txt, (p1.names, p2.names)


if __name__ == '__main__':
    cfg = Cfg()
    out = sys.argv[1]
    for kv in sys.argv[2:]:
        k, v = kv.split('=')
        old = getattr(cfg, k)
        setattr(cfg, k, (v not in ('0', 'False')) if isinstance(old, bool) else type(old)(v))
    txt, names = generate(cfg)
    open(out, 'w').write(txt)
    if cfg.stamps:
        import json
        json.dump(names, open(out + '.names', 'w'))
```

```python
import sys, os
sys.path.insert(0, os.path.dirname(os.path.abspath(__file__)))
from asmlib import Stream, vr, sr, check_hazards

K = 'gated_mix__ssm_conv_s5__swiglu_ffn__prompt_kernel'

ACT = 0
KSP = 160
AGG = 0xA00000
GAT = 0xA20000
HF = 0xA30000
GF = 0xA31000
GW = 0xA32000
WS_SIZE = 0xA40000
STAMP = 0xF000000
OOB = 0x40000000
SLOT = 24576
P2B = 0
P1B = 2 * SLOT
WSLOT = [4, 5, 0, 1, 2, 3, 4, 5]
XB = 6 * SLOT
X_TR, X_EX, X_EX2, X_G, X_OMG, X_CNT = XB, XB + 8192, XB + 9216, XB + 10240, XB + 10752, XB + 11264
LDS = XB + 16384
S_RT, S_CG, S_M2, S_N2, S_W, S_TAG = 38, 39, 40, 41, 42, 43
R_WS, R_X, R_B, R_WG, R_WU, R_E, R_O = 44, 48, 52, 56, 60, 64, 68
S_OA, S_OW = 72, 73
S_K4 = 73
T0, T1, T2, T3 = 3, 81, 0, 1
S_MB = 82
S_MB2 = 83
S_C0 = 84
S_C1 = 86
S_CNT = 88
S_RHO, S_STAG = 22, 23
S_ST0 = 90
LOG2E = 0x3fb8aa3b
NLOG2E = 0xbfb8aa3b
INV2PI = 0x3e22f983


class Cfg:
    mapping = '84'
    map2 = '48'
    rot = True
    stag0 = 0
    nstag = 4
    p2_before_b5 = 8
    wd_early = 0
    w2pf = True
    stamps = False
    D = 3
    DF = 5
    poll_after_piece = 5
    spin = 1 << 15
    code_pf = True
    out_flags = ''
    prio = True


class WS(Stream):
    def __init__(self, cfg, vst):
        super().__init__()
        self.cfg, self.vst = cfg, vst
        self.pend, self.names, self.nst = [], [], 0

    def stamp(self, name):
        if not self.cfg.stamps:
            return
        if len(self.pend) == 6:
            self('s_waitcnt lgkmcnt(0)')
            self.lg = []
            self.flush()
        used = {p for p, _ in self.pend}
        p = [x for x in range(6) if x not in used][0]
        self(f's_memtime {sr(S_ST0 + 2 * p, 2)}')
        self.pend.append((p, self.nst))
        self.names.append(name)
        self.nst += 1

    def flush(self):
        for p, i in self.pend:
            self(f'v_writelane_b32 {vr(self.vst)}, {sr(S_ST0 + 2 * p)}, {i}')
        self.pend = []

    def wait_lg_all(self):
        super().wait_lg_all()
        self.flush()

    def dump_stamps(self, role):
        if not self.cfg.stamps:
            return
        self(f's_memrealtime {sr(S_C0, 2)}')
        self.wait_lg_all()
        self(f'v_writelane_b32 {vr(self.vst)}, {sr(S_C0)}, 62')
        self(f'v_writelane_b32 {vr(self.vst)}, s89, 63')
        self(f's_lshl_b32 {sr(T0)}, s2, 3\ns_add_u32 {sr(T0)}, {sr(T0)}, {sr(S_W)}\ns_add_u32 {sr(T0)}, {sr(T0)}, {4 * role}')
        self(f's_lshl_b32 {sr(T0)}, {sr(T0)}, 8\ns_add_u32 {sr(T0)}, {sr(T0)}, {STAMP}')
        self(f's_add_u32 s36, s36, {sr(T0)}\ns_addc_u32 s37, s37, 0')
        self('v_lshlrev_b32 v1, 2, v0')
        self(f'global_store_dword v1, {vr(self.vst)}, s[36:37]')


def srd(A, r, ptr, size):
    A(f's_mov_b32 {sr(r)}, {sr(ptr)}\ns_mov_b32 {sr(r + 1)}, {sr(ptr + 1)}\ns_mov_b32 {sr(r + 2)}, {size}\ns_mov_b32 {sr(r + 3)}, 0x20000')


def k4(k):
    return '0' if k == 0 else sr(S_K4 + k)


def swz_consts(A, vq8, vcA, vcB, t):
    A(f'v_lshrrev_b32 {vr(vq8)}, 3, v0')
    A(f'v_lshrrev_b32 {vr(t)}, 4, v0')
    A(f'v_and_b32 {vr(vcA)}, 7, v0')
    A(f'v_xor_b32 {vr(vcA)}, {vr(vcA)}, {vr(t)}')
    A(f'v_lshlrev_b32 {vr(vcA)}, 4, {vr(vcA)}')
    A(f'v_xor_b32 {vr(vcB)}, 64, {vr(vcA)}')


def frag_addr(A, a0, t):
    A(f'v_and_b32 {vr(a0)}, 31, v0')
    A(f'v_bfe_u32 {vr(t)}, v0, 1, 3')
    A(f'v_lshrrev_b32 {vr(a0 + 1)}, 5, v0')
    A(f'v_xor_b32 {vr(t)}, {vr(t)}, {vr(a0 + 1)}')
    A(f'v_lshlrev_b32 {vr(t)}, 4, {vr(t)}')
    A(f'v_lshl_add_u32 {vr(a0)}, {vr(a0)}, 7, {vr(t)}')
    for s in (1, 2, 3):
        A(f'v_xor_b32 {vr(a0 + s)}, {s << 5}, {vr(a0)}')


def wffn_voffs(A, vw, t):
    A(f's_mul_i32 {sr(T0)}, {sr(S_W)}, {16 * 2752}\ns_mul_i32 {sr(T1)}, {sr(S_CG)}, 192\ns_add_u32 {sr(T0)}, {sr(T0)}, {sr(T1)}')
    A(f's_mul_i32 {sr(T1)}, {sr(S_CG)}, 12\ns_sub_i32 {sr(T1)}, 172, {sr(T1)}')
    A(f'v_mov_b32 {vr(t + 3)}, {OOB}')
    for j in range(3):
        A(f'v_add_u32 {vr(t)}, {64 * j}, v0')
        A(f'v_mul_u32_u24 {vr(t + 1)}, 171, {vr(t)}')
        A(f'v_lshrrev_b32 {vr(t + 1)}, 11, {vr(t + 1)}')
        A(f'v_mul_u32_u24 {vr(t + 2)}, 12, {vr(t + 1)}')
        A(f'v_sub_u32 {vr(t)}, {vr(t)}, {vr(t + 2)}')
        A(f'v_cmp_gt_i32 vcc, {sr(T1)}, {vr(t)}')
        A(f'v_mul_u32_u24 {vr(t + 1)}, 2752, {vr(t + 1)}')
        A(f'v_lshl_add_u32 {vr(t + 1)}, {vr(t)}, 4, {vr(t + 1)}')
        if j:
            A(f'v_subrev_u32 {vr(t + 1)}, {1024 * j}, {vr(t + 1)}')
        A(f'v_add_u32 {vr(t + 1)}, {sr(T0)}, {vr(t + 1)}')
        A(f'v_cndmask_b32 {vr(vw + j)}, {vr(t + 3)}, {vr(t + 1)}, vcc')


def issue_a(A, b, vx, vb):
    sl = (b % 4) * SLOT
    A(f's_add_u32 m0, {sr(S_MB)}, {sl}')
    if b:
        A(f's_add_u32 {sr(S_OA)}, {sr(S_OA)}, 128\ns_and_b32 {sr(S_OA)}, {sr(S_OA)}, 1023')
    else:
        A(f's_lshl_b32 {sr(S_OA)}, {sr(S_RHO)}, 7')
    for j in range(4):
        A.vmem(f'buffer_load_dwordx4 {vr(vx + j)}, {sr(R_X, 4)}, {sr(S_OA)} offen offset:{1024 * j} lds', f'blk{b}')
    A(f's_add_u32 m0, {sr(S_MB2)}, {sl + 16384}\ns_nop 0')
    for j in range(2):
        A.vmem(f'buffer_load_dwordx4 {vr(vb + j)}, {sr(R_B, 4)}, {sr(S_OA)} offen offset:{1024 * j} lds', f'blk{b}')


def issue_w(A, b, vw, smb):
    sl = WSLOT[b - 8] * SLOT
    A(f's_add_u32 m0, {sr(smb)}, {sl}')
    A(f's_add_u32 {sr(S_OW)}, {sr(S_RHO)}, {b - 8}\ns_and_b32 {sr(S_OW)}, {sr(S_OW)}, 7\ns_mul_i32 {sr(S_OW)}, {sr(S_OW)}, {64 * 2752}')
    for j in range(3):
        A.vmem(f'buffer_load_dwordx4 {vr(vw + j)}, {sr(R_WG, 4)}, {sr(S_OW)} offen offset:{1024 * j} lds', f'blk{b}')
    A(f's_add_u32 m0, {sr(smb)}, {sl + 12288}\ns_nop 0')
    for j in range(3):
        A.vmem(f'buffer_load_dwordx4 {vr(vw + j)}, {sr(R_WU, 4)}, {sr(S_OW)} offen offset:{1024 * j} lds', f'blk{b}')


def spin(A, name, loads, check, cfg):
    A(f's_mov_b32 {sr(S_CNT)}, {cfg.spin}')
    A.label(f'L_{name}_chk')
    check()
    A(f's_cbranch_scc1 L_{name}_ok')
    A(f's_sub_u32 {sr(S_CNT)}, {sr(S_CNT)}, 1\ns_cmp_eq_u32 {sr(S_CNT)}, 0\ns_cbranch_scc1 L_{name}_ok')
    saved = list(A.vm)
    loads()
    A('s_waitcnt vmcnt(0)')
    A.vm = saved
    A(f's_branch L_{name}_chk')
    A.label(f'L_{name}_ok')


def arrive(A, va, vone, off):
    A('s_mov_b64 exec, 1')
    A.ds(f'ds_add_u32 {vr(va)}, {vr(vone)} offset:{off}')
    A('s_mov_b64 exec, -1')


def await4(A, name, va, vt, off):
    A.label(f'L_{name}')
    A.ds(f'ds_read_b32 {vr(vt)}, {vr(va)} offset:{off}')
    Stream.wait_lg_all(A)
    A(f'v_readfirstlane_b32 {sr(S_CNT)}, {vr(vt)}\ns_cmp_ge_u32 {sr(S_CNT)}, 4\ns_cbranch_scc0 L_{name}')
    A.flush()


def rho(A, cfg):
    if cfg.rot:
        m = (1, 2) if cfg.mapping == '84' else (2, 1)
        A(f's_mul_i32 {sr(S_RHO)}, {sr(S_RT)}, {m[0]}\ns_mul_i32 {sr(S_STAG)}, {sr(S_CG)}, {m[1]}\ns_add_u32 {sr(S_RHO)}, {sr(S_RHO)}, {sr(S_STAG)}\ns_and_b32 {sr(S_RHO)}, {sr(S_RHO)}, 7')
    else:
        A(f's_mov_b32 {sr(S_RHO)}, 0')


def mfma(A, d, a, b, first):
    A(f'v_mfma_f32_32x32x16_bf16 {vr(d, 16)}, {vr(a, 4)}, {vr(b, 4)}, {"0" if first else vr(d, 16)}')


def gen_entry(cfg):
    A = Stream()
    A('s_cmp_ge_u32 s2, 256\ns_cbranch_scc1 L_end')
    A('s_load_dwordx16 s[4:19], s[0:1], 0\ns_load_dwordx16 s[20:35], s[0:1], 64\ns_load_dwordx2 s[36:37], s[0:1], 128')
    if cfg.stamps:
        A('s_memrealtime s[88:89]')
    A('v_lshrrev_b32 v1, 6, v0\nv_and_b32 v0, 63, v0\nv_readfirstlane_b32 s3, v1')
    A('s_and_b32 s81, s2, 7\ns_lshr_b32 s82, s2, 3')
    if cfg.mapping == '48':
        A(f's_lshr_b32 {sr(S_RT)}, s81, 1\ns_lshl_b32 {sr(S_RT)}, {sr(S_RT)}, 2\ns_and_b32 s83, s82, 3\ns_add_u32 {sr(S_RT)}, {sr(S_RT)}, s83')
        A(f's_and_b32 {sr(S_CG)}, s81, 1\ns_lshl_b32 {sr(S_CG)}, {sr(S_CG)}, 3\ns_lshr_b32 s83, s82, 2\ns_add_u32 {sr(S_CG)}, {sr(S_CG)}, s83')
    else:
        A(f's_and_b32 {sr(S_RT)}, s81, 1\ns_lshl_b32 {sr(S_RT)}, {sr(S_RT)}, 3\ns_and_b32 s83, s82, 7\ns_add_u32 {sr(S_RT)}, {sr(S_RT)}, s83')
        A(f's_lshr_b32 {sr(S_CG)}, s81, 1\ns_lshl_b32 {sr(S_CG)}, {sr(S_CG)}, 2\ns_lshr_b32 s83, s82, 3\ns_add_u32 {sr(S_CG)}, {sr(S_CG)}, s83')
    A(f's_and_b32 {sr(S_W)}, s3, 3')
    A('s_cmp_lt_u32 s3, 4\ns_cbranch_scc1 L_p1')
    if cfg.code_pf:
        A(f's_and_b32 s83, s82, 3\ns_cmp_lg_u32 s83, {sr(S_W)}\ns_cbranch_scc1 L_nopf')
        A('s_getpc_b64 s[84:85]')
        A.label('L_pc')
        A(f's_sub_u32 s84, s84, L_pc-{K}\ns_subb_u32 s85, s85, 0')
        A(f's_lshl_b32 s83, s83, 13\nv_lshl_add_u32 v1, v0, 7, s83')
        A(f'v_min_u32 v1, L_codeend-{K}-4, v1')
        A('global_load_dword v2, v1, s[84:85]')
        A.label('L_nopf')
    A(f's_lshl_b32 s83, {sr(S_CG)}, 6')
    A(f'v_and_b32 v112, 31, v0\nv_lshl_add_u32 v112, v112, 1, s83')
    A('s_waitcnt lgkmcnt(0)')
    A('global_load_ushort v113, v112, s[6:7]\nglobal_load_ushort v114, v112, s[8:9]\nglobal_load_ushort v115, v112, s[18:19]')
    A('s_branch L_p2')
    A.label('L_p1')
    return A


def map2(A, cfg):
    A('s_and_b32 s81, s2, 7\ns_lshr_b32 s3, s2, 3')
    if cfg.map2 == '48':
        A(f's_lshl_b32 {sr(S_M2)}, s81, 2\ns_lshr_b32 s81, s3, 3\ns_add_u32 {sr(S_M2)}, {sr(S_M2)}, s81\ns_and_b32 {sr(S_N2)}, s3, 7')
    else:
        A(f's_lshr_b32 {sr(S_M2)}, s81, 1\ns_lshl_b32 {sr(S_M2)}, {sr(S_M2)}, 3\ns_and_b32 {sr(S_N2)}, s3, 7\ns_add_u32 {sr(S_M2)}, {sr(S_M2)}, {sr(S_N2)}')
        A(f's_and_b32 {sr(S_N2)}, s81, 1\ns_lshl_b32 {sr(S_N2)}, {sr(S_N2)}, 2\ns_lshr_b32 s3, s3, 3\ns_add_u32 {sr(S_N2)}, {sr(S_N2)}, s3')


def load_tag(A):
    if A.cfg.stamps:
        A('s_mov_b32 s89, s88')
    A(f's_add_u32 {sr(T2)}, s36, {GW}\ns_addc_u32 {sr(T3)}, s37, 0')
    A(f's_load_dword {sr(S_TAG)}, {sr(T2, 2)}, 0')


def consts(A):
    for k in range(1, 8):
        A(f's_mov_b32 {sr(S_K4 + k)}, {4096 * k}')


def gen_p1(cfg):
    A = WS(cfg, 7)
    TB = 1
    VCN, VONE = 4, 5
    WB = 8
    ACC = 32
    XR = 128
    VX, VB, VW, AX, TMP = 32, 36, 38, 44, 52
    D = cfg.D
    if cfg.stamps:
        A('v_mov_b32 v7, 0')
    A.stamp('start')
    swz_consts(A, TMP, TMP + 1, TMP + 2, TMP + 3)
    A(f's_lshl_b32 {sr(T1)}, {sr(S_RT)}, 2\ns_add_u32 {sr(T1)}, {sr(T1)}, {sr(S_W)}\ns_lshl_b32 {sr(T1)}, {sr(T1)}, 15')
    A(f'v_lshrrev_b32 {vr(TMP + 3)}, 5, v0')
    A(f'v_and_b32 {vr(TMP + 4)}, 3, {vr(TMP)}')
    A(f'v_lshl_add_u32 {vr(TMP + 3)}, {vr(TMP + 3)}, 4, {vr(TMP + 4)}')
    A(f'v_lshl_add_u32 {vr(TMP + 3)}, {vr(TMP + 3)}, 10, {sr(T1)}')
    A(f'v_add_u32 {vr(VX)}, {vr(TMP + 3)}, {vr(TMP + 1)}')
    A(f'v_add_u32 {vr(VX + 1)}, {vr(TMP + 3)}, {vr(TMP + 2)}')
    A(f'v_add_u32 {vr(VX + 2)}, {2 * 3072}, {vr(VX)}')
    A(f'v_add_u32 {vr(VX + 3)}, {3 * 3072}, {vr(VX + 1)}')
    A(f'v_add_u32 {vr(VX + 1)}, 3072, {vr(VX + 1)}')
    A(f's_and_b32 {sr(T0)}, {sr(S_W)}, 1\ns_lshl_b32 {sr(T1)}, {sr(S_CG)}, 1\ns_add_u32 {sr(T1)}, {sr(T1)}, {sr(T0)}\ns_lshl_b32 {sr(T1)}, {sr(T1)}, 14')
    A(f'v_lshl_add_u32 {vr(TMP + 3)}, {vr(TMP)}, 10, {sr(T1)}')
    A(f'v_add_u32 {vr(VB)}, {vr(TMP + 3)}, {vr(TMP + 1)}')
    A(f'v_add_u32 {vr(VB + 1)}, {vr(TMP + 3)}, {vr(TMP + 2)}')
    A(f'v_add_u32 {vr(VB + 1)}, 7168, {vr(VB + 1)}')
    A(f's_lshl_b32 {sr(S_MB)}, {sr(S_W)}, 12\ns_lshl_b32 {sr(S_MB2)}, {sr(S_W)}, 11')
    A(f's_mov_b32 {sr(R_B + 2)}, {512 * 1024}\ns_mov_b32 {sr(R_B + 3)}, 0x20000\ns_mov_b32 {sr(R_X + 2)}, {2048 * 1024}\ns_mov_b32 {sr(R_X + 3)}, 0x20000')
    A(f's_cmp_ge_u32 {sr(S_W)}, 2')
    A.wait_lg_all()
    A(f's_cselect_b32 {sr(R_B)}, s12, s10\ns_cselect_b32 {sr(R_B + 1)}, s13, s11\ns_mov_b32 {sr(R_X)}, s4\ns_mov_b32 {sr(R_X + 1)}, s5')
    rho(A, cfg)
    A.stamp('karg')
    for b in range(D):
        issue_a(A, b, VX, VB)
        if b == 0:
            load_tag(A)
        if b == 1:
            srd(A, R_WG, 24, 512 * 2752)
            srd(A, R_WU, 26, 512 * 2752)
            srd(A, R_WS, 36, WS_SIZE)
            srd(A, R_E, 28, 1376 * 1024)
            srd(A, R_O, 32, 2048 * 2048)
            consts(A)
            wffn_voffs(A, VW, TMP)
            frag_addr(A, AX, TMP)
            for s in range(4):
                A(f'v_add_u32 {vr(AX + s)}, {sr(S_MB)}, {vr(AX + s)}')
                A(f'v_add_u32 {vr(AX + 4 + s)}, {2 * SLOT}, {vr(AX + s)}')
            A(f'v_lshrrev_b32 {vr(TMP)}, 5, v0\nv_bfe_u32 {vr(TMP + 1)}, v0, 2, 2\nv_lshl_add_u32 {vr(TMP)}, {vr(TMP)}, 3, {vr(TMP + 1)}')
            A(f'v_mul_u32_u24 {vr(TMP)}, 192, {vr(TMP)}\nv_bfe_u32 {vr(TMP + 1)}, v0, 4, 1\nv_lshl_add_u32 {vr(TMP)}, {vr(TMP + 1)}, 5, {vr(TMP)}')
            A(f'v_and_b32 {vr(TMP + 1)}, 3, v0\nv_lshl_add_u32 {vr(TB)}, {vr(TMP + 1)}, 3, {vr(TMP)}')
            A(f'v_add_u32 {vr(TB + 1)}, {2 * SLOT}, {vr(TB)}\nv_add_u32 {vr(TB + 2)}, {4 * SLOT}, {vr(TB)}')
            A(f'v_mov_b32 {vr(VCN)}, {X_CNT}\nv_mov_b32 {vr(VONE)}, 1')
            A(f's_mul_i32 {sr(S_C1)}, {sr(S_W)}, 3072')
            map2(A, cfg)
            A(f's_lshr_b32 {sr(S_STAG)}, s2, 3\ns_and_b32 {sr(T0)}, s2, 1\ns_mul_i32 {sr(T0)}, {sr(T0)}, {cfg.nstag // 2}\ns_add_u32 {sr(S_STAG)}, {sr(S_STAG)}, {sr(T0)}')
            A(f's_and_b32 {sr(S_STAG)}, {sr(S_STAG)}, {cfg.nstag - 1}')
    A.stamp('issued0')
    A.wait_lg_all()
    A(f's_add_u32 {sr(S_TAG)}, {sr(S_TAG)}, 0x9E3779B1')
    for i in range(8):
        A.wait_vm(f'blk{i}')
        A.wait_lg_all()
        A('s_barrier')
        A.stamp(f'A{i}')
        for s in range(4):
            A.ds(f'ds_read_b128 {vr(XR + 16 * i + 4 * s, 4)}, {vr(AX + 4 * ((i >> 1) & 1) + s)} offset:{(i % 2) * SLOT}', 'x')
        b = i + D
        if b < 8:
            issue_a(A, b, VX, VB)
        else:
            issue_w(A, b + 1, VW, S_C1)
        if cfg.stag0 <= i < cfg.stag0 + cfg.nstag:
            A(f's_cmp_lg_u32 {sr(S_STAG)}, {i - cfg.stag0}\ns_cbranch_scc1 L_now0_{i}')
            saved = list(A.vm)
            issue_w(A, 8, VW, S_C1)
            A.vm = saved
            A.label(f'L_now0_{i}')
    assert cfg.stag0 + cfg.nstag <= 8 - D
    A.wait_lg_all()
    A(f's_cmp_eq_u32 {sr(S_CG)}, 15\ns_cbranch_scc1 L_p1_gate')
    vm_at_split = list(A.vm)
    if cfg.prio:
        A('s_setprio 2')

    def rd(n):
        b, s, j = n // 24, (n // 6) % 4, n % 6
        u, mat = j // 2, j % 2
        if n % 24 == 0:
            if b == 0:
                A(f's_waitcnt vmcnt({len(A.vm)})')
            A.wait_vm(f'blk{8 + b}')
            if b <= 5:
                A('s_barrier')
            if b in (0, 2, 4, 5, 7):
                A.stamp(f'B{b}')
        slot = WSLOT[b]
        for r in range(2):
            off = (slot % 2) * SLOT + mat * 12288 + s * 3072 + r * 768 + u * 64
            A.ds(f'ds_read_b64_tr_b16 {vr(WB + 4 * j + 2 * r, 2)}, {vr(TB + slot // 2)} offset:{off}', f'w{n}')
    for n in range(6):
        rd(n)
    VD = 152
    VST = 156
    TMP = 157
    fill = []
    F = Stream()
    F(f's_lshl_b32 {sr(T1)}, {sr(S_RT)}, 2\ns_add_u32 {sr(T1)}, {sr(T1)}, {sr(S_W)}\ns_mul_i32 {sr(T1)}, {sr(T1)}, {KSP}')
    F(f's_mul_i32 {sr(T0)}, {sr(S_CG)}, 6\ns_add_u32 {sr(T1)}, {sr(T1)}, {sr(T0)}\ns_add_u32 {sr(T1)}, {sr(T1)}, 64\ns_lshl_b32 {sr(T1)}, {sr(T1)}, 10')
    F(f'v_lshl_add_u32 {vr(VST)}, v0, 4, {sr(T1)}')
    F(f's_mov_b32 {sr(S_C0)}, {NLOG2E}\ns_mov_b32 {sr(S_C0 + 1)}, {NLOG2E}\ns_mov_b32 {sr(S_C1)}, 1.0\ns_mov_b32 {sr(S_C1 + 1)}, 1.0')

    def wd_voffs(F):
        F(f'v_lshrrev_b32 {vr(TMP)}, 3, v0\nv_bfe_u32 {vr(TMP + 1)}, v0, 4, 1\nv_lshlrev_b32 {vr(TMP + 1)}, 2, {vr(TMP + 1)}')
        F(f'v_and_b32 {vr(TMP + 2)}, 7, v0\nv_xor_b32 {vr(TMP + 1)}, {vr(TMP + 1)}, {vr(TMP + 2)}\nv_lshlrev_b32 {vr(TMP + 1)}, 4, {vr(TMP + 1)}')
        F(f'v_lshl_add_u32 {vr(TMP)}, {vr(TMP)}, 10, {vr(TMP + 1)}')
        F(f's_mul_i32 {sr(T0)}, {sr(S_W)}, {352 * 1024}\ns_lshl_b32 {sr(T1)}, {sr(S_N2)}, 7\ns_add_u32 {sr(T0)}, {sr(T0)}, {sr(T1)}')
        F(f'v_add_u32 {vr(VD)}, {sr(T0)}, {vr(TMP)}')
        for j in (1, 2, 3):
            F(f'v_add_u32 {vr(VD + j)}, {7168 * j}, {vr(VD)}')
        F(f's_mul_i32 {sr(S_MB)}, {sr(S_W)}, {SLOT}\ns_add_u32 {sr(S_MB)}, {sr(S_MB)}, {P1B}')
    wd_voffs(F)
    F(f's_lshr_b32 {sr(T0)}, {sr(S_W)}, 1\ns_lshl_b32 {sr(T1)}, {sr(S_RT)}, 1\ns_add_u32 {sr(T1)}, {sr(T1)}, {sr(T0)}\ns_lshl_b32 {sr(T1)}, {sr(T1)}, 4')
    F(f's_add_u32 {sr(T1)}, {sr(T1)}, {sr(S_CG)}\ns_lshl_b32 {sr(T1)}, {sr(T1)}, 1\ns_and_b32 {sr(T0)}, {sr(S_W)}, 1\ns_add_u32 {sr(T1)}, {sr(T1)}, {sr(T0)}')
    F(f's_lshl_b32 {sr(T1)}, {sr(T1)}, 2\ns_add_u32 {sr(S_MB2)}, {sr(T1)}, {GF}')
    fill = list(F.lines)
    for n in range(192):
        ks, j = n // 6, n % 6
        A.wait_lg(f'w{n}')
        mfma(A, ACC + 16 * j, WB + 4 * j, XR + 4 * ks, ks == 0)
        if n + 6 < 192:
            rd(n + 6)
        if n >= 140 and fill:
            A(fill.pop(0))
    assert not fill
    arrive(A, VCN, VONE, 0)
    A.stamp('E')

    def dma_wd(t):
        A(f's_add_u32 m0, {sr(S_MB)}, {(t % 12) * 2048}')
        A(f's_mov_b32 {sr(S_OW)}, {t * 16384}')
        for j in range(4):
            A.vmem(f'buffer_load_dwordx4 {vr(VD + j)}, {sr(R_E, 4)}, {sr(S_OW)} offen offset:{1024 * j} lds', f'wd{t + j // 2}')
    A('s_nop 1')
    wd_next = 0
    for u in range(3):
        G, U, P = ACC + 32 * u, ACC + 32 * u + 16, XR + 8 * u
        for r in range(0, 16, 2):
            A(f'v_pk_mul_f32 {vr(U + r, 2)}, {vr(G + r, 2)}, {vr(U + r, 2)}')
        for r in range(0, 16, 2):
            A(f'v_pk_mul_f32 {vr(G + r, 2)}, {vr(G + r, 2)}, {sr(S_C0, 2)}')
        for r in range(16):
            A(f'v_exp_f32 {vr(G + r)}, {vr(G + r)}')
        for r in range(0, 16, 2):
            A(f'v_pk_add_f32 {vr(G + r, 2)}, {vr(G + r, 2)}, {sr(S_C1, 2)}')
        for r in range(16):
            A(f'v_rcp_f32 {vr(G + r)}, {vr(G + r)}')
        for r in range(0, 16, 2):
            A(f'v_pk_mul_f32 {vr(U + r, 2)}, {vr(G + r, 2)}, {vr(U + r, 2)}')
        for r in range(0, 16, 2):
            A(f'v_cvt_pk_bf16_f32 {vr(P + r // 2)}, {vr(U + r)}, {vr(U + r + 1)}')
        for j in range(2):
            n = 2 * u + j
            A.vmem(f'buffer_store_dwordx4 {vr(P + 4 * j, 4)}, {vr(VST)}, {sr(R_WS, 4)}, {k4(n // 4)} offen offset:{1024 * (n % 4)} sc1', 'gu')
        if u == 0:
            await4(A, 'cntE', VCN, 6, 0)
        for _ in range(cfg.wd_early):
            dma_wd(wd_next)
            wd_next += 2
    A.stamp('epi')
    A(f'v_mov_b32 v2, {sr(S_TAG)}\nv_mov_b32 v3, 0')
    A.wait_vm('gu')
    A('s_mov_b64 exec, 1')
    A.vmem(f'buffer_store_dword v2, v3, {sr(R_WS, 4)}, {sr(S_MB2)} offen sc1', 'fl')
    A('s_mov_b64 exec, -1')
    if cfg.prio:
        A('s_setprio 0')
    A.label('L_p1_join')
    A.stamp('guflag')
    AW, VA, VP = 1, 3, 5
    ACC2 = 32
    TMP = 8
    for t in range(wd_next, 12, 2):
        dma_wd(t)
    A(f'v_lshrrev_b32 {vr(TMP)}, 5, v0\nv_bfe_u32 {vr(TMP + 1)}, v0, 2, 2\nv_lshl_add_u32 {vr(TMP)}, {vr(TMP)}, 2, {vr(TMP + 1)}')
    A(f's_and_b32 {sr(T0)}, {sr(S_W)}, 1\nv_bfe_u32 {vr(TMP + 1)}, v0, 3, 1\nv_xor_b32 {vr(TMP + 1)}, {sr(T0)}, {vr(TMP + 1)}')
    A(f'v_lshlrev_b32 {vr(TMP + 1)}, 6, {vr(TMP + 1)}\nv_lshl_add_u32 {vr(TMP)}, {vr(TMP)}, 7, {vr(TMP + 1)}')
    A(f'v_bfe_u32 {vr(TMP + 1)}, v0, 4, 1\nv_lshl_add_u32 {vr(TMP)}, {vr(TMP + 1)}, 5, {vr(TMP)}')
    A(f'v_and_b32 {vr(TMP + 1)}, 3, v0\nv_lshl_add_u32 {vr(TMP)}, {vr(TMP + 1)}, 3, {vr(TMP)}')
    A(f'v_add_u32 {vr(AW)}, {sr(S_MB)}, {vr(TMP)}\nv_xor_b32 {vr(AW + 1)}, 64, {vr(AW)}')
    A(f's_lshr_b32 {sr(T0)}, {sr(S_W)}, 1\ns_lshl_b32 {sr(T1)}, {sr(S_M2)}, 1\ns_add_u32 {sr(T2)}, {sr(T1)}, {sr(T0)}\ns_xor_b32 {sr(T3)}, {sr(T2)}, 1')
    A(f's_mul_i32 {sr(T0)}, {sr(S_W)}, 22\ns_add_u32 {sr(T0)}, {sr(T0)}, 64')
    for ma, t in ((0, T2), (1, T3)):
        A(f's_mul_i32 {sr(t)}, {sr(t)}, {KSP}\ns_add_u32 {sr(t)}, {sr(t)}, {sr(T0)}\ns_lshl_b32 {sr(t)}, {sr(t)}, 10')
        A(f'v_lshl_add_u32 {vr(VA + ma)}, v0, 4, {sr(t)}')
    A(f's_mul_i32 {sr(T0)}, {sr(S_W)}, 11\ns_add_u32 {sr(T1)}, {sr(T0)}, 10\ns_mul_i32 {sr(T0)}, {sr(T0)}, 43\ns_lshr_b32 {sr(T0)}, {sr(T0)}, 7')
    A(f's_mul_i32 {sr(T1)}, {sr(T1)}, 43\ns_lshr_b32 {sr(T1)}, {sr(T1)}, 7\ns_lshl_b32 {sr(T0)}, {sr(T0)}, 1\ns_lshl_b32 {sr(T1)}, {sr(T1)}, 1\ns_add_u32 {sr(T1)}, {sr(T1)}, 1')
    A(f'v_add_u32 {vr(VP)}, {sr(T0)}, v0\nv_min_u32 {vr(VP)}, {sr(T1)}, {vr(VP)}')
    A(f's_lshl_b32 {sr(T0)}, {sr(S_M2)}, 7\ns_add_u32 {sr(T0)}, {sr(T0)}, {GF}')
    A(f'v_lshl_add_u32 {vr(VP)}, {vr(VP)}, 2, {sr(T0)}')

    def pl():
        A.vmem(f'buffer_load_dword v6, {vr(VP)}, {sr(R_WS, 4)}, 0 offen sc1', 'poll')

    def ck():
        A(f'v_cmp_eq_u32 vcc, {sr(S_TAG)}, v6\ns_cmp_eq_u64 vcc, -1')
    pl()
    RW, RR, RF, RG, RO = 96, 97, 100, 101, 102
    A(f'v_lshl_add_u32 {vr(RW)}, v0, 4, {sr(S_MB)}')
    for a in (1, 2, 3):
        A(f's_xor_b32 {sr(T0)}, {sr(S_W)}, {a}\ns_mul_i32 {sr(T0)}, {sr(T0)}, {SLOT}\ns_add_u32 {sr(T0)}, {sr(T0)}, {P1B}')
        A(f'v_lshl_add_u32 {vr(RR + a - 1)}, v0, 4, {sr(T0)}')
    A(f's_xor_b32 {sr(T0)}, {sr(S_W)}, 1\ns_lshl_b32 {sr(T0)}, {sr(T0)}, 12\ns_add_u32 {sr(T0)}, {sr(T0)}, {P2B}')
    A(f'v_lshl_add_u32 {vr(RF)}, v0, 4, {sr(T0)}')
    A(f's_lshl_b32 {sr(T0)}, {sr(S_W)}, 7\ns_add_u32 {sr(T0)}, {sr(T0)}, {X_OMG}')
    A(f'v_lshrrev_b32 {vr(RG)}, 5, v0\nv_lshl_add_u32 {vr(RG)}, {vr(RG)}, 6, {sr(T0)}')
    A(f's_lshr_b32 {sr(T0)}, {sr(S_W)}, 1\ns_lshl_b32 {sr(T1)}, {sr(S_M2)}, 1\ns_add_u32 {sr(T0)}, {sr(T0)}, {sr(T1)}\ns_lshl_b32 {sr(T0)}, {sr(T0)}, 16')
    A(f's_and_b32 {sr(T1)}, {sr(S_W)}, 1\ns_lshl_b32 {sr(T2)}, {sr(S_N2)}, 1\ns_add_u32 {sr(T1)}, {sr(T1)}, {sr(T2)}\ns_lshl_b32 {sr(T1)}, {sr(T1)}, 7\ns_add_u32 {sr(T0)}, {sr(T0)}, {sr(T1)}')
    A(f'v_lshrrev_b32 {vr(RO)}, 5, v0\nv_and_b32 {vr(RO + 1)}, 31, v0\nv_lshlrev_b32 {vr(RO + 1)}, 2, {vr(RO + 1)}\nv_lshl_add_u32 {vr(RO)}, {vr(RO)}, 15, {vr(RO + 1)}\nv_add_u32 {vr(RO)}, {sr(T0)}, {vr(RO)}')
    A.wait_vm('poll')
    spin(A, 'gu', pl, ck, cfg)
    A.stamp('gupoll')
    AB, NB = 160, 12

    def ld_act(t):
        for ma in range(2):
            A.vmem(f'buffer_load_dwordx4 {vr(AB + 8 * (t % NB) + 4 * ma, 4)}, {vr(VA + ma)}, {sr(R_WS, 4)}, {k4(t // 4)} offen offset:{1024 * (t % 4)} sc1', f'act{t}')

    def rd_wd(t):
        A.wait_vm(f'wd{t}')
        for na in range(2):
            for r in range(2):
                A.ds(f'ds_read_b64_tr_b16 {vr(WB + 8 * (t % 3) + 4 * na + 2 * r, 2)}, {vr(AW + na)} offset:{(t % 12) * 2048 + r * 1024}', f'wf{t}')
    DF = cfg.DF
    for t in range(DF):
        ld_act(t)
    rd_wd(0)
    for t in range(22):
        if t + DF < 22:
            ld_act(t + DF)
        if t + 1 < 22:
            rd_wd(t + 1)
        A.wait_vm(f'act{t}')
        A.wait_lg(f'wf{t}')
        for a in (1, 2, 3, 0):
            mfma(A, ACC2 + 16 * a, AB + 8 * (t % NB) + 4 * (a >> 1), WB + 8 * (t % 3) + 4 * (a & 1), t == 0)
        if t % 2 == 1 and t + 11 < 22:
            dma_wd(t + 11)
        if t in (0, 11):
            A.stamp(f'F{t}')
    A.stamp('Fend')
    A('s_nop 8')
    for a in (1, 2, 3):
        for j in range(4):
            A.ds(f'ds_write_b128 {vr(RW)}, {vr(ACC2 + 16 * a + 4 * j, 4)} offset:{(a - 1) * 4096 + j * 1024}')
    A.wait_lg_all()
    A('s_barrier')
    A.stamp('X2')
    PB = 160
    for j in range(4):
        for a in (1, 2, 3):
            A.ds(f'ds_read_b128 {vr(PB + 16 * (a - 1) + 4 * j, 4)}, {vr(RR + a - 1)} offset:{(a - 1) * 4096 + j * 1024}', f'r{j}')
        A.ds(f'ds_read_b128 {vr(PB + 48 + 4 * j, 4)}, {vr(RF)} offset:{j * 1024}', f'r{j}')
        A.ds(f'ds_read_b128 {vr(PB + 64 + 4 * j, 4)}, {vr(RG)} offset:{j * 16}', f'r{j}')
    for j in range(4):
        A.wait_lg(f'r{j}')
        for r in range(4 * j, 4 * j + 4, 2):
            A(f'v_pk_add_f32 {vr(ACC2 + r, 2)}, {vr(ACC2 + r, 2)}, {vr(PB + r, 2)}')
            A(f'v_pk_add_f32 {vr(PB + 16 + r, 2)}, {vr(PB + 16 + r, 2)}, {vr(PB + 32 + r, 2)}')
        for r in range(4 * j, 4 * j + 4, 2):
            A(f'v_pk_add_f32 {vr(ACC2 + r, 2)}, {vr(ACC2 + r, 2)}, {vr(PB + 16 + r, 2)}')
        for r in range(4 * j, 4 * j + 4, 2):
            A(f'v_pk_fma_f32 {vr(ACC2 + r, 2)}, {vr(ACC2 + r, 2)}, {vr(PB + 64 + r, 2)}, {vr(PB + 48 + r, 2)}')
        for r in range(4 * j, 4 * j + 4):
            A.vmem(f'buffer_store_dword {vr(ACC2 + r)}, {vr(RO)}, {sr(R_O, 4)}, {k4(r // 2)} offen offset:{2048 * (r % 2)} {cfg.out_flags}')
    A.stamp('stored')
    if cfg.stamps:
        A.wait_vm_all()
        A.stamp('done')
    A.dump_stamps(0)
    A('s_endpgm')

    A.label('L_p1_gate')
    A.vm = vm_at_split
    A.wait_vm_all()
    A('s_barrier')
    srd(A, R_B, 30, 1024)
    srd(A, R_WG, 14, 512 * 1024)
    srd(A, R_WU, 16, 512 * 1024)
    A('v_lshrrev_b32 v1, 5, v0\nv_lshlrev_b32 v1, 4, v1\nv_lshlrev_b32 v3, 7, v0')
    A(f's_lshl_b32 {sr(T2)}, {sr(S_RT)}, 2\ns_add_u32 {sr(T2)}, {sr(T2)}, {sr(S_W)}\ns_lshl_b32 {sr(T3)}, {sr(T2)}, 13\ns_mul_i32 {sr(S_C0)}, {sr(T2)}, 22016')
    for a in range(4):
        A(f'v_mov_b32 {vr(8 + a)}, 0')

    def pf(r, so):
        if cfg.w2pf:
            A.vmem(f'buffer_load_dword v2, v3, {sr(r, 4)}, {sr(so)} offen')
    for half in range(2):
        for s in range(16):
            if s % 4 == 0:
                A(f's_add_u32 {sr(S_OA)}, {sr(S_OA)}, 128\ns_and_b32 {sr(S_OA)}, {sr(S_OA)}, 1023')
            A.vmem(f'buffer_load_dwordx4 {vr(32 + 4 * s, 4)}, v1, {sr(R_B, 4)}, {sr(S_OA)} offen offset:{32 * (s % 4)}', 'gw')
        pf(R_WU if half else R_WG, T3)
        if half == 0:
            A('s_barrier\ns_barrier\ns_barrier')
        A.wait_vm('gw')
        for s in range(16):
            for e in range(4):
                A(f'v_dot2c_f32_bf16 {vr(8 + e)}, {vr(XR + 4 * (16 * half + s) + e)}, {vr(32 + 4 * s + e)}')
    A('s_nop 2')
    A('v_add_f32 v8, v8, v9\nv_add_f32 v10, v10, v11\nv_add_f32 v8, v8, v10\nv_mov_b32 v9, v8\ns_nop 1')
    A('v_permlane32_swap_b32 v8, v9\nv_add_f32 v8, v8, v9')
    A('v_cvt_pk_bf16_f32 v8, v8, v8\nv_lshlrev_b32 v8, 16, v8')
    A(f'v_mul_f32 v8, {NLOG2E}, v8\nv_exp_f32 v8, v8\ns_nop 0\nv_add_f32 v8, 1.0, v8\nv_rcp_f32 v8, v8\ns_nop 0')
    A(f'v_cvt_pk_bf16_f32 v8, v8, v8\nv_lshlrev_b32 v8, 16, v8\nv_mov_b32 v9, {sr(S_TAG)}')
    A('v_bfe_u32 v10, v0, 2, 1\nv_bfe_u32 v11, v0, 3, 2\nv_and_b32 v12, 3, v0\nv_lshl_add_u32 v11, v11, 2, v12\nv_lshl_add_u32 v10, v10, 4, v11')
    A(f's_lshl_b32 {sr(T1)}, {sr(T2)}, 8\ns_add_u32 {sr(T1)}, {sr(T1)}, {GAT}')
    A(f'v_lshlrev_b32 v10, 3, v10')
    A('s_mov_b32 exec_hi, 0')
    A(f'buffer_store_dwordx2 v[8:9], v10, {sr(R_WS, 4)}, {sr(T1)} offen sc1')
    A('s_mov_b64 exec, -1')
    A('s_waitcnt vmcnt(1)')
    for b in range(3):
        pf(R_E, S_C0)
        A(f's_add_u32 {sr(S_C0)}, {sr(S_C0)}, 8192')
        if b == 0:
            A('s_barrier\ns_barrier')
        A('s_waitcnt vmcnt(0)')
    TMP = 157
    wd_voffs(A)
    for t in range(0, wd_next, 2):
        dma_wd(t)
    A('s_waitcnt vmcnt(0)')
    A('s_branch L_p1_join')
    return A


def gen_p2(cfg):
    A = WS(cfg, 31)
    LR, LI, L16R, L16I, L32R, L32I, KR, KI = 1, 2, 3, 4, 5, 6, 7, 8
    WQ = 9
    WSR, WSI, LCR, LCI = 13, 14, 15, 16
    VW = 17
    VC = 20
    AC = 24
    VPQ = 28
    VEX = 30
    U, V = 32, 48
    XF, BF = 64, 80
    TMP = 112
    AX = 128
    FB2 = 144
    CR = 128
    A.label('L_p2')
    if cfg.stamps:
        A('v_mov_b32 v31, 0')
    A.stamp('start')
    load_tag(A)
    rho(A, cfg)
    map2(A, cfg)
    srd(A, R_WG, 24, 512 * 2752)
    srd(A, R_WU, 26, 512 * 2752)
    srd(A, R_WS, 36, WS_SIZE)
    srd(A, R_X, 4, 2048 * 1024)
    srd(A, R_B, 14, 512 * 1024)
    srd(A, R_E, 16, 512 * 1024)
    consts(A)
    A(f'v_mov_b32 {vr(TMP + 4)}, {X_CNT}\nv_mov_b32 {vr(TMP + 6)}, 0\nv_mov_b32 {vr(TMP + 7)}, 0')
    A.ds(f'ds_write_b64 {vr(TMP + 4)}, {vr(TMP + 6, 2)}')
    wffn_voffs(A, VW, TMP + 8)
    frag_addr(A, AC, TMP + 8)
    A(f's_lshl_b32 {sr(S_MB)}, {sr(S_W)}, 12')
    for s in range(4):
        A(f'v_add_u32 {vr(AX + s)}, {sr(S_MB)}, {vr(AC + s)}')
        A(f'v_add_u32 {vr(AX + 4 + s)}, {2 * SLOT}, {vr(AX + s)}')
        A(f'v_add_u32 {vr(AX + 8 + s)}, {2 * SLOT}, {vr(AC + s)}')
    A(f's_mul_i32 {sr(S_MB2)}, {sr(S_W)}, 3072')
    swz_consts(A, TMP + 4, TMP + 5, TMP + 6, TMP + 7)
    A(f's_lshl_b32 {sr(T0)}, {sr(S_N2)}, 16\ns_lshl_b32 {sr(T1)}, {sr(S_W)}, 8\ns_add_u32 {sr(T0)}, {sr(T0)}, {sr(T1)}')
    A(f'v_lshl_add_u32 {vr(TMP + 4)}, {vr(TMP + 4)}, 10, {sr(T0)}')
    A(f'v_add_u32 {vr(VC)}, {vr(TMP + 4)}, {vr(TMP + 5)}\nv_add_u32 {vr(VC + 1)}, {vr(TMP + 4)}, {vr(TMP + 6)}')
    A(f'v_add_u32 {vr(VC + 2)}, {2 * 7168}, {vr(VC)}\nv_add_u32 {vr(VC + 3)}, {3 * 7168}, {vr(VC + 1)}\nv_add_u32 {vr(VC + 1)}, 7168, {vr(VC + 1)}')
    A(f'v_and_b32 {vr(VEX)}, 31, v0\nv_lshlrev_b32 {vr(VEX)}, 3, {vr(VEX)}\nv_add_u32 {vr(VEX)}, {X_EX}, {vr(VEX)}')
    N0, N1, NS = TMP + 4, TMP + 5, TMP + 6
    A(f's_lshl_b32 {sr(T0)}, {sr(S_W)}, 2\ns_lshl_b32 {sr(T1)}, {sr(S_CG)}, 13\ns_add_u32 {sr(T1)}, {sr(T1)}, {AGG}')
    A(f'v_lshrrev_b32 {vr(TMP + 7)}, 5, v0\nv_and_b32 {vr(TMP + 8)}, 31, v0\nv_lshl_add_u32 {vr(TMP + 8)}, {vr(TMP + 8)}, 4, {sr(T1)}')
    A(f'v_mov_b32 {vr(TMP + 10)}, {OOB}')
    for j in range(2):
        A(f'v_add_u32 {vr(TMP + 9)}, {sr(T0)}, {vr(TMP + 7)}')
        if j:
            A(f'v_add_u32 {vr(TMP + 9)}, 2, {vr(TMP + 9)}')
        A(f'v_cmp_gt_u32 vcc, {sr(S_RT)}, {vr(TMP + 9)}')
        A(f'v_lshl_add_u32 {vr(VPQ + j)}, {vr(TMP + 9)}, 9, {vr(TMP + 8)}')
        A(f'v_sub_u32 {vr(N0 + j)}, {sr(S_RT)}, {vr(TMP + 9)}')
        A(f'v_cndmask_b32 {vr(VPQ + j)}, {vr(TMP + 10)}, {vr(VPQ + j)}, vcc')
        A(f'v_add_u32 {vr(N0 + j)}, -1, {vr(N0 + j)}\nv_max_i32 {vr(N0 + j)}, 0, {vr(N0 + j)}\nv_lshlrev_b32 {vr(N0 + j)}, 7, {vr(N0 + j)}\nv_cvt_f32_i32 {vr(N0 + j)}, {vr(N0 + j)}')
    A(f's_lshl_b32 {sr(T0)}, {sr(S_W)}, 5\nv_lshl_add_u32 {vr(NS)}, {vr(TMP + 7)}, 4, {sr(T0)}\nv_cvt_f32_i32 {vr(NS)}, {vr(NS)}')
    A.stamp('addr')
    A.wait_vm_all()
    LRE, LIM, DT, A2, BR = TMP + 1, TMP + 2, TMP + 3, TMP + 7, TMP + 8
    t0, t1, t2 = TMP + 9, TMP + 10, TMP + 11
    for r in (LRE, LIM, DT):
        A(f'v_lshlrev_b32 {vr(r)}, 16, {vr(r)}')
    A(f'v_mul_f32 {vr(DT)}, {LOG2E}, {vr(DT)}\nv_exp_f32 {vr(DT)}, {vr(DT)}\ns_nop 0')
    A(f'v_cvt_pk_bf16_f32 {vr(DT)}, {vr(DT)}, {vr(DT)}\nv_lshlrev_b32 {vr(DT)}, 16, {vr(DT)}')
    A(f'v_mul_f32 {vr(A2)}, {vr(DT)}, {vr(LRE)}\nv_mul_f32 {vr(BR)}, {vr(DT)}, {vr(LIM)}')
    A(f'v_mul_f32 {vr(A2)}, {LOG2E}, {vr(A2)}\nv_mul_f32 {vr(BR)}, {INV2PI}, {vr(BR)}')

    def cpow(dr, di, n):
        A(f'v_mul_f32 {vr(t0)}, {n}, {vr(A2)}\nv_mul_f32 {vr(t1)}, {n}, {vr(BR)}')
        A(f'v_exp_f32 {vr(t0)}, {vr(t0)}\nv_fract_f32 {vr(t1)}, {vr(t1)}')
        A(f'v_cos_f32 {vr(dr)}, {vr(t1)}\nv_sin_f32 {vr(di)}, {vr(t1)}')
        A(f'v_mul_f32 {vr(dr)}, {vr(t0)}, {vr(dr)}\nv_mul_f32 {vr(di)}, {vr(t0)}, {vr(di)}')
    cpow(LR, LI, '1.0')
    cpow(L16R, L16I, '0x41800000')
    cpow(L32R, L32I, '0x42000000')
    cpow(WQ, WQ + 1, vr(N0))
    cpow(WQ + 2, WQ + 3, vr(N1))
    cpow(WSR, WSI, vr(NS))
    A(f'v_mul_f32 {vr(t0)}, {vr(LRE)}, {vr(LRE)}\nv_fmac_f32 {vr(t0)}, {vr(LIM)}, {vr(LIM)}\nv_rcp_f32 {vr(t0)}, {vr(t0)}')
    A(f'v_add_f32 {vr(t1)}, -1.0, {vr(LR)}\nv_add_f32 {vr(t0)}, {vr(t0)}, {vr(t0)}')
    A(f'v_mul_f32 {vr(KR)}, {vr(t1)}, {vr(LRE)}\nv_fmac_f32 {vr(KR)}, {vr(LI)}, {vr(LIM)}')
    A(f'v_mul_f32 {vr(KI)}, {vr(LI)}, {vr(LRE)}\nv_fma_f32 {vr(KI)}, -{vr(t1)}, {vr(LIM)}, {vr(KI)}')
    A(f'v_mul_f32 {vr(KR)}, {vr(t0)}, {vr(KR)}\nv_mul_f32 {vr(KI)}, {vr(t0)}, {vr(KI)}')
    A(f's_lshl_b32 {sr(T0)}, {sr(S_W)}, 8\nv_add_u32 {vr(TMP + 8)}, {sr(T0)}, {vr(VEX)}')
    A(f's_lshl_b32 {sr(T0)}, {sr(S_CG)}, 4\ns_add_u32 {sr(T0)}, {sr(T0)}, {sr(S_RT)}\ns_lshl_b32 {sr(T0)}, {sr(T0)}, 9\ns_add_u32 {sr(T0)}, {sr(T0)}, {AGG}')
    A(f's_cmp_eq_u32 {sr(S_W)}, 0\ns_cselect_b32 {sr(T0)}, {sr(T0)}, {OOB}')
    A(f'v_lshl_add_u32 {vr(TMP + 9)}, v0, 4, {sr(T0)}')
    A.wait_lg_all()
    A(f's_add_u32 {sr(S_TAG)}, {sr(S_TAG)}, 0x9E3779B1')
    A.stamp('setup')

    def fb(i):
        return (XF, BF) if i % 2 else (FB2, FB2 + 16)

    def mm(i, s):
        xf, bf = fb(i)
        A.wait_lg(f'a{i}{s}')
        mfma(A, U, xf + 4 * s, bf + 8 * s, i == 0 and s == 0)
        A.wait_lg(f'b{i}{s}')
        mfma(A, V, xf + 4 * s, bf + 8 * s + 4, i == 0 and s == 0)
    for i in range(8):
        A('s_barrier')
        so = (i % 2) * SLOT
        hi = (i >> 1) & 1
        xf, bf = fb(i)
        for s in range(4):
            ab = AX + 8 + s if hi else AC + s
            A.ds(f'ds_read_b128 {vr(xf + 4 * s, 4)}, {vr(AX + 4 * hi + s)} offset:{so}', f'a{i}{s}')
            A.ds(f'ds_read_b128 {vr(bf + 8 * s, 4)}, {vr(ab)} offset:{so + 16384}', f'a{i}{s}')
            A.ds(f'ds_read_b128 {vr(bf + 8 * s + 4, 4)}, {vr(ab)} offset:{so + 20480}', f'b{i}{s}')
            if i and s < 2:
                mm(i - 1, 2 + s)
        mm(i, 0)
        mm(i, 1)
        if i < 7:
            A.wait_lg_all()
    mm(7, 2)
    mm(7, 3)
    A.flush()
    A.stamp('Aend')
    A(f's_add_u32 {sr(S_MB)}, {sr(S_MB)}, {P2B}')
    for s in range(4):
        A(f'v_add_u32 {vr(AC + s)}, {sr(S_MB)}, {vr(AC + s)}')
    GR = XF + 12
    A('s_nop 6')

    def cfma(dr, di, ar, ai, br, bi, cr, ci):
        A(f'v_fma_f32 {vr(dr)}, {vr(ar)}, {vr(br)}, {vr(cr)}\nv_fma_f32 {vr(di)}, {vr(ar)}, {vr(bi)}, {vr(ci)}')
        A(f'v_fma_f32 {vr(dr)}, -{vr(ai)}, {vr(bi)}, {vr(dr)}\nv_fma_f32 {vr(di)}, {vr(ai)}, {vr(br)}, {vr(di)}')
    pr, pi = U, V
    for r in range(1, 16):
        dr, di = TMP + 2 * (r % 2), TMP + 2 * (r % 2) + 1
        cfma(dr, di, LR, LI, pr, pi, U + r, V + r)
        pr, pi = dr, di
    E0R, E0I, E1R, E1I = TMP + 2, TMP + 3, TMP + 4, TMP + 5
    assert (pr, pi) == (E0R, E0I)
    A(f'v_mov_b32 {vr(E1R)}, {vr(E0R)}\nv_mov_b32 {vr(E1I)}, {vr(E0I)}')
    A(f'v_mov_b32 {vr(GR + 1)}, {sr(S_TAG)}\nv_mov_b32 {vr(GR + 3)}, {sr(S_TAG)}')
    A(f'v_permlane32_swap_b32 {vr(E0R)}, {vr(E1R)}\nv_permlane32_swap_b32 {vr(E0I)}, {vr(E1I)}')
    cfma(TMP + 6, TMP + 7, L16R, L16I, E0R, E0I, E1R, E1I)
    A.ds(f'ds_write_b64 {vr(TMP + 8)}, {vr(TMP + 6, 2)}')
    A.wait_lg_all()
    A.stamp('pass1')
    if cfg.prio:
        A('s_setprio 3')
    A('s_barrier')
    EW = XF
    for w in range(4):
        A.ds(f'ds_read_b64 {vr(EW + 2 * w, 2)}, {vr(VEX)} offset:{256 * w}')
    PA = XF + 8
    A.wait_lg_all()
    cfma(PA, PA + 1, L32R, L32I, EW, EW + 1, EW + 2, EW + 3)
    cfma(PA + 2, PA + 3, L32R, L32I, PA, PA + 1, EW + 4, EW + 5)
    cfma(GR, GR + 2, L32R, L32I, PA + 2, PA + 3, EW + 6, EW + 7)
    A('s_mov_b32 exec_hi, 0')
    A.vmem(f'buffer_store_dwordx4 {vr(GR, 4)}, {vr(TMP + 9)}, {sr(R_WS, 4)}, 0 offen sc1')
    A('s_mov_b64 exec, -1')
    if cfg.prio:
        A('s_setprio 0')
    A.stamp('pub')
    issue_w(A, 12, VW, S_MB2)
    PW = TMP + 10
    A(f'v_mov_b32 {vr(PW)}, 0\nv_mov_b32 {vr(PW + 1)}, 0')
    for w, src in ((1, EW), (2, PA), (3, PA + 2)):
        A(f's_cmp_eq_u32 {sr(S_W)}, {w}\ns_cselect_b64 vcc, -1, 0')
        A(f'v_cndmask_b32 {vr(PW)}, {vr(PW)}, {vr(src)}, vcc\nv_cndmask_b32 {vr(PW + 1)}, {vr(PW + 1)}, {vr(src + 1)}, vcc')
    cfma(LCR, LCI, L16R, L16I, PW, PW + 1, E0R, E0I)
    A('s_mov_b32 vcc_lo, -1\ns_mov_b32 vcc_hi, 0')
    A(f'v_cndmask_b32 {vr(LCR)}, {vr(LCR)}, {vr(PW)}, vcc\nv_cndmask_b32 {vr(LCI)}, {vr(LCI)}, {vr(PW + 1)}, vcc')

    def scale(rs):
        for r in rs:
            t = TMP + (r & 1)
            A(f'v_mul_f32 {vr(t)}, {vr(KI)}, {vr(V + r)}\nv_mul_f32 {vr(V + r)}, {vr(KR)}, {vr(V + r)}')
            A(f'v_fmac_f32 {vr(V + r)}, {vr(KI)}, {vr(U + r)}\nv_fma_f32 {vr(U + r)}, {vr(KR)}, {vr(U + r)}, -{vr(t)}')
    PQ = XF

    def pl_agg():
        for j in range(2):
            A.vmem(f'buffer_load_dwordx4 {vr(PQ + 4 * j, 4)}, {vr(VPQ + j)}, {sr(R_WS, 4)}, 0 offen sc1', 'pagg')

    def ck_agg():
        for j in range(2):
            A(f'v_cmp_eq_u32 {sr(S_C0, 2)}, {sr(S_TAG)}, {vr(PQ + 4 * j + 1)}\nv_cmp_eq_u32 {sr(S_C1, 2)}, {sr(S_TAG)}, {vr(PQ + 4 * j + 3)}')
            A(f'v_cmp_eq_u32 vcc, {OOB}, {vr(VPQ + j)}')
            A(f's_and_b64 {sr(S_C0, 2)}, {sr(S_C0, 2)}, {sr(S_C1, 2)}\ns_or_b64 {sr(S_C0, 2)}, {sr(S_C0, 2)}, vcc')
            if j == 0:
                A(f's_mov_b64 {sr(T2, 2)}, {sr(S_C0, 2)}')
        A(f's_and_b64 {sr(S_C0, 2)}, {sr(S_C0, 2)}, {sr(T2, 2)}\ns_cmp_eq_u64 {sr(S_C0, 2)}, -1')
    A('s_barrier')
    A.stamp('B1')
    issue_w(A, 13, VW, S_MB2)
    scale(range(0, 8))
    A('s_barrier')
    issue_w(A, 14, VW, S_MB2)
    scale(range(8, 16))
    pl_agg()
    AWR, ARD, VST = TMP + 4, TMP + 5, TMP + 6
    A(f's_lshl_b32 {sr(T0)}, {sr(S_W)}, 11\ns_add_u32 {sr(T0)}, {sr(T0)}, {X_TR}')
    A(f'v_and_b32 {vr(AWR)}, 31, v0\nv_lshrrev_b32 {vr(TMP)}, 5, v0\nv_lshl_add_u32 {vr(AWR)}, {vr(AWR)}, 1, {vr(TMP)}\nv_lshl_add_u32 {vr(AWR)}, {vr(AWR)}, 5, {sr(T0)}')
    A(f'v_bfe_u32 {vr(TMP + 1)}, v0, 2, 2\nv_lshl_add_u32 {vr(TMP)}, {vr(TMP)}, 3, {vr(TMP + 1)}\nv_lshl_add_u32 {vr(ARD)}, {vr(TMP)}, 6, {sr(T0)}')
    A(f'v_and_b32 {vr(TMP)}, 1, v0\nv_lshl_add_u32 {vr(ARD)}, {vr(TMP)}, 5, {vr(ARD)}')
    A(f'v_bfe_u32 {vr(TMP)}, v0, 4, 1\nv_lshl_add_u32 {vr(ARD)}, {vr(TMP)}, 4, {vr(ARD)}\nv_bfe_u32 {vr(TMP)}, v0, 1, 1\nv_lshl_add_u32 {vr(ARD)}, {vr(TMP)}, 3, {vr(ARD)}')
    A(f's_lshl_b32 {sr(T1)}, {sr(S_RT)}, 2\ns_add_u32 {sr(T1)}, {sr(T1)}, {sr(S_W)}\ns_mul_i32 {sr(T1)}, {sr(T1)}, {KSP}')
    A(f's_lshl_b32 {sr(T0)}, {sr(S_CG)}, 2\ns_add_u32 {sr(T1)}, {sr(T1)}, {sr(T0)}\ns_lshl_b32 {sr(T1)}, {sr(T1)}, 10')
    A(f'v_lshl_add_u32 {vr(VST)}, v0, 4, {sr(T1)}')
    A('s_barrier')
    A.stamp('B3')
    issue_w(A, 15, VW, S_MB2)
    A.wait_vm('pagg')
    spin(A, 'agg', pl_agg, ck_agg, cfg)
    A.stamp('aggok')
    Q = TMP
    A(f'v_mul_f32 {vr(Q)}, {vr(WQ)}, {vr(PQ)}\nv_mul_f32 {vr(Q + 1)}, {vr(WQ)}, {vr(PQ + 2)}')
    A(f'v_fma_f32 {vr(Q)}, -{vr(WQ + 1)}, {vr(PQ + 2)}, {vr(Q)}\nv_fmac_f32 {vr(Q + 1)}, {vr(WQ + 1)}, {vr(PQ)}')
    cfma(Q, Q + 1, WQ + 2, WQ + 3, PQ + 4, PQ + 6, Q, Q + 1)
    A(f'v_mov_b32 {vr(Q + 2)}, {vr(Q)}\nv_mov_b32 {vr(Q + 3)}, {vr(Q + 1)}\ns_nop 1')
    A(f'v_permlane32_swap_b32 {vr(Q)}, {vr(Q + 2)}\nv_permlane32_swap_b32 {vr(Q + 1)}, {vr(Q + 3)}')
    A(f'v_add_f32 {vr(Q)}, {vr(Q)}, {vr(Q + 2)}\nv_add_f32 {vr(Q + 1)}, {vr(Q + 1)}, {vr(Q + 3)}')
    A.ds(f'ds_write_b64 {vr(TMP + 8)}, {vr(Q, 2)} offset:1024')
    A(f's_and_b32 {sr(T0)}, {sr(S_W)}, 1\ns_lshl_b32 {sr(S_C0)}, {sr(T0)}, 15\ns_xor_b32 {sr(S_C0 + 1)}, {sr(S_C0)}, 0x8000')

    def dma_c(pc):
        blk, part, na = pc >> 2, (pc >> 1) & 1, pc & 1
        A(f's_add_u32 m0, {sr(S_MB)}, {(pc % 3) * 16384}')
        A(f's_add_u32 {sr(S_OA)}, {sr(S_C0 + na)}, {blk * 128}')
        for j in range(4):
            A.vmem(f'buffer_load_dwordx4 {vr(VC + j)}, {sr(R_E if part else R_B, 4)}, {sr(S_OA)} offen offset:{1024 * j} lds', f'c{pc}')

    def creg(t, na):
        return CR + 8 * t + 4 * na

    def mov_c(pc):
        na = pc & 1
        A.wait_vm(f'c{pc}')
        for s in range(4):
            A.ds(f'ds_read_b128 {vr(creg((pc >> 1) * 4 + s, na), 4)}, {vr(AC + s)} offset:{(pc % 3) * 16384}', f'mc{pc}')
        if pc + 3 < 8:
            A.wait_lg_all()
            dma_c(pc + 3)
    A.wait_vm('blk12')
    A.wait_lg_all()
    A('s_barrier')
    A.stamp('B4')
    for w in range(4):
        A.ds(f'ds_read_b64 {vr(EW + 2 * w, 2)}, {vr(VEX)} offset:{1024 + 256 * w}')
    dma_c(0)
    A.wait_lg_all()
    A(f'v_pk_add_f32 {vr(EW, 2)}, {vr(EW, 2)}, {vr(EW + 2, 2)}\nv_pk_add_f32 {vr(EW + 4, 2)}, {vr(EW + 4, 2)}, {vr(EW + 6, 2)}\nv_pk_add_f32 {vr(EW, 2)}, {vr(EW, 2)}, {vr(EW + 4, 2)}')
    cfma(LCR, LCI, WSR, WSI, EW, EW + 1, LCR, LCI)
    A(f'v_mul_f32 {vr(TMP)}, {vr(KR)}, {vr(LCR)}\nv_mul_f32 {vr(TMP + 1)}, {vr(KR)}, {vr(LCI)}')
    A(f'v_fma_f32 {vr(TMP)}, -{vr(KI)}, {vr(LCI)}, {vr(TMP)}\nv_fmac_f32 {vr(TMP + 1)}, {vr(KI)}, {vr(LCR)}')
    pr, pi = TMP, TMP + 1
    PK = XF
    for r in range(17):
        if r == cfg.p2_before_b5:
            A.wait_vm('blk15')
            A.stamp('preB5')
            A('s_barrier')
            dma_c(1)
            dma_c(2)
        if r == 16:
            break
        cfma(U + r, V + r, LR, LI, pr, pi, U + r, V + r)
        pr, pi = U + r, V + r
        if r % 2:
            A(f'v_cvt_pk_bf16_f32 {vr(PK + r // 2)}, {vr(U + r - 1)}, {vr(U + r)}')
            A(f'v_cvt_pk_bf16_f32 {vr(PK + 8 + r // 2)}, -{vr(V + r - 1)}, -{vr(V + r)}')
    A.stamp('pass2')
    HFR = BF
    for part in range(2):
        for j in range(2):
            A.ds(f'ds_write_b128 {vr(AWR)}, {vr(PK + 8 * part + 4 * j, 4)} offset:{16 * j}')
        for cj in range(2):
            for rd in range(2):
                A.ds(f'ds_read_b64_tr_b16 {vr(HFR + 8 * part + 4 * cj + 2 * rd, 2)}, {vr(ARD)} offset:{(16 * cj + 4 * rd) * 64}', f'h{part}{cj}')
    for part in range(2):
        for cj in range(2):
            A.wait_lg(f'h{part}{cj}')
            A.vmem(f'buffer_store_dwordx4 {vr(HFR + 8 * part + 4 * cj, 4)}, {vr(VST)}, {sr(R_WS, 4)}, 0 offen offset:{1024 * (2 * part + cj)} sc1', 'h')
    A.flush()
    A.stamp('hst')
    if cfg.prio:
        A('s_setprio 1')
    mov_c(0)
    A(f's_lshr_b32 {sr(T0)}, {sr(S_W)}, 1\ns_lshl_b32 {sr(T1)}, {sr(S_RT)}, 1\ns_add_u32 {sr(T1)}, {sr(T1)}, {sr(T0)}\ns_lshl_b32 {sr(T1)}, {sr(T1)}, 4')
    A(f's_add_u32 {sr(T1)}, {sr(T1)}, {sr(S_CG)}\ns_lshl_b32 {sr(T1)}, {sr(T1)}, 1\ns_and_b32 {sr(T0)}, {sr(S_W)}, 1\ns_add_u32 {sr(T1)}, {sr(T1)}, {sr(T0)}')
    A(f's_lshl_b32 {sr(T1)}, {sr(T1)}, 2\ns_add_u32 {sr(T1)}, {sr(T1)}, {HF}')
    A(f'v_mov_b32 {vr(TMP)}, {sr(S_TAG)}\nv_mov_b32 {vr(TMP + 1)}, 0')
    mov_c(1)
    mov_c(2)
    A.wait_vm('h')
    A('s_mov_b64 exec, 1')
    A.vmem(f'buffer_store_dword {vr(TMP)}, {vr(TMP + 1)}, {sr(R_WS, 4)}, {sr(T1)} offen sc1', 'fl')
    A('s_mov_b64 exec, -1')
    A.stamp('hflag')
    VA, VP, VG, VXS, PD, PG, DS = 1, 3, 4, 5, 6, 8, 10
    A(f's_lshr_b32 {sr(T0)}, {sr(S_W)}, 1\ns_lshl_b32 {sr(T1)}, {sr(S_M2)}, 1\ns_add_u32 {sr(T2)}, {sr(T1)}, {sr(T0)}\ns_xor_b32 {sr(T3)}, {sr(T2)}, 1')
    A(f's_lshl_b32 {sr(T1)}, {sr(T2)}, 8\ns_add_u32 {sr(T1)}, {sr(T1)}, {GAT}\nv_and_b32 {vr(VG)}, 31, v0\nv_lshl_add_u32 {vr(VG)}, {vr(VG)}, 3, {sr(T1)}')
    A(f's_and_b32 {sr(T0)}, {sr(S_W)}, 1\ns_lshl_b32 {sr(T1)}, {sr(S_N2)}, 1\ns_add_u32 {sr(T0)}, {sr(T0)}, {sr(T1)}\ns_lshl_b32 {sr(T0)}, {sr(T0)}, 6')
    A(f'v_and_b32 {vr(DS)}, 31, v0\nv_lshl_add_u32 {vr(DS)}, {vr(DS)}, 1, {sr(T0)}')
    A(f's_lshl_b32 {sr(T1)}, {sr(T2)}, 15\nv_lshrrev_b32 {vr(VXS)}, 5, v0\nv_lshl_add_u32 {vr(VXS)}, {vr(VXS)}, 14, {vr(DS)}\nv_add_u32 {vr(VXS)}, {sr(T1)}, {vr(VXS)}')
    A(f's_lshl_b32 {sr(T0)}, {sr(S_W)}, 4')
    for ma, t in ((0, T2), (1, T3)):
        A(f's_mul_i32 {sr(t)}, {sr(t)}, {KSP}\ns_add_u32 {sr(t)}, {sr(t)}, {sr(T0)}\ns_lshl_b32 {sr(t)}, {sr(t)}, 10')
        A(f'v_lshl_add_u32 {vr(VA + ma)}, v0, 4, {sr(t)}')
    A(f's_lshl_b32 {sr(T0)}, {sr(S_M2)}, 7\ns_lshl_b32 {sr(T1)}, {sr(S_W)}, 5\ns_add_u32 {sr(T0)}, {sr(T0)}, {sr(T1)}\ns_add_u32 {sr(T0)}, {sr(T0)}, {HF}')
    A(f'v_and_b32 {vr(VP)}, 7, v0\nv_lshl_add_u32 {vr(VP)}, {vr(VP)}, 2, {sr(T0)}')

    def pl_h():
        A.vmem(f'buffer_load_dword {vr(PD)}, {vr(VP)}, {sr(R_WS, 4)}, 0 offen sc1', 'ph')
        A.vmem(f'buffer_load_dwordx2 {vr(PG, 2)}, {vr(VG)}, {sr(R_WS, 4)}, 0 offen sc1', 'ph')

    def ck_h():
        A(f'v_cmp_eq_u32 vcc, {sr(S_TAG)}, {vr(PD)}\nv_cmp_eq_u32 {sr(S_C1, 2)}, {sr(S_TAG)}, {vr(PG + 1)}')
        A(f's_and_b64 vcc, vcc, {sr(S_C1, 2)}\ns_cmp_eq_u64 vcc, -1')
    ACC2 = 32
    free = [96, 104, 112, 120]
    areg = {}

    def kk(t):
        blk, part, s = t >> 3, (t >> 2) & 1, t & 3
        return 8 * blk + 4 * (s >> 1) + 2 * part + (s & 1)

    def ld_act(t):
        areg[t] = free.pop(0)
        for ma in range(2):
            A.vmem(f'buffer_load_dwordx4 {vr(areg[t] + 4 * ma, 4)}, {vr(VA + ma)}, {sr(R_WS, 4)}, {k4(kk(t) // 4)} offen offset:{1024 * (kk(t) % 4)} sc1', f'act{t}')
    mov_c(3)
    mov_c(4)
    A.vmem(f'global_load_ushort {vr(DS)}, {vr(DS)}, s[20:21]', 'xs')
    pl_h()
    for pc in range(5, 8):
        mov_c(pc)
    A.stamp('Cdone')
    A(f'v_lshl_add_u32 v11, v0, 4, {sr(S_MB)}')
    for a in (1, 2, 3):
        A(f's_xor_b32 {sr(T0)}, {sr(S_W)}, {a}\ns_lshl_b32 {sr(T0)}, {sr(T0)}, 12\ns_add_u32 {sr(T0)}, {sr(T0)}, {P2B}')
        A(f'v_lshl_add_u32 {vr(11 + a)}, v0, 4, {sr(T0)}')
    A(f'v_mov_b32 v15, {X_CNT}\nv_mov_b32 v16, 1')
    A.wait_vm('ph')
    spin(A, 'h', pl_h, ck_h, cfg)
    A.stamp('hpoll')
    for t in range(4):
        ld_act(t)
    A(f's_lshl_b32 {sr(T0)}, {sr(S_W)}, 7\ns_add_u32 {sr(T0)}, {sr(T0)}, {X_G}')
    A(f'v_and_b32 {vr(VP)}, 31, v0\nv_lshl_add_u32 {vr(VP)}, {vr(VP)}, 2, {sr(T0)}')
    A(f'v_lshrrev_b32 {vr(VG)}, 5, v0\nv_lshl_add_u32 {vr(VG)}, {vr(VG)}, 6, {sr(T0)}')
    A(f'v_sub_f32 {vr(PG + 1)}, 1.0, {vr(PG)}')
    A.ds(f'ds_write_b32 {vr(VP)}, {vr(PG)}')
    A.ds(f'ds_write_b32 {vr(VP)}, {vr(PG + 1)} offset:{X_OMG - X_G}')
    A.wait_lg_all()
    nxt = 4
    XS = None
    for t in range(16):
        A.wait_vm(f'act{t}')
        for a in (1, 2, 3, 0):
            mfma(A, ACC2 + 16 * a, areg[t] + 4 * (a >> 1), creg(t, a & 1), t == 0)
        free += [areg[t], creg(t, 0)]
        for _ in range(2):
            if nxt < 16:
                ld_act(nxt)
                nxt += 1
        if t == 9:
            XS = creg(8, 0)
            free.remove(creg(8, 0))
            free.remove(creg(9, 0))
            for r in range(16):
                A.vmem(f'buffer_load_ushort {vr(XS + r)}, {vr(VXS)}, {sr(R_X, 4)}, {k4(r // 4)} offen offset:{1024 * (r % 4)}', 'xs')
        if t == 0:
            A.stamp('S0')
    A.stamp('Send')
    A('s_nop 8')
    for a in (1, 2, 3):
        for j in range(4):
            A.ds(f'ds_write_b128 v11, {vr(ACC2 + 16 * a + 4 * j, 4)} offset:{(a - 1) * 16384 + j * 1024}')
    arrive(A, 15, 16, 4)
    GV = 96
    for j in range(4):
        A.ds(f'ds_read_b128 {vr(GV + 4 * j, 4)}, {vr(VG)} offset:{16 * j}')
    A.wait_vm('xs')
    A(f'v_lshlrev_b32 {vr(DS)}, 16, {vr(DS)}')
    for r in range(16):
        A(f'v_lshlrev_b32 {vr(XS + r)}, 16, {vr(XS + r)}')
        A(f'v_fmac_f32 {vr(ACC2 + r)}, {vr(XS + r)}, {vr(DS)}')
    await4(A, 'cntS', 15, 17, 4)
    A.stamp('X1')
    PB = 128
    for a in (1, 2, 3):
        for j in range(4):
            A.ds(f'ds_read_b128 {vr(PB + 16 * (a - 1) + 4 * j, 4)}, {vr(11 + a)} offset:{(a - 1) * 16384 + j * 1024}', f'r{a}')
    for a in (1, 2, 3):
        A.wait_lg(f'r{a}')
        for r in range(0, 16, 2):
            A(f'v_pk_add_f32 {vr(ACC2 + r, 2)}, {vr(ACC2 + r, 2)}, {vr(PB + 16 * (a - 1) + r, 2)}')
    for r in range(0, 16, 2):
        A(f'v_pk_mul_f32 {vr(ACC2 + r, 2)}, {vr(ACC2 + r, 2)}, {vr(GV + r, 2)}')
    for j in range(4):
        A.ds(f'ds_write_b128 v12, {vr(ACC2 + 4 * j, 4)} offset:{j * 1024}')
    A.wait_lg_all()
    A.stamp('Sfin')
    A('s_barrier')
    A(f's_lshl_b32 {sr(T0)}, {sr(S_M2)}, 5\ns_lshl_b32 {sr(T1)}, {sr(S_N2)}, 2\ns_add_u32 {sr(T0)}, {sr(T0)}, {sr(T1)}\ns_add_u32 {sr(T0)}, {sr(T0)}, {sr(S_W)}')
    A(f's_cmp_lg_u32 {sr(T0)}, {31 << 5}\ns_cbranch_scc1 L_p2_done')
    A(f'v_mov_b32 v1, {sr(S_TAG)}\nv_mov_b32 v2, {GW}\ns_mov_b64 exec, 1')
    A(f'buffer_store_dword v1, v2, {sr(R_WS, 4)}, 0 offen\ns_mov_b64 exec, -1')
    A.label('L_p2_done')
    A.dump_stamps(1)
    A.label('L_end')
    A('s_endpgm')
    A.label('L_codeend')
    return A


HEADER = open(os.path.join(os.path.dirname(os.path.abspath(__file__)), '..', 'cdna_kernels',
                           'gated_mix__ssm_conv_s5__swiglu_ffn__prompt.s.ref')).read().split('; Override launch')[0]


def generate(cfg):
    e, p1, p2 = gen_entry(cfg), gen_p1(cfg), gen_p2(cfg)
    probs = check_hazards(e.lines + p1.lines, 'p1') + check_hazards(e.lines + p2.lines, 'p2')
    for p in probs:
        print('HAZARD', p, file=sys.stderr)
    assert not probs
    nb1 = sum(l == 's_barrier' for l in p1.lines[:p1.lines.index('L_p1_gate:')])
    nb2 = sum(l == 's_barrier' for l in p2.lines)
    assert nb1 == nb2, (nb1, nb2)
    txt = HEADER + f'; @launch grid=(256,1,1) block=(512,1,1) lds={LDS}\n'
    txt += f'.amdgcn_target "amdgcn-amd-amdhsa--gfx950"\n.text\n.globl {K}\n.p2align 8\n.type {K},@function\n{K}:\n'
    txt += e.text() + p1.text() + p2.text()
    txt += f'''.section .rodata,"a"
.p2align 6
.amdhsa_kernel {K}
  .amdhsa_next_free_vgpr 256
  .amdhsa_next_free_sgpr 102
  .amdhsa_accum_offset 256
  .amdhsa_group_segment_fixed_size 0
  .amdhsa_kernarg_size 136
  .amdhsa_user_sgpr_count 2
  .amdhsa_user_sgpr_kernarg_segment_ptr 1
  .amdhsa_system_sgpr_workgroup_id_x 1
.end_amdhsa_kernel
'''
    return txt, (p1.names, p2.names)


if __name__ == '__main__':
    cfg = Cfg()
    out = sys.argv[1]
    for kv in sys.argv[2:]:
        k, v = kv.split('=')
        old = getattr(cfg, k)
        setattr(cfg, k, (v not in ('0', 'False')) if isinstance(old, bool) else type(old)(v))
    txt, names = generate(cfg)
    open(out, 'w').write(txt)
    if cfg.stamps:
        import json
        json.dump(names, open(out + '.names', 'w'))
```

```python
import sys, os
sys.path.insert(0, os.path.dirname(os.path.abspath(__file__)))
from asmlib import Stream, vr, sr, check_hazards

K = 'gated_mix__ssm_conv_s5__swiglu_ffn__prompt_kernel'

ACT = 0
KSP = 160
AGG = 0xA00000
GAT = 0xA20000
HF = 0xA30000
GF = 0xA31000
GW = 0xA32000
WS_SIZE = 0xA40000
STAMP = 0xF000000
OOB = 0x40000000
SLOT = 24576
P2B = 0
P1B = 2 * SLOT
WSLOT = [4, 5, 0, 1, 2, 3, 4, 5]
XB = 6 * SLOT
X_TR, X_EX, X_EX2, X_G, X_OMG, X_CNT = XB, XB + 8192, XB + 9216, XB + 10240, XB + 10752, XB + 11264
LDS = XB + 16384
S_RT, S_CG, S_M2, S_N2, S_W, S_TAG = 38, 39, 40, 41, 42, 43
R_WS, R_X, R_B, R_WG, R_WU, R_E, R_O = 44, 48, 52, 56, 60, 64, 68
S_OA, S_OW = 72, 73
S_K4 = 73
T0, T1, T2, T3 = 3, 81, 0, 1
S_MB = 82
S_MB2 = 83
S_C0 = 84
S_C1 = 86
S_CNT = 88
S_RHO, S_STAG = 22, 23
S_ST0 = 90
LOG2E = 0x3fb8aa3b
NLOG2E = 0xbfb8aa3b
INV2PI = 0x3e22f983


class Cfg:
    mapping = '84'
    map2 = '48'
    rot = True
    stag0 = 0
    nstag = 4
    p2_before_b5 = 8
    wd_early = 0
    w2pf = True
    probe = ''
    stamps = False
    D = 3
    DF = 5
    poll_after_piece = 5
    spin = 1 << 15
    code_pf = True
    out_flags = ''
    prio = True


class WS(Stream):
    def __init__(self, cfg, vst):
        super().__init__()
        self.cfg, self.vst = cfg, vst
        self.pend, self.names, self.nst = [], [], 0

    def stamp(self, name):
        role = '1' if self.vst == 7 else '2'
        if self.cfg.probe and self.cfg.probe[0] == role and (name == 'start' or self.cfg.probe[2:] == name):
            self('s_memrealtime s[98:99]')
        if not self.cfg.stamps:
            return
        if len(self.pend) == 6:
            self('s_waitcnt lgkmcnt(0)')
            self.lg = []
            self.flush()
        used = {p for p, _ in self.pend}
        p = [x for x in range(6) if x not in used][0]
        self(f's_memtime {sr(S_ST0 + 2 * p, 2)}')
        self.pend.append((p, self.nst))
        self.names.append(name)
        self.nst += 1

    def flush(self):
        for p, i in self.pend:
            self(f'v_writelane_b32 {vr(self.vst)}, {sr(S_ST0 + 2 * p)}, {i}')
        self.pend = []

    def wait_lg_all(self):
        super().wait_lg_all()
        self.flush()

    def dump_stamps(self, role):
        if self.cfg.probe and int(self.cfg.probe[0]) == role + 1:
            self('s_waitcnt lgkmcnt(0)\ns_add_u32 s98, s98, 3000')
            self.label('L_hold')
            self('s_memrealtime s[96:97]\ns_waitcnt lgkmcnt(0)\ns_sub_u32 s96, s96, s98\ns_cmp_lt_i32 s96, 0\ns_cbranch_scc1 L_hold')
        if not self.cfg.stamps:
            return
        self(f's_memrealtime {sr(S_C0, 2)}')
        self.wait_lg_all()
        self(f'v_writelane_b32 {vr(self.vst)}, {sr(S_C0)}, 62')
        self(f'v_writelane_b32 {vr(self.vst)}, s89, 63')
        self(f's_lshl_b32 {sr(T0)}, s2, 3\ns_add_u32 {sr(T0)}, {sr(T0)}, {sr(S_W)}\ns_add_u32 {sr(T0)}, {sr(T0)}, {4 * role}')
        self(f's_lshl_b32 {sr(T0)}, {sr(T0)}, 8\ns_add_u32 {sr(T0)}, {sr(T0)}, {STAMP}')
        self(f's_add_u32 s36, s36, {sr(T0)}\ns_addc_u32 s37, s37, 0')
        self('v_lshlrev_b32 v1, 2, v0')
        self(f'global_store_dword v1, {vr(self.vst)}, s[36:37]')


def srd(A, r, ptr, size):
    A(f's_mov_b32 {sr(r)}, {sr(ptr)}\ns_mov_b32 {sr(r + 1)}, {sr(ptr + 1)}\ns_mov_b32 {sr(r + 2)}, {size}\ns_mov_b32 {sr(r + 3)}, 0x20000')


def k4(k):
    return '0' if k == 0 else sr(S_K4 + k)


def swz_consts(A, vq8, vcA, vcB, t):
    A(f'v_lshrrev_b32 {vr(vq8)}, 3, v0')
    A(f'v_lshrrev_b32 {vr(t)}, 4, v0')
    A(f'v_and_b32 {vr(vcA)}, 7, v0')
    A(f'v_xor_b32 {vr(vcA)}, {vr(vcA)}, {vr(t)}')
    A(f'v_lshlrev_b32 {vr(vcA)}, 4, {vr(vcA)}')
    A(f'v_xor_b32 {vr(vcB)}, 64, {vr(vcA)}')


def frag_addr(A, a0, t):
    A(f'v_and_b32 {vr(a0)}, 31, v0')
    A(f'v_bfe_u32 {vr(t)}, v0, 1, 3')
    A(f'v_lshrrev_b32 {vr(a0 + 1)}, 5, v0')
    A(f'v_xor_b32 {vr(t)}, {vr(t)}, {vr(a0 + 1)}')
    A(f'v_lshlrev_b32 {vr(t)}, 4, {vr(t)}')
    A(f'v_lshl_add_u32 {vr(a0)}, {vr(a0)}, 7, {vr(t)}')
    for s in (1, 2, 3):
        A(f'v_xor_b32 {vr(a0 + s)}, {s << 5}, {vr(a0)}')


def wffn_voffs(A, vw, t):
    A(f's_mul_i32 {sr(T0)}, {sr(S_W)}, {16 * 2752}\ns_mul_i32 {sr(T1)}, {sr(S_CG)}, 192\ns_add_u32 {sr(T0)}, {sr(T0)}, {sr(T1)}')
    A(f's_mul_i32 {sr(T1)}, {sr(S_CG)}, 12\ns_sub_i32 {sr(T1)}, 172, {sr(T1)}')
    A(f'v_mov_b32 {vr(t + 3)}, {OOB}')
    for j in range(3):
        A(f'v_add_u32 {vr(t)}, {64 * j}, v0')
        A(f'v_mul_u32_u24 {vr(t + 1)}, 171, {vr(t)}')
        A(f'v_lshrrev_b32 {vr(t + 1)}, 11, {vr(t + 1)}')
        A(f'v_mul_u32_u24 {vr(t + 2)}, 12, {vr(t + 1)}')
        A(f'v_sub_u32 {vr(t)}, {vr(t)}, {vr(t + 2)}')
        A(f'v_cmp_gt_i32 vcc, {sr(T1)}, {vr(t)}')
        A(f'v_mul_u32_u24 {vr(t + 1)}, 2752, {vr(t + 1)}')
        A(f'v_lshl_add_u32 {vr(t + 1)}, {vr(t)}, 4, {vr(t + 1)}')
        if j:
            A(f'v_subrev_u32 {vr(t + 1)}, {1024 * j}, {vr(t + 1)}')
        A(f'v_add_u32 {vr(t + 1)}, {sr(T0)}, {vr(t + 1)}')
        A(f'v_cndmask_b32 {vr(vw + j)}, {vr(t + 3)}, {vr(t + 1)}, vcc')


def issue_a(A, b, vx, vb):
    sl = (b % 4) * SLOT
    A(f's_add_u32 m0, {sr(S_MB)}, {sl}')
    if b:
        A(f's_add_u32 {sr(S_OA)}, {sr(S_OA)}, 128\ns_and_b32 {sr(S_OA)}, {sr(S_OA)}, 1023')
    else:
        A(f's_lshl_b32 {sr(S_OA)}, {sr(S_RHO)}, 7')
    for j in range(4):
        A.vmem(f'buffer_load_dwordx4 {vr(vx + j)}, {sr(R_X, 4)}, {sr(S_OA)} offen offset:{1024 * j} lds', f'blk{b}')
    A(f's_add_u32 m0, {sr(S_MB2)}, {sl + 16384}\ns_nop 0')
    for j in range(2):
        A.vmem(f'buffer_load_dwordx4 {vr(vb + j)}, {sr(R_B, 4)}, {sr(S_OA)} offen offset:{1024 * j} lds', f'blk{b}')


def issue_w(A, b, vw, smb):
    sl = WSLOT[b - 8] * SLOT
    A(f's_add_u32 m0, {sr(smb)}, {sl}')
    A(f's_add_u32 {sr(S_OW)}, {sr(S_RHO)}, {b - 8}\ns_and_b32 {sr(S_OW)}, {sr(S_OW)}, 7\ns_mul_i32 {sr(S_OW)}, {sr(S_OW)}, {64 * 2752}')
    for j in range(3):
        A.vmem(f'buffer_load_dwordx4 {vr(vw + j)}, {sr(R_WG, 4)}, {sr(S_OW)} offen offset:{1024 * j} lds', f'blk{b}')
    A(f's_add_u32 m0, {sr(smb)}, {sl + 12288}\ns_nop 0')
    for j in range(3):
        A.vmem(f'buffer_load_dwordx4 {vr(vw + j)}, {sr(R_WU, 4)}, {sr(S_OW)} offen offset:{1024 * j} lds', f'blk{b}')


def spin(A, name, loads, check, cfg):
    A(f's_mov_b32 {sr(S_CNT)}, {cfg.spin}')
    A.label(f'L_{name}_chk')
    check()
    A(f's_cbranch_scc1 L_{name}_ok')
    A(f's_sub_u32 {sr(S_CNT)}, {sr(S_CNT)}, 1\ns_cmp_eq_u32 {sr(S_CNT)}, 0\ns_cbranch_scc1 L_{name}_ok')
    saved = list(A.vm)
    loads()
    A('s_waitcnt vmcnt(0)')
    A.vm = saved
    A(f's_branch L_{name}_chk')
    A.label(f'L_{name}_ok')


def arrive(A, va, vone, off):
    A('s_mov_b64 exec, 1')
    A.ds(f'ds_add_u32 {vr(va)}, {vr(vone)} offset:{off}')
    A('s_mov_b64 exec, -1')


def await4(A, name, va, vt, off):
    A.label(f'L_{name}')
    A.ds(f'ds_read_b32 {vr(vt)}, {vr(va)} offset:{off}')
    Stream.wait_lg_all(A)
    A(f'v_readfirstlane_b32 {sr(S_CNT)}, {vr(vt)}\ns_cmp_ge_u32 {sr(S_CNT)}, 4\ns_cbranch_scc0 L_{name}')
    A.flush()


def rho(A, cfg):
    if cfg.rot:
        m = (1, 2) if cfg.mapping == '84' else (2, 1)
        A(f's_mul_i32 {sr(S_RHO)}, {sr(S_RT)}, {m[0]}\ns_mul_i32 {sr(S_STAG)}, {sr(S_CG)}, {m[1]}\ns_add_u32 {sr(S_RHO)}, {sr(S_RHO)}, {sr(S_STAG)}\ns_and_b32 {sr(S_RHO)}, {sr(S_RHO)}, 7')
    else:
        A(f's_mov_b32 {sr(S_RHO)}, 0')


def mfma(A, d, a, b, first):
    A(f'v_mfma_f32_32x32x16_bf16 {vr(d, 16)}, {vr(a, 4)}, {vr(b, 4)}, {"0" if first else vr(d, 16)}')


def gen_entry(cfg):
    A = Stream()
    A('s_cmp_ge_u32 s2, 256\ns_cbranch_scc1 L_end')
    A('s_load_dwordx16 s[4:19], s[0:1], 0\ns_load_dwordx16 s[20:35], s[0:1], 64\ns_load_dwordx2 s[36:37], s[0:1], 128')
    if cfg.stamps:
        A('s_memrealtime s[88:89]')
    A('v_lshrrev_b32 v1, 6, v0\nv_and_b32 v0, 63, v0\nv_readfirstlane_b32 s3, v1')
    A('s_and_b32 s81, s2, 7\ns_lshr_b32 s82, s2, 3')
    if cfg.mapping == '48':
        A(f's_lshr_b32 {sr(S_RT)}, s81, 1\ns_lshl_b32 {sr(S_RT)}, {sr(S_RT)}, 2\ns_and_b32 s83, s82, 3\ns_add_u32 {sr(S_RT)}, {sr(S_RT)}, s83')
        A(f's_and_b32 {sr(S_CG)}, s81, 1\ns_lshl_b32 {sr(S_CG)}, {sr(S_CG)}, 3\ns_lshr_b32 s83, s82, 2\ns_add_u32 {sr(S_CG)}, {sr(S_CG)}, s83')
    else:
        A(f's_and_b32 {sr(S_RT)}, s81, 1\ns_lshl_b32 {sr(S_RT)}, {sr(S_RT)}, 3\ns_and_b32 s83, s82, 7\ns_add_u32 {sr(S_RT)}, {sr(S_RT)}, s83')
        A(f's_lshr_b32 {sr(S_CG)}, s81, 1\ns_lshl_b32 {sr(S_CG)}, {sr(S_CG)}, 2\ns_lshr_b32 s83, s82, 3\ns_add_u32 {sr(S_CG)}, {sr(S_CG)}, s83')
    A(f's_and_b32 {sr(S_W)}, s3, 3')
    A('s_cmp_lt_u32 s3, 4\ns_cbranch_scc1 L_p1')
    if cfg.code_pf:
        A(f's_and_b32 s83, s82, 3\ns_cmp_lg_u32 s83, {sr(S_W)}\ns_cbranch_scc1 L_nopf')
        A('s_getpc_b64 s[84:85]')
        A.label('L_pc')
        A(f's_sub_u32 s84, s84, L_pc-{K}\ns_subb_u32 s85, s85, 0')
        A(f's_lshl_b32 s83, s83, 13\nv_lshl_add_u32 v1, v0, 7, s83')
        A(f'v_min_u32 v1, L_codeend-{K}-4, v1')
        A('global_load_dword v2, v1, s[84:85]')
        A.label('L_nopf')
    A(f's_lshl_b32 s83, {sr(S_CG)}, 6')
    A(f'v_and_b32 v112, 31, v0\nv_lshl_add_u32 v112, v112, 1, s83')
    A('s_waitcnt lgkmcnt(0)')
    A('global_load_ushort v113, v112, s[6:7]\nglobal_load_ushort v114, v112, s[8:9]\nglobal_load_ushort v115, v112, s[18:19]')
    A('s_branch L_p2')
    A.label('L_p1')
    return A


def map2(A, cfg):
    A('s_and_b32 s81, s2, 7\ns_lshr_b32 s3, s2, 3')
    if cfg.map2 == '48':
        A(f's_lshl_b32 {sr(S_M2)}, s81, 2\ns_lshr_b32 s81, s3, 3\ns_add_u32 {sr(S_M2)}, {sr(S_M2)}, s81\ns_and_b32 {sr(S_N2)}, s3, 7')
    else:
        A(f's_lshr_b32 {sr(S_M2)}, s81, 1\ns_lshl_b32 {sr(S_M2)}, {sr(S_M2)}, 3\ns_and_b32 {sr(S_N2)}, s3, 7\ns_add_u32 {sr(S_M2)}, {sr(S_M2)}, {sr(S_N2)}')
        A(f's_and_b32 {sr(S_N2)}, s81, 1\ns_lshl_b32 {sr(S_N2)}, {sr(S_N2)}, 2\ns_lshr_b32 s3, s3, 3\ns_add_u32 {sr(S_N2)}, {sr(S_N2)}, s3')


def load_tag(A):
    if A.cfg.stamps:
        A('s_mov_b32 s89, s88')
    A(f's_add_u32 {sr(T2)}, s36, {GW}\ns_addc_u32 {sr(T3)}, s37, 0')
    A(f's_load_dword {sr(S_TAG)}, {sr(T2, 2)}, 0')


def consts(A):
    for k in range(1, 8):
        A(f's_mov_b32 {sr(S_K4 + k)}, {4096 * k}')


def gen_p1(cfg):
    A = WS(cfg, 7)
    TB = 1
    VCN, VONE = 4, 5
    WB = 8
    ACC = 32
    XR = 128
    VX, VB, VW, AX, TMP = 32, 36, 38, 44, 52
    D = cfg.D
    if cfg.stamps:
        A('v_mov_b32 v7, 0')
    A.stamp('start')
    swz_consts(A, TMP, TMP + 1, TMP + 2, TMP + 3)
    A(f's_lshl_b32 {sr(T1)}, {sr(S_RT)}, 2\ns_add_u32 {sr(T1)}, {sr(T1)}, {sr(S_W)}\ns_lshl_b32 {sr(T1)}, {sr(T1)}, 15')
    A(f'v_lshrrev_b32 {vr(TMP + 3)}, 5, v0')
    A(f'v_and_b32 {vr(TMP + 4)}, 3, {vr(TMP)}')
    A(f'v_lshl_add_u32 {vr(TMP + 3)}, {vr(TMP + 3)}, 4, {vr(TMP + 4)}')
    A(f'v_lshl_add_u32 {vr(TMP + 3)}, {vr(TMP + 3)}, 10, {sr(T1)}')
    A(f'v_add_u32 {vr(VX)}, {vr(TMP + 3)}, {vr(TMP + 1)}')
    A(f'v_add_u32 {vr(VX + 1)}, {vr(TMP + 3)}, {vr(TMP + 2)}')
    A(f'v_add_u32 {vr(VX + 2)}, {2 * 3072}, {vr(VX)}')
    A(f'v_add_u32 {vr(VX + 3)}, {3 * 3072}, {vr(VX + 1)}')
    A(f'v_add_u32 {vr(VX + 1)}, 3072, {vr(VX + 1)}')
    A(f's_and_b32 {sr(T0)}, {sr(S_W)}, 1\ns_lshl_b32 {sr(T1)}, {sr(S_CG)}, 1\ns_add_u32 {sr(T1)}, {sr(T1)}, {sr(T0)}\ns_lshl_b32 {sr(T1)}, {sr(T1)}, 14')
    A(f'v_lshl_add_u32 {vr(TMP + 3)}, {vr(TMP)}, 10, {sr(T1)}')
    A(f'v_add_u32 {vr(VB)}, {vr(TMP + 3)}, {vr(TMP + 1)}')
    A(f'v_add_u32 {vr(VB + 1)}, {vr(TMP + 3)}, {vr(TMP + 2)}')
    A(f'v_add_u32 {vr(VB + 1)}, 7168, {vr(VB + 1)}')
    A(f's_lshl_b32 {sr(S_MB)}, {sr(S_W)}, 12\ns_lshl_b32 {sr(S_MB2)}, {sr(S_W)}, 11')
    A(f's_mov_b32 {sr(R_B + 2)}, {512 * 1024}\ns_mov_b32 {sr(R_B + 3)}, 0x20000\ns_mov_b32 {sr(R_X + 2)}, {2048 * 1024}\ns_mov_b32 {sr(R_X + 3)}, 0x20000')
    A(f's_cmp_ge_u32 {sr(S_W)}, 2')
    A.wait_lg_all()
    A(f's_cselect_b32 {sr(R_B)}, s12, s10\ns_cselect_b32 {sr(R_B + 1)}, s13, s11\ns_mov_b32 {sr(R_X)}, s4\ns_mov_b32 {sr(R_X + 1)}, s5')
    rho(A, cfg)
    A.stamp('karg')
    for b in range(D):
        issue_a(A, b, VX, VB)
        if b == 0:
            load_tag(A)
        if b == 1:
            srd(A, R_WG, 24, 512 * 2752)
            srd(A, R_WU, 26, 512 * 2752)
            srd(A, R_WS, 36, WS_SIZE)
            srd(A, R_E, 28, 1376 * 1024)
            srd(A, R_O, 32, 2048 * 2048)
            consts(A)
            wffn_voffs(A, VW, TMP)
            frag_addr(A, AX, TMP)
            for s in range(4):
                A(f'v_add_u32 {vr(AX + s)}, {sr(S_MB)}, {vr(AX + s)}')
                A(f'v_add_u32 {vr(AX + 4 + s)}, {2 * SLOT}, {vr(AX + s)}')
            A(f'v_lshrrev_b32 {vr(TMP)}, 5, v0\nv_bfe_u32 {vr(TMP + 1)}, v0, 2, 2\nv_lshl_add_u32 {vr(TMP)}, {vr(TMP)}, 3, {vr(TMP + 1)}')
            A(f'v_mul_u32_u24 {vr(TMP)}, 192, {vr(TMP)}\nv_bfe_u32 {vr(TMP + 1)}, v0, 4, 1\nv_lshl_add_u32 {vr(TMP)}, {vr(TMP + 1)}, 5, {vr(TMP)}')
            A(f'v_and_b32 {vr(TMP + 1)}, 3, v0\nv_lshl_add_u32 {vr(TB)}, {vr(TMP + 1)}, 3, {vr(TMP)}')
            A(f'v_add_u32 {vr(TB + 1)}, {2 * SLOT}, {vr(TB)}\nv_add_u32 {vr(TB + 2)}, {4 * SLOT}, {vr(TB)}')
            A(f'v_mov_b32 {vr(VCN)}, {X_CNT}\nv_mov_b32 {vr(VONE)}, 1')
            A(f's_mul_i32 {sr(S_C1)}, {sr(S_W)}, 3072')
            map2(A, cfg)
            A(f's_lshr_b32 {sr(S_STAG)}, s2, 3\ns_and_b32 {sr(T0)}, s2, 1\ns_mul_i32 {sr(T0)}, {sr(T0)}, {cfg.nstag // 2}\ns_add_u32 {sr(S_STAG)}, {sr(S_STAG)}, {sr(T0)}')
            A(f's_and_b32 {sr(S_STAG)}, {sr(S_STAG)}, {cfg.nstag - 1}')
    A.stamp('issued0')
    A.wait_lg_all()
    A(f's_add_u32 {sr(S_TAG)}, {sr(S_TAG)}, 0x9E3779B1')
    for i in range(8):
        A.wait_vm(f'blk{i}')
        A.wait_lg_all()
        A('s_barrier')
        A.stamp(f'A{i}')
        for s in range(4):
            A.ds(f'ds_read_b128 {vr(XR + 16 * i + 4 * s, 4)}, {vr(AX + 4 * ((i >> 1) & 1) + s)} offset:{(i % 2) * SLOT}', 'x')
        b = i + D
        if b < 8:
            issue_a(A, b, VX, VB)
        else:
            issue_w(A, b + 1, VW, S_C1)
        if cfg.stag0 <= i < cfg.stag0 + cfg.nstag:
            A(f's_cmp_lg_u32 {sr(S_STAG)}, {i - cfg.stag0}\ns_cbranch_scc1 L_now0_{i}')
            saved = list(A.vm)
            issue_w(A, 8, VW, S_C1)
            A.vm = saved
            A.label(f'L_now0_{i}')
    assert cfg.stag0 + cfg.nstag <= 8 - D
    A.wait_lg_all()
    A(f's_cmp_eq_u32 {sr(S_CG)}, 15\ns_cbranch_scc1 L_p1_gate')
    vm_at_split = list(A.vm)
    if cfg.prio:
        A('s_setprio 2')

    def rd(n):
        b, s, j = n // 24, (n // 6) % 4, n % 6
        u, mat = j // 2, j % 2
        if n % 24 == 0:
            if b == 0:
                A(f's_waitcnt vmcnt({len(A.vm)})')
            A.wait_vm(f'blk{8 + b}')
            if b <= 5:
                A('s_barrier')
            if b in (0, 2, 4, 5, 7):
                A.stamp(f'B{b}')
        slot = WSLOT[b]
        for r in range(2):
            off = (slot % 2) * SLOT + mat * 12288 + s * 3072 + r * 768 + u * 64
            A.ds(f'ds_read_b64_tr_b16 {vr(WB + 4 * j + 2 * r, 2)}, {vr(TB + slot // 2)} offset:{off}', f'w{n}')
    for n in range(6):
        rd(n)
    VD = 152
    VST = 156
    TMP = 157
    fill = []
    F = Stream()
    F(f's_lshl_b32 {sr(T1)}, {sr(S_RT)}, 2\ns_add_u32 {sr(T1)}, {sr(T1)}, {sr(S_W)}\ns_mul_i32 {sr(T1)}, {sr(T1)}, {KSP}')
    F(f's_mul_i32 {sr(T0)}, {sr(S_CG)}, 6\ns_add_u32 {sr(T1)}, {sr(T1)}, {sr(T0)}\ns_add_u32 {sr(T1)}, {sr(T1)}, 64\ns_lshl_b32 {sr(T1)}, {sr(T1)}, 10')
    F(f'v_lshl_add_u32 {vr(VST)}, v0, 4, {sr(T1)}')
    F(f's_mov_b32 {sr(S_C0)}, {NLOG2E}\ns_mov_b32 {sr(S_C0 + 1)}, {NLOG2E}\ns_mov_b32 {sr(S_C1)}, 1.0\ns_mov_b32 {sr(S_C1 + 1)}, 1.0')

    def wd_voffs(F):
        F(f'v_lshrrev_b32 {vr(TMP)}, 3, v0\nv_bfe_u32 {vr(TMP + 1)}, v0, 4, 1\nv_lshlrev_b32 {vr(TMP + 1)}, 2, {vr(TMP + 1)}')
        F(f'v_and_b32 {vr(TMP + 2)}, 7, v0\nv_xor_b32 {vr(TMP + 1)}, {vr(TMP + 1)}, {vr(TMP + 2)}\nv_lshlrev_b32 {vr(TMP + 1)}, 4, {vr(TMP + 1)}')
        F(f'v_lshl_add_u32 {vr(TMP)}, {vr(TMP)}, 10, {vr(TMP + 1)}')
        F(f's_mul_i32 {sr(T0)}, {sr(S_W)}, {352 * 1024}\ns_lshl_b32 {sr(T1)}, {sr(S_N2)}, 7\ns_add_u32 {sr(T0)}, {sr(T0)}, {sr(T1)}')
        F(f'v_add_u32 {vr(VD)}, {sr(T0)}, {vr(TMP)}')
        for j in (1, 2, 3):
            F(f'v_add_u32 {vr(VD + j)}, {7168 * j}, {vr(VD)}')
        F(f's_mul_i32 {sr(S_MB)}, {sr(S_W)}, {SLOT}\ns_add_u32 {sr(S_MB)}, {sr(S_MB)}, {P1B}')
    wd_voffs(F)
    F(f's_lshr_b32 {sr(T0)}, {sr(S_W)}, 1\ns_lshl_b32 {sr(T1)}, {sr(S_RT)}, 1\ns_add_u32 {sr(T1)}, {sr(T1)}, {sr(T0)}\ns_lshl_b32 {sr(T1)}, {sr(T1)}, 4')
    F(f's_add_u32 {sr(T1)}, {sr(T1)}, {sr(S_CG)}\ns_lshl_b32 {sr(T1)}, {sr(T1)}, 1\ns_and_b32 {sr(T0)}, {sr(S_W)}, 1\ns_add_u32 {sr(T1)}, {sr(T1)}, {sr(T0)}')
    F(f's_lshl_b32 {sr(T1)}, {sr(T1)}, 2\ns_add_u32 {sr(S_MB2)}, {sr(T1)}, {GF}')
    fill = list(F.lines)
    for n in range(192):
        ks, j = n // 6, n % 6
        A.wait_lg(f'w{n}')
        mfma(A, ACC + 16 * j, WB + 4 * j, XR + 4 * ks, ks == 0)
        if n + 6 < 192:
            rd(n + 6)
        if n >= 140 and fill:
            A(fill.pop(0))
    assert not fill
    arrive(A, VCN, VONE, 0)
    A.stamp('E')

    def dma_wd(t):
        A(f's_add_u32 m0, {sr(S_MB)}, {(t % 12) * 2048}')
        A(f's_mov_b32 {sr(S_OW)}, {t * 16384}')
        for j in range(4):
            A.vmem(f'buffer_load_dwordx4 {vr(VD + j)}, {sr(R_E, 4)}, {sr(S_OW)} offen offset:{1024 * j} lds', f'wd{t + j // 2}')
    A('s_nop 1')
    wd_next = 0
    for u in range(3):
        G, U, P = ACC + 32 * u, ACC + 32 * u + 16, XR + 8 * u
        for r in range(0, 16, 2):
            A(f'v_pk_mul_f32 {vr(U + r, 2)}, {vr(G + r, 2)}, {vr(U + r, 2)}')
        for r in range(0, 16, 2):
            A(f'v_pk_mul_f32 {vr(G + r, 2)}, {vr(G + r, 2)}, {sr(S_C0, 2)}')
        for r in range(16):
            A(f'v_exp_f32 {vr(G + r)}, {vr(G + r)}')
        for r in range(0, 16, 2):
            A(f'v_pk_add_f32 {vr(G + r, 2)}, {vr(G + r, 2)}, {sr(S_C1, 2)}')
        for r in range(16):
            A(f'v_rcp_f32 {vr(G + r)}, {vr(G + r)}')
        for r in range(0, 16, 2):
            A(f'v_pk_mul_f32 {vr(U + r, 2)}, {vr(G + r, 2)}, {vr(U + r, 2)}')
        for r in range(0, 16, 2):
            A(f'v_cvt_pk_bf16_f32 {vr(P + r // 2)}, {vr(U + r)}, {vr(U + r + 1)}')
        for j in range(2):
            n = 2 * u + j
            A.vmem(f'buffer_store_dwordx4 {vr(P + 4 * j, 4)}, {vr(VST)}, {sr(R_WS, 4)}, {k4(n // 4)} offen offset:{1024 * (n % 4)} sc1', 'gu')
        if u == 0:
            await4(A, 'cntE', VCN, 6, 0)
        for _ in range(cfg.wd_early):
            dma_wd(wd_next)
            wd_next += 2
    A.stamp('epi')
    A(f'v_mov_b32 v2, {sr(S_TAG)}\nv_mov_b32 v3, 0')
    A.wait_vm('gu')
    A('s_mov_b64 exec, 1')
    A.vmem(f'buffer_store_dword v2, v3, {sr(R_WS, 4)}, {sr(S_MB2)} offen sc1', 'fl')
    A('s_mov_b64 exec, -1')
    if cfg.prio:
        A('s_setprio 0')
    A.label('L_p1_join')
    A.stamp('guflag')
    AW, VA, VP = 1, 3, 5
    ACC2 = 32
    TMP = 8
    for t in range(wd_next, 12, 2):
        dma_wd(t)
    A(f'v_lshrrev_b32 {vr(TMP)}, 5, v0\nv_bfe_u32 {vr(TMP + 1)}, v0, 2, 2\nv_lshl_add_u32 {vr(TMP)}, {vr(TMP)}, 2, {vr(TMP + 1)}')
    A(f's_and_b32 {sr(T0)}, {sr(S_W)}, 1\nv_bfe_u32 {vr(TMP + 1)}, v0, 3, 1\nv_xor_b32 {vr(TMP + 1)}, {sr(T0)}, {vr(TMP + 1)}')
    A(f'v_lshlrev_b32 {vr(TMP + 1)}, 6, {vr(TMP + 1)}\nv_lshl_add_u32 {vr(TMP)}, {vr(TMP)}, 7, {vr(TMP + 1)}')
    A(f'v_bfe_u32 {vr(TMP + 1)}, v0, 4, 1\nv_lshl_add_u32 {vr(TMP)}, {vr(TMP + 1)}, 5, {vr(TMP)}')
    A(f'v_and_b32 {vr(TMP + 1)}, 3, v0\nv_lshl_add_u32 {vr(TMP)}, {vr(TMP + 1)}, 3, {vr(TMP)}')
    A(f'v_add_u32 {vr(AW)}, {sr(S_MB)}, {vr(TMP)}\nv_xor_b32 {vr(AW + 1)}, 64, {vr(AW)}')
    A(f's_lshr_b32 {sr(T0)}, {sr(S_W)}, 1\ns_lshl_b32 {sr(T1)}, {sr(S_M2)}, 1\ns_add_u32 {sr(T2)}, {sr(T1)}, {sr(T0)}\ns_xor_b32 {sr(T3)}, {sr(T2)}, 1')
    A(f's_mul_i32 {sr(T0)}, {sr(S_W)}, 22\ns_add_u32 {sr(T0)}, {sr(T0)}, 64')
    for ma, t in ((0, T2), (1, T3)):
        A(f's_mul_i32 {sr(t)}, {sr(t)}, {KSP}\ns_add_u32 {sr(t)}, {sr(t)}, {sr(T0)}\ns_lshl_b32 {sr(t)}, {sr(t)}, 10')
        A(f'v_lshl_add_u32 {vr(VA + ma)}, v0, 4, {sr(t)}')
    A(f's_mul_i32 {sr(T0)}, {sr(S_W)}, 11\ns_add_u32 {sr(T1)}, {sr(T0)}, 10\ns_mul_i32 {sr(T0)}, {sr(T0)}, 43\ns_lshr_b32 {sr(T0)}, {sr(T0)}, 7')
    A(f's_mul_i32 {sr(T1)}, {sr(T1)}, 43\ns_lshr_b32 {sr(T1)}, {sr(T1)}, 7\ns_lshl_b32 {sr(T0)}, {sr(T0)}, 1\ns_lshl_b32 {sr(T1)}, {sr(T1)}, 1\ns_add_u32 {sr(T1)}, {sr(T1)}, 1')
    A(f'v_add_u32 {vr(VP)}, {sr(T0)}, v0\nv_min_u32 {vr(VP)}, {sr(T1)}, {vr(VP)}')
    A(f's_lshl_b32 {sr(T0)}, {sr(S_M2)}, 7\ns_add_u32 {sr(T0)}, {sr(T0)}, {GF}')
    A(f'v_lshl_add_u32 {vr(VP)}, {vr(VP)}, 2, {sr(T0)}')

    def pl():
        A.vmem(f'buffer_load_dword v6, {vr(VP)}, {sr(R_WS, 4)}, 0 offen sc1', 'poll')

    def ck():
        A(f'v_cmp_eq_u32 vcc, {sr(S_TAG)}, v6\ns_cmp_eq_u64 vcc, -1')
    pl()
    RW, RR, RF, RG, RO = 96, 97, 100, 101, 102
    A(f'v_lshl_add_u32 {vr(RW)}, v0, 4, {sr(S_MB)}')
    for a in (1, 2, 3):
        A(f's_xor_b32 {sr(T0)}, {sr(S_W)}, {a}\ns_mul_i32 {sr(T0)}, {sr(T0)}, {SLOT}\ns_add_u32 {sr(T0)}, {sr(T0)}, {P1B}')
        A(f'v_lshl_add_u32 {vr(RR + a - 1)}, v0, 4, {sr(T0)}')
    A(f's_xor_b32 {sr(T0)}, {sr(S_W)}, 1\ns_lshl_b32 {sr(T0)}, {sr(T0)}, 12\ns_add_u32 {sr(T0)}, {sr(T0)}, {P2B}')
    A(f'v_lshl_add_u32 {vr(RF)}, v0, 4, {sr(T0)}')
    A(f's_lshl_b32 {sr(T0)}, {sr(S_W)}, 7\ns_add_u32 {sr(T0)}, {sr(T0)}, {X_OMG}')
    A(f'v_lshrrev_b32 {vr(RG)}, 5, v0\nv_lshl_add_u32 {vr(RG)}, {vr(RG)}, 6, {sr(T0)}')
    A(f's_lshr_b32 {sr(T0)}, {sr(S_W)}, 1\ns_lshl_b32 {sr(T1)}, {sr(S_M2)}, 1\ns_add_u32 {sr(T0)}, {sr(T0)}, {sr(T1)}\ns_lshl_b32 {sr(T0)}, {sr(T0)}, 16')
    A(f's_and_b32 {sr(T1)}, {sr(S_W)}, 1\ns_lshl_b32 {sr(T2)}, {sr(S_N2)}, 1\ns_add_u32 {sr(T1)}, {sr(T1)}, {sr(T2)}\ns_lshl_b32 {sr(T1)}, {sr(T1)}, 7\ns_add_u32 {sr(T0)}, {sr(T0)}, {sr(T1)}')
    A(f'v_lshrrev_b32 {vr(RO)}, 5, v0\nv_and_b32 {vr(RO + 1)}, 31, v0\nv_lshlrev_b32 {vr(RO + 1)}, 2, {vr(RO + 1)}\nv_lshl_add_u32 {vr(RO)}, {vr(RO)}, 15, {vr(RO + 1)}\nv_add_u32 {vr(RO)}, {sr(T0)}, {vr(RO)}')
    A.wait_vm('poll')
    spin(A, 'gu', pl, ck, cfg)
    A.stamp('gupoll')
    AB, NB = 160, 12

    def ld_act(t):
        for ma in range(2):
            A.vmem(f'buffer_load_dwordx4 {vr(AB + 8 * (t % NB) + 4 * ma, 4)}, {vr(VA + ma)}, {sr(R_WS, 4)}, {k4(t // 4)} offen offset:{1024 * (t % 4)} sc1', f'act{t}')

    def rd_wd(t):
        A.wait_vm(f'wd{t}')
        for na in range(2):
            for r in range(2):
                A.ds(f'ds_read_b64_tr_b16 {vr(WB + 8 * (t % 3) + 4 * na + 2 * r, 2)}, {vr(AW + na)} offset:{(t % 12) * 2048 + r * 1024}', f'wf{t}')
    DF = cfg.DF
    for t in range(DF):
        ld_act(t)
    rd_wd(0)
    for t in range(22):
        if t + DF < 22:
            ld_act(t + DF)
        if t + 1 < 22:
            rd_wd(t + 1)
        A.wait_vm(f'act{t}')
        A.wait_lg(f'wf{t}')
        for a in (1, 2, 3, 0):
            mfma(A, ACC2 + 16 * a, AB + 8 * (t % NB) + 4 * (a >> 1), WB + 8 * (t % 3) + 4 * (a & 1), t == 0)
        if t % 2 == 1 and t + 11 < 22:
            dma_wd(t + 11)
        if t in (0, 11):
            A.stamp(f'F{t}')
    A.stamp('Fend')
    A('s_nop 8')
    for a in (1, 2, 3):
        for j in range(4):
            A.ds(f'ds_write_b128 {vr(RW)}, {vr(ACC2 + 16 * a + 4 * j, 4)} offset:{(a - 1) * 4096 + j * 1024}')
    A.wait_lg_all()
    A('s_barrier')
    A.stamp('X2')
    PB = 160
    for j in range(4):
        for a in (1, 2, 3):
            A.ds(f'ds_read_b128 {vr(PB + 16 * (a - 1) + 4 * j, 4)}, {vr(RR + a - 1)} offset:{(a - 1) * 4096 + j * 1024}', f'r{j}')
        A.ds(f'ds_read_b128 {vr(PB + 48 + 4 * j, 4)}, {vr(RF)} offset:{j * 1024}', f'r{j}')
        A.ds(f'ds_read_b128 {vr(PB + 64 + 4 * j, 4)}, {vr(RG)} offset:{j * 16}', f'r{j}')
    for j in range(4):
        A.wait_lg(f'r{j}')
        for r in range(4 * j, 4 * j + 4, 2):
            A(f'v_pk_add_f32 {vr(ACC2 + r, 2)}, {vr(ACC2 + r, 2)}, {vr(PB + r, 2)}')
            A(f'v_pk_add_f32 {vr(PB + 16 + r, 2)}, {vr(PB + 16 + r, 2)}, {vr(PB + 32 + r, 2)}')
        for r in range(4 * j, 4 * j + 4, 2):
            A(f'v_pk_add_f32 {vr(ACC2 + r, 2)}, {vr(ACC2 + r, 2)}, {vr(PB + 16 + r, 2)}')
        for r in range(4 * j, 4 * j + 4, 2):
            A(f'v_pk_fma_f32 {vr(ACC2 + r, 2)}, {vr(ACC2 + r, 2)}, {vr(PB + 64 + r, 2)}, {vr(PB + 48 + r, 2)}')
        for r in range(4 * j, 4 * j + 4):
            A.vmem(f'buffer_store_dword {vr(ACC2 + r)}, {vr(RO)}, {sr(R_O, 4)}, {k4(r // 2)} offen offset:{2048 * (r % 2)} {cfg.out_flags}')
    A.stamp('stored')
    if cfg.stamps:
        A.wait_vm_all()
        A.stamp('done')
    A.dump_stamps(0)
    A('s_endpgm')

    A.label('L_p1_gate')
    A.vm = vm_at_split
    A.wait_vm_all()
    A('s_barrier')
    srd(A, R_B, 30, 1024)
    srd(A, R_WG, 14, 512 * 1024)
    srd(A, R_WU, 16, 512 * 1024)
    A('v_lshrrev_b32 v1, 5, v0\nv_lshlrev_b32 v1, 4, v1\nv_lshlrev_b32 v3, 7, v0')
    A(f's_lshl_b32 {sr(T2)}, {sr(S_RT)}, 2\ns_add_u32 {sr(T2)}, {sr(T2)}, {sr(S_W)}\ns_lshl_b32 {sr(T3)}, {sr(T2)}, 13\ns_mul_i32 {sr(S_C0)}, {sr(T2)}, 22016')
    for a in range(4):
        A(f'v_mov_b32 {vr(8 + a)}, 0')

    def pf(r, so):
        if cfg.w2pf:
            A.vmem(f'buffer_load_dword v2, v3, {sr(r, 4)}, {sr(so)} offen')
    for half in range(2):
        for s in range(16):
            if s % 4 == 0:
                A(f's_add_u32 {sr(S_OA)}, {sr(S_OA)}, 128\ns_and_b32 {sr(S_OA)}, {sr(S_OA)}, 1023')
            A.vmem(f'buffer_load_dwordx4 {vr(32 + 4 * s, 4)}, v1, {sr(R_B, 4)}, {sr(S_OA)} offen offset:{32 * (s % 4)}', 'gw')
        pf(R_WU if half else R_WG, T3)
        if half == 0:
            A('s_barrier\ns_barrier\ns_barrier')
        A.wait_vm('gw')
        for s in range(16):
            for e in range(4):
                A(f'v_dot2c_f32_bf16 {vr(8 + e)}, {vr(XR + 4 * (16 * half + s) + e)}, {vr(32 + 4 * s + e)}')
    A('s_nop 2')
    A('v_add_f32 v8, v8, v9\nv_add_f32 v10, v10, v11\nv_add_f32 v8, v8, v10\nv_mov_b32 v9, v8\ns_nop 1')
    A('v_permlane32_swap_b32 v8, v9\nv_add_f32 v8, v8, v9')
    A('v_cvt_pk_bf16_f32 v8, v8, v8\nv_lshlrev_b32 v8, 16, v8')
    A(f'v_mul_f32 v8, {NLOG2E}, v8\nv_exp_f32 v8, v8\ns_nop 0\nv_add_f32 v8, 1.0, v8\nv_rcp_f32 v8, v8\ns_nop 0')
    A(f'v_cvt_pk_bf16_f32 v8, v8, v8\nv_lshlrev_b32 v8, 16, v8\nv_mov_b32 v9, {sr(S_TAG)}')
    A('v_bfe_u32 v10, v0, 2, 1\nv_bfe_u32 v11, v0, 3, 2\nv_and_b32 v12, 3, v0\nv_lshl_add_u32 v11, v11, 2, v12\nv_lshl_add_u32 v10, v10, 4, v11')
    A(f's_lshl_b32 {sr(T1)}, {sr(T2)}, 8\ns_add_u32 {sr(T1)}, {sr(T1)}, {GAT}')
    A(f'v_lshlrev_b32 v10, 3, v10')
    A('s_mov_b32 exec_hi, 0')
    A(f'buffer_store_dwordx2 v[8:9], v10, {sr(R_WS, 4)}, {sr(T1)} offen sc1')
    A('s_mov_b64 exec, -1')
    A('s_waitcnt vmcnt(1)')
    for b in range(3):
        pf(R_E, S_C0)
        A(f's_add_u32 {sr(S_C0)}, {sr(S_C0)}, 8192')
        if b == 0:
            A('s_barrier\ns_barrier')
        A('s_waitcnt vmcnt(0)')
    TMP = 157
    wd_voffs(A)
    for t in range(0, wd_next, 2):
        dma_wd(t)
    A('s_waitcnt vmcnt(0)')
    A('s_branch L_p1_join')
    return A


def gen_p2(cfg):
    A = WS(cfg, 31)
    LR, LI, L16R, L16I, L32R, L32I, KR, KI = 1, 2, 3, 4, 5, 6, 7, 8
    WQ = 9
    WSR, WSI, LCR, LCI = 13, 14, 15, 16
    VW = 17
    VC = 20
    AC = 24
    VPQ = 28
    VEX = 30
    U, V = 32, 48
    XF, BF = 64, 80
    TMP = 112
    AX = 128
    FB2 = 144
    CR = 128
    A.label('L_p2')
    if cfg.stamps:
        A('v_mov_b32 v31, 0')
    A.stamp('start')
    load_tag(A)
    rho(A, cfg)
    map2(A, cfg)
    srd(A, R_WG, 24, 512 * 2752)
    srd(A, R_WU, 26, 512 * 2752)
    srd(A, R_WS, 36, WS_SIZE)
    srd(A, R_X, 4, 2048 * 1024)
    srd(A, R_B, 14, 512 * 1024)
    srd(A, R_E, 16, 512 * 1024)
    consts(A)
    A(f'v_mov_b32 {vr(TMP + 4)}, {X_CNT}\nv_mov_b32 {vr(TMP + 6)}, 0\nv_mov_b32 {vr(TMP + 7)}, 0')
    A.ds(f'ds_write_b64 {vr(TMP + 4)}, {vr(TMP + 6, 2)}')
    wffn_voffs(A, VW, TMP + 8)
    frag_addr(A, AC, TMP + 8)
    A(f's_lshl_b32 {sr(S_MB)}, {sr(S_W)}, 12')
    for s in range(4):
        A(f'v_add_u32 {vr(AX + s)}, {sr(S_MB)}, {vr(AC + s)}')
        A(f'v_add_u32 {vr(AX + 4 + s)}, {2 * SLOT}, {vr(AX + s)}')
        A(f'v_add_u32 {vr(AX + 8 + s)}, {2 * SLOT}, {vr(AC + s)}')
    A(f's_mul_i32 {sr(S_MB2)}, {sr(S_W)}, 3072')
    swz_consts(A, TMP + 4, TMP + 5, TMP + 6, TMP + 7)
    A(f's_lshl_b32 {sr(T0)}, {sr(S_N2)}, 16\ns_lshl_b32 {sr(T1)}, {sr(S_W)}, 8\ns_add_u32 {sr(T0)}, {sr(T0)}, {sr(T1)}')
    A(f'v_lshl_add_u32 {vr(TMP + 4)}, {vr(TMP + 4)}, 10, {sr(T0)}')
    A(f'v_add_u32 {vr(VC)}, {vr(TMP + 4)}, {vr(TMP + 5)}\nv_add_u32 {vr(VC + 1)}, {vr(TMP + 4)}, {vr(TMP + 6)}')
    A(f'v_add_u32 {vr(VC + 2)}, {2 * 7168}, {vr(VC)}\nv_add_u32 {vr(VC + 3)}, {3 * 7168}, {vr(VC + 1)}\nv_add_u32 {vr(VC + 1)}, 7168, {vr(VC + 1)}')
    A(f'v_and_b32 {vr(VEX)}, 31, v0\nv_lshlrev_b32 {vr(VEX)}, 3, {vr(VEX)}\nv_add_u32 {vr(VEX)}, {X_EX}, {vr(VEX)}')
    N0, N1, NS = TMP + 4, TMP + 5, TMP + 6
    A(f's_lshl_b32 {sr(T0)}, {sr(S_W)}, 2\ns_lshl_b32 {sr(T1)}, {sr(S_CG)}, 13\ns_add_u32 {sr(T1)}, {sr(T1)}, {AGG}')
    A(f'v_lshrrev_b32 {vr(TMP + 7)}, 5, v0\nv_and_b32 {vr(TMP + 8)}, 31, v0\nv_lshl_add_u32 {vr(TMP + 8)}, {vr(TMP + 8)}, 4, {sr(T1)}')
    A(f'v_mov_b32 {vr(TMP + 10)}, {OOB}')
    for j in range(2):
        A(f'v_add_u32 {vr(TMP + 9)}, {sr(T0)}, {vr(TMP + 7)}')
        if j:
            A(f'v_add_u32 {vr(TMP + 9)}, 2, {vr(TMP + 9)}')
        A(f'v_cmp_gt_u32 vcc, {sr(S_RT)}, {vr(TMP + 9)}')
        A(f'v_lshl_add_u32 {vr(VPQ + j)}, {vr(TMP + 9)}, 9, {vr(TMP + 8)}')
        A(f'v_sub_u32 {vr(N0 + j)}, {sr(S_RT)}, {vr(TMP + 9)}')
        A(f'v_cndmask_b32 {vr(VPQ + j)}, {vr(TMP + 10)}, {vr(VPQ + j)}, vcc')
        A(f'v_add_u32 {vr(N0 + j)}, -1, {vr(N0 + j)}\nv_max_i32 {vr(N0 + j)}, 0, {vr(N0 + j)}\nv_lshlrev_b32 {vr(N0 + j)}, 7, {vr(N0 + j)}\nv_cvt_f32_i32 {vr(N0 + j)}, {vr(N0 + j)}')
    A(f's_lshl_b32 {sr(T0)}, {sr(S_W)}, 5\nv_lshl_add_u32 {vr(NS)}, {vr(TMP + 7)}, 4, {sr(T0)}\nv_cvt_f32_i32 {vr(NS)}, {vr(NS)}')
    A.stamp('addr')
    A.wait_vm_all()
    LRE, LIM, DT, A2, BR = TMP + 1, TMP + 2, TMP + 3, TMP + 7, TMP + 8
    t0, t1, t2 = TMP + 9, TMP + 10, TMP + 11
    for r in (LRE, LIM, DT):
        A(f'v_lshlrev_b32 {vr(r)}, 16, {vr(r)}')
    A(f'v_mul_f32 {vr(DT)}, {LOG2E}, {vr(DT)}\nv_exp_f32 {vr(DT)}, {vr(DT)}\ns_nop 0')
    A(f'v_cvt_pk_bf16_f32 {vr(DT)}, {vr(DT)}, {vr(DT)}\nv_lshlrev_b32 {vr(DT)}, 16, {vr(DT)}')
    A(f'v_mul_f32 {vr(A2)}, {vr(DT)}, {vr(LRE)}\nv_mul_f32 {vr(BR)}, {vr(DT)}, {vr(LIM)}')
    A(f'v_mul_f32 {vr(A2)}, {LOG2E}, {vr(A2)}\nv_mul_f32 {vr(BR)}, {INV2PI}, {vr(BR)}')

    def cpow(dr, di, n):
        A(f'v_mul_f32 {vr(t0)}, {n}, {vr(A2)}\nv_mul_f32 {vr(t1)}, {n}, {vr(BR)}')
        A(f'v_exp_f32 {vr(t0)}, {vr(t0)}\nv_fract_f32 {vr(t1)}, {vr(t1)}')
        A(f'v_cos_f32 {vr(dr)}, {vr(t1)}\nv_sin_f32 {vr(di)}, {vr(t1)}')
        A(f'v_mul_f32 {vr(dr)}, {vr(t0)}, {vr(dr)}\nv_mul_f32 {vr(di)}, {vr(t0)}, {vr(di)}')
    cpow(LR, LI, '1.0')
    cpow(L16R, L16I, '0x41800000')
    cpow(L32R, L32I, '0x42000000')
    cpow(WQ, WQ + 1, vr(N0))
    cpow(WQ + 2, WQ + 3, vr(N1))
    cpow(WSR, WSI, vr(NS))
    A(f'v_mul_f32 {vr(t0)}, {vr(LRE)}, {vr(LRE)}\nv_fmac_f32 {vr(t0)}, {vr(LIM)}, {vr(LIM)}\nv_rcp_f32 {vr(t0)}, {vr(t0)}')
    A(f'v_add_f32 {vr(t1)}, -1.0, {vr(LR)}\nv_add_f32 {vr(t0)}, {vr(t0)}, {vr(t0)}')
    A(f'v_mul_f32 {vr(KR)}, {vr(t1)}, {vr(LRE)}\nv_fmac_f32 {vr(KR)}, {vr(LI)}, {vr(LIM)}')
    A(f'v_mul_f32 {vr(KI)}, {vr(LI)}, {vr(LRE)}\nv_fma_f32 {vr(KI)}, -{vr(t1)}, {vr(LIM)}, {vr(KI)}')
    A(f'v_mul_f32 {vr(KR)}, {vr(t0)}, {vr(KR)}\nv_mul_f32 {vr(KI)}, {vr(t0)}, {vr(KI)}')
    A(f's_lshl_b32 {sr(T0)}, {sr(S_W)}, 8\nv_add_u32 {vr(TMP + 8)}, {sr(T0)}, {vr(VEX)}')
    A(f's_lshl_b32 {sr(T0)}, {sr(S_CG)}, 4\ns_add_u32 {sr(T0)}, {sr(T0)}, {sr(S_RT)}\ns_lshl_b32 {sr(T0)}, {sr(T0)}, 9\ns_add_u32 {sr(T0)}, {sr(T0)}, {AGG}')
    A(f's_cmp_eq_u32 {sr(S_W)}, 0\ns_cselect_b32 {sr(T0)}, {sr(T0)}, {OOB}')
    A(f'v_lshl_add_u32 {vr(TMP + 9)}, v0, 4, {sr(T0)}')
    A.wait_lg_all()
    A(f's_add_u32 {sr(S_TAG)}, {sr(S_TAG)}, 0x9E3779B1')
    A.stamp('setup')

    def fb(i):
        return (XF, BF) if i % 2 else (FB2, FB2 + 16)

    def mm(i, s):
        xf, bf = fb(i)
        A.wait_lg(f'a{i}{s}')
        mfma(A, U, xf + 4 * s, bf + 8 * s, i == 0 and s == 0)
        A.wait_lg(f'b{i}{s}')
        mfma(A, V, xf + 4 * s, bf + 8 * s + 4, i == 0 and s == 0)
    for i in range(8):
        A('s_barrier')
        so = (i % 2) * SLOT
        hi = (i >> 1) & 1
        xf, bf = fb(i)
        for s in range(4):
            ab = AX + 8 + s if hi else AC + s
            A.ds(f'ds_read_b128 {vr(xf + 4 * s, 4)}, {vr(AX + 4 * hi + s)} offset:{so}', f'a{i}{s}')
            A.ds(f'ds_read_b128 {vr(bf + 8 * s, 4)}, {vr(ab)} offset:{so + 16384}', f'a{i}{s}')
            A.ds(f'ds_read_b128 {vr(bf + 8 * s + 4, 4)}, {vr(ab)} offset:{so + 20480}', f'b{i}{s}')
            if i and s < 2:
                mm(i - 1, 2 + s)
        mm(i, 0)
        mm(i, 1)
        if i < 7:
            A.wait_lg_all()
    mm(7, 2)
    mm(7, 3)
    A.flush()
    A.stamp('Aend')
    A(f's_add_u32 {sr(S_MB)}, {sr(S_MB)}, {P2B}')
    for s in range(4):
        A(f'v_add_u32 {vr(AC + s)}, {sr(S_MB)}, {vr(AC + s)}')
    GR = XF + 12
    A('s_nop 6')

    def cfma(dr, di, ar, ai, br, bi, cr, ci):
        A(f'v_fma_f32 {vr(dr)}, {vr(ar)}, {vr(br)}, {vr(cr)}\nv_fma_f32 {vr(di)}, {vr(ar)}, {vr(bi)}, {vr(ci)}')
        A(f'v_fma_f32 {vr(dr)}, -{vr(ai)}, {vr(bi)}, {vr(dr)}\nv_fma_f32 {vr(di)}, {vr(ai)}, {vr(br)}, {vr(di)}')
    pr, pi = U, V
    for r in range(1, 16):
        dr, di = TMP + 2 * (r % 2), TMP + 2 * (r % 2) + 1
        cfma(dr, di, LR, LI, pr, pi, U + r, V + r)
        pr, pi = dr, di
    E0R, E0I, E1R, E1I = TMP + 2, TMP + 3, TMP + 4, TMP + 5
    assert (pr, pi) == (E0R, E0I)
    A(f'v_mov_b32 {vr(E1R)}, {vr(E0R)}\nv_mov_b32 {vr(E1I)}, {vr(E0I)}')
    A(f'v_mov_b32 {vr(GR + 1)}, {sr(S_TAG)}\nv_mov_b32 {vr(GR + 3)}, {sr(S_TAG)}')
    A(f'v_permlane32_swap_b32 {vr(E0R)}, {vr(E1R)}\nv_permlane32_swap_b32 {vr(E0I)}, {vr(E1I)}')
    cfma(TMP + 6, TMP + 7, L16R, L16I, E0R, E0I, E1R, E1I)
    A.ds(f'ds_write_b64 {vr(TMP + 8)}, {vr(TMP + 6, 2)}')
    A.wait_lg_all()
    A.stamp('pass1')
    if cfg.prio:
        A('s_setprio 3')
    A('s_barrier')
    EW = XF
    for w in range(4):
        A.ds(f'ds_read_b64 {vr(EW + 2 * w, 2)}, {vr(VEX)} offset:{256 * w}')
    PA = XF + 8
    A.wait_lg_all()
    cfma(PA, PA + 1, L32R, L32I, EW, EW + 1, EW + 2, EW + 3)
    cfma(PA + 2, PA + 3, L32R, L32I, PA, PA + 1, EW + 4, EW + 5)
    cfma(GR, GR + 2, L32R, L32I, PA + 2, PA + 3, EW + 6, EW + 7)
    A('s_mov_b32 exec_hi, 0')
    A.vmem(f'buffer_store_dwordx4 {vr(GR, 4)}, {vr(TMP + 9)}, {sr(R_WS, 4)}, 0 offen sc1')
    A('s_mov_b64 exec, -1')
    if cfg.prio:
        A('s_setprio 0')
    A.stamp('pub')
    issue_w(A, 12, VW, S_MB2)
    PW = TMP + 10
    A(f'v_mov_b32 {vr(PW)}, 0\nv_mov_b32 {vr(PW + 1)}, 0')
    for w, src in ((1, EW), (2, PA), (3, PA + 2)):
        A(f's_cmp_eq_u32 {sr(S_W)}, {w}\ns_cselect_b64 vcc, -1, 0')
        A(f'v_cndmask_b32 {vr(PW)}, {vr(PW)}, {vr(src)}, vcc\nv_cndmask_b32 {vr(PW + 1)}, {vr(PW + 1)}, {vr(src + 1)}, vcc')
    cfma(LCR, LCI, L16R, L16I, PW, PW + 1, E0R, E0I)
    A('s_mov_b32 vcc_lo, -1\ns_mov_b32 vcc_hi, 0')
    A(f'v_cndmask_b32 {vr(LCR)}, {vr(LCR)}, {vr(PW)}, vcc\nv_cndmask_b32 {vr(LCI)}, {vr(LCI)}, {vr(PW + 1)}, vcc')

    def scale(rs):
        for r in rs:
            t = TMP + (r & 1)
            A(f'v_mul_f32 {vr(t)}, {vr(KI)}, {vr(V + r)}\nv_mul_f32 {vr(V + r)}, {vr(KR)}, {vr(V + r)}')
            A(f'v_fmac_f32 {vr(V + r)}, {vr(KI)}, {vr(U + r)}\nv_fma_f32 {vr(U + r)}, {vr(KR)}, {vr(U + r)}, -{vr(t)}')
    PQ = XF

    def pl_agg():
        for j in range(2):
            A.vmem(f'buffer_load_dwordx4 {vr(PQ + 4 * j, 4)}, {vr(VPQ + j)}, {sr(R_WS, 4)}, 0 offen sc1', 'pagg')

    def ck_agg():
        for j in range(2):
            A(f'v_cmp_eq_u32 {sr(S_C0, 2)}, {sr(S_TAG)}, {vr(PQ + 4 * j + 1)}\nv_cmp_eq_u32 {sr(S_C1, 2)}, {sr(S_TAG)}, {vr(PQ + 4 * j + 3)}')
            A(f'v_cmp_eq_u32 vcc, {OOB}, {vr(VPQ + j)}')
            A(f's_and_b64 {sr(S_C0, 2)}, {sr(S_C0, 2)}, {sr(S_C1, 2)}\ns_or_b64 {sr(S_C0, 2)}, {sr(S_C0, 2)}, vcc')
            if j == 0:
                A(f's_mov_b64 {sr(T2, 2)}, {sr(S_C0, 2)}')
        A(f's_and_b64 {sr(S_C0, 2)}, {sr(S_C0, 2)}, {sr(T2, 2)}\ns_cmp_eq_u64 {sr(S_C0, 2)}, -1')
    A('s_barrier')
    A.stamp('B1')
    issue_w(A, 13, VW, S_MB2)
    scale(range(0, 8))
    A('s_barrier')
    issue_w(A, 14, VW, S_MB2)
    scale(range(8, 16))
    pl_agg()
    AWR, ARD, VST = TMP + 4, TMP + 5, TMP + 6
    A(f's_lshl_b32 {sr(T0)}, {sr(S_W)}, 11\ns_add_u32 {sr(T0)}, {sr(T0)}, {X_TR}')
    A(f'v_and_b32 {vr(AWR)}, 31, v0\nv_lshrrev_b32 {vr(TMP)}, 5, v0\nv_lshl_add_u32 {vr(AWR)}, {vr(AWR)}, 1, {vr(TMP)}\nv_lshl_add_u32 {vr(AWR)}, {vr(AWR)}, 5, {sr(T0)}')
    A(f'v_bfe_u32 {vr(TMP + 1)}, v0, 2, 2\nv_lshl_add_u32 {vr(TMP)}, {vr(TMP)}, 3, {vr(TMP + 1)}\nv_lshl_add_u32 {vr(ARD)}, {vr(TMP)}, 6, {sr(T0)}')
    A(f'v_and_b32 {vr(TMP)}, 1, v0\nv_lshl_add_u32 {vr(ARD)}, {vr(TMP)}, 5, {vr(ARD)}')
    A(f'v_bfe_u32 {vr(TMP)}, v0, 4, 1\nv_lshl_add_u32 {vr(ARD)}, {vr(TMP)}, 4, {vr(ARD)}\nv_bfe_u32 {vr(TMP)}, v0, 1, 1\nv_lshl_add_u32 {vr(ARD)}, {vr(TMP)}, 3, {vr(ARD)}')
    A(f's_lshl_b32 {sr(T1)}, {sr(S_RT)}, 2\ns_add_u32 {sr(T1)}, {sr(T1)}, {sr(S_W)}\ns_mul_i32 {sr(T1)}, {sr(T1)}, {KSP}')
    A(f's_lshl_b32 {sr(T0)}, {sr(S_CG)}, 2\ns_add_u32 {sr(T1)}, {sr(T1)}, {sr(T0)}\ns_lshl_b32 {sr(T1)}, {sr(T1)}, 10')
    A(f'v_lshl_add_u32 {vr(VST)}, v0, 4, {sr(T1)}')
    A('s_barrier')
    A.stamp('B3')
    issue_w(A, 15, VW, S_MB2)
    A.wait_vm('pagg')
    spin(A, 'agg', pl_agg, ck_agg, cfg)
    A.stamp('aggok')
    Q = TMP
    A(f'v_mul_f32 {vr(Q)}, {vr(WQ)}, {vr(PQ)}\nv_mul_f32 {vr(Q + 1)}, {vr(WQ)}, {vr(PQ + 2)}')
    A(f'v_fma_f32 {vr(Q)}, -{vr(WQ + 1)}, {vr(PQ + 2)}, {vr(Q)}\nv_fmac_f32 {vr(Q + 1)}, {vr(WQ + 1)}, {vr(PQ)}')
    cfma(Q, Q + 1, WQ + 2, WQ + 3, PQ + 4, PQ + 6, Q, Q + 1)
    A(f'v_mov_b32 {vr(Q + 2)}, {vr(Q)}\nv_mov_b32 {vr(Q + 3)}, {vr(Q + 1)}\ns_nop 1')
    A(f'v_permlane32_swap_b32 {vr(Q)}, {vr(Q + 2)}\nv_permlane32_swap_b32 {vr(Q + 1)}, {vr(Q + 3)}')
    A(f'v_add_f32 {vr(Q)}, {vr(Q)}, {vr(Q + 2)}\nv_add_f32 {vr(Q + 1)}, {vr(Q + 1)}, {vr(Q + 3)}')
    A.ds(f'ds_write_b64 {vr(TMP + 8)}, {vr(Q, 2)} offset:1024')
    A(f's_and_b32 {sr(T0)}, {sr(S_W)}, 1\ns_lshl_b32 {sr(S_C0)}, {sr(T0)}, 15\ns_xor_b32 {sr(S_C0 + 1)}, {sr(S_C0)}, 0x8000')

    def dma_c(pc):
        blk, part, na = pc >> 2, (pc >> 1) & 1, pc & 1
        A(f's_add_u32 m0, {sr(S_MB)}, {(pc % 3) * 16384}')
        A(f's_add_u32 {sr(S_OA)}, {sr(S_C0 + na)}, {blk * 128}')
        for j in range(4):
            A.vmem(f'buffer_load_dwordx4 {vr(VC + j)}, {sr(R_E if part else R_B, 4)}, {sr(S_OA)} offen offset:{1024 * j} lds', f'c{pc}')

    def creg(t, na):
        return CR + 8 * t + 4 * na

    def mov_c(pc):
        na = pc & 1
        A.wait_vm(f'c{pc}')
        for s in range(4):
            A.ds(f'ds_read_b128 {vr(creg((pc >> 1) * 4 + s, na), 4)}, {vr(AC + s)} offset:{(pc % 3) * 16384}', f'mc{pc}')
        if pc + 3 < 8:
            A.wait_lg_all()
            dma_c(pc + 3)
    A.wait_vm('blk12')
    A.wait_lg_all()
    A('s_barrier')
    A.stamp('B4')
    for w in range(4):
        A.ds(f'ds_read_b64 {vr(EW + 2 * w, 2)}, {vr(VEX)} offset:{1024 + 256 * w}')
    dma_c(0)
    A.wait_lg_all()
    A(f'v_pk_add_f32 {vr(EW, 2)}, {vr(EW, 2)}, {vr(EW + 2, 2)}\nv_pk_add_f32 {vr(EW + 4, 2)}, {vr(EW + 4, 2)}, {vr(EW + 6, 2)}\nv_pk_add_f32 {vr(EW, 2)}, {vr(EW, 2)}, {vr(EW + 4, 2)}')
    cfma(LCR, LCI, WSR, WSI, EW, EW + 1, LCR, LCI)
    A(f'v_mul_f32 {vr(TMP)}, {vr(KR)}, {vr(LCR)}\nv_mul_f32 {vr(TMP + 1)}, {vr(KR)}, {vr(LCI)}')
    A(f'v_fma_f32 {vr(TMP)}, -{vr(KI)}, {vr(LCI)}, {vr(TMP)}\nv_fmac_f32 {vr(TMP + 1)}, {vr(KI)}, {vr(LCR)}')
    pr, pi = TMP, TMP + 1
    PK = XF
    for r in range(17):
        if r == cfg.p2_before_b5:
            A.wait_vm('blk15')
            A.stamp('preB5')
            A('s_barrier')
            dma_c(1)
            dma_c(2)
        if r == 16:
            break
        cfma(U + r, V + r, LR, LI, pr, pi, U + r, V + r)
        pr, pi = U + r, V + r
        if r % 2:
            A(f'v_cvt_pk_bf16_f32 {vr(PK + r // 2)}, {vr(U + r - 1)}, {vr(U + r)}')
            A(f'v_cvt_pk_bf16_f32 {vr(PK + 8 + r // 2)}, -{vr(V + r - 1)}, -{vr(V + r)}')
    A.stamp('pass2')
    HFR = BF
    for part in range(2):
        for j in range(2):
            A.ds(f'ds_write_b128 {vr(AWR)}, {vr(PK + 8 * part + 4 * j, 4)} offset:{16 * j}')
        for cj in range(2):
            for rd in range(2):
                A.ds(f'ds_read_b64_tr_b16 {vr(HFR + 8 * part + 4 * cj + 2 * rd, 2)}, {vr(ARD)} offset:{(16 * cj + 4 * rd) * 64}', f'h{part}{cj}')
    for part in range(2):
        for cj in range(2):
            A.wait_lg(f'h{part}{cj}')
            A.vmem(f'buffer_store_dwordx4 {vr(HFR + 8 * part + 4 * cj, 4)}, {vr(VST)}, {sr(R_WS, 4)}, 0 offen offset:{1024 * (2 * part + cj)} sc1', 'h')
    A.flush()
    A.stamp('hst')
    if cfg.prio:
        A('s_setprio 1')
    mov_c(0)
    A(f's_lshr_b32 {sr(T0)}, {sr(S_W)}, 1\ns_lshl_b32 {sr(T1)}, {sr(S_RT)}, 1\ns_add_u32 {sr(T1)}, {sr(T1)}, {sr(T0)}\ns_lshl_b32 {sr(T1)}, {sr(T1)}, 4')
    A(f's_add_u32 {sr(T1)}, {sr(T1)}, {sr(S_CG)}\ns_lshl_b32 {sr(T1)}, {sr(T1)}, 1\ns_and_b32 {sr(T0)}, {sr(S_W)}, 1\ns_add_u32 {sr(T1)}, {sr(T1)}, {sr(T0)}')
    A(f's_lshl_b32 {sr(T1)}, {sr(T1)}, 2\ns_add_u32 {sr(T1)}, {sr(T1)}, {HF}')
    A(f'v_mov_b32 {vr(TMP)}, {sr(S_TAG)}\nv_mov_b32 {vr(TMP + 1)}, 0')
    mov_c(1)
    mov_c(2)
    A.wait_vm('h')
    A('s_mov_b64 exec, 1')
    A.vmem(f'buffer_store_dword {vr(TMP)}, {vr(TMP + 1)}, {sr(R_WS, 4)}, {sr(T1)} offen sc1', 'fl')
    A('s_mov_b64 exec, -1')
    A.stamp('hflag')
    VA, VP, VG, VXS, PD, PG, DS = 1, 3, 4, 5, 6, 8, 10
    A(f's_lshr_b32 {sr(T0)}, {sr(S_W)}, 1\ns_lshl_b32 {sr(T1)}, {sr(S_M2)}, 1\ns_add_u32 {sr(T2)}, {sr(T1)}, {sr(T0)}\ns_xor_b32 {sr(T3)}, {sr(T2)}, 1')
    A(f's_lshl_b32 {sr(T1)}, {sr(T2)}, 8\ns_add_u32 {sr(T1)}, {sr(T1)}, {GAT}\nv_and_b32 {vr(VG)}, 31, v0\nv_lshl_add_u32 {vr(VG)}, {vr(VG)}, 3, {sr(T1)}')
    A(f's_and_b32 {sr(T0)}, {sr(S_W)}, 1\ns_lshl_b32 {sr(T1)}, {sr(S_N2)}, 1\ns_add_u32 {sr(T0)}, {sr(T0)}, {sr(T1)}\ns_lshl_b32 {sr(T0)}, {sr(T0)}, 6')
    A(f'v_and_b32 {vr(DS)}, 31, v0\nv_lshl_add_u32 {vr(DS)}, {vr(DS)}, 1, {sr(T0)}')
    A(f's_lshl_b32 {sr(T1)}, {sr(T2)}, 15\nv_lshrrev_b32 {vr(VXS)}, 5, v0\nv_lshl_add_u32 {vr(VXS)}, {vr(VXS)}, 14, {vr(DS)}\nv_add_u32 {vr(VXS)}, {sr(T1)}, {vr(VXS)}')
    A(f's_lshl_b32 {sr(T0)}, {sr(S_W)}, 4')
    for ma, t in ((0, T2), (1, T3)):
        A(f's_mul_i32 {sr(t)}, {sr(t)}, {KSP}\ns_add_u32 {sr(t)}, {sr(t)}, {sr(T0)}\ns_lshl_b32 {sr(t)}, {sr(t)}, 10')
        A(f'v_lshl_add_u32 {vr(VA + ma)}, v0, 4, {sr(t)}')
    A(f's_lshl_b32 {sr(T0)}, {sr(S_M2)}, 7\ns_lshl_b32 {sr(T1)}, {sr(S_W)}, 5\ns_add_u32 {sr(T0)}, {sr(T0)}, {sr(T1)}\ns_add_u32 {sr(T0)}, {sr(T0)}, {HF}')
    A(f'v_and_b32 {vr(VP)}, 7, v0\nv_lshl_add_u32 {vr(VP)}, {vr(VP)}, 2, {sr(T0)}')

    def pl_h():
        A.vmem(f'buffer_load_dword {vr(PD)}, {vr(VP)}, {sr(R_WS, 4)}, 0 offen sc1', 'ph')
        A.vmem(f'buffer_load_dwordx2 {vr(PG, 2)}, {vr(VG)}, {sr(R_WS, 4)}, 0 offen sc1', 'ph')

    def ck_h():
        A(f'v_cmp_eq_u32 vcc, {sr(S_TAG)}, {vr(PD)}\nv_cmp_eq_u32 {sr(S_C1, 2)}, {sr(S_TAG)}, {vr(PG + 1)}')
        A(f's_and_b64 vcc, vcc, {sr(S_C1, 2)}\ns_cmp_eq_u64 vcc, -1')
    ACC2 = 32
    free = [96, 104, 112, 120]
    areg = {}

    def kk(t):
        blk, part, s = t >> 3, (t >> 2) & 1, t & 3
        return 8 * blk + 4 * (s >> 1) + 2 * part + (s & 1)

    def ld_act(t):
        areg[t] = free.pop(0)
        for ma in range(2):
            A.vmem(f'buffer_load_dwordx4 {vr(areg[t] + 4 * ma, 4)}, {vr(VA + ma)}, {sr(R_WS, 4)}, {k4(kk(t) // 4)} offen offset:{1024 * (kk(t) % 4)} sc1', f'act{t}')
    mov_c(3)
    mov_c(4)
    A.vmem(f'global_load_ushort {vr(DS)}, {vr(DS)}, s[20:21]', 'xs')
    pl_h()
    for pc in range(5, 8):
        mov_c(pc)
    A.stamp('Cdone')
    A(f'v_lshl_add_u32 v11, v0, 4, {sr(S_MB)}')
    for a in (1, 2, 3):
        A(f's_xor_b32 {sr(T0)}, {sr(S_W)}, {a}\ns_lshl_b32 {sr(T0)}, {sr(T0)}, 12\ns_add_u32 {sr(T0)}, {sr(T0)}, {P2B}')
        A(f'v_lshl_add_u32 {vr(11 + a)}, v0, 4, {sr(T0)}')
    A(f'v_mov_b32 v15, {X_CNT}\nv_mov_b32 v16, 1')
    A.wait_vm('ph')
    spin(A, 'h', pl_h, ck_h, cfg)
    A.stamp('hpoll')
    for t in range(4):
        ld_act(t)
    A(f's_lshl_b32 {sr(T0)}, {sr(S_W)}, 7\ns_add_u32 {sr(T0)}, {sr(T0)}, {X_G}')
    A(f'v_and_b32 {vr(VP)}, 31, v0\nv_lshl_add_u32 {vr(VP)}, {vr(VP)}, 2, {sr(T0)}')
    A(f'v_lshrrev_b32 {vr(VG)}, 5, v0\nv_lshl_add_u32 {vr(VG)}, {vr(VG)}, 6, {sr(T0)}')
    A(f'v_sub_f32 {vr(PG + 1)}, 1.0, {vr(PG)}')
    A.ds(f'ds_write_b32 {vr(VP)}, {vr(PG)}')
    A.ds(f'ds_write_b32 {vr(VP)}, {vr(PG + 1)} offset:{X_OMG - X_G}')
    A.wait_lg_all()
    nxt = 4
    XS = None
    for t in range(16):
        A.wait_vm(f'act{t}')
        for a in (1, 2, 3, 0):
            mfma(A, ACC2 + 16 * a, areg[t] + 4 * (a >> 1), creg(t, a & 1), t == 0)
        free += [areg[t], creg(t, 0)]
        for _ in range(2):
            if nxt < 16:
                ld_act(nxt)
                nxt += 1
        if t == 9:
            XS = creg(8, 0)
            free.remove(creg(8, 0))
            free.remove(creg(9, 0))
            for r in range(16):
                A.vmem(f'buffer_load_ushort {vr(XS + r)}, {vr(VXS)}, {sr(R_X, 4)}, {k4(r // 4)} offen offset:{1024 * (r % 4)}', 'xs')
        if t == 0:
            A.stamp('S0')
    A.stamp('Send')
    A('s_nop 8')
    for a in (1, 2, 3):
        for j in range(4):
            A.ds(f'ds_write_b128 v11, {vr(ACC2 + 16 * a + 4 * j, 4)} offset:{(a - 1) * 16384 + j * 1024}')
    arrive(A, 15, 16, 4)
    GV = 96
    for j in range(4):
        A.ds(f'ds_read_b128 {vr(GV + 4 * j, 4)}, {vr(VG)} offset:{16 * j}')
    A.wait_vm('xs')
    A(f'v_lshlrev_b32 {vr(DS)}, 16, {vr(DS)}')
    for r in range(16):
        A(f'v_lshlrev_b32 {vr(XS + r)}, 16, {vr(XS + r)}')
        A(f'v_fmac_f32 {vr(ACC2 + r)}, {vr(XS + r)}, {vr(DS)}')
    await4(A, 'cntS', 15, 17, 4)
    A.stamp('X1')
    PB = 128
    for a in (1, 2, 3):
        for j in range(4):
            A.ds(f'ds_read_b128 {vr(PB + 16 * (a - 1) + 4 * j, 4)}, {vr(11 + a)} offset:{(a - 1) * 16384 + j * 1024}', f'r{a}')
    for a in (1, 2, 3):
        A.wait_lg(f'r{a}')
        for r in range(0, 16, 2):
            A(f'v_pk_add_f32 {vr(ACC2 + r, 2)}, {vr(ACC2 + r, 2)}, {vr(PB + 16 * (a - 1) + r, 2)}')
    for r in range(0, 16, 2):
        A(f'v_pk_mul_f32 {vr(ACC2 + r, 2)}, {vr(ACC2 + r, 2)}, {vr(GV + r, 2)}')
    for j in range(4):
        A.ds(f'ds_write_b128 v12, {vr(ACC2 + 4 * j, 4)} offset:{j * 1024}')
    A.wait_lg_all()
    A.stamp('Sfin')
    A('s_barrier')
    A(f's_lshl_b32 {sr(T0)}, {sr(S_M2)}, 5\ns_lshl_b32 {sr(T1)}, {sr(S_N2)}, 2\ns_add_u32 {sr(T0)}, {sr(T0)}, {sr(T1)}\ns_add_u32 {sr(T0)}, {sr(T0)}, {sr(S_W)}')
    A(f's_cmp_lg_u32 {sr(T0)}, {31 << 5}\ns_cbranch_scc1 L_p2_done')
    A(f'v_mov_b32 v1, {sr(S_TAG)}\nv_mov_b32 v2, {GW}\ns_mov_b64 exec, 1')
    A(f'buffer_store_dword v1, v2, {sr(R_WS, 4)}, 0 offen\ns_mov_b64 exec, -1')
    A.label('L_p2_done')
    A.dump_stamps(1)
    A.label('L_end')
    A('s_endpgm')
    A.label('L_codeend')
    return A


HEADER = open(os.path.join(os.path.dirname(os.path.abspath(__file__)), '..', 'cdna_kernels',
                           'gated_mix__ssm_conv_s5__swiglu_ffn__prompt.s.ref')).read().split('; Override launch')[0]


def generate(cfg):
    e, p1, p2 = gen_entry(cfg), gen_p1(cfg), gen_p2(cfg)
    probs = check_hazards(e.lines + p1.lines, 'p1') + check_hazards(e.lines + p2.lines, 'p2')
    for p in probs:
        print('HAZARD', p, file=sys.stderr)
    assert not probs
    nb1 = sum(l == 's_barrier' for l in p1.lines[:p1.lines.index('L_p1_gate:')])
    nb2 = sum(l == 's_barrier' for l in p2.lines)
    assert nb1 == nb2, (nb1, nb2)
    txt = HEADER + f'; @launch grid=(256,1,1) block=(512,1,1) lds={LDS}\n'
    txt += f'.amdgcn_target "amdgcn-amd-amdhsa--gfx950"\n.text\n.globl {K}\n.p2align 8\n.type {K},@function\n{K}:\n'
    txt += e.text() + p1.text() + p2.text()
    txt += f'''.section .rodata,"a"
.p2align 6
.amdhsa_kernel {K}
  .amdhsa_next_free_vgpr 256
  .amdhsa_next_free_sgpr 102
  .amdhsa_accum_offset 256
  .amdhsa_group_segment_fixed_size 0
  .amdhsa_kernarg_size 136
  .amdhsa_user_sgpr_count 2
  .amdhsa_user_sgpr_kernarg_segment_ptr 1
  .amdhsa_system_sgpr_workgroup_id_x 1
.end_amdhsa_kernel
'''
    return txt, (p1.names, p2.names)


if __name__ == '__main__':
    cfg = Cfg()
    out = sys.argv[1]
    for kv in sys.argv[2:]:
        k, v = kv.split('=')
        old = getattr(cfg, k)
        setattr(cfg, k, (v not in ('0', 'False')) if isinstance(old, bool) else type(old)(v))
    txt, names = generate(cfg)
    open(out, 'w').write(txt)
    if cfg.stamps:
        import json
        json.dump(names, open(out + '.names', 'w'))
```

```python
import sys, os
sys.path.insert(0, os.path.dirname(os.path.abspath(__file__)))
from asmlib import Stream, vr, sr, check_hazards

K = 'gated_mix__ssm_conv_s5__swiglu_ffn__prompt_kernel'

ACT = 0
KSP = 160
AGG = 0x1400000
GAT = 0x1440000
FST = 4096 + 256
HF = 0x1460000
GF = 0x1490000
GW = 0x14C0000
WS_SIZE = 0x14D0000
STAMP = 0xF000000
OOB = 0x40000000
SLOT = 24576
P2B = 0
P1B = 2 * SLOT
WSLOT = [4, 5, 0, 1, 2, 3, 4, 5]
XB = 6 * SLOT
X_TR, X_EX, X_EX2, X_G, X_OMG, X_CNT = XB, XB + 8192, XB + 9216, XB + 10240, XB + 10752, XB + 11264
X_PAR = XB + 11520
LDS = XB + 16384
S_RT, S_CG, S_M2, S_N2, S_W, S_TAG = 38, 39, 40, 41, 42, 43
R_WS, R_X, R_B, R_WG, R_WU, R_E, R_O = 44, 48, 52, 56, 60, 64, 68
S_OA, S_OW = 72, 73
S_K4 = 73
T0, T1, T2, T3 = 3, 81, 0, 1
S_MB = 82
S_MB2 = 83
S_C0 = 84
S_C1 = 86
S_CNT = 88
S_RHO, S_STAG = 87, 23
S_GST, S_GFL, S_WDO = 34, 35, 22
S_ST0 = 90
LOG2E = 0x3fb8aa3b
NLOG2E = 0xbfb8aa3b
INV2PI = 0x3e22f983


class Cfg:
    mapping = '84'
    map2 = '48'
    rot = True
    stag0 = 0
    nstag = 4
    rotx = 0
    swap = True
    w2pf = 1
    pairwait = True
    fx = ''
    fb = ''
    fw = ''
    fc = ''
    probe = ''
    stamps = 0
    D = 3
    DF = 5
    hpoll_at = 4
    c12_at = 0
    post_exec = False
    c3pf = True
    dbg = ''
    p1b = 3
    post_at = 2
    peek_at = 12
    pf_at = 0
    spin = 1 << 15
    code_pf = True
    out_flags = ''
    prio = True


class WS(Stream):
    def __init__(self, cfg, vst):
        super().__init__()
        self.cfg, self.vst = cfg, vst
        self.pend, self.names, self.nst = [], [], 0

    def stamp(self, name):
        role = '1' if self.vst == 7 else '2'
        if self.cfg.probe and self.cfg.probe[0] == role and (name == 'start' or self.cfg.probe[2:] == name):
            self('s_memrealtime s[98:99]')
        if self.cfg.stamps != 1:
            return
        if len(self.pend) == 6:
            self('s_waitcnt lgkmcnt(0)')
            self.lg = []
            self.flush()
        used = {p for p, _ in self.pend}
        p = [x for x in range(6) if x not in used][0]
        self(f's_memtime {sr(S_ST0 + 2 * p, 2)}')
        self.pend.append((p, self.nst))
        self.names.append(name)
        self.nst += 1

    def flush(self):
        for p, i in self.pend:
            self(f'v_writelane_b32 {vr(self.vst)}, {sr(S_ST0 + 2 * p)}, {i}')
        self.pend = []

    def wait_lg_all(self):
        super().wait_lg_all()
        self.flush()

    def dump_stamps(self, role):
        if self.cfg.probe and int(self.cfg.probe[0]) == role + 1:
            self('s_waitcnt lgkmcnt(0)\ns_add_u32 s98, s98, 3000')
            self.label('L_hold')
            self('s_memrealtime s[96:97]\ns_waitcnt lgkmcnt(0)\ns_sub_u32 s96, s96, s98\ns_cmp_lt_i32 s96, 0\ns_cbranch_scc1 L_hold')
        if not self.cfg.stamps:
            return
        self(f's_memrealtime {sr(S_C0, 2)}')
        self.wait_lg_all()
        self(f'v_writelane_b32 {vr(self.vst)}, {sr(S_C0)}, 62')
        self(f'v_writelane_b32 {vr(self.vst)}, s89, 63')
        self(f's_lshl_b32 {sr(T0)}, s2, 3\ns_add_u32 {sr(T0)}, {sr(T0)}, {sr(S_W)}\ns_add_u32 {sr(T0)}, {sr(T0)}, {4 * role}')
        self(f's_lshl_b32 {sr(T0)}, {sr(T0)}, 8\ns_add_u32 {sr(T0)}, {sr(T0)}, {STAMP}')
        self(f's_add_u32 s36, s36, {sr(T0)}\ns_addc_u32 s37, s37, 0')
        self('v_lshlrev_b32 v1, 2, v0')
        self(f'global_store_dword v1, {vr(self.vst)}, s[36:37]')


def srd(A, r, ptr, size):
    A(f's_mov_b32 {sr(r)}, {sr(ptr)}\ns_mov_b32 {sr(r + 1)}, {sr(ptr + 1)}\ns_mov_b32 {sr(r + 2)}, {size}\ns_mov_b32 {sr(r + 3)}, 0x20000')


def k4(k):
    return '0' if k == 0 else sr(S_K4 + k if k < 8 else 16 + k)


def fo(n):
    return f'{k4(n // 2)} offen offset:{2048 * (n % 2)}'


def lane_pat(A, d, t, base):
    A(f'v_and_b32 {vr(t)}, 15, v0\nv_lshl_add_u32 {vr(t)}, {vr(t)}, 4, {base}\nv_lshrrev_b32 {vr(d)}, 4, v0\nv_lshl_add_u32 {vr(d)}, {vr(d)}, 9, {vr(t)}')


def swz_consts(A, vq8, vcA, vcB, t):
    A(f'v_lshrrev_b32 {vr(vq8)}, 3, v0')
    A(f'v_lshrrev_b32 {vr(t)}, 4, v0')
    A(f'v_and_b32 {vr(vcA)}, 7, v0')
    A(f'v_xor_b32 {vr(vcA)}, {vr(vcA)}, {vr(t)}')
    A(f'v_lshlrev_b32 {vr(vcA)}, 4, {vr(vcA)}')
    A(f'v_xor_b32 {vr(vcB)}, 64, {vr(vcA)}')


def frag_addr(A, a0, t):
    A(f'v_and_b32 {vr(a0)}, 31, v0')
    A(f'v_bfe_u32 {vr(t)}, v0, 1, 3')
    A(f'v_lshrrev_b32 {vr(a0 + 1)}, 5, v0')
    A(f'v_xor_b32 {vr(t)}, {vr(t)}, {vr(a0 + 1)}')
    A(f'v_lshlrev_b32 {vr(t)}, 4, {vr(t)}')
    A(f'v_lshl_add_u32 {vr(a0)}, {vr(a0)}, 7, {vr(t)}')
    for s in (1, 2, 3):
        A(f'v_xor_b32 {vr(a0 + s)}, {s << 5}, {vr(a0)}')


def wffn_voffs(A, vw, t):
    A(f's_mul_i32 {sr(T0)}, {sr(S_W)}, {16 * 2752}\ns_mul_i32 {sr(T1)}, {sr(S_CG)}, 192\ns_add_u32 {sr(T0)}, {sr(T0)}, {sr(T1)}')
    A(f's_mul_i32 {sr(T1)}, {sr(S_CG)}, 12\ns_sub_i32 {sr(T1)}, 172, {sr(T1)}')
    A(f'v_mov_b32 {vr(t + 3)}, {OOB}')
    for j in range(3):
        A(f'v_add_u32 {vr(t)}, {64 * j}, v0')
        A(f'v_mul_u32_u24 {vr(t + 1)}, 171, {vr(t)}')
        A(f'v_lshrrev_b32 {vr(t + 1)}, 11, {vr(t + 1)}')
        A(f'v_mul_u32_u24 {vr(t + 2)}, 12, {vr(t + 1)}')
        A(f'v_sub_u32 {vr(t)}, {vr(t)}, {vr(t + 2)}')
        A(f'v_cmp_gt_i32 vcc, {sr(T1)}, {vr(t)}')
        A(f'v_mul_u32_u24 {vr(t + 1)}, 2752, {vr(t + 1)}')
        A(f'v_lshl_add_u32 {vr(t + 1)}, {vr(t)}, 4, {vr(t + 1)}')
        if j:
            A(f'v_subrev_u32 {vr(t + 1)}, {1024 * j}, {vr(t + 1)}')
        A(f'v_add_u32 {vr(t + 1)}, {sr(T0)}, {vr(t + 1)}')
        A(f'v_cndmask_b32 {vr(vw + j)}, {vr(t + 3)}, {vr(t + 1)}, vcc')


def issue_a(A, b, vx, vb):
    sl = (b % 4) * SLOT
    A(f's_add_u32 m0, {sr(S_MB)}, {sl}')
    if b:
        pass
    A(f's_bfe_u32 {sr(S_OA)}, {sr(S_RHO)}, {(3 << 16) | (4 * b)}\ns_lshl_b32 {sr(S_OA)}, {sr(S_OA)}, 7')
    for j in range(4):
        A.vmem(f'buffer_load_dwordx4 {vr(vx + j)}, {sr(R_X, 4)}, {sr(S_OA)} offen offset:{1024 * j} {A.cfg.fx} lds', f'blk{b}')
    A(f's_add_u32 m0, {sr(S_MB2)}, {sl + 16384}\ns_nop 0')
    for j in range(2):
        A.vmem(f'buffer_load_dwordx4 {vr(vb + j)}, {sr(R_B, 4)}, {sr(S_OA)} offen offset:{1024 * j} {A.cfg.fb} lds', f'blk{b}')


def issue_w(A, b, vw, smb):
    sl = WSLOT[b - 8] * SLOT
    A(f's_add_u32 m0, {sr(smb)}, {sl}')
    A(f's_bfe_u32 {sr(S_OW)}, {sr(S_RHO)}, {(3 << 16) | (4 * (b - 8))}\ns_mul_i32 {sr(S_OW)}, {sr(S_OW)}, {64 * 2752}')
    for j in range(3):
        A.vmem(f'buffer_load_dwordx4 {vr(vw + j)}, {sr(R_WG, 4)}, {sr(S_OW)} offen offset:{1024 * j} {A.cfg.fw} lds', f'blk{b}')
    A(f's_add_u32 m0, {sr(smb)}, {sl + 12288}\ns_nop 0')
    for j in range(3):
        A.vmem(f'buffer_load_dwordx4 {vr(vw + j)}, {sr(R_WU, 4)}, {sr(S_OW)} offen offset:{1024 * j} {A.cfg.fw} lds', f'blk{b}')


def spin(A, name, loads, check, cfg, extra=None):
    A(f's_mov_b32 {sr(S_CNT)}, {cfg.spin}')
    A.label(f'L_{name}_chk')
    check()
    A(f's_cbranch_scc1 L_{name}_ok')
    A(f's_sub_u32 {sr(S_CNT)}, {sr(S_CNT)}, 1\ns_cmp_eq_u32 {sr(S_CNT)}, 0\ns_cbranch_scc1 L_{name}_ok')
    saved = list(A.vm)
    loads()
    A('s_waitcnt vmcnt(0)')
    A.vm = saved
    if extra:
        lg = list(A.lg)
        extra()
        A.lg = lg
    A(f's_branch L_{name}_chk')
    A.label(f'L_{name}_ok')


G1, G2, G3 = 0, 16, 32
E_W4, E_W5, E_W6, E_W7, E_WD = 4, 5, 6, 7, 8
E_EX, E_EX2, E_SP = 1, 2, 3


def prog_addrs(A, vw, vrd, own):
    A(f's_lshl2_add_u32 {sr(T0)}, {sr(S_W)}, {X_CNT + own}\nv_mov_b32 {vr(vw)}, {sr(T0)}')
    A(f'v_and_b32 {vr(vrd)}, 3, v0\nv_lshlrev_b32 {vr(vrd)}, 2, {vr(vrd)}\nv_add_u32 {vr(vrd)}, {X_CNT}, {vr(vrd)}')


def post(A, vw, vt, val, off=0):
    A(f'v_mov_b32 {vr(vt)}, {val}')
    if A.cfg.post_exec:
        A('s_mov_b64 exec, 1')
    A.ds(f'ds_write_b32 {vr(vw)}, {vr(vt)} offset:{off}')
    if A.cfg.post_exec:
        A('s_mov_b64 exec, -1')


def await_(A, name, vrd, vt, off, val):
    A.label(f'L_{name}')
    A.ds(f'ds_read_b32 {vr(vt)}, {vr(vrd)} offset:{off}')
    Stream.wait_lg_all(A)
    A(f'v_cmp_gt_u32 vcc, {val}, {vr(vt)}\ns_cbranch_vccnz L_{name}')
    A.flush()


def rho0(A, cfg, t):
    if not cfg.rot:
        A(f's_mov_b32 {sr(t)}, 0')
        return
    assert cfg.mapping == '84'
    if cfg.rotx:
        A(f's_lshl1_add_u32 {sr(t)}, {sr(S_CG)}, {sr(S_RT)}')
    else:
        A(f's_and_b32 {sr(t)}, s2, 6\ns_add_u32 {sr(t)}, {sr(t)}, {sr(S_RT)}')
    A(f's_and_b32 {sr(t)}, {sr(t)}, 7')


def rho_pre(A, cfg, d, t):
    def pack(o):
        return sum(v << (4 * i) for i, v in enumerate(o))
    tabs = [[0, 1, 2, 3, 5, 4, 6, 7], [0, 2, 1, 3, 4, 6, 5, 7], [0, 1, 3, 2, 4, 5, 7, 6], [0, 1, 2, 4, 3, 5, 6, 7]]
    if cfg.swap:
        A(f's_and_b32 {sr(t)}, {sr(S_CG)}, 3\ns_mov_b32 {sr(d)}, {pack(tabs[0])}')
        for j in (1, 2, 3):
            A(f's_cmp_eq_u32 {sr(t)}, {j}\ns_cselect_b32 {sr(d)}, {pack(tabs[j])}, {sr(d)}')
    else:
        A(f's_mov_b32 {sr(d)}, 0x76543210')
    rho0(A, cfg, t)
    A(f's_mul_i32 {sr(t)}, {sr(t)}, 0x11111111\ns_add_u32 {sr(d)}, {sr(d)}, {sr(t)}')


def flag_addr(A, d, base):
    A(f's_lshr_b32 {sr(T0)}, {sr(S_W)}, 1\ns_lshl1_add_u32 {sr(T1)}, {sr(S_RT)}, {sr(T0)}\ns_mul_i32 {sr(T1)}, {sr(T1)}, {FST}')
    A(f's_and_b32 {sr(T0)}, {sr(S_W)}, 1\ns_lshl1_add_u32 {sr(T0)}, {sr(S_CG)}, {sr(T0)}\ns_lshl2_add_u32 {sr(T1)}, {sr(T0)}, {sr(T1)}')
    A(f's_add_u32 {sr(d)}, {sr(T1)}, {base}')


def wd_voffs(A, VD, TMP, smb):
    A(f'v_lshrrev_b32 {vr(TMP)}, 3, v0\nv_bfe_u32 {vr(TMP + 1)}, v0, 4, 1\nv_lshlrev_b32 {vr(TMP + 1)}, 2, {vr(TMP + 1)}')
    A(f'v_and_b32 {vr(TMP + 2)}, 7, v0\nv_xor_b32 {vr(TMP + 1)}, {vr(TMP + 1)}, {vr(TMP + 2)}\nv_lshlrev_b32 {vr(TMP + 1)}, 4, {vr(TMP + 1)}')
    A(f'v_lshl_add_u32 {vr(TMP)}, {vr(TMP)}, 10, {vr(TMP + 1)}')
    A(f's_mul_i32 {sr(T0)}, {sr(S_W)}, {352 * 1024}\ns_lshl_b32 {sr(T1)}, {sr(S_N2)}, 7\ns_add_u32 {sr(T0)}, {sr(T0)}, {sr(T1)}')
    A(f'v_add_u32 {vr(VD)}, {sr(T0)}, {vr(TMP)}')
    for j in (1, 2, 3):
        A(f'v_add_u32 {vr(VD + j)}, {7168 * j}, {vr(VD)}')
    A(f's_lshl_b32 {sr(smb)}, {sr(S_W)}, 12\ns_add_u32 {sr(smb)}, {sr(smb)}, {P1B}')


def dma_wd(A, t, VD, smb, r):
    A(f's_add_u32 m0, {sr(smb)}, {(t % 12) * 8192}')
    A(f's_mov_b32 {sr(S_OW)}, {t * 16384}')
    for j in range(4):
        A.vmem(f'buffer_load_dwordx4 {vr(VD + j)}, {sr(r, 4)}, {sr(S_OW)} offen offset:{1024 * j} lds', f'wd{t + j // 2}')


def mfma(A, d, a, b, first):
    A(f'v_mfma_f32_32x32x16_bf16 {vr(d, 16)}, {vr(a, 4)}, {vr(b, 4)}, {"0" if first else vr(d, 16)}')


def gen_entry(cfg):
    A = Stream()
    A('s_load_dwordx16 s[4:19], s[0:1], 0\ns_load_dwordx16 s[20:35], s[0:1], 64\ns_load_dwordx2 s[36:37], s[0:1], 128')
    A('s_cmp_ge_u32 s2, 256\ns_cbranch_scc1 L_end')
    if cfg.stamps:
        A('s_memrealtime s[88:89]')
    A('s_lshr_b32 s82, s2, 3')
    if cfg.code_pf:
        A('s_getpc_b64 s[84:85]')
        A.label('L_pc')
        A(f's_and_b32 s83, s82, 3\ns_mul_i32 s83, s83, {48 * 128}\nv_min_u32 v1, 47, v0\nv_lshl_add_u32 v1, v1, 7, s83')
        A(f'v_min_u32 v1, L_codeend-L_pc-4, v1')
        A('global_load_dword v255, v1, s[84:85]')
    A('v_lshrrev_b32 v1, 6, v0\nv_and_b32 v0, 63, v0\nv_readfirstlane_b32 s3, v1')
    if cfg.mapping == '48':
        A(f's_bfe_u32 {sr(S_RT)}, s2, 0x20001\ns_lshl_b32 {sr(S_RT)}, {sr(S_RT)}, 2\ns_and_b32 s83, s82, 3\ns_add_u32 {sr(S_RT)}, {sr(S_RT)}, s83')
        A(f's_and_b32 {sr(S_CG)}, s2, 1\ns_lshl_b32 {sr(S_CG)}, {sr(S_CG)}, 3\ns_lshr_b32 s83, s82, 2\ns_add_u32 {sr(S_CG)}, {sr(S_CG)}, s83')
    else:
        A(f's_and_b32 {sr(S_RT)}, s2, 1\ns_and_b32 s83, s82, 7\ns_lshl3_add_u32 {sr(S_RT)}, {sr(S_RT)}, s83')
        A(f's_and_b32 {sr(S_CG)}, s2, 6\ns_lshr_b32 s83, s82, 3\ns_lshl1_add_u32 {sr(S_CG)}, {sr(S_CG)}, s83')
    A(f's_and_b32 {sr(S_W)}, s3, 3')
    A('s_cmp_ge_u32 s3, 4\ns_cbranch_scc1 L_p2')
    return A


def map2(A, cfg):
    A('s_and_b32 s81, s2, 7\ns_lshr_b32 s3, s2, 3')
    if cfg.map2 == '48':
        A(f's_lshl_b32 {sr(S_M2)}, s81, 2\ns_lshr_b32 s81, s3, 3\ns_add_u32 {sr(S_M2)}, {sr(S_M2)}, s81\ns_and_b32 {sr(S_N2)}, s3, 7')
    else:
        A(f's_lshr_b32 {sr(S_M2)}, s81, 1\ns_lshl_b32 {sr(S_M2)}, {sr(S_M2)}, 3\ns_and_b32 {sr(S_N2)}, s3, 7\ns_add_u32 {sr(S_M2)}, {sr(S_M2)}, {sr(S_N2)}')
        A(f's_and_b32 {sr(S_N2)}, s81, 1\ns_lshl_b32 {sr(S_N2)}, {sr(S_N2)}, 2\ns_lshr_b32 s3, s3, 3\ns_add_u32 {sr(S_N2)}, {sr(S_N2)}, s3')


def load_tag(A):
    if A.cfg.stamps:
        A('s_mov_b32 s89, s88')
    A(f's_add_u32 {sr(T2)}, s36, {GW}\ns_addc_u32 {sr(T3)}, s37, 0')
    A(f's_load_dword {sr(S_TAG)}, {sr(T2, 2)}, 0')


def consts(A):
    for k in range(1, 11):
        A(f's_mov_b32 {k4(k)}, {4096 * k}')


def gen_p1(cfg):
    A = WS(cfg, 7)
    TB = 1
    VPW, VPR, VPT = 4, 5, 6
    WB = 8
    ACC = 32
    XR = 128
    VX, VB, VW, AX, TMP = 32, 36, 38, 44, 52
    D = cfg.D
    if cfg.stamps:
        A('v_mov_b32 v7, 0')
    A.stamp('start')
    swz_consts(A, TMP, TMP + 1, TMP + 2, TMP + 3)
    A(f's_lshl2_add_u32 {sr(T1)}, {sr(S_RT)}, {sr(S_W)}\ns_lshl_b32 {sr(T1)}, {sr(T1)}, 15')
    A(f'v_lshrrev_b32 {vr(TMP + 3)}, 5, v0')
    A(f'v_and_b32 {vr(TMP + 4)}, 3, {vr(TMP)}')
    A(f'v_lshl_add_u32 {vr(TMP + 3)}, {vr(TMP + 3)}, 4, {vr(TMP + 4)}')
    A(f'v_lshl_add_u32 {vr(TMP + 3)}, {vr(TMP + 3)}, 10, {sr(T1)}')
    A(f'v_add_u32 {vr(VX)}, {vr(TMP + 3)}, {vr(TMP + 1)}')
    A(f'v_add_u32 {vr(VX + 1)}, {vr(TMP + 3)}, {vr(TMP + 2)}')
    A(f'v_add_u32 {vr(VX + 2)}, {2 * 3072}, {vr(VX)}')
    A(f'v_add_u32 {vr(VX + 3)}, {3 * 3072}, {vr(VX + 1)}')
    A(f'v_add_u32 {vr(VX + 1)}, 3072, {vr(VX + 1)}')
    A(f's_lshl_b32 {sr(S_MB)}, {sr(S_W)}, 12\ns_mov_b32 m0, {sr(S_MB)}')
    rho0(A, cfg, S_OA)
    A(f's_lshl_b32 {sr(S_OA)}, {sr(S_OA)}, 7')
    A(f's_mov_b32 {sr(R_X + 2)}, {2048 * 1024}\ns_mov_b32 {sr(R_X + 3)}, 0x20000')
    A.wait_lg_all()
    A(f's_mov_b32 {sr(R_X)}, s4\ns_mov_b32 {sr(R_X + 1)}, s5')
    A.stamp('karg')
    for j in range(4):
        A.vmem(f'buffer_load_dwordx4 {vr(VX + j)}, {sr(R_X, 4)}, {sr(S_OA)} offen offset:{1024 * j} {A.cfg.fx} lds', 'blk0')
    A(f's_and_b32 {sr(T0)}, {sr(S_W)}, 1\ns_lshl1_add_u32 {sr(T1)}, {sr(S_CG)}, {sr(T0)}\ns_lshl_b32 {sr(T1)}, {sr(T1)}, 14')
    A(f'v_lshl_add_u32 {vr(TMP + 3)}, {vr(TMP)}, 10, {sr(T1)}')
    A(f'v_add_u32 {vr(VB)}, {vr(TMP + 3)}, {vr(TMP + 1)}')
    A(f'v_add_u32 {vr(VB + 1)}, {vr(TMP + 3)}, {vr(TMP + 2)}')
    A(f'v_add_u32 {vr(VB + 1)}, 7168, {vr(VB + 1)}')
    A(f's_lshl_b32 {sr(S_MB2)}, {sr(S_W)}, 11\ns_add_u32 m0, {sr(S_MB2)}, 16384')
    A(f's_cmp_ge_u32 {sr(S_W)}, 2')
    A(f's_cselect_b32 {sr(R_B)}, s12, s10\ns_cselect_b32 {sr(R_B + 1)}, s13, s11\ns_mov_b32 {sr(R_B + 2)}, {512 * 1024}\ns_mov_b32 {sr(R_B + 3)}, 0x20000')
    for j in range(2):
        A.vmem(f'buffer_load_dwordx4 {vr(VB + j)}, {sr(R_B, 4)}, {sr(S_OA)} offen offset:{1024 * j} {A.cfg.fb} lds', 'blk0')
    rho_pre(A, cfg, S_RHO, T0)
    for b in range(1, D):
        issue_a(A, b, VX, VB)
        if b == 1:
            A(f's_lshl_b32 {sr(T0)}, {sr(S_CG)}, 6\ns_cmp_eq_u32 {sr(S_W)}, 3\ns_cselect_b32 {sr(T0)}, {OOB}, {sr(T0)}')
            A(f'v_and_b32 {vr(TMP + 5)}, 15, v0\nv_lshl_add_u32 {vr(TMP + 5)}, {vr(TMP + 5)}, 2, {sr(T0)}')
            A(f's_mov_b32 {sr(R_E + 2)}, 1024\ns_mov_b32 {sr(R_E + 3)}, 0x20000')
            A(f's_cmp_ge_u32 {sr(S_W)}, 2\ns_cselect_b32 {sr(R_E)}, s18, s6\ns_cselect_b32 {sr(R_E + 1)}, s19, s7')
            A(f's_cmp_eq_u32 {sr(S_W)}, 1\ns_cselect_b32 {sr(R_E)}, s8, {sr(R_E)}\ns_cselect_b32 {sr(R_E + 1)}, s9, {sr(R_E + 1)}')
            A(f's_lshl_b32 {sr(T0)}, {sr(S_W)}, 8\ns_add_u32 m0, {sr(T0)}, {X_PAR}\ns_nop 0')
            A.vmem(f'buffer_load_dword {vr(TMP + 5)}, {sr(R_E, 4)}, 0 offen lds', 'blk1')
            load_tag(A)
        if b == 1:
            srd(A, R_WG, 24, 512 * 2752)
            srd(A, R_WU, 26, 512 * 2752)
            srd(A, R_WS, 36, WS_SIZE)
            srd(A, R_E, 28, 1376 * 1024)
            srd(A, R_O, 32, 2048 * 2048)
            consts(A)
            wffn_voffs(A, VW, TMP)
            frag_addr(A, AX, TMP)
            for s in range(4):
                A(f'v_add_u32 {vr(AX + s)}, {sr(S_MB)}, {vr(AX + s)}')
                A(f'v_add_u32 {vr(AX + 4 + s)}, {2 * SLOT}, {vr(AX + s)}')
            A(f'v_lshrrev_b32 {vr(TMP)}, 5, v0\nv_bfe_u32 {vr(TMP + 1)}, v0, 2, 2\nv_lshl_add_u32 {vr(TMP)}, {vr(TMP)}, 3, {vr(TMP + 1)}')
            A(f'v_mul_u32_u24 {vr(TMP)}, 192, {vr(TMP)}\nv_bfe_u32 {vr(TMP + 1)}, v0, 4, 1\nv_lshl_add_u32 {vr(TMP)}, {vr(TMP + 1)}, 5, {vr(TMP)}')
            A(f'v_and_b32 {vr(TMP + 1)}, 3, v0\nv_lshl_add_u32 {vr(TB)}, {vr(TMP + 1)}, 3, {vr(TMP)}')
            A(f'v_add_u32 {vr(TB + 1)}, {2 * SLOT}, {vr(TB)}\nv_add_u32 {vr(TB + 2)}, {4 * SLOT}, {vr(TB)}')
            prog_addrs(A, VPW, VPR, G1)
            A(f's_mul_i32 {sr(S_C1)}, {sr(S_W)}, 3072')
            map2(A, cfg)
            A(f's_lshr_b32 {sr(S_STAG)}, s2, 3\ns_and_b32 {sr(T0)}, s2, 1\ns_mul_i32 {sr(T0)}, {sr(T0)}, {cfg.nstag // 2}\ns_add_u32 {sr(S_STAG)}, {sr(S_STAG)}, {sr(T0)}')
            A(f's_and_b32 {sr(S_STAG)}, {sr(S_STAG)}, {cfg.nstag - 1}')
            A(f's_lshl_b32 {sr(T1)}, {sr(S_RT)}, 2\ns_add_u32 {sr(T1)}, {sr(T1)}, {sr(S_W)}\ns_mul_i32 {sr(T1)}, {sr(T1)}, {KSP}')
            A(f's_mul_i32 {sr(T0)}, {sr(S_CG)}, 6\ns_add_u32 {sr(T1)}, {sr(T1)}, {sr(T0)}\ns_add_u32 {sr(T1)}, {sr(T1)}, 64\ns_lshl_b32 {sr(S_GST)}, {sr(T1)}, 11')
            flag_addr(A, S_GFL, GF)
    A.stamp('issued0')
    A.wait_lg_all()
    A(f's_add_u32 {sr(S_TAG)}, {sr(S_TAG)}, 0x9E3779B1')
    for i in range(8):
        A.wait_vm(f'blk{i}')
        A.wait_lg_all()
        A('s_barrier')
        A.stamp(f'A{i}')
        for s in range(4):
            A.ds(f'ds_read_b128 {vr(XR + 16 * i + 4 * s, 4)}, {vr(AX + 4 * ((i >> 1) & 1) + s)} offset:{(i % 2) * SLOT}', 'x')
        b = i + D
        if b < 8:
            issue_a(A, b, VX, VB)
        else:
            issue_w(A, b + 1, VW, S_C1)
        if cfg.stag0 <= i < cfg.stag0 + cfg.nstag:
            A(f's_cmp_lg_u32 {sr(S_STAG)}, {i - cfg.stag0}\ns_cbranch_scc1 L_now0_{i}')
            saved = list(A.vm)
            issue_w(A, 8, VW, S_C1)
            A.vm = saved
            A.label(f'L_now0_{i}')
    assert cfg.stag0 + cfg.nstag <= 8 - D
    A.wait_lg_all()
    A(f's_cmp_eq_u32 {sr(S_CG)}, 15\ns_cbranch_scc1 L_p1_gate')
    vm_at_split = list(A.vm)
    if cfg.p1b:
        A(f's_setprio {cfg.p1b}')

    def need(b):
        return (G1, b) if b <= 3 else (G2, {4: E_W4, 5: E_W5, 6: E_W6, 7: E_W7}[b])

    def rd(n):
        b, s, j = n // 24, (n // 6) % 4, n % 6
        u, mat = j // 2, j % 2
        if n % 24 == 0:
            if b == 0:
                A(f's_waitcnt vmcnt({len(A.vm)})')
                A('s_barrier')
            else:
                A.wait_lg('pg')
                if 'nochk' not in cfg.dbg:
                    A(f'v_cmp_gt_u32 vcc, {need(b)[1]}, {vr(VPT)}\ns_cbranch_vccnz L_slow{b}')
                A.label(f'L_back{b}')
            if b in (0, 2, 4, 5, 7):
                A.stamp(f'B{b}')
        slot = WSLOT[b]
        for r in range(2):
            off = (slot % 2) * SLOT + mat * 12288 + s * 3072 + r * 768 + u * 64
            A.ds(f'ds_read_b64_tr_b16 {vr(WB + 4 * j + 2 * r, 2)}, {vr(TB + slot // 2)} offset:{off}', f'w{n}')
    for n in range(6):
        rd(n)
    for n in range(192):
        ks, j = n // 6, n % 6
        if not cfg.pairwait:
            A.wait_lg(f'w{n}')
        elif n % 2 == 0:
            A.wait_lg(f'w{n + 1}')
        mfma(A, ACC + 16 * j, WB + 4 * j, XR + 4 * ks, ks == 0)
        if n + 6 < 192:
            rd(n + 6)
        if n % 24 == cfg.post_at and ('nopost' not in cfg.dbg or n < 24):
            A.wait_vm(f'blk{8 + n // 24 + 1}')
            post(A, VPW, VPT, n // 24 + 1 if 'nopost' not in cfg.dbg else 9)
        if n % 24 == cfg.peek_at and n < 168:
            A.ds(f'ds_read_b32 {vr(VPT)}, {vr(VPR)} offset:{need(n // 24 + 1)[0]}', 'pg')
    post(A, VPW, VPT, 9)
    if cfg.p1b:
        A('s_setprio 0')
    A.stamp('E')
    VST = 1
    lane_pat(A, VST, 2, sr(S_GST))
    A(f's_mov_b32 {sr(S_C0)}, {NLOG2E}\ns_mov_b32 {sr(S_C0 + 1)}, {NLOG2E}\ns_mov_b32 {sr(S_C1)}, 1.0\ns_mov_b32 {sr(S_C1 + 1)}, 1.0')
    for u in range(3):
        G, U, P = ACC + 32 * u, ACC + 32 * u + 16, XR + 8 * u
        for r in range(0, 16, 2):
            A(f'v_pk_mul_f32 {vr(U + r, 2)}, {vr(G + r, 2)}, {vr(U + r, 2)}')
        for r in range(0, 16, 2):
            A(f'v_pk_mul_f32 {vr(G + r, 2)}, {vr(G + r, 2)}, {sr(S_C0, 2)}')
        for r in range(16):
            A(f'v_exp_f32 {vr(G + r)}, {vr(G + r)}')
        for r in range(0, 16, 2):
            A(f'v_pk_add_f32 {vr(G + r, 2)}, {vr(G + r, 2)}, {sr(S_C1, 2)}')
        for r in range(16):
            A(f'v_rcp_f32 {vr(G + r)}, {vr(G + r)}')
        for r in range(0, 16, 2):
            A(f'v_pk_mul_f32 {vr(U + r, 2)}, {vr(G + r, 2)}, {vr(U + r, 2)}')
        for r in range(0, 16, 2):
            A(f'v_cvt_pk_bf16_f32 {vr(P + r // 2)}, {vr(U + r)}, {vr(U + r + 1)}')
        if cfg.prio:
            A('s_setprio 3')
        for j in range(2):
            n = 2 * u + j
            A.vmem(f'buffer_store_dwordx4 {vr(P + 4 * j, 4)}, {vr(VST)}, {sr(R_WS, 4)}, {fo(n)} sc1', 'gu')
        if cfg.prio and u < 2:
            A('s_setprio 0')
    A.stamp('epi')
    A(f'v_mov_b32 v8, {sr(S_TAG)}\nv_mov_b32 v9, 0')
    A.wait_vm('gu')
    A('s_mov_b64 exec, 1')
    A.vmem(f'buffer_store_dword v8, v9, {sr(R_WS, 4)}, {sr(S_GFL)} offen sc1', 'fl')
    A('s_mov_b64 exec, -1')
    if cfg.prio:
        A('s_setprio 0')
    A.label('L_p1_join')
    A.stamp('guflag')
    AW, VA, VP = 104, 1, 3
    ACC2 = 32
    TMP = 12
    VD = 152
    wd_voffs(A, VD, TMP, S_MB)
    A(f'v_lshrrev_b32 {vr(TMP)}, 5, v0\nv_bfe_u32 {vr(TMP + 1)}, v0, 2, 2\nv_lshl_add_u32 {vr(TMP)}, {vr(TMP)}, 2, {vr(TMP + 1)}')
    A(f's_and_b32 {sr(T0)}, {sr(S_W)}, 1\nv_bfe_u32 {vr(TMP + 1)}, v0, 3, 1\nv_xor_b32 {vr(TMP + 1)}, {sr(T0)}, {vr(TMP + 1)}')
    A(f'v_lshlrev_b32 {vr(TMP + 1)}, 6, {vr(TMP + 1)}\nv_lshl_add_u32 {vr(TMP)}, {vr(TMP)}, 7, {vr(TMP + 1)}')
    A(f'v_bfe_u32 {vr(TMP + 1)}, v0, 4, 1\nv_lshl_add_u32 {vr(TMP)}, {vr(TMP + 1)}, 5, {vr(TMP)}')
    A(f'v_and_b32 {vr(TMP + 1)}, 3, v0\nv_lshl_add_u32 {vr(TMP)}, {vr(TMP + 1)}, 3, {vr(TMP)}')
    A(f'v_add_u32 {vr(AW)}, {sr(S_MB)}, {vr(TMP)}\nv_xor_b32 {vr(AW + 1)}, 64, {vr(AW)}')
    A(f'v_add_u32 {vr(AW + 2)}, 0x10000, {vr(AW)}\nv_add_u32 {vr(AW + 3)}, 0x10000, {vr(AW + 1)}')
    A(f's_lshr_b32 {sr(T0)}, {sr(S_W)}, 1\ns_lshl_b32 {sr(T1)}, {sr(S_M2)}, 1\ns_add_u32 {sr(T2)}, {sr(T1)}, {sr(T0)}\ns_xor_b32 {sr(T3)}, {sr(T2)}, 1')
    A(f's_mul_i32 {sr(T0)}, {sr(S_W)}, 22\ns_add_u32 {sr(T0)}, {sr(T0)}, 64')
    for ma, t in ((0, T2), (1, T3)):
        A(f's_mul_i32 {sr(t)}, {sr(t)}, {KSP}\ns_add_u32 {sr(t)}, {sr(t)}, {sr(T0)}\ns_lshl_b32 {sr(t)}, {sr(t)}, 11')
        lane_pat(A, VA + ma, VP, sr(t))
    A(f's_mul_i32 {sr(T0)}, {sr(S_W)}, 11\ns_add_u32 {sr(T1)}, {sr(T0)}, 10\ns_mul_i32 {sr(T0)}, {sr(T0)}, 43\ns_lshr_b32 {sr(T0)}, {sr(T0)}, 7')
    A(f's_mul_i32 {sr(T1)}, {sr(T1)}, 43\ns_lshr_b32 {sr(T1)}, {sr(T1)}, 7\ns_lshl_b32 {sr(T0)}, {sr(T0)}, 1\ns_lshl_b32 {sr(T1)}, {sr(T1)}, 1\ns_add_u32 {sr(T1)}, {sr(T1)}, 1')
    A(f'v_add_u32 {vr(VP)}, {sr(T0)}, v0\nv_min_u32 {vr(VP)}, {sr(T1)}, {vr(VP)}')
    A(f's_mul_i32 {sr(T0)}, {sr(S_M2)}, {FST}\ns_add_u32 {sr(T0)}, {sr(T0)}, {GF}')
    A(f'v_lshl_add_u32 {vr(VP)}, {vr(VP)}, 2, {sr(T0)}')

    def pl():
        A.vmem(f'buffer_load_dword v6, {vr(VP)}, {sr(R_WS, 4)}, 0 offen sc1', 'poll')

    def ck():
        A(f'v_cmp_eq_u32 vcc, {sr(S_TAG)}, v6\ns_cmp_eq_u64 vcc, -1')
    RW, RR, RF, RG, RO = 96, 97, 100, 101, 102
    A(f'v_lshl_add_u32 {vr(RW)}, v0, 4, {sr(S_MB)}')
    for a in (1, 2, 3):
        A(f's_xor_b32 {sr(T0)}, {sr(S_W)}, {a}\ns_lshl_b32 {sr(T0)}, {sr(T0)}, 12\ns_add_u32 {sr(T0)}, {sr(T0)}, {P1B}')
        A(f'v_lshl_add_u32 {vr(RR + a - 1)}, v0, 4, {sr(T0)}')
    A(f's_xor_b32 {sr(T0)}, {sr(S_W)}, 1\ns_lshl_b32 {sr(T0)}, {sr(T0)}, 12\ns_add_u32 {sr(T0)}, {sr(T0)}, {P2B}')
    A(f'v_lshl_add_u32 {vr(RF)}, v0, 4, {sr(T0)}')
    A(f's_lshl_b32 {sr(T0)}, {sr(S_W)}, 7\ns_add_u32 {sr(T0)}, {sr(T0)}, {X_OMG}')
    A(f'v_lshrrev_b32 {vr(RG)}, 5, v0\nv_lshl_add_u32 {vr(RG)}, {vr(RG)}, 6, {sr(T0)}')
    A(f's_lshr_b32 {sr(T0)}, {sr(S_W)}, 1\ns_lshl_b32 {sr(T1)}, {sr(S_M2)}, 1\ns_add_u32 {sr(T0)}, {sr(T0)}, {sr(T1)}\ns_lshl_b32 {sr(T0)}, {sr(T0)}, 16')
    A(f's_and_b32 {sr(T1)}, {sr(S_W)}, 1\ns_lshl_b32 {sr(T2)}, {sr(S_N2)}, 1\ns_add_u32 {sr(T1)}, {sr(T1)}, {sr(T2)}\ns_lshl_b32 {sr(T1)}, {sr(T1)}, 7\ns_add_u32 {sr(T0)}, {sr(T0)}, {sr(T1)}')
    A(f'v_lshrrev_b32 {vr(RO)}, 5, v0\nv_and_b32 {vr(RO + 1)}, 31, v0\nv_lshlrev_b32 {vr(RO + 1)}, 2, {vr(RO + 1)}\nv_lshl_add_u32 {vr(RO)}, {vr(RO)}, 15, {vr(RO + 1)}\nv_add_u32 {vr(RO)}, {sr(T0)}, {vr(RO)}')
    await_(A, 'cntW', VPW, VPT, G2 - G1, E_WD)
    A.stamp('wdok')
    pl()
    A.wait_vm('poll')
    spin(A, 'gu', pl, ck, cfg)
    A.stamp('gupoll')
    AB, NB = 160, 12

    def ld_act(t):
        for ma in range(2):
            A.vmem(f'buffer_load_dwordx4 {vr(AB + 8 * (t % NB) + 4 * ma, 4)}, {vr(VA + ma)}, {sr(R_WS, 4)}, {fo(t)} sc1', f'act{t}')

    def rd_wd(t):
        A.wait_vm(f'wd{t}')
        for na in range(2):
            for r in range(2):
                off = ((t % 12) // 2) * 16384 + (t % 2) * 2048 + r * 1024
                A.ds(f'ds_read_b64_tr_b16 {vr(WB + 8 * (t % 3) + 4 * na + 2 * r, 2)}, {vr(AW + na + 2 * (off >> 16))} offset:{off & 0xffff}', f'wf{t}')
    DF = cfg.DF
    for t in range(DF):
        ld_act(t)
    rd_wd(0)
    for t in range(22):
        if t + DF < 22:
            ld_act(t + DF)
        if t + 1 < 22:
            rd_wd(t + 1)
        A.wait_vm(f'act{t}')
        A.wait_lg(f'wf{t}')
        for a in (1, 2, 3, 0):
            mfma(A, ACC2 + 16 * a, AB + 8 * (t % NB) + 4 * (a >> 1), WB + 8 * (t % 3) + 4 * (a & 1), t == 0)
        if t % 2 == 1 and t + 11 < 22:
            dma_wd(A, t + 11, VD, S_MB, R_E)
        if t in (0, 11):
            A.stamp(f'F{t}')
    A.stamp('Fend')
    A('s_nop 8')
    for a in (1, 2, 3):
        for j in range(4):
            A.ds(f'ds_write_b128 {vr(RW)}, {vr(ACC2 + 16 * a + 4 * j, 4)} offset:{(a - 1) * 16384 + j * 1024}')
    A.wait_lg_all()
    A('s_barrier')
    A.stamp('X2')
    PB = 160
    for j in range(4):
        for a in (1, 2, 3):
            A.ds(f'ds_read_b128 {vr(PB + 16 * (a - 1) + 4 * j, 4)}, {vr(RR + a - 1)} offset:{(a - 1) * 16384 + j * 1024}', f'r{j}')
        A.ds(f'ds_read_b128 {vr(PB + 48 + 4 * j, 4)}, {vr(RF)} offset:{j * 1024}', f'r{j}')
        A.ds(f'ds_read_b128 {vr(PB + 64 + 4 * j, 4)}, {vr(RG)} offset:{j * 16}', f'r{j}')
    for j in range(4):
        A.wait_lg(f'r{j}')
        for r in range(4 * j, 4 * j + 4, 2):
            A(f'v_pk_add_f32 {vr(ACC2 + r, 2)}, {vr(ACC2 + r, 2)}, {vr(PB + r, 2)}')
            A(f'v_pk_add_f32 {vr(PB + 16 + r, 2)}, {vr(PB + 16 + r, 2)}, {vr(PB + 32 + r, 2)}')
        for r in range(4 * j, 4 * j + 4, 2):
            A(f'v_pk_add_f32 {vr(ACC2 + r, 2)}, {vr(ACC2 + r, 2)}, {vr(PB + 16 + r, 2)}')
        for r in range(4 * j, 4 * j + 4, 2):
            A(f'v_pk_fma_f32 {vr(ACC2 + r, 2)}, {vr(ACC2 + r, 2)}, {vr(PB + 64 + r, 2)}, {vr(PB + 48 + r, 2)}')
        for r in range(4 * j, 4 * j + 4):
            A.vmem(f'buffer_store_dword {vr(ACC2 + r)}, {vr(RO)}, {sr(R_O, 4)}, {k4(r // 2)} offen offset:{2048 * (r % 2)} {cfg.out_flags}')
    A.stamp('stored')
    if cfg.stamps:
        A.wait_vm_all()
        A.stamp('done')
    A.dump_stamps(0)
    A('s_endpgm')

    for b in range(1, 8):
        A.label(f'L_slow{b}')
        A(f'ds_read_b32 {vr(VPT)}, {vr(VPR)} offset:{need(b)[0]}\ns_waitcnt lgkmcnt(0)')
        A(f'v_cmp_gt_u32 vcc, {need(b)[1]}, {vr(VPT)}\ns_cbranch_vccnz L_slow{b}\ns_branch L_back{b}')

    A.label('L_p1_gate')
    A.vm = vm_at_split
    A.wait_vm_all()
    A('s_barrier')
    post(A, VPW, VPT, 9)
    srd(A, R_B, 30, 1024)
    A('v_lshrrev_b32 v1, 5, v0\nv_lshlrev_b32 v1, 4, v1')
    A(f's_lshl_b32 {sr(T2)}, {sr(S_RT)}, 2\ns_add_u32 {sr(T2)}, {sr(T2)}, {sr(S_W)}')
    for a in range(4):
        A(f'v_mov_b32 {vr(8 + a)}, 0')
    for half in range(2):
        for s in range(16):
            if s % 4 == 0:
                A(f's_bfe_u32 {sr(S_OA)}, {sr(S_RHO)}, {(3 << 16) | (16 * half + s)}\ns_lshl_b32 {sr(S_OA)}, {sr(S_OA)}, 7')
            A.vmem(f'buffer_load_dwordx4 {vr(32 + 4 * s, 4)}, v1, {sr(R_B, 4)}, {sr(S_OA)} offen offset:{32 * (s % 4)}', 'gw')
        A.wait_vm('gw')
        for s in range(16):
            for e in range(4):
                A(f'v_dot2c_f32_bf16 {vr(8 + e)}, {vr(XR + 4 * (16 * half + s) + e)}, {vr(32 + 4 * s + e)}')
    A('s_nop 2')
    A('v_add_f32 v8, v8, v9\nv_add_f32 v10, v10, v11\nv_add_f32 v8, v8, v10\nv_mov_b32 v9, v8\ns_nop 1')
    A('v_permlane32_swap_b32 v8, v9\nv_add_f32 v8, v8, v9')
    A('v_cvt_pk_bf16_f32 v8, v8, v8\nv_lshlrev_b32 v8, 16, v8')
    A(f'v_mul_f32 v8, {NLOG2E}, v8\nv_exp_f32 v8, v8\ns_nop 0\nv_add_f32 v8, 1.0, v8\nv_rcp_f32 v8, v8\ns_nop 0')
    A(f'v_cvt_pk_bf16_f32 v8, v8, v8\nv_lshlrev_b32 v8, 16, v8\nv_mov_b32 v9, {sr(S_TAG)}')
    A('v_bfe_u32 v10, v0, 2, 1\nv_bfe_u32 v11, v0, 3, 2\nv_and_b32 v12, 3, v0\nv_lshl_add_u32 v11, v11, 2, v12\nv_lshl_add_u32 v10, v10, 4, v11')
    A(f's_lshl_b32 {sr(T1)}, {sr(T2)}, 10\ns_add_u32 {sr(T1)}, {sr(T1)}, {GAT}')
    A(f'v_lshlrev_b32 v10, 3, v10')
    A('s_mov_b32 exec_hi, 0')
    A(f'buffer_store_dwordx2 v[8:9], v10, {sr(R_WS, 4)}, {sr(T1)} offen sc1')
    A('s_mov_b64 exec, -1')
    A('s_branch L_p1_join')
    return A


def gen_p2(cfg):
    A = WS(cfg, 31)
    LR, LI, L16R, L16I, L32R, L32I, KR, KI = 1, 2, 3, 4, 5, 6, 7, 8
    WQ = 194
    WSR, WSI, LCR, LCI = 198, 199, 9, 10
    VW = 11
    VPW, VPR, VPT = 15, 16, 17
    VC = 20
    AC = 24
    VPQ = 28
    VEX = 30
    U, V = 32, 48
    XF, BF = 64, 80
    TMP = 112
    AX = 128
    FB2 = 144
    CR = 128
    A.label('L_p2')
    if cfg.stamps:
        A('v_mov_b32 v31, 0')
    A.stamp('start')
    rho_pre(A, cfg, S_RHO, T0)
    A.wait_lg_all()
    load_tag(A)
    map2(A, cfg)
    srd(A, R_O, 28, 1376 * 1024)
    srd(A, R_WG, 24, 512 * 2752)
    srd(A, R_WU, 26, 512 * 2752)
    srd(A, R_WS, 36, WS_SIZE)
    srd(A, R_X, 4, 2048 * 1024)
    srd(A, R_B, 14, 512 * 1024)
    srd(A, R_E, 16, 512 * 1024)
    consts(A)
    A(f'v_and_b32 {vr(TMP + 4)}, 15, v0\nv_lshlrev_b32 {vr(TMP + 4)}, 2, {vr(TMP + 4)}\nv_add_u32 {vr(TMP + 4)}, {X_CNT}, {vr(TMP + 4)}\nv_mov_b32 {vr(TMP + 6)}, 0')
    A.ds(f'ds_write_b32 {vr(TMP + 4)}, {vr(TMP + 6)}')
    A(f'v_and_b32 {vr(TMP)}, 31, v0\nv_lshlrev_b32 {vr(TMP)}, 1, {vr(TMP)}\nv_add_u32 {vr(TMP)}, {X_PAR}, {vr(TMP)}')
    wffn_voffs(A, VW, TMP + 8)
    frag_addr(A, AC, TMP + 8)
    A(f's_lshl_b32 {sr(S_MB)}, {sr(S_W)}, 12')
    for s in range(4):
        A(f'v_add_u32 {vr(AX + s)}, {sr(S_MB)}, {vr(AC + s)}')
        A(f'v_add_u32 {vr(AX + 4 + s)}, {2 * SLOT}, {vr(AX + s)}')
        A(f'v_add_u32 {vr(AX + 8 + s)}, {2 * SLOT}, {vr(AC + s)}')
    A(f's_mul_i32 {sr(S_MB2)}, {sr(S_W)}, 3072')
    swz_consts(A, TMP + 4, TMP + 5, TMP + 6, TMP + 7)
    A(f's_lshl_b32 {sr(T0)}, {sr(S_N2)}, 16\ns_lshl_b32 {sr(T1)}, {sr(S_W)}, 8\ns_add_u32 {sr(T0)}, {sr(T0)}, {sr(T1)}')
    A(f'v_lshl_add_u32 {vr(TMP + 4)}, {vr(TMP + 4)}, 10, {sr(T0)}')
    A(f'v_add_u32 {vr(VC)}, {vr(TMP + 4)}, {vr(TMP + 5)}\nv_add_u32 {vr(VC + 1)}, {vr(TMP + 4)}, {vr(TMP + 6)}')
    A(f'v_add_u32 {vr(VC + 2)}, {2 * 7168}, {vr(VC)}\nv_add_u32 {vr(VC + 3)}, {3 * 7168}, {vr(VC + 1)}\nv_add_u32 {vr(VC + 1)}, 7168, {vr(VC + 1)}')
    A(f'v_and_b32 {vr(VEX)}, 31, v0\nv_lshlrev_b32 {vr(VEX)}, 3, {vr(VEX)}\nv_add_u32 {vr(VEX)}, {X_EX}, {vr(VEX)}')
    N0, N1, NS = TMP + 4, TMP + 5, TMP + 6
    A(f's_lshl_b32 {sr(T0)}, {sr(S_W)}, 2\ns_lshl_b32 {sr(T1)}, {sr(S_CG)}, 14\ns_add_u32 {sr(T1)}, {sr(T1)}, {AGG}')
    A(f'v_and_b32 {vr(TMP + 8)}, 15, v0\nv_lshl_add_u32 {vr(TMP + 8)}, {vr(TMP + 8)}, 4, {sr(T1)}\nv_bfe_u32 {vr(TMP + 7)}, v0, 4, 1\nv_lshl_add_u32 {vr(TMP + 8)}, {vr(TMP + 7)}, 9, {vr(TMP + 8)}')
    A(f'v_lshrrev_b32 {vr(TMP + 7)}, 5, v0')
    A(f'v_mov_b32 {vr(TMP + 10)}, {OOB}')
    for j in range(2):
        A(f'v_add_u32 {vr(TMP + 9)}, {sr(T0)}, {vr(TMP + 7)}')
        if j:
            A(f'v_add_u32 {vr(TMP + 9)}, 2, {vr(TMP + 9)}')
        A(f'v_cmp_gt_u32 vcc, {sr(S_RT)}, {vr(TMP + 9)}')
        A(f'v_lshl_add_u32 {vr(VPQ + j)}, {vr(TMP + 9)}, 10, {vr(TMP + 8)}')
        A(f'v_sub_u32 {vr(N0 + j)}, {sr(S_RT)}, {vr(TMP + 9)}')
        A(f'v_cndmask_b32 {vr(VPQ + j)}, {vr(TMP + 10)}, {vr(VPQ + j)}, vcc')
        A(f'v_add_u32 {vr(N0 + j)}, -1, {vr(N0 + j)}\nv_max_i32 {vr(N0 + j)}, 0, {vr(N0 + j)}\nv_lshlrev_b32 {vr(N0 + j)}, 7, {vr(N0 + j)}\nv_cvt_f32_i32 {vr(N0 + j)}, {vr(N0 + j)}')
    A(f's_lshl_b32 {sr(T0)}, {sr(S_W)}, 5\nv_lshl_add_u32 {vr(NS)}, {vr(TMP + 7)}, 4, {sr(T0)}\nv_cvt_f32_i32 {vr(NS)}, {vr(NS)}')
    LRE, LIM, DT, A2, BR = TMP + 1, TMP + 2, TMP + 3, TMP + 7, TMP + 12
    t0, t1 = TMP + 10, TMP + 11
    A(f's_lshl_b32 {sr(T0)}, {sr(S_W)}, 8\nv_add_u32 {vr(TMP + 8)}, {sr(T0)}, {vr(VEX)}')
    A(f's_lshl_b32 {sr(T0)}, {sr(S_CG)}, 4\ns_add_u32 {sr(T0)}, {sr(T0)}, {sr(S_RT)}\ns_lshl_b32 {sr(T0)}, {sr(T0)}, 10\ns_add_u32 {sr(T0)}, {sr(T0)}, {AGG}')
    A(f's_cmp_eq_u32 {sr(S_W)}, 0\ns_cselect_b32 {sr(T0)}, {sr(T0)}, {OOB}')
    lane_pat(A, TMP + 9, t0, sr(T0))
    flag_addr(A, S_GFL, HF)
    prog_addrs(A, VPW, VPR, G2)
    A(f's_and_b32 {sr(T0)}, {sr(S_W)}, 1\ns_lshl_b32 {sr(S_GST)}, {sr(T0)}, 15\ns_xor_b32 {sr(S_WDO)}, {sr(S_GST)}, 0x8000')
    AWR, ARD, VST = 200, 202, TMP + 15
    A(f's_lshl_b32 {sr(T0)}, {sr(S_W)}, 11\ns_add_u32 {sr(T0)}, {sr(T0)}, {X_TR}')
    A(f'v_lshrrev_b32 {vr(t0)}, 5, v0\nv_lshlrev_b32 {vr(AWR)}, 1, {vr(t0)}\nv_bfe_u32 {vr(t1)}, v0, 1, 2\nv_xor_b32 {vr(AWR)}, {vr(AWR)}, {vr(t1)}')
    A(f'v_and_b32 {vr(t1)}, 31, v0\nv_lshl_add_u32 {vr(AWR)}, {vr(t1)}, 2, {vr(AWR)}\nv_lshl_add_u32 {vr(AWR)}, {vr(AWR)}, 4, {sr(T0)}\nv_xor_b32 {vr(AWR + 1)}, 16, {vr(AWR)}')
    A(f'v_bfe_u32 {vr(t1)}, v0, 2, 2\nv_lshl_add_u32 {vr(t0)}, {vr(t0)}, 3, {vr(t1)}\nv_lshl_add_u32 {vr(ARD)}, {vr(t0)}, 6, {sr(T0)}')
    A(f'v_and_b32 {vr(t0)}, 1, v0\nv_lshl_add_u32 {vr(ARD)}, {vr(t0)}, 5, {vr(ARD)}')
    A(f'v_bfe_u32 {vr(t0)}, v0, 4, 1\nv_bfe_u32 {vr(t1)}, v0, 3, 1\nv_xor_b32 {vr(t0)}, {vr(t0)}, {vr(t1)}\nv_lshl_add_u32 {vr(ARD)}, {vr(t0)}, 4, {vr(ARD)}')
    A(f'v_bfe_u32 {vr(t0)}, v0, 1, 1\nv_lshl_add_u32 {vr(ARD)}, {vr(t0)}, 3, {vr(ARD)}\nv_xor_b32 {vr(ARD + 1)}, 32, {vr(ARD)}')
    A(f's_lshl_b32 {sr(T1)}, {sr(S_RT)}, 2\ns_add_u32 {sr(T1)}, {sr(T1)}, {sr(S_W)}\ns_mul_i32 {sr(T1)}, {sr(T1)}, {KSP}')
    A(f's_lshl_b32 {sr(T0)}, {sr(S_CG)}, 2\ns_add_u32 {sr(T1)}, {sr(T1)}, {sr(T0)}\ns_lshl_b32 {sr(T1)}, {sr(T1)}, 11')
    lane_pat(A, VST, t0, sr(T1))
    VPF = 192
    if cfg.w2pf == 1:
        A(f's_lshl_b32 {sr(T0)}, s2, 11\ns_mul_i32 {sr(T1)}, s2, {43 * 128}\ns_and_b32 {sr(T2)}, {sr(S_W)}, 1\ns_mul_i32 {sr(T2)}, {sr(T2)}, {22 * 128}\ns_add_u32 {sr(T1)}, {sr(T1)}, {sr(T2)}')
        A(f's_cmp_ge_u32 {sr(S_W)}, 2\ns_cselect_b32 {sr(T0)}, {sr(T1)}, {sr(T0)}\ns_cselect_b32 {sr(T1)}, 22, 16')
        A(f'v_lshl_add_u32 {vr(VPF)}, v0, 7, {sr(T0)}\nv_cmp_gt_u32 vcc, {sr(T1)}, v0\nv_mov_b32 {vr(t0)}, {OOB}\ns_nop 0\nv_cndmask_b32 {vr(VPF)}, {vr(t0)}, {vr(VPF)}, vcc')
        A(f's_cmp_eq_u32 {sr(S_W)}, 1\ns_cselect_b32 s4, s16, s14\ns_cselect_b32 s5, s17, s15\ns_cmp_ge_u32 {sr(S_W)}, 2\ns_cselect_b32 s4, s28, s4\ns_cselect_b32 s5, s29, s5')
        A(f's_cselect_b32 s6, {1376 * 1024}, {sr(R_B + 2)}\ns_mov_b32 s7, 0x20000')
        A(f's_lshr_b32 {sr(S_STAG)}, s2, 3\ns_mul_i32 {sr(T0)}, {sr(S_STAG)}, 43\ns_lshr_b32 {sr(T0)}, {sr(T0)}, 7\ns_mul_i32 {sr(T0)}, {sr(T0)}, 3\ns_sub_u32 {sr(S_STAG)}, {sr(S_STAG)}, {sr(T0)}')

    if cfg.c3pf:
        A(f's_lshr_b32 {sr(T2)}, s2, 3\ns_lshl_b32 {sr(T0)}, {sr(T2)}, 4\ns_mul_i32 {sr(T1)}, {sr(T2)}, 43\ns_and_b32 {sr(T2)}, {sr(S_W)}, 1\ns_mul_i32 {sr(T2)}, {sr(T2)}, 22\ns_add_u32 {sr(T1)}, {sr(T1)}, {sr(T2)}')
        A(f's_cmp_ge_u32 {sr(S_W)}, 2\ns_cselect_b32 {sr(T0)}, {sr(T1)}, {sr(T0)}\ns_cselect_b32 {sr(T1)}, 22, 16\ns_lshl_b32 {sr(T0)}, {sr(T0)}, 10\ns_add_u32 {sr(T0)}, {sr(T0)}, {384 - 32 * 1024}')
        A(f'v_lshl_add_u32 {vr(t1)}, v0, 10, {sr(T0)}\ns_bfm_b32 vcc_hi, {sr(T1)}, 0\ns_mov_b32 vcc_lo, 0\nv_cndmask_b32 {vr(VPF)}, {vr(VPF)}, {vr(t1)}, vcc')

    def w2pf(e):
        if cfg.w2pf == 1 and cfg.pf_at < 0:
            A(f's_cmp_lg_u32 {sr(S_STAG)}, {e}\ns_cbranch_scc1 L_nopf2_{e}')
            A(f'buffer_load_dword {vr(VPF + 1)}, {vr(VPF)}, s[4:7], 0 offen')
            A.label(f'L_nopf2_{e}')
        elif cfg.w2pf == 1 and cfg.pf_at == e:
            A.vmem(f'buffer_load_dword {vr(VPF + 1)}, {vr(VPF)}, s[4:7], 0 offen')
    A.wait_lg_all()
    A(f's_add_u32 {sr(S_TAG)}, {sr(S_TAG)}, 0x9E3779B1')
    A.stamp('setup')

    def cpow(dr, di, n):
        A(f'v_mul_f32 {vr(t0)}, {n}, {vr(A2)}\nv_mul_f32 {vr(t1)}, {n}, {vr(BR)}')
        A(f'v_exp_f32 {vr(t0)}, {vr(t0)}\nv_fract_f32 {vr(t1)}, {vr(t1)}')
        A(f'v_cos_f32 {vr(dr)}, {vr(t1)}\nv_sin_f32 {vr(di)}, {vr(t1)}')
        A(f'v_mul_f32 {vr(dr)}, {vr(t0)}, {vr(dr)}\nv_mul_f32 {vr(di)}, {vr(t0)}, {vr(di)}')

    def lam(i):
        if i == 0:
            for r in (LRE, LIM, DT):
                A(f'v_lshlrev_b32 {vr(r)}, 16, {vr(r)}')
            A(f'v_mul_f32 {vr(DT)}, {LOG2E}, {vr(DT)}\nv_exp_f32 {vr(DT)}, {vr(DT)}\ns_nop 0')
            A(f'v_cvt_pk_bf16_f32 {vr(DT)}, {vr(DT)}, {vr(DT)}\nv_lshlrev_b32 {vr(DT)}, 16, {vr(DT)}')
            A(f'v_mul_f32 {vr(A2)}, {vr(DT)}, {vr(LRE)}\nv_mul_f32 {vr(BR)}, {vr(DT)}, {vr(LIM)}')
            A(f'v_mul_f32 {vr(A2)}, {LOG2E}, {vr(A2)}\nv_mul_f32 {vr(BR)}, {INV2PI}, {vr(BR)}')
            cpow(LR, LI, '1.0')
            cpow(L16R, L16I, '0x41800000')
        if i == 1:
            cpow(L32R, L32I, '0x42000000')
        if i == 2:
            cpow(WQ, WQ + 1, vr(N0))
        if i == 3:
            cpow(WQ + 2, WQ + 3, vr(N1))
        if i == 4:
            cpow(WSR, WSI, vr(NS))
        if i == 5:
            A(f'v_mul_f32 {vr(t0)}, {vr(LRE)}, {vr(LRE)}\nv_fmac_f32 {vr(t0)}, {vr(LIM)}, {vr(LIM)}\nv_rcp_f32 {vr(t0)}, {vr(t0)}')
            A(f'v_add_f32 {vr(t1)}, -1.0, {vr(LR)}\nv_add_f32 {vr(t0)}, {vr(t0)}, {vr(t0)}')
            A(f'v_mul_f32 {vr(KR)}, {vr(t1)}, {vr(LRE)}\nv_fmac_f32 {vr(KR)}, {vr(LI)}, {vr(LIM)}')
            A(f'v_mul_f32 {vr(KI)}, {vr(LI)}, {vr(LRE)}\nv_fma_f32 {vr(KI)}, -{vr(t1)}, {vr(LIM)}, {vr(KI)}')
            A(f'v_mul_f32 {vr(KR)}, {vr(t0)}, {vr(KR)}\nv_mul_f32 {vr(KI)}, {vr(t0)}, {vr(KI)}')

    def fb(i):
        return (XF, BF) if i % 2 else (FB2, FB2 + 16)

    def mm(i, s):
        xf, bf = fb(i)
        A.wait_lg(f'a{i}{s}')
        mfma(A, U, xf + 4 * s, bf + 8 * s, i == 0 and s == 0)
        A.wait_lg(f'b{i}{s}')
        mfma(A, V, xf + 4 * s, bf + 8 * s + 4, i == 0 and s == 0)
    for i in range(8):
        A('s_barrier')
        so = (i % 2) * SLOT
        hi = (i >> 1) & 1
        xf, bf = fb(i)
        for s in range(4):
            ab = AX + 8 + s if hi else AC + s
            A.ds(f'ds_read_b128 {vr(xf + 4 * s, 4)}, {vr(AX + 4 * hi + s)} offset:{so}', f'a{i}{s}')
            A.ds(f'ds_read_b128 {vr(bf + 8 * s, 4)}, {vr(ab)} offset:{so + 16384}', f'a{i}{s}')
            A.ds(f'ds_read_b128 {vr(bf + 8 * s + 4, 4)}, {vr(ab)} offset:{so + 20480}', f'b{i}{s}')
            if i and s < 2:
                mm(i - 1, 2 + s)
        if i == 1:
            for j, r in enumerate((LRE, LIM, DT)):
                A.ds(f'ds_read_u16 {vr(r)}, {vr(TMP)} offset:{256 * j}')
        mm(i, 0)
        mm(i, 1)
        A.wait_lg_all()
        lam(i - 1)
    if cfg.prio:
        A('s_setprio 2')
    A('s_barrier')
    if 'p2wait' in cfg.dbg:
        await_(A, 'dbgw', VPR, VPT, G1, 9)
    if 'p2sleep' in cfg.dbg:
        for i in range(14):
            A('s_sleep 8')
    w2pf(0)
    mm(7, 2)
    mm(7, 3)
    A.stamp('Aend')
    A(f's_add_u32 {sr(S_MB)}, {sr(S_MB)}, {P2B}')
    for s in range(4):
        A(f'v_add_u32 {vr(AC + s)}, {sr(S_MB)}, {vr(AC + s)}')
    GR = XF + 12
    A('s_nop 6')

    def cfma(dr, di, ar, ai, br, bi, cr, ci):
        A(f'v_fma_f32 {vr(dr)}, {vr(ar)}, {vr(br)}, {vr(cr)}\nv_fma_f32 {vr(di)}, {vr(ar)}, {vr(bi)}, {vr(ci)}')
        A(f'v_fma_f32 {vr(dr)}, -{vr(ai)}, {vr(bi)}, {vr(dr)}\nv_fma_f32 {vr(di)}, {vr(ai)}, {vr(br)}, {vr(di)}')
    pr, pi = U, V
    for r in range(1, 16):
        dr, di = TMP + 2 * (r % 2), TMP + 2 * (r % 2) + 1
        cfma(dr, di, LR, LI, pr, pi, U + r, V + r)
        pr, pi = dr, di
    E0R, E0I, E1R, E1I = TMP + 2, TMP + 3, TMP + 4, TMP + 5
    assert (pr, pi) == (E0R, E0I)
    A(f'v_mov_b32 {vr(E1R)}, {vr(E0R)}\nv_mov_b32 {vr(E1I)}, {vr(E0I)}')
    A(f'v_mov_b32 {vr(GR + 1)}, {sr(S_TAG)}\nv_mov_b32 {vr(GR + 3)}, {sr(S_TAG)}')
    A(f'v_permlane32_swap_b32 {vr(E0R)}, {vr(E1R)}\nv_permlane32_swap_b32 {vr(E0I)}, {vr(E1I)}')
    cfma(TMP + 6, TMP + 7, L16R, L16I, E0R, E0I, E1R, E1I)
    A.ds(f'ds_write_b64 {vr(TMP + 8)}, {vr(TMP + 6, 2)}')
    post(A, VPW, VPT, E_EX, G3 - G2)
    A.stamp('pass1')
    issue_w(A, 12, VW, S_MB2)
    await_(A, 'ex', VPR, VPT, G3, E_EX)
    EW = XF
    for w in range(4):
        A.ds(f'ds_read_b64 {vr(EW + 2 * w, 2)}, {vr(VEX)} offset:{256 * w}')
    PA = XF + 8
    A.wait_lg_all()
    cfma(PA, PA + 1, L32R, L32I, EW, EW + 1, EW + 2, EW + 3)
    cfma(PA + 2, PA + 3, L32R, L32I, PA, PA + 1, EW + 4, EW + 5)
    cfma(GR, GR + 2, L32R, L32I, PA + 2, PA + 3, EW + 6, EW + 7)
    A('s_mov_b32 exec_hi, 0')
    A.vmem(f'buffer_store_dwordx4 {vr(GR, 4)}, {vr(TMP + 9)}, {sr(R_WS, 4)}, 0 offen sc1')
    A('s_mov_b64 exec, -1')
    A.stamp('pub')
    issue_w(A, 13, VW, S_MB2)
    w2pf(1)
    PW = TMP + 10
    A(f'v_mov_b32 {vr(PW)}, 0\nv_mov_b32 {vr(PW + 1)}, 0')
    for w, src in ((1, EW), (2, PA), (3, PA + 2)):
        A(f's_cmp_eq_u32 {sr(S_W)}, {w}\ns_cselect_b64 vcc, -1, 0')
        A(f'v_cndmask_b32 {vr(PW)}, {vr(PW)}, {vr(src)}, vcc\nv_cndmask_b32 {vr(PW + 1)}, {vr(PW + 1)}, {vr(src + 1)}, vcc')
    cfma(LCR, LCI, L16R, L16I, PW, PW + 1, E0R, E0I)
    A('s_mov_b32 vcc_lo, -1\ns_mov_b32 vcc_hi, 0')
    A(f'v_cndmask_b32 {vr(LCR)}, {vr(LCR)}, {vr(PW)}, vcc\nv_cndmask_b32 {vr(LCI)}, {vr(LCI)}, {vr(PW + 1)}, vcc')

    def scale(rs):
        for r in rs:
            t = TMP + (r & 1)
            A(f'v_mul_f32 {vr(t)}, {vr(KI)}, {vr(V + r)}\nv_mul_f32 {vr(V + r)}, {vr(KR)}, {vr(V + r)}')
            A(f'v_fmac_f32 {vr(V + r)}, {vr(KI)}, {vr(U + r)}\nv_fma_f32 {vr(U + r)}, {vr(KR)}, {vr(U + r)}, -{vr(t)}')
    PQ = XF

    def pl_agg():
        for j in range(2):
            A.vmem(f'buffer_load_dwordx4 {vr(PQ + 4 * j, 4)}, {vr(VPQ + j)}, {sr(R_WS, 4)}, 0 offen sc1', 'pagg')

    def ck_agg():
        for j in range(2):
            A(f'v_cmp_eq_u32 {sr(S_C0, 2)}, {sr(S_TAG)}, {vr(PQ + 4 * j + 1)}\nv_cmp_eq_u32 {sr(8, 2)}, {sr(S_TAG)}, {vr(PQ + 4 * j + 3)}')
            A(f'v_cmp_eq_u32 vcc, {OOB}, {vr(VPQ + j)}')
            A(f's_and_b64 {sr(S_C0, 2)}, {sr(S_C0, 2)}, {sr(8, 2)}\ns_or_b64 {sr(S_C0, 2)}, {sr(S_C0, 2)}, vcc')
            if j == 0:
                A(f's_mov_b64 {sr(T2, 2)}, {sr(S_C0, 2)}')
        A(f's_and_b64 {sr(S_C0, 2)}, {sr(S_C0, 2)}, {sr(T2, 2)}\ns_cmp_eq_u64 {sr(S_C0, 2)}, -1')
    scale(range(0, 8))
    await_(A, 'pa2', VPR, VPT, G1, 2)
    issue_w(A, 14, VW, S_MB2)
    A.wait_vm('blk12')
    post(A, VPW, VPT, E_W4)
    A.stamp('W4')
    scale(range(8, 16))
    pl_agg()
    await_(A, 'pa3', VPR, VPT, G1, 3)
    issue_w(A, 15, VW, S_MB2)
    w2pf(2)

    def dma_c(pc):
        blk, part, na = pc >> 2, (pc >> 1) & 1, pc & 1
        A(f's_add_u32 m0, {sr(S_MB)}, {(pc % 3) * 16384}')
        A(f's_add_u32 {sr(S_OA)}, {sr(S_WDO if na else S_GST)}, {blk * 128}')
        for j in range(4):
            A.vmem(f'buffer_load_dwordx4 {vr(VC + j)}, {sr(R_E if part else R_B, 4)}, {sr(S_OA)} offen offset:{1024 * j} lds', f'c{pc}')
    A.wait_vm('blk13')
    post(A, VPW, VPT, E_W5)
    A.wait_vm('pagg')
    post(A, VPW, VPT, E_W6)
    spin(A, 'agg', pl_agg, ck_agg, cfg, lambda: post(A, VPW, VPT, E_W7))
    A.stamp('aggok')
    Q = TMP
    A(f'v_mul_f32 {vr(Q)}, {vr(WQ)}, {vr(PQ)}\nv_mul_f32 {vr(Q + 1)}, {vr(WQ)}, {vr(PQ + 2)}')
    A(f'v_fma_f32 {vr(Q)}, -{vr(WQ + 1)}, {vr(PQ + 2)}, {vr(Q)}\nv_fmac_f32 {vr(Q + 1)}, {vr(WQ + 1)}, {vr(PQ)}')
    cfma(Q, Q + 1, WQ + 2, WQ + 3, PQ + 4, PQ + 6, Q, Q + 1)
    A(f'v_mov_b32 {vr(Q + 2)}, {vr(Q)}\nv_mov_b32 {vr(Q + 3)}, {vr(Q + 1)}\ns_nop 1')
    A(f'v_permlane32_swap_b32 {vr(Q)}, {vr(Q + 2)}\nv_permlane32_swap_b32 {vr(Q + 1)}, {vr(Q + 3)}')
    A(f'v_add_f32 {vr(Q)}, {vr(Q)}, {vr(Q + 2)}\nv_add_f32 {vr(Q + 1)}, {vr(Q + 1)}, {vr(Q + 3)}')
    A.ds(f'ds_write_b64 {vr(TMP + 8)}, {vr(Q, 2)} offset:1024')

    def creg(t, na):
        return CR + 8 * t + 4 * na

    def rd_c(pc):
        A.wait_vm(f'c{pc}')
        for s in range(4):
            A.ds(f'ds_read_b128 {vr(creg((pc >> 1) * 4 + s, pc & 1), 4)}, {vr(AC + s)} offset:{(pc % 3) * 16384}', f'mc{pc}')

    def re_c(pc):
        if pc + 3 < 8:
            A.wait_lg(f'mc{pc}')
            dma_c(pc + 3)

    def mov_c(pc):
        rd_c(pc)
        re_c(pc)
    post(A, VPW, VPT, E_EX2, G3 - G2)
    await_(A, 'pa4', VPR, VPT, G1, 4)
    dma_c(0)
    await_(A, 'ex2', VPR, VPT, G3, E_EX2)
    A.stamp('ex2')
    for w in range(4):
        A.ds(f'ds_read_b64 {vr(EW + 2 * w, 2)}, {vr(VEX)} offset:{1024 + 256 * w}', 'ex2')
    A.wait_vm('blk15')
    post(A, VPW, VPT, E_W7)
    A.wait_lg('ex2')
    for o in (0, 1):
        A(f'v_add_f32 {vr(EW + o)}, {vr(EW + o)}, {vr(EW + 2 + o)}\nv_add_f32 {vr(EW + 4 + o)}, {vr(EW + 4 + o)}, {vr(EW + 6 + o)}')
    A(f'v_add_f32 {vr(EW)}, {vr(EW)}, {vr(EW + 4)}\nv_add_f32 {vr(EW + 1)}, {vr(EW + 1)}, {vr(EW + 5)}')
    cfma(LCR, LCI, WSR, WSI, EW, EW + 1, LCR, LCI)
    A(f'v_mul_f32 {vr(TMP)}, {vr(KR)}, {vr(LCR)}\nv_mul_f32 {vr(TMP + 1)}, {vr(KR)}, {vr(LCI)}')
    A(f'v_fma_f32 {vr(TMP)}, -{vr(KI)}, {vr(LCI)}, {vr(TMP)}\nv_fmac_f32 {vr(TMP + 1)}, {vr(KI)}, {vr(LCR)}')
    pr, pi = TMP, TMP + 1
    PK = XF
    for r in range(16):
        if r == cfg.c12_at:
            await_(A, 'pa5', VPR, VPT, G1, 5)
            dma_c(1)
            dma_c(2)
        cfma(U + r, V + r, LR, LI, pr, pi, U + r, V + r)
        pr, pi = U + r, V + r
        if r % 2:
            A(f'v_cvt_pk_bf16_f32 {vr(PK + r // 2)}, {vr(U + r - 1)}, {vr(U + r)}')
            A(f'v_cvt_pk_bf16_f32 {vr(PK + 8 + r // 2)}, -{vr(V + r - 1)}, -{vr(V + r)}')
    A.stamp('pass2')
    HFR = BF
    for part in range(2):
        for j in range(2):
            A.ds(f'ds_write_b128 {vr(AWR + j)}, {vr(PK + 8 * part + 4 * j, 4)}')
        for cj in range(2):
            for rd in range(2):
                A.ds(f'ds_read_b64_tr_b16 {vr(HFR + 8 * part + 4 * cj + 2 * rd, 2)}, {vr(ARD + rd)} offset:{(16 * cj + 4 * rd) * 64}', f'h{part}{cj}')
    for part in range(2):
        for cj in range(2):
            A.wait_lg(f'h{part}{cj}')
            A.vmem(f'buffer_store_dwordx4 {vr(HFR + 8 * part + 4 * cj, 4)}, {vr(VST)}, {sr(R_WS, 4)}, {fo(2 * part + cj)} sc1', 'h')
    A.flush()
    A.stamp('hst')
    for pc in range(3):
        rd_c(pc)
    for pc in range(3):
        re_c(pc)
    A(f'v_mov_b32 {vr(TMP)}, {sr(S_TAG)}\nv_mov_b32 {vr(TMP + 1)}, 0')
    A.wait_vm('h')
    A('s_mov_b64 exec, 1')
    A.vmem(f'buffer_store_dword {vr(TMP)}, {vr(TMP + 1)}, {sr(R_WS, 4)}, {sr(S_GFL)} offen sc1', 'fl')
    A('s_mov_b64 exec, -1')
    A.stamp('hflag')
    VD = 32
    wd_voffs(A, VD, VD + 4, S_MB2)
    VA, VP, VG, VXS, PD, PG, DS = 1, 3, 4, 5, 6, 8, 10
    A(f's_lshr_b32 {sr(T0)}, {sr(S_W)}, 1\ns_lshl_b32 {sr(T1)}, {sr(S_M2)}, 1\ns_add_u32 {sr(T2)}, {sr(T1)}, {sr(T0)}\ns_xor_b32 {sr(T3)}, {sr(T2)}, 1')
    A(f's_lshl_b32 {sr(T1)}, {sr(T2)}, 10\ns_add_u32 {sr(T1)}, {sr(T1)}, {GAT}\nv_and_b32 {vr(VG)}, 31, v0\nv_lshl_add_u32 {vr(VG)}, {vr(VG)}, 3, {sr(T1)}')
    A(f's_and_b32 {sr(T0)}, {sr(S_W)}, 1\ns_lshl_b32 {sr(T1)}, {sr(S_N2)}, 1\ns_add_u32 {sr(T0)}, {sr(T0)}, {sr(T1)}\ns_lshl_b32 {sr(T0)}, {sr(T0)}, 6')
    A(f'v_and_b32 {vr(DS)}, 31, v0\nv_lshl_add_u32 {vr(DS)}, {vr(DS)}, 1, {sr(T0)}')
    A(f's_lshl_b32 {sr(T1)}, {sr(T2)}, 15\nv_lshrrev_b32 {vr(VXS)}, 5, v0\nv_lshl_add_u32 {vr(VXS)}, {vr(VXS)}, 14, {vr(DS)}\nv_add_u32 {vr(VXS)}, {sr(T1)}, {vr(VXS)}')
    A(f's_lshl_b32 {sr(T0)}, {sr(S_W)}, 4')
    for ma, t in ((0, T2), (1, T3)):
        A(f's_mul_i32 {sr(t)}, {sr(t)}, {KSP}\ns_add_u32 {sr(t)}, {sr(t)}, {sr(T0)}\ns_lshl_b32 {sr(t)}, {sr(t)}, 11')
        lane_pat(A, VA + ma, VP, sr(t))
    A(f's_mul_i32 {sr(T0)}, {sr(S_M2)}, {FST}\ns_lshl_b32 {sr(T1)}, {sr(S_W)}, 5\ns_add_u32 {sr(T0)}, {sr(T0)}, {sr(T1)}\ns_add_u32 {sr(T0)}, {sr(T0)}, {HF}')
    A(f'v_and_b32 {vr(VP)}, 7, v0\nv_lshl_add_u32 {vr(VP)}, {vr(VP)}, 2, {sr(T0)}')

    def pl_h():
        A.vmem(f'buffer_load_dword {vr(PD)}, {vr(VP)}, {sr(R_WS, 4)}, 0 offen sc1', 'ph')
        A.vmem(f'buffer_load_dwordx2 {vr(PG, 2)}, {vr(VG)}, {sr(R_WS, 4)}, 0 offen sc1', 'ph')

    def ck_h():
        A(f'v_cmp_eq_u32 vcc, {sr(S_TAG)}, {vr(PD)}\nv_cmp_eq_u32 {sr(S_C1, 2)}, {sr(S_TAG)}, {vr(PG + 1)}')
        A(f's_and_b64 vcc, vcc, {sr(S_C1, 2)}\ns_cmp_eq_u64 vcc, -1')
    ACC2 = 32
    free = [96, 104, 112, 120]
    areg = {}

    def kk(t):
        blk, part, s = t >> 3, (t >> 2) & 1, t & 3
        return 8 * blk + 4 * (s >> 1) + 2 * part + (s & 1)

    def ld_act(t):
        areg[t] = free.pop(0)
        for ma in range(2):
            A.vmem(f'buffer_load_dwordx4 {vr(areg[t] + 4 * ma, 4)}, {vr(VA + ma)}, {sr(R_WS, 4)}, {fo(kk(t))} sc1', f'act{t}')
    for pc in range(3, 5):
        mov_c(pc)
    A.stamp('c4')
    A.vmem(f'global_load_ushort {vr(DS)}, {vr(DS)}, s[20:21]', 'xs')
    await_(A, 'w7', VPR, VPT, G2, E_W7)
    for t in range(0, 12, 2):
        if t in (0, 6, 8):
            await_(A, f'pa_wd{t}', VPR, VPT, G1, {0: 7, 6: 8, 8: 9}[t])
        if t == 8:
            A.stamp('cntE')
        dma_wd(A, t, VD, S_MB2, R_O)
        if t // 2 < 3:
            rd_c(5 + t // 2)
        if t == cfg.hpoll_at:
            pl_h()
    A.stamp('Cdone')
    A(f'v_lshl_add_u32 v11, v0, 4, {sr(S_MB)}')
    for a in (1, 2, 3):
        A(f's_xor_b32 {sr(T0)}, {sr(S_W)}, {a}\ns_lshl_b32 {sr(T0)}, {sr(T0)}, 12\ns_add_u32 {sr(T0)}, {sr(T0)}, {P2B}')
        A(f'v_lshl_add_u32 {vr(11 + a)}, v0, 4, {sr(T0)}')
    A.wait_vm('ph')
    spin(A, 'h', pl_h, ck_h, cfg, lambda: post(A, VPW, VPT, E_WD))
    A.stamp('hpoll')
    for t in range(4):
        ld_act(t)
    A(f's_lshl_b32 {sr(T0)}, {sr(S_W)}, 7\ns_add_u32 {sr(T0)}, {sr(T0)}, {X_G}')
    A(f'v_and_b32 {vr(VP)}, 31, v0\nv_lshl_add_u32 {vr(VP)}, {vr(VP)}, 2, {sr(T0)}')
    A(f'v_lshrrev_b32 {vr(VG)}, 5, v0\nv_lshl_add_u32 {vr(VG)}, {vr(VG)}, 6, {sr(T0)}')
    A(f'v_sub_f32 {vr(PG + 1)}, 1.0, {vr(PG)}')
    A.ds(f'ds_write_b32 {vr(VP)}, {vr(PG)}')
    A.ds(f'ds_write_b32 {vr(VP)}, {vr(PG + 1)} offset:{X_OMG - X_G}')
    A.wait_vm('wd11')
    post(A, VPW, VPT, E_WD)
    A.wait_lg_all()
    nxt = 4
    XS = None
    for t in range(16):
        A.wait_vm(f'act{t}')
        for a in (1, 2, 3, 0):
            mfma(A, ACC2 + 16 * a, areg[t] + 4 * (a >> 1), creg(t, a & 1), t == 0)
        free += [areg[t], creg(t, 0)]
        for _ in range(2):
            if nxt < 16:
                ld_act(nxt)
                nxt += 1
        if t == 9:
            XS = creg(8, 0)
            free.remove(creg(8, 0))
            free.remove(creg(9, 0))
            for r in range(16):
                A.vmem(f'buffer_load_ushort {vr(XS + r)}, {vr(VXS)}, {sr(R_X, 4)}, {k4(r // 4)} offen offset:{1024 * (r % 4)}', 'xs')
        if t == 0:
            A.stamp('S0')
    A.stamp('Send')
    A('s_nop 8')
    for a in (1, 2, 3):
        for j in range(4):
            A.ds(f'ds_write_b128 v11, {vr(ACC2 + 16 * a + 4 * j, 4)} offset:{(a - 1) * 16384 + j * 1024}')
    post(A, VPW, VPT, E_SP, G3 - G2)
    GV = 96
    for j in range(4):
        A.ds(f'ds_read_b128 {vr(GV + 4 * j, 4)}, {vr(VG)} offset:{16 * j}')
    A.wait_vm('xs')
    A(f'v_lshlrev_b32 {vr(DS)}, 16, {vr(DS)}')
    for r in range(16):
        A(f'v_lshlrev_b32 {vr(XS + r)}, 16, {vr(XS + r)}')
        A(f'v_fmac_f32 {vr(ACC2 + r)}, {vr(XS + r)}, {vr(DS)}')
    await_(A, 'cntS', VPR, VPT, G3, E_SP)
    A.stamp('X1')
    PB = 128
    for a in (1, 2, 3):
        for j in range(4):
            A.ds(f'ds_read_b128 {vr(PB + 16 * (a - 1) + 4 * j, 4)}, {vr(11 + a)} offset:{(a - 1) * 16384 + j * 1024}', f'r{a}')
    for a in (1, 2, 3):
        A.wait_lg(f'r{a}')
        for r in range(0, 16, 2):
            A(f'v_pk_add_f32 {vr(ACC2 + r, 2)}, {vr(ACC2 + r, 2)}, {vr(PB + 16 * (a - 1) + r, 2)}')
    for r in range(0, 16, 2):
        A(f'v_pk_mul_f32 {vr(ACC2 + r, 2)}, {vr(ACC2 + r, 2)}, {vr(GV + r, 2)}')
    for j in range(4):
        A.ds(f'ds_write_b128 v12, {vr(ACC2 + 4 * j, 4)} offset:{j * 1024}')
    A.wait_lg_all()
    A.stamp('Sfin')
    A('s_barrier')
    A(f's_lshl_b32 {sr(T0)}, {sr(S_M2)}, 5\ns_lshl_b32 {sr(T1)}, {sr(S_N2)}, 2\ns_add_u32 {sr(T0)}, {sr(T0)}, {sr(T1)}\ns_add_u32 {sr(T0)}, {sr(T0)}, {sr(S_W)}')
    A(f's_cmp_lg_u32 {sr(T0)}, {31 << 5}\ns_cbranch_scc1 L_p2_done')
    A(f'v_mov_b32 v1, {sr(S_TAG)}\nv_mov_b32 v2, {GW}\ns_mov_b64 exec, 1')
    A(f'buffer_store_dword v1, v2, {sr(R_WS, 4)}, 0 offen\ns_mov_b64 exec, -1')
    A.label('L_p2_done')
    A.dump_stamps(1)
    A.label('L_end')
    A('s_endpgm')
    A.label('L_codeend')
    return A


HEADER = open(os.path.join(os.path.dirname(os.path.abspath(__file__)), '..', 'cdna_kernels',
                           'gated_mix__ssm_conv_s5__swiglu_ffn__prompt.s.ref')).read().split('; Override launch')[0]


def generate(cfg):
    e, p1, p2 = gen_entry(cfg), gen_p1(cfg), gen_p2(cfg)
    if cfg.dbg:
        i0 = [i for i, l in enumerate(p2.lines) if l == 's_barrier'][8]
        i1 = p2.lines.index('L_h_chk:')
        for i in range(i0, i1):
            l = p2.lines[i]
            if 'nofma' in cfg.dbg and l.startswith(('v_fma', 'v_mul_f32', 'v_cvt_pk')):
                p2.lines[i] = 's_nop 1'
            if 'nodma' in cfg.dbg and l.endswith(' lds'):
                p2.lines[i] = 's_nop 3'
            if 'nods' in cfg.dbg and l.startswith(('ds_read_b128', 'ds_write_b128', 'ds_read_b64_tr')):
                p2.lines[i] = 's_nop 1'
            if 'nost' in cfg.dbg and l.startswith('buffer_store_dwordx4') and 'offset' in l:
                p2.lines[i] = 's_nop 1'
    probs = check_hazards(e.lines + p1.lines, 'p1') + check_hazards(e.lines + p2.lines, 'p2')
    for p in probs:
        print('HAZARD', p, file=sys.stderr)
    assert not probs
    nb1 = sum(l == 's_barrier' for l in p1.lines[:p1.lines.index('L_p1_gate:')])
    nb2 = sum(l == 's_barrier' for l in p2.lines)
    assert nb1 == nb2, (nb1, nb2)
    txt = HEADER + f'; @launch grid=(256,1,1) block=(512,1,1) lds={LDS}\n'
    txt += f'.amdgcn_target "amdgcn-amd-amdhsa--gfx950"\n.text\n.globl {K}\n.p2align 8\n.type {K},@function\n{K}:\n'
    txt += e.text() + p1.text() + p2.text()
    txt += f'''.section .rodata,"a"
.p2align 6
.amdhsa_kernel {K}
  .amdhsa_next_free_vgpr 256
  .amdhsa_next_free_sgpr 102
  .amdhsa_accum_offset 256
  .amdhsa_group_segment_fixed_size 0
  .amdhsa_kernarg_size 136
  .amdhsa_user_sgpr_count 2
  .amdhsa_user_sgpr_kernarg_segment_ptr 1
  .amdhsa_system_sgpr_workgroup_id_x 1
.end_amdhsa_kernel
'''
    return txt, (p1.names, p2.names)


if __name__ == '__main__':
    cfg = Cfg()
    out = sys.argv[1]
    for kv in sys.argv[2:]:
        k, v = kv.split('=')
        old = getattr(cfg, k)
        setattr(cfg, k, (v not in ('0', 'False')) if isinstance(old, bool) else type(old)(v))
    txt, names = generate(cfg)
    open(out, 'w').write(txt)
    if cfg.stamps:
        import json
        json.dump(names, open(out + '.names', 'w'))
```

```python
import sys, os
sys.path.insert(0, os.path.dirname(os.path.abspath(__file__)))
from asmlib import Stream, vr, sr, check_hazards

K = 'gated_mix__ssm_conv_s5__swiglu_ffn__prompt_kernel'

ACT = 0
KSP = 160
AGG = 0x1400000
GAT = 0x1440000
FST = 8192
HF = 0x1480000
GF = 0x14C0000
GW = 0x1500000
WS_SIZE = 0x1510000
STAMP = 0xF000000
OOB = 0x40000000
SLOT = 24576
P2B = 0
P1B = 2 * SLOT
WSLOT = [4, 5, 0, 1, 4, 5, 0, 1]
XB = 6 * SLOT
X_TR, X_EX, X_EX2, X_G, X_OMG, X_CNT = XB, XB + 8192, XB + 9216, XB + 10240, XB + 10752, XB + 11264
X_PAR = XB + 11520
LDS = XB + 16384
S_RT, S_CG, S_M2, S_N2, S_W, S_TAG = 38, 39, 40, 41, 42, 43
R_WS, R_X, R_B, R_WG, R_WU, R_E, R_O = 44, 48, 52, 56, 60, 64, 68
S_OA, S_OW = 72, 73
S_K4 = 73
T0, T1, T2, T3 = 3, 81, 0, 1
S_MB = 82
S_MB2 = 83
S_C0 = 84
S_C1 = 86
S_CNT = 88
S_RHO, S_STAG = 87, 23
S_GST, S_GFL, S_WDO = 34, 35, 22
S_ROT, S_QN, S_UR = 10, 11, 12
S_ST0 = 90
LOG2E = 0x3fb8aa3b
NLOG2E = 0xbfb8aa3b
INV2PI = 0x3e22f983


class Cfg:
    mapping = '84'
    map2 = '48'
    rot2 = True
    rotj = 'x'
    weave = 2
    sched = 'mm +c0 +pf p1 W4 pub lc +W5 s0 s1 poll w4 W6 w5 q W7 w6 +c1 +c2 car pa w7 r0 +c3 pb tr r1 r2 c4 c5 vd r3 c6 ad hf r4 c7 d3 r5 d2 d4 r6 d0 hp xs r7 hs d1 d5'
    rot = True
    stag0 = 0
    nstag = 4
    rotx = 0
    swap = True
    w2pf = 1
    pairwait = True
    fx = ''
    fb = ''
    fw = ''
    fc = ''
    probe = ''
    stamps = 0
    D = 3
    DF = 7
    hpoll_at = 4
    c12_at = 0
    post_exec = False
    burst = False
    fullflag = True
    spoll = True
    pF = 1
    touch = False
    pEnd = 0
    gpl = 3
    p2w = 4
    wres = 5
    p2st = 'mm,p1,pub,W4,w4,W5,q,car,W6,pb,W7,tr,hf,c2,c5,c7,r7,d1,d3,d5,w5,w6,w7'
    fine = False
    c3pf = True
    dbg = ''
    p1b = 2
    p2b = 3
    p2lo = 1
    post_at = 2
    peek_at = 8
    depth = 8
    pf_at = 0
    spin = 1 << 15
    code_pf = True
    out_flags = ''
    prio = True


class WS(Stream):
    def __init__(self, cfg, vst):
        super().__init__()
        self.cfg, self.vst = cfg, vst
        self.pend, self.names, self.nst = [], [], 0
        self.bg, self.ticks = [], 0

    def defer(self, fn):
        l0, v0 = len(self.lines), len(self.vm)
        fn()
        lines, tags = self.lines[l0:], self.vm[v0:]
        del self.lines[l0:], self.vm[v0:]
        cur = []
        for ln in lines:
            cur.append(ln)
            if ln.startswith('buffer_'):
                self.bg.append((cur, tags.pop(0)))
                cur = []
        assert not cur and not tags

    def pop_bg(self):
        lines, tag = self.bg.pop(0)
        self.lines += lines
        self.vm.append(tag)

    def low(self, fn):
        if self.cfg.p2lo != self.cfg.p2b:
            self(f's_setprio {self.cfg.p2lo}')
        fn()
        if self.cfg.p2lo != self.cfg.p2b:
            self(f's_setprio {self.cfg.p2b}')

    def tick(self):
        self.ticks += 1
        if self.bg and self.ticks >= self.cfg.weave:
            self.ticks = 0
            self.low(self.pop_bg)

    def drain(self):
        if self.bg:
            self.low(lambda: [self.pop_bg() for _ in list(self.bg)])

    def stamp(self, name):
        role = '1' if self.vst == 7 else '2'
        if self.cfg.probe and self.cfg.probe[0] == role and (name == 'start' or self.cfg.probe[2:] == name):
            self('s_memrealtime s[98:99]')
        if self.cfg.stamps == 4:
            if name in ('start', 'A0', 'A4', 'A7', 'B0', 'B4', 'E', 'epi', 'guflag', 'wdok', 'gupoll', 'F0', 'Fend', 'X2', 'done', 'pub', 'q', 'tr', 'hf', 'hpoll', 'S0', 'Send', 'Sfin'):
                self._stamp(name, 's_memrealtime')
            return
        if self.cfg.stamps == 3:
            if name in ('start', 'A0', 'A4', 'B0', 'B4', 'E', 'guflag', 'F0', 'done') and role == '1':
                self._stamp(name, 's_memtime')
                self._stamp(name + '_ns', 's_memrealtime')
            return
        if self.cfg.stamps != 1:
            return
        self._stamp(name, 's_memtime')

    def _stamp(self, name, op):
        if len(self.pend) == 6:
            self('s_waitcnt lgkmcnt(0)')
            self.lg = []
            self.flush()
        used = {p for p, _ in self.pend}
        p = [x for x in range(6) if x not in used][0]
        self(f'{op} {sr(S_ST0 + 2 * p, 2)}')
        self.pend.append((p, self.nst))
        self.names.append(name)
        self.nst += 1

    def flush(self):
        for p, i in self.pend:
            self(f'v_writelane_b32 {vr(self.vst)}, {sr(S_ST0 + 2 * p)}, {i}')
        self.pend = []

    def wait_lg_all(self):
        super().wait_lg_all()
        self.flush()

    def dump_stamps(self, role):
        if self.cfg.probe and int(self.cfg.probe[0]) == role + 1:
            self('s_waitcnt lgkmcnt(0)\ns_add_u32 s98, s98, 3000')
            self.label('L_hold')
            self('s_memrealtime s[96:97]\ns_waitcnt lgkmcnt(0)\ns_sub_u32 s96, s96, s98\ns_cmp_lt_i32 s96, 0\ns_cbranch_scc1 L_hold')
        if not self.cfg.stamps:
            return
        self(f's_memrealtime {sr(S_C0, 2)}')
        self.wait_lg_all()
        self(f'v_writelane_b32 {vr(self.vst)}, {sr(S_C0)}, 62')
        self(f'v_writelane_b32 {vr(self.vst)}, s89, 63')
        self(f's_lshl_b32 {sr(T0)}, s2, 3\ns_add_u32 {sr(T0)}, {sr(T0)}, {sr(S_W)}\ns_add_u32 {sr(T0)}, {sr(T0)}, {4 * role}')
        self(f's_lshl_b32 {sr(T0)}, {sr(T0)}, 8\ns_add_u32 {sr(T0)}, {sr(T0)}, {STAMP}')
        self(f's_add_u32 s36, s36, {sr(T0)}\ns_addc_u32 s37, s37, 0')
        self('v_lshlrev_b32 v1, 2, v0')
        self(f'global_store_dword v1, {vr(self.vst)}, s[36:37]')


def srd(A, r, ptr, size):
    A(f's_mov_b32 {sr(r)}, {sr(ptr)}\ns_mov_b32 {sr(r + 1)}, {sr(ptr + 1)}\ns_mov_b32 {sr(r + 2)}, {size}\ns_mov_b32 {sr(r + 3)}, 0x20000')


def k4(k):
    return '0' if k == 0 else sr(S_K4 + k if k < 8 else 16 + k)


def fo(n):
    return f'{k4(n // 2)} offen offset:{2048 * (n % 2)}'


def lane_pat(A, d, t, base):
    A(f'v_and_b32 {vr(t)}, 15, v0\nv_lshl_add_u32 {vr(t)}, {vr(t)}, 4, {base}\nv_lshrrev_b32 {vr(d)}, 4, v0\nv_lshl_add_u32 {vr(d)}, {vr(d)}, 9, {vr(t)}')


def swz_consts(A, vq8, vcA, vcB, t):
    A(f'v_lshrrev_b32 {vr(vq8)}, 3, v0')
    A(f'v_lshrrev_b32 {vr(t)}, 4, v0')
    A(f'v_and_b32 {vr(vcA)}, 7, v0')
    A(f'v_xor_b32 {vr(vcA)}, {vr(vcA)}, {vr(t)}')
    A(f'v_lshlrev_b32 {vr(vcA)}, 4, {vr(vcA)}')
    A(f'v_xor_b32 {vr(vcB)}, 64, {vr(vcA)}')


def frag_addr(A, a0, t):
    A(f'v_and_b32 {vr(a0)}, 31, v0')
    A(f'v_bfe_u32 {vr(t)}, v0, 1, 3')
    A(f'v_lshrrev_b32 {vr(a0 + 1)}, 5, v0')
    A(f'v_xor_b32 {vr(t)}, {vr(t)}, {vr(a0 + 1)}')
    A(f'v_lshlrev_b32 {vr(t)}, 4, {vr(t)}')
    A(f'v_lshl_add_u32 {vr(a0)}, {vr(a0)}, 7, {vr(t)}')
    for s in (1, 2, 3):
        A(f'v_xor_b32 {vr(a0 + s)}, {s << 5}, {vr(a0)}')


def wffn_voffs(A, vw, t):
    A(f's_mul_i32 {sr(T0)}, {sr(S_W)}, {16 * 2752}\ns_mul_i32 {sr(T1)}, {sr(S_CG)}, 192\ns_add_u32 {sr(T0)}, {sr(T0)}, {sr(T1)}')
    A(f's_mul_i32 {sr(T1)}, {sr(S_CG)}, 12\ns_sub_i32 {sr(T1)}, 172, {sr(T1)}')
    A(f'v_mov_b32 {vr(t + 3)}, {OOB}')
    for j in range(3):
        A(f'v_add_u32 {vr(t)}, {64 * j}, v0')
        A(f'v_mul_u32_u24 {vr(t + 1)}, 171, {vr(t)}')
        A(f'v_lshrrev_b32 {vr(t + 1)}, 11, {vr(t + 1)}')
        A(f'v_mul_u32_u24 {vr(t + 2)}, 12, {vr(t + 1)}')
        A(f'v_sub_u32 {vr(t)}, {vr(t)}, {vr(t + 2)}')
        A(f'v_cmp_gt_i32 vcc, {sr(T1)}, {vr(t)}')
        A(f'v_mul_u32_u24 {vr(t + 1)}, 2752, {vr(t + 1)}')
        A(f'v_lshl_add_u32 {vr(t + 1)}, {vr(t)}, 4, {vr(t + 1)}')
        if j:
            A(f'v_subrev_u32 {vr(t + 1)}, {1024 * j}, {vr(t + 1)}')
        A(f'v_add_u32 {vr(t + 1)}, {sr(T0)}, {vr(t + 1)}')
        A(f'v_cndmask_b32 {vr(vw + j)}, {vr(t + 3)}, {vr(t + 1)}, vcc')


def issue_a(A, b, vx, vb):
    sl = (b % 4) * SLOT
    A(f's_add_u32 m0, {sr(S_MB)}, {sl}')
    if b:
        pass
    A(f's_bfe_u32 {sr(S_OA)}, {sr(S_RHO)}, {(3 << 16) | (4 * b)}\ns_lshl_b32 {sr(S_OA)}, {sr(S_OA)}, 7')
    for j in range(4):
        A.vmem(f'buffer_load_dwordx4 {vr(vx + j)}, {sr(R_X, 4)}, {sr(S_OA)} offen offset:{1024 * j} {A.cfg.fx} lds', f'blk{b}')
    A(f's_add_u32 m0, {sr(S_MB2)}, {sl + 16384}\ns_nop 0')
    for j in range(2):
        A.vmem(f'buffer_load_dwordx4 {vr(vb + j)}, {sr(R_B, 4)}, {sr(S_OA)} offen offset:{1024 * j} {A.cfg.fb} lds', f'blk{b}')


def issue_w(A, b, vw, smb):
    sl = WSLOT[b - 8] * SLOT
    A(f's_add_u32 m0, {sr(smb)}, {sl}')
    A(f's_bfe_u32 {sr(S_OW)}, {sr(S_RHO)}, {(3 << 16) | (4 * (b - 8))}\ns_mul_i32 {sr(S_OW)}, {sr(S_OW)}, {64 * 2752}')
    for j in range(3):
        A.vmem(f'buffer_load_dwordx4 {vr(vw + j)}, {sr(R_WG, 4)}, {sr(S_OW)} offen offset:{1024 * j} {A.cfg.fw} lds', f'blk{b}')
    A(f's_add_u32 m0, {sr(smb)}, {sl + 12288}\ns_nop 0')
    for j in range(3):
        A.vmem(f'buffer_load_dwordx4 {vr(vw + j)}, {sr(R_WU, 4)}, {sr(S_OW)} offen offset:{1024 * j} {A.cfg.fw} lds', f'blk{b}')


def spin(A, name, loads, check, cfg, extra=None):
    A(f's_mov_b32 {sr(S_CNT)}, {cfg.spin}')
    A.label(f'L_{name}_chk')
    check()
    A(f's_cbranch_scc1 L_{name}_ok')
    A(f's_sub_u32 {sr(S_CNT)}, {sr(S_CNT)}, 1\ns_cmp_eq_u32 {sr(S_CNT)}, 0\ns_cbranch_scc1 L_{name}_ok')
    saved = list(A.vm)
    loads()
    A('s_waitcnt vmcnt(0)')
    A.vm = saved
    if extra:
        lg = list(A.lg)
        extra()
        A.lg = lg
    A(f's_branch L_{name}_chk')
    A.label(f'L_{name}_ok')


G1, G2, G3 = 0, 16, 32
E_W4, E_W5, E_W6, E_W7, E_WD = 4, 5, 6, 7, 8
E_EX, E_EX2, E_SP = 1, 2, 3


def prog_addrs(A, vw, vrd, own):
    A(f's_lshl2_add_u32 {sr(T0)}, {sr(S_W)}, {X_CNT + own}\nv_mov_b32 {vr(vw)}, {sr(T0)}')
    A(f'v_and_b32 {vr(vrd)}, 3, v0\nv_lshlrev_b32 {vr(vrd)}, 2, {vr(vrd)}\nv_add_u32 {vr(vrd)}, {X_CNT}, {vr(vrd)}')


def post(A, vw, vt, val, off=0):
    A(f'v_mov_b32 {vr(vt)}, {val}')
    if A.cfg.post_exec:
        A('s_mov_b64 exec, 1')
    A.ds(f'ds_write_b32 {vr(vw)}, {vr(vt)} offset:{off}')
    if A.cfg.post_exec:
        A('s_mov_b64 exec, -1')


def await_(A, name, vrd, vt, off, val):
    A.label(f'L_{name}')
    A.ds(f'ds_read_b32 {vr(vt)}, {vr(vrd)} offset:{off}')
    Stream.wait_lg_all(A)
    A(f'v_cmp_gt_u32 vcc, {val}, {vr(vt)}\ns_cbranch_vccnz L_{name}')
    A.flush()


def rho0(A, cfg, t):
    if not cfg.rot:
        A(f's_mov_b32 {sr(t)}, 0')
        return
    assert cfg.mapping == '84'
    if cfg.rotx:
        A(f's_lshl1_add_u32 {sr(t)}, {sr(S_CG)}, {sr(S_RT)}')
    else:
        A(f's_and_b32 {sr(t)}, s2, 6\ns_add_u32 {sr(t)}, {sr(t)}, {sr(S_RT)}')
    A(f's_and_b32 {sr(t)}, {sr(t)}, 7')


def rho_pre(A, cfg, d, t):
    def pack(o):
        return sum(v << (4 * i) for i, v in enumerate(o))
    tabs = [[0, 1, 2, 3, 5, 4, 6, 7], [0, 2, 1, 3, 4, 6, 5, 7], [0, 1, 3, 2, 4, 5, 7, 6], [0, 1, 2, 4, 3, 5, 6, 7]]
    if cfg.swap:
        A(f's_and_b32 {sr(t)}, {sr(S_CG)}, 3\ns_mov_b32 {sr(d)}, {pack(tabs[0])}')
        for j in (1, 2, 3):
            A(f's_cmp_eq_u32 {sr(t)}, {j}\ns_cselect_b32 {sr(d)}, {pack(tabs[j])}, {sr(d)}')
    else:
        A(f's_mov_b32 {sr(d)}, 0x76543210')
    rho0(A, cfg, t)
    A(f's_mul_i32 {sr(t)}, {sr(t)}, 0x11111111\ns_add_u32 {sr(d)}, {sr(d)}, {sr(t)}')


def spoll(A, name, cfg, loads, extra=None, mode='both'):
    SP = 56

    def issue():
        for i, (b, o) in enumerate(loads):
            A(f's_load_dword {sr(SP + i if i < 8 else 76 + i)}, {sr(b, 2)}, {o} glc')
    if mode == 'issue':
        issue()
        return
    A(f's_mov_b32 {sr(S_CNT)}, {cfg.spin}')
    if mode == 'check':
        A(f's_branch L_{name}_wait')
    A.label(f'L_{name}_try')
    issue()
    A.label(f'L_{name}_wait')
    Stream.wait_lg_all(A)
    for i in range(len(loads)):
        r = SP + i if i < 8 else 76 + i
        A(f's_xor_b32 {sr(r)}, {sr(r)}, {sr(S_TAG)}')
        if i:
            A(f's_or_b32 {sr(SP)}, {sr(SP)}, {sr(r)}')
    A(f's_cbranch_scc0 L_{name}_ok')
    if extra:
        saved = list(A.vm), list(A.lg)
        extra()
        A.vm, A.lg = saved
    A(f's_sub_u32 {sr(S_CNT)}, {sr(S_CNT)}, 1\ns_cmp_lg_u32 {sr(S_CNT)}, 0\ns_cbranch_scc1 L_{name}_try')
    A.label(f'L_{name}_ok')
    A.flush()


def flag_addr(A, d, base):
    A(f's_lshr_b32 {sr(T0)}, {sr(S_W)}, 1\ns_lshl1_add_u32 {sr(T1)}, {sr(S_RT)}, {sr(T0)}\ns_mul_i32 {sr(T1)}, {sr(T1)}, {FST}')
    A(f's_and_b32 {sr(T0)}, {sr(S_W)}, 1\ns_lshl1_add_u32 {sr(T0)}, {sr(S_CG)}, {sr(T0)}\ns_lshl_b32 {sr(T0)}, {sr(T0)}, 8\ns_add_u32 {sr(T1)}, {sr(T0)}, {sr(T1)}')
    A(f's_add_u32 {sr(d)}, {sr(T1)}, {base}')


def wd_voffs(A, VD, TMP, smb):
    A(f'v_lshrrev_b32 {vr(TMP)}, 3, v0\nv_bfe_u32 {vr(TMP + 1)}, v0, 4, 1\nv_lshlrev_b32 {vr(TMP + 1)}, 2, {vr(TMP + 1)}')
    A(f'v_and_b32 {vr(TMP + 2)}, 7, v0\nv_xor_b32 {vr(TMP + 1)}, {vr(TMP + 1)}, {vr(TMP + 2)}\nv_lshlrev_b32 {vr(TMP + 1)}, 4, {vr(TMP + 1)}')
    A(f'v_lshl_add_u32 {vr(TMP)}, {vr(TMP)}, 10, {vr(TMP + 1)}')
    A(f's_mul_i32 {sr(T0)}, {sr(S_W)}, {352 * 1024}\ns_lshl_b32 {sr(T1)}, {sr(S_N2)}, 7\ns_add_u32 {sr(T0)}, {sr(T0)}, {sr(T1)}')
    A(f'v_add_u32 {vr(VD)}, {sr(T0)}, {vr(TMP)}')
    for j in (1, 2, 3):
        A(f'v_add_u32 {vr(VD + j)}, {7168 * j}, {vr(VD)}')
    A(f's_lshl_b32 {sr(smb)}, {sr(S_W)}, 12\ns_add_u32 {sr(smb)}, {sr(smb)}, {P1B}')


def dma_wd(A, t, VD, smb, r):
    A(f's_add_u32 m0, {sr(smb)}, {(t % 12) * 8192}')
    unit_off(A, S_OW, t // 2, 15)
    for j in range(4):
        A.vmem(f'buffer_load_dwordx4 {vr(VD + j)}, {sr(r, 4)}, {sr(S_OW)} offen offset:{1024 * j} lds', f'wd{t + j // 2}')


def mfma(A, d, a, b, first):
    A(f'v_mfma_f32_32x32x16_bf16 {vr(d, 16)}, {vr(a, 4)}, {vr(b, 4)}, {"0" if first else vr(d, 16)}')


def gen_entry(cfg):
    A = Stream()
    A('s_load_dwordx16 s[4:19], s[0:1], 0\ns_load_dwordx16 s[20:35], s[0:1], 64\ns_load_dwordx2 s[36:37], s[0:1], 128')
    A('s_cmp_ge_u32 s2, 256\ns_cbranch_scc1 L_end')
    if cfg.stamps:
        A('s_memrealtime s[88:89]')
    A('s_lshr_b32 s82, s2, 3')
    if cfg.code_pf:
        A('s_getpc_b64 s[84:85]')
        A.label('L_pc')
        A(f's_and_b32 s83, s82, 3\ns_mul_i32 s83, s83, {48 * 128}\nv_min_u32 v1, 47, v0\nv_lshl_add_u32 v1, v1, 7, s83')
        A(f'v_min_u32 v1, L_codeend-L_pc-4, v1')
        A('global_load_dword v255, v1, s[84:85]')
    A('v_lshrrev_b32 v1, 6, v0\nv_and_b32 v0, 63, v0\nv_readfirstlane_b32 s3, v1')
    if cfg.mapping == '48':
        A(f's_bfe_u32 {sr(S_RT)}, s2, 0x20001\ns_lshl_b32 {sr(S_RT)}, {sr(S_RT)}, 2\ns_and_b32 s83, s82, 3\ns_add_u32 {sr(S_RT)}, {sr(S_RT)}, s83')
        A(f's_and_b32 {sr(S_CG)}, s2, 1\ns_lshl_b32 {sr(S_CG)}, {sr(S_CG)}, 3\ns_lshr_b32 s83, s82, 2\ns_add_u32 {sr(S_CG)}, {sr(S_CG)}, s83')
    else:
        A(f's_and_b32 {sr(S_RT)}, s2, 1\ns_and_b32 s83, s82, 7\ns_lshl3_add_u32 {sr(S_RT)}, {sr(S_RT)}, s83')
        A(f's_and_b32 {sr(S_CG)}, s2, 6\ns_lshr_b32 s83, s82, 3\ns_lshl1_add_u32 {sr(S_CG)}, {sr(S_CG)}, s83')
    A(f's_and_b32 {sr(S_W)}, s3, 3')
    A('s_cmp_ge_u32 s3, 4\ns_cbranch_scc1 L_p2')
    return A


def map2(A, cfg):
    A('s_and_b32 s81, s2, 7\ns_lshr_b32 s3, s2, 3')
    if cfg.map2 == '48':
        A(f's_lshl_b32 {sr(S_M2)}, s81, 2\ns_lshr_b32 s81, s3, 3\ns_add_u32 {sr(S_M2)}, {sr(S_M2)}, s81\ns_and_b32 {sr(S_N2)}, s3, 7')
    else:
        A(f's_lshr_b32 {sr(S_M2)}, s81, 1\ns_lshl_b32 {sr(S_M2)}, {sr(S_M2)}, 3\ns_and_b32 {sr(S_N2)}, s3, 7\ns_add_u32 {sr(S_M2)}, {sr(S_M2)}, {sr(S_N2)}')
        A(f's_and_b32 {sr(S_N2)}, s81, 1\ns_lshl_b32 {sr(S_N2)}, {sr(S_N2)}, 2\ns_lshr_b32 s3, s3, 3\ns_add_u32 {sr(S_N2)}, {sr(S_N2)}, s3')
    A(f's_and_b32 {sr(S_QN)}, {sr(S_W)}, 1')
    if cfg.rot2:
        if cfg.rotj == 'm':
            A(f's_and_b32 s81, {sr(S_M2)}, 7')
        elif cfg.rotj == 'x':
            A(f's_lshr_b32 s81, {sr(S_M2)}, 2')
        A(f's_and_b32 {sr(S_ROT)}, s81, 3\ns_lshr_b32 s3, s81, 2\ns_xor_b32 {sr(S_QN)}, {sr(S_QN)}, s3')
        if cfg.rotj == 'm' and cfg.map2 == '48':
            A(f's_lshl1_add_u32 s81, {sr(S_ROT)}, s3')
        A(f's_mul_i32 s3, s81, 11\ns_lshr_b32 {sr(S_UR)}, s3, 3')
    else:
        A(f's_mov_b32 {sr(S_ROT)}, 0\ns_mov_b32 {sr(S_UR)}, 0')


def unit_off(A, d, p, sh):
    A(f's_add_u32 {sr(d)}, {sr(S_UR)}, {p}\ns_sub_u32 {sr(T0)}, {sr(d)}, 11\ns_cselect_b32 {sr(d)}, {sr(d)}, {sr(T0)}\ns_lshl_b32 {sr(d)}, {sr(d)}, {sh}')


def load_tag(A):
    if A.cfg.stamps:
        A('s_mov_b32 s89, s88')
    A(f's_add_u32 {sr(T2)}, s36, {GW}\ns_addc_u32 {sr(T3)}, s37, 0')
    A(f's_load_dword {sr(S_TAG)}, {sr(T2, 2)}, 0')


def consts(A):
    for k in range(1, 11):
        A(f's_mov_b32 {k4(k)}, {4096 * k}')


def gen_p1(cfg):
    A = WS(cfg, 7)
    TB = 1
    VPW, VPR, VPT = 4, 5, 6
    WB = 8
    ACC = 32
    XR = 128
    VX, VB, VW, AX, TMP = 32, 36, 38, 44, 52
    D = cfg.D
    if cfg.stamps:
        A('v_mov_b32 v7, 0')
    A.stamp('start')
    swz_consts(A, TMP, TMP + 1, TMP + 2, TMP + 3)
    A(f's_lshl2_add_u32 {sr(T1)}, {sr(S_RT)}, {sr(S_W)}\ns_lshl_b32 {sr(T1)}, {sr(T1)}, 15')
    A(f'v_lshrrev_b32 {vr(TMP + 3)}, 5, v0')
    A(f'v_and_b32 {vr(TMP + 4)}, 3, {vr(TMP)}')
    A(f'v_lshl_add_u32 {vr(TMP + 3)}, {vr(TMP + 3)}, 4, {vr(TMP + 4)}')
    A(f'v_lshl_add_u32 {vr(TMP + 3)}, {vr(TMP + 3)}, 10, {sr(T1)}')
    A(f'v_add_u32 {vr(VX)}, {vr(TMP + 3)}, {vr(TMP + 1)}')
    A(f'v_add_u32 {vr(VX + 1)}, {vr(TMP + 3)}, {vr(TMP + 2)}')
    A(f'v_add_u32 {vr(VX + 2)}, {2 * 3072}, {vr(VX)}')
    A(f'v_add_u32 {vr(VX + 3)}, {3 * 3072}, {vr(VX + 1)}')
    A(f'v_add_u32 {vr(VX + 1)}, 3072, {vr(VX + 1)}')
    A(f's_lshl_b32 {sr(S_MB)}, {sr(S_W)}, 12\ns_mov_b32 m0, {sr(S_MB)}')
    rho0(A, cfg, S_OA)
    A(f's_lshl_b32 {sr(S_OA)}, {sr(S_OA)}, 7')
    A(f's_mov_b32 {sr(R_X + 2)}, {2048 * 1024}\ns_mov_b32 {sr(R_X + 3)}, 0x20000')
    A.wait_lg_all()
    A(f's_mov_b32 {sr(R_X)}, s4\ns_mov_b32 {sr(R_X + 1)}, s5')
    A.stamp('karg')
    for j in range(4):
        A.vmem(f'buffer_load_dwordx4 {vr(VX + j)}, {sr(R_X, 4)}, {sr(S_OA)} offen offset:{1024 * j} {A.cfg.fx} lds', 'blk0')
    A(f's_and_b32 {sr(T0)}, {sr(S_W)}, 1\ns_lshl1_add_u32 {sr(T1)}, {sr(S_CG)}, {sr(T0)}\ns_lshl_b32 {sr(T1)}, {sr(T1)}, 14')
    A(f'v_lshl_add_u32 {vr(TMP + 3)}, {vr(TMP)}, 10, {sr(T1)}')
    A(f'v_add_u32 {vr(VB)}, {vr(TMP + 3)}, {vr(TMP + 1)}')
    A(f'v_add_u32 {vr(VB + 1)}, {vr(TMP + 3)}, {vr(TMP + 2)}')
    A(f'v_add_u32 {vr(VB + 1)}, 7168, {vr(VB + 1)}')
    A(f's_lshl_b32 {sr(S_MB2)}, {sr(S_W)}, 11\ns_add_u32 m0, {sr(S_MB2)}, 16384')
    A(f's_cmp_ge_u32 {sr(S_W)}, 2')
    A(f's_cselect_b32 {sr(R_B)}, s12, s10\ns_cselect_b32 {sr(R_B + 1)}, s13, s11\ns_mov_b32 {sr(R_B + 2)}, {512 * 1024}\ns_mov_b32 {sr(R_B + 3)}, 0x20000')
    for j in range(2):
        A.vmem(f'buffer_load_dwordx4 {vr(VB + j)}, {sr(R_B, 4)}, {sr(S_OA)} offen offset:{1024 * j} {A.cfg.fb} lds', 'blk0')
    rho_pre(A, cfg, S_RHO, T0)
    for b in range(1, D):
        issue_a(A, b, VX, VB)
        if b == 1:
            A(f's_lshl_b32 {sr(T0)}, {sr(S_CG)}, 6\ns_cmp_eq_u32 {sr(S_W)}, 3\ns_cselect_b32 {sr(T0)}, {OOB}, {sr(T0)}')
            A(f'v_and_b32 {vr(TMP + 5)}, 15, v0\nv_lshl_add_u32 {vr(TMP + 5)}, {vr(TMP + 5)}, 2, {sr(T0)}')
            A(f's_mov_b32 {sr(R_E + 2)}, 1024\ns_mov_b32 {sr(R_E + 3)}, 0x20000')
            A(f's_cmp_ge_u32 {sr(S_W)}, 2\ns_cselect_b32 {sr(R_E)}, s18, s6\ns_cselect_b32 {sr(R_E + 1)}, s19, s7')
            A(f's_cmp_eq_u32 {sr(S_W)}, 1\ns_cselect_b32 {sr(R_E)}, s8, {sr(R_E)}\ns_cselect_b32 {sr(R_E + 1)}, s9, {sr(R_E + 1)}')
            A(f's_lshl_b32 {sr(T0)}, {sr(S_W)}, 8\ns_add_u32 m0, {sr(T0)}, {X_PAR}\ns_nop 0')
            A.vmem(f'buffer_load_dword {vr(TMP + 5)}, {sr(R_E, 4)}, 0 offen lds', 'blk1')
            load_tag(A)
        if b == 1:
            srd(A, R_WG, 24, 512 * 2752)
            srd(A, R_WU, 26, 512 * 2752)
            srd(A, R_WS, 36, WS_SIZE)
            srd(A, R_E, 28, 1376 * 1024)
            srd(A, R_O, 32, 2048 * 2048)
            consts(A)
            wffn_voffs(A, VW, TMP)
            frag_addr(A, AX, TMP)
            for s in range(4):
                A(f'v_add_u32 {vr(AX + s)}, {sr(S_MB)}, {vr(AX + s)}')
                A(f'v_add_u32 {vr(AX + 4 + s)}, {2 * SLOT}, {vr(AX + s)}')
            A(f'v_lshrrev_b32 {vr(TMP)}, 5, v0\nv_bfe_u32 {vr(TMP + 1)}, v0, 2, 2\nv_lshl_add_u32 {vr(TMP)}, {vr(TMP)}, 3, {vr(TMP + 1)}')
            A(f'v_mul_u32_u24 {vr(TMP)}, 192, {vr(TMP)}\nv_bfe_u32 {vr(TMP + 1)}, v0, 4, 1\nv_lshl_add_u32 {vr(TMP)}, {vr(TMP + 1)}, 5, {vr(TMP)}')
            A(f'v_and_b32 {vr(TMP + 1)}, 3, v0\nv_lshl_add_u32 {vr(TB)}, {vr(TMP + 1)}, 3, {vr(TMP)}')
            A(f'v_add_u32 {vr(TB + 1)}, {2 * SLOT}, {vr(TB)}\nv_add_u32 {vr(TB + 2)}, {4 * SLOT}, {vr(TB)}')
            prog_addrs(A, VPW, VPR, G1)
            A(f's_mul_i32 {sr(S_C1)}, {sr(S_W)}, 3072')
            map2(A, cfg)
            A(f's_lshr_b32 {sr(S_STAG)}, s2, 3\ns_and_b32 {sr(T0)}, s2, 1\ns_mul_i32 {sr(T0)}, {sr(T0)}, {cfg.nstag // 2}\ns_add_u32 {sr(S_STAG)}, {sr(S_STAG)}, {sr(T0)}')
            A(f's_and_b32 {sr(S_STAG)}, {sr(S_STAG)}, {cfg.nstag - 1}')
            A(f's_lshl_b32 {sr(T1)}, {sr(S_RT)}, 2\ns_add_u32 {sr(T1)}, {sr(T1)}, {sr(S_W)}\ns_mul_i32 {sr(T1)}, {sr(T1)}, {KSP}')
            A(f's_mul_i32 {sr(T0)}, {sr(S_CG)}, 6\ns_add_u32 {sr(T1)}, {sr(T1)}, {sr(T0)}\ns_add_u32 {sr(T1)}, {sr(T1)}, 64\ns_lshl_b32 {sr(S_GST)}, {sr(T1)}, 11')
            flag_addr(A, S_GFL, GF)
            if cfg.touch:
                A(f's_mul_i32 {sr(T0)}, {sr(S_M2)}, {FST}\ns_lshl_b32 {sr(T1)}, {sr(S_W)}, 11\ns_add_u32 {sr(T0)}, {sr(T0)}, {sr(T1)}\ns_add_u32 {sr(T0)}, {sr(T0)}, {HF}')
                A(f'v_and_b32 {vr(TMP)}, 7, v0\nv_lshl_add_u32 {vr(TMP)}, {vr(TMP)}, 8, {sr(T0)}\nv_bfe_u32 {vr(TMP + 1)}, v0, 3, 1\nv_lshl_add_u32 {vr(TMP)}, {vr(TMP + 1)}, 18, {vr(TMP)}')
                assert GF - HF == 1 << 18
                A.vmem(f'buffer_load_dword v254, {vr(TMP)}, {sr(R_WS, 4)}, 0 offen sc1', 'blk1')
    A.stamp('issued0')
    A.wait_lg_all()
    A(f's_add_u32 {sr(S_TAG)}, {sr(S_TAG)}, 0x9E3779B1')
    for i in range(8):
        A.wait_vm(f'blk{i}')
        A.wait_lg_all()
        A('s_barrier')
        A.stamp(f'A{i}')
        for s in range(4):
            A.ds(f'ds_read_b128 {vr(XR + 16 * i + 4 * s, 4)}, {vr(AX + 4 * ((i >> 1) & 1) + s)} offset:{(i % 2) * SLOT}', 'x')
        b = i + D
        if b < 8:
            issue_a(A, b, VX, VB)
        elif b + 1 - 8 < cfg.p2w:
            issue_w(A, b + 1, VW, S_C1)
        if cfg.stag0 <= i < cfg.stag0 + cfg.nstag:
            A(f's_cmp_lg_u32 {sr(S_STAG)}, {i - cfg.stag0}\ns_cbranch_scc1 L_now0_{i}')
            saved = list(A.vm)
            issue_w(A, 8, VW, S_C1)
            A.vm = saved
            A.label(f'L_now0_{i}')
    assert cfg.stag0 + cfg.nstag <= 8 - D
    A.wait_lg_all()
    A(f's_cmp_eq_u32 {sr(S_CG)}, 15\ns_cbranch_scc1 L_p1_gate')
    vm_at_split = list(A.vm)
    if cfg.stamps:
        A('s_mov_b32 s13, 0')
    if cfg.p1b:
        A(f's_setprio {cfg.p1b}')

    def need(b):
        return (G1, b) if b < cfg.p2w else (G2, b)

    def rd(n):
        b, s, j = n // 24, (n // 6) % 4, n % 6
        u, mat = j // 2, j % 2
        if n % 24 == 0:
            if b == 0:
                A(f's_waitcnt vmcnt({len(A.vm)})')
                A('s_barrier')
            else:
                A.wait_lg('pg')
                if 'nochk' not in cfg.dbg:
                    A(f'v_cmp_gt_u32 vcc, {need(b)[1]}, {vr(VPT)}\ns_cbranch_vccnz L_slow{b}')
                A.label(f'L_back{b}')
            if b in (0, 2, 4, 5, 7):
                A.stamp(f'B{b}')
        slot = WSLOT[b]
        wbuf[n] = wfree.pop(0)
        for r in range(2):
            off = (slot % 2) * SLOT + mat * 12288 + s * 3072 + r * 768 + u * 64
            A.ds(f'ds_read_b64_tr_b16 {vr(wbuf[n] + 2 * r, 2)}, {vr(TB + slot // 2)} offset:{off}', f'w{n}')
    wfree, wbuf = [WB + 4 * j for j in range(6)], {}
    for n in range(6):
        rd(n)
    nrd = 6
    for n in range(192):
        ks, j = n // 6, n % 6
        if not cfg.pairwait:
            A.wait_lg(f'w{n}')
        elif n % 2 == 0:
            A.wait_lg(f'w{n + 1}')
        mfma(A, ACC + 16 * j, wbuf[n], XR + 4 * ks, ks == 0)
        wfree.append(wbuf[n])
        if j == 1 and 1 <= ks <= cfg.depth - 6:
            wfree.append(XR + 4 * (ks - 1))
        while nrd < 192 and wfree:
            rd(nrd)
            nrd += 1
        if n % 24 == cfg.post_at and ('nopost' not in cfg.dbg or n < 24):
            A.wait_vm(f'blk{8 + n // 24 + 1}')
            post(A, VPW, VPT, n // 24 + 1 if 'nopost' not in cfg.dbg else 9)
        if n % 24 == cfg.peek_at and n < 168:
            A.ds(f'ds_read_b32 {vr(VPT)}, {vr(VPR)} offset:{need(n // 24 + 1)[0]}', 'pg')
    post(A, VPW, VPT, 9)
    if cfg.p1b:
        A('s_setprio 0')
    A.stamp('E')
    if cfg.stamps:
        A('v_writelane_b32 v7, s13, 61')
    VST = 1
    lane_pat(A, VST, 2, sr(S_GST))
    A(f's_mov_b32 {sr(S_C0)}, {NLOG2E}\ns_mov_b32 {sr(S_C0 + 1)}, {NLOG2E}\ns_mov_b32 {sr(S_C1)}, 1.0\ns_mov_b32 {sr(S_C1 + 1)}, 1.0')
    for u in range(3):
        G, U, P = ACC + 32 * u, ACC + 32 * u + 16, XR + 8 * u
        for r in range(0, 16, 2):
            A(f'v_pk_mul_f32 {vr(U + r, 2)}, {vr(G + r, 2)}, {vr(U + r, 2)}')
        for r in range(0, 16, 2):
            A(f'v_pk_mul_f32 {vr(G + r, 2)}, {vr(G + r, 2)}, {sr(S_C0, 2)}')
        for r in range(16):
            A(f'v_exp_f32 {vr(G + r)}, {vr(G + r)}')
        for r in range(0, 16, 2):
            A(f'v_pk_add_f32 {vr(G + r, 2)}, {vr(G + r, 2)}, {sr(S_C1, 2)}')
        for r in range(16):
            A(f'v_rcp_f32 {vr(G + r)}, {vr(G + r)}')
        for r in range(0, 16, 2):
            A(f'v_pk_mul_f32 {vr(U + r, 2)}, {vr(G + r, 2)}, {vr(U + r, 2)}')
        for r in range(0, 16, 2):
            A(f'v_cvt_pk_bf16_f32 {vr(P + r // 2)}, {vr(U + r)}, {vr(U + r + 1)}')
        if cfg.fine:
            A.stamp(f'u{u}')
        if u < 2 and cfg.burst:
            continue
        if cfg.prio:
            A('s_setprio 3')
        for n in range(0 if cfg.burst else 2 * u, 2 * u + 2):
            A.vmem(f'buffer_store_dwordx4 {vr(XR + 4 * n, 4)}, {vr(VST)}, {sr(R_WS, 4)}, {fo(n)} sc1', 'gu')
        if cfg.prio and u < 2:
            A('s_setprio 0')
    A.stamp('epi')
    A(f'v_mov_b32 v8, {sr(S_TAG)}\nv_lshlrev_b32 v9, 2, v0')
    A.wait_vm('gu')
    A('s_mov_b32 exec_hi, 0' if cfg.fullflag else 's_mov_b64 exec, 1')
    A.vmem(f'buffer_store_dword v8, v9, {sr(R_WS, 4)}, {sr(S_GFL)} offen sc1', 'fl')
    A('s_mov_b64 exec, -1')
    if cfg.prio:
        A('s_setprio 0')
    A.label('L_p1_join')
    A.stamp('guflag')
    AW, VA, VP = 104, 1, 3
    ACC2 = 32
    TMP = 12
    VD = 108
    wd_voffs(A, VD, TMP, S_MB)
    A(f'v_lshrrev_b32 {vr(TMP)}, 5, v0\nv_bfe_u32 {vr(TMP + 1)}, v0, 2, 2\nv_lshl_add_u32 {vr(TMP)}, {vr(TMP)}, 2, {vr(TMP + 1)}')
    A(f'v_bfe_u32 {vr(TMP + 1)}, v0, 3, 1\nv_xor_b32 {vr(TMP + 1)}, {sr(S_QN)}, {vr(TMP + 1)}')
    A(f'v_lshlrev_b32 {vr(TMP + 1)}, 6, {vr(TMP + 1)}\nv_lshl_add_u32 {vr(TMP)}, {vr(TMP)}, 7, {vr(TMP + 1)}')
    A(f'v_bfe_u32 {vr(TMP + 1)}, v0, 4, 1\nv_lshl_add_u32 {vr(TMP)}, {vr(TMP + 1)}, 5, {vr(TMP)}')
    A(f'v_and_b32 {vr(TMP + 1)}, 3, v0\nv_lshl_add_u32 {vr(TMP)}, {vr(TMP + 1)}, 3, {vr(TMP)}')
    A(f'v_add_u32 {vr(AW)}, {sr(S_MB)}, {vr(TMP)}\nv_xor_b32 {vr(AW + 1)}, 64, {vr(AW)}')
    A(f'v_add_u32 {vr(AW + 2)}, 0x10000, {vr(AW)}\nv_add_u32 {vr(AW + 3)}, 0x10000, {vr(AW + 1)}')
    A(f's_lshr_b32 {sr(T0)}, {sr(S_W)}, 1\ns_lshl_b32 {sr(T1)}, {sr(S_M2)}, 1\ns_add_u32 {sr(T2)}, {sr(T1)}, {sr(T0)}\ns_xor_b32 {sr(T3)}, {sr(T2)}, 1')
    A(f's_mul_i32 {sr(T0)}, {sr(S_W)}, 22\ns_add_u32 {sr(T0)}, {sr(T0)}, 64')
    for ma, t in ((0, T2), (1, T3)):
        A(f's_mul_i32 {sr(t)}, {sr(t)}, {KSP}\ns_add_u32 {sr(t)}, {sr(t)}, {sr(T0)}\ns_lshl_b32 {sr(t)}, {sr(t)}, 11')
        lane_pat(A, VA + ma, VP, sr(t))
    A(f's_mul_i32 {sr(T0)}, {sr(S_W)}, 11\ns_add_u32 {sr(T1)}, {sr(T0)}, 10\ns_mul_i32 {sr(T0)}, {sr(T0)}, 43\ns_lshr_b32 {sr(T0)}, {sr(T0)}, 7')
    A(f's_mul_i32 {sr(T1)}, {sr(T1)}, 43\ns_lshr_b32 {sr(T1)}, {sr(T1)}, 7\ns_lshl_b32 {sr(T0)}, {sr(T0)}, 1\ns_lshl_b32 {sr(T1)}, {sr(T1)}, 1\ns_add_u32 {sr(T1)}, {sr(T1)}, 1')
    A(f'v_add_u32 {vr(VP)}, {sr(T0)}, v0\nv_min_u32 {vr(VP)}, {sr(T1)}, {vr(VP)}')
    if cfg.spoll:
        A(f's_mul_i32 {sr(T2)}, {sr(S_M2)}, {FST}\ns_add_u32 {sr(T2)}, {sr(T2)}, {GF}')
        A(f's_lshl_b32 {sr(T0)}, {sr(T0)}, 8\ns_add_u32 {sr(T0)}, {sr(T0)}, {sr(T2)}\ns_add_u32 s4, s36, {sr(T0)}\ns_addc_u32 s5, s37, 0')
        A(f's_sub_u32 {sr(T1)}, {sr(T1)}, 1\ns_lshl_b32 {sr(T1)}, {sr(T1)}, 8\ns_add_u32 {sr(T1)}, {sr(T1)}, {sr(T2)}\ns_add_u32 s6, s36, {sr(T1)}\ns_addc_u32 s7, s37, 0')
    A(f's_mul_i32 {sr(T0)}, {sr(S_M2)}, {FST}\ns_add_u32 {sr(T0)}, {sr(T0)}, {GF}')
    A(f'v_lshl_add_u32 {vr(VP)}, {vr(VP)}, 8, {sr(T0)}')

    def pl():
        A.vmem(f'buffer_load_dword v6, {vr(VP)}, {sr(R_WS, 4)}, 0 offen sc1', 'poll')

    def ck():
        A(f'v_cmp_eq_u32 vcc, {sr(S_TAG)}, v6\ns_cmp_eq_u64 vcc, -1')
    RW, RR, RF, RG, RO = 96, 97, 100, 101, 102
    A(f'v_lshl_add_u32 {vr(RW)}, v0, 4, {sr(S_MB)}')
    for a in (1, 2, 3):
        A(f's_xor_b32 {sr(T0)}, {sr(S_W)}, {a}\ns_lshl_b32 {sr(T0)}, {sr(T0)}, 12\ns_add_u32 {sr(T0)}, {sr(T0)}, {P1B}')
        A(f'v_lshl_add_u32 {vr(RR + a - 1)}, v0, 4, {sr(T0)}')
    A(f's_xor_b32 {sr(T0)}, {sr(S_W)}, 1\ns_lshl_b32 {sr(T0)}, {sr(T0)}, 12\ns_add_u32 {sr(T0)}, {sr(T0)}, {P2B}')
    A(f'v_lshl_add_u32 {vr(RF)}, v0, 4, {sr(T0)}')
    A(f's_lshl_b32 {sr(T0)}, {sr(S_W)}, 7\ns_add_u32 {sr(T0)}, {sr(T0)}, {X_OMG}')
    A(f'v_lshrrev_b32 {vr(RG)}, 5, v0\nv_lshl_add_u32 {vr(RG)}, {vr(RG)}, 6, {sr(T0)}')
    A(f's_lshr_b32 {sr(T0)}, {sr(S_W)}, 1\ns_lshl_b32 {sr(T1)}, {sr(S_M2)}, 1\ns_add_u32 {sr(T0)}, {sr(T0)}, {sr(T1)}\ns_lshl_b32 {sr(T0)}, {sr(T0)}, 16')
    A(f's_lshl1_add_u32 {sr(T1)}, {sr(S_N2)}, {sr(S_QN)}\ns_lshl_b32 {sr(T1)}, {sr(T1)}, 7\ns_add_u32 {sr(T0)}, {sr(T0)}, {sr(T1)}')
    A(f'v_lshrrev_b32 {vr(RO)}, 5, v0\nv_and_b32 {vr(RO + 1)}, 31, v0\nv_lshlrev_b32 {vr(RO + 1)}, 2, {vr(RO + 1)}\nv_lshl_add_u32 {vr(RO)}, {vr(RO)}, 15, {vr(RO + 1)}\nv_add_u32 {vr(RO)}, {sr(T0)}, {vr(RO)}')
    WR = 112
    NR = 2 * cfg.wres
    AB = WR + 8 * NR
    NB = (256 - AB) // 8

    def ld_act(t):
        if t % 2 == 0:
            unit_off(A, S_OA, t // 2, 12)
        for ma in range(2):
            A.vmem(f'buffer_load_dwordx4 {vr(AB + 8 * (t % NB) + 4 * ma, 4)}, {vr(VA + ma)}, {sr(R_WS, 4)}, {sr(S_OA)} offen offset:{2048 * (t % 2)} sc1', f'act{t}')

    def wreg(t):
        return WR + 8 * t if t < NR else WB + 8 * (t % 3)

    def rd_wd(t):
        A.wait_vm(f'wd{t}')
        for na in range(2):
            for r in range(2):
                off = ((t % 12) // 2) * 16384 + (t % 2) * 2048 + r * 1024
                A.ds(f'ds_read_b64_tr_b16 {vr(wreg(t) + 4 * na + 2 * r, 2)}, {vr(AW + na + 2 * (off >> 16))} offset:{off & 0xffff}', f'wf{t}')
    gl = [(4, 256 * j) for j in range(8)] + [(6, 0), (6, 256)]
    assert cfg.spoll
    if cfg.wres:
        await_(A, 'cntW', VPW, VPT, G2 - G1, E_WD)
        A.stamp('wdok')
        for t in range(NR):
            rd_wd(t)
            if t >= 2:
                A.wait_lg(f'wf{t - 2}')
        A.wait_lg_all()
        for g in range(cfg.wres):
            if g == max(0, cfg.wres - cfg.gpl):
                spoll(A, 'gu', cfg, gl, mode='issue')
            dma_wd(A, 2 * g + 12, VD, S_MB, R_E)
        A.stamp('wres')
        spoll(A, 'gu', cfg, gl, mode='check')
    else:
        spoll(A, 'gu', cfg, gl)
    A.stamp('gupoll')
    DF = min(cfg.DF, NB - 1)
    for t in range(DF):
        ld_act(t)
    if not cfg.wres:
        await_(A, 'cntW', VPW, VPT, G2 - G1, E_WD)
        rd_wd(0)
    if cfg.prio and cfg.pF:
        A(f's_setprio {cfg.pF}')
    for t in range(22):
        if t + DF < 22:
            ld_act(t + DF)
        if NR <= t + 1 < 22:
            rd_wd(t + 1)
        A.wait_vm(f'act{t}')
        A.wait_lg(f'wf{t}')
        for a in (1, 2, 3, 0):
            mfma(A, ACC2 + 16 * a, AB + 8 * (t % NB) + 4 * (a >> 1), wreg(t) + 4 * (a & 1), t == 0)
        if t % 2 == 1 and t + 11 < 22 and t >= NR:
            dma_wd(A, t + 11, VD, S_MB, R_E)
        if t in (0, 11) or (cfg.fine and t % 2 == 0):
            A.stamp(f'F{t}')
    A.stamp('Fend')
    A('s_nop 8')
    for a in (1, 2, 3):
        for j in range(4):
            A.ds(f'ds_write_b128 {vr(RW)}, {vr(ACC2 + 16 * a + 4 * j, 4)} offset:{(a - 1) * 16384 + j * 1024}')
    A.wait_lg_all()
    A('s_barrier')
    A.stamp('X2')
    PB = 160
    for j in range(4):
        for a in (1, 2, 3):
            A.ds(f'ds_read_b128 {vr(PB + 16 * (a - 1) + 4 * j, 4)}, {vr(RR + a - 1)} offset:{(a - 1) * 16384 + j * 1024}', f'r{j}')
        A.ds(f'ds_read_b128 {vr(PB + 48 + 4 * j, 4)}, {vr(RF)} offset:{j * 1024}', f'r{j}')
        A.ds(f'ds_read_b128 {vr(PB + 64 + 4 * j, 4)}, {vr(RG)} offset:{j * 16}', f'r{j}')
    for j in range(4):
        A.wait_lg(f'r{j}')
        for r in range(4 * j, 4 * j + 4, 2):
            A(f'v_pk_add_f32 {vr(ACC2 + r, 2)}, {vr(ACC2 + r, 2)}, {vr(PB + r, 2)}')
            A(f'v_pk_add_f32 {vr(PB + 16 + r, 2)}, {vr(PB + 16 + r, 2)}, {vr(PB + 32 + r, 2)}')
        for r in range(4 * j, 4 * j + 4, 2):
            A(f'v_pk_add_f32 {vr(ACC2 + r, 2)}, {vr(ACC2 + r, 2)}, {vr(PB + 16 + r, 2)}')
        for r in range(4 * j, 4 * j + 4, 2):
            A(f'v_pk_fma_f32 {vr(ACC2 + r, 2)}, {vr(ACC2 + r, 2)}, {vr(PB + 64 + r, 2)}, {vr(PB + 48 + r, 2)}')
        for r in range(4 * j, 4 * j + 4):
            A.vmem(f'buffer_store_dword {vr(ACC2 + r)}, {vr(RO)}, {sr(R_O, 4)}, {k4(r // 2)} offen offset:{2048 * (r % 2)} {cfg.out_flags}')
    A.stamp('stored')
    if cfg.stamps:
        A.wait_vm_all()
        A.stamp('done')
    A.dump_stamps(0)
    A('s_endpgm')

    for b in range(1, 8):
        A.label(f'L_slow{b}')
        if cfg.stamps:
            A(f's_add_u32 s13, s13, {1 << (4 * b)}')
        A(f'ds_read_b32 {vr(VPT)}, {vr(VPR)} offset:{need(b)[0]}\ns_waitcnt lgkmcnt(0)')
        A(f'v_cmp_gt_u32 vcc, {need(b)[1]}, {vr(VPT)}\ns_cbranch_vccnz L_slow{b}\ns_branch L_back{b}')

    A.label('L_p1_gate')
    A.vm = vm_at_split
    A.wait_vm_all()
    A('s_barrier')
    post(A, VPW, VPT, 9)
    srd(A, R_B, 30, 1024)
    A('v_lshrrev_b32 v1, 5, v0\nv_lshlrev_b32 v1, 4, v1')
    A(f's_lshl_b32 {sr(T2)}, {sr(S_RT)}, 2\ns_add_u32 {sr(T2)}, {sr(T2)}, {sr(S_W)}')
    for a in range(4):
        A(f'v_mov_b32 {vr(8 + a)}, 0')
    for half in range(2):
        for s in range(16):
            if s % 4 == 0:
                A(f's_bfe_u32 {sr(S_OA)}, {sr(S_RHO)}, {(3 << 16) | (16 * half + s)}\ns_lshl_b32 {sr(S_OA)}, {sr(S_OA)}, 7')
            A.vmem(f'buffer_load_dwordx4 {vr(32 + 4 * s, 4)}, v1, {sr(R_B, 4)}, {sr(S_OA)} offen offset:{32 * (s % 4)}', 'gw')
        A.wait_vm('gw')
        for s in range(16):
            for e in range(4):
                A(f'v_dot2c_f32_bf16 {vr(8 + e)}, {vr(XR + 4 * (16 * half + s) + e)}, {vr(32 + 4 * s + e)}')
    A('s_nop 2')
    A('v_add_f32 v8, v8, v9\nv_add_f32 v10, v10, v11\nv_add_f32 v8, v8, v10\nv_mov_b32 v9, v8\ns_nop 1')
    A('v_permlane32_swap_b32 v8, v9\nv_add_f32 v8, v8, v9')
    A('v_cvt_pk_bf16_f32 v8, v8, v8\nv_lshlrev_b32 v8, 16, v8')
    A(f'v_mul_f32 v8, {NLOG2E}, v8\nv_exp_f32 v8, v8\ns_nop 0\nv_add_f32 v8, 1.0, v8\nv_rcp_f32 v8, v8\ns_nop 0')
    A(f'v_cvt_pk_bf16_f32 v8, v8, v8\nv_lshlrev_b32 v8, 16, v8\nv_mov_b32 v9, {sr(S_TAG)}')
    A('v_bfe_u32 v10, v0, 2, 1\nv_bfe_u32 v11, v0, 3, 2\nv_and_b32 v12, 3, v0\nv_lshl_add_u32 v11, v11, 2, v12\nv_lshl_add_u32 v10, v10, 4, v11')
    A(f's_lshl_b32 {sr(T1)}, {sr(T2)}, 10\ns_add_u32 {sr(T1)}, {sr(T1)}, {GAT}')
    A(f'v_lshlrev_b32 v10, 3, v10')
    A('s_mov_b32 exec_hi, 0')
    A(f'buffer_store_dwordx2 v[8:9], v10, {sr(R_WS, 4)}, {sr(T1)} offen sc1')
    A('s_mov_b64 exec, -1')
    A('s_branch L_p1_join')
    return A


def gen_p2(cfg):
    A = WS(cfg, 31)
    LR, LI, L16R, L16I, L32R, L32I, KR, KI = 1, 2, 3, 4, 5, 6, 7, 8
    WQ = 194
    WSR, WSI, LCR, LCI = 198, 199, 9, 10
    VW = 11
    VPW, VPR, VPT = 15, 16, 17
    VC = 20
    AC = 24
    VPQ = 28
    VEX = 30
    U, V = 32, 48
    XF, BF = 64, 80
    TMP = 112
    AX = 128
    FB2 = 144
    CR = 128
    A.label('L_p2')
    if cfg.stamps:
        A('v_mov_b32 v31, 0')
    A.stamp('start')
    rho_pre(A, cfg, S_RHO, T0)
    A.wait_lg_all()
    load_tag(A)
    map2(A, cfg)
    srd(A, R_O, 28, 1376 * 1024)
    srd(A, R_WG, 24, 512 * 2752)
    srd(A, R_WU, 26, 512 * 2752)
    srd(A, R_WS, 36, WS_SIZE)
    srd(A, R_X, 4, 2048 * 1024)
    srd(A, R_B, 14, 512 * 1024)
    srd(A, R_E, 16, 512 * 1024)
    A(f's_bitcmp1_b32 {sr(S_ROT)}, 0\ns_cselect_b32 {sr(R_B)}, s16, s14\ns_cselect_b32 {sr(R_B + 1)}, s17, s15\ns_cselect_b32 {sr(R_E)}, s14, s16\ns_cselect_b32 {sr(R_E + 1)}, s15, s17')
    consts(A)
    A(f'v_and_b32 {vr(TMP + 4)}, 15, v0\nv_lshlrev_b32 {vr(TMP + 4)}, 2, {vr(TMP + 4)}\nv_add_u32 {vr(TMP + 4)}, {X_CNT}, {vr(TMP + 4)}\nv_mov_b32 {vr(TMP + 6)}, 0')
    A.ds(f'ds_write_b32 {vr(TMP + 4)}, {vr(TMP + 6)}')
    A(f'v_and_b32 {vr(TMP)}, 31, v0\nv_lshlrev_b32 {vr(TMP)}, 1, {vr(TMP)}\nv_add_u32 {vr(TMP)}, {X_PAR}, {vr(TMP)}')
    wffn_voffs(A, VW, TMP + 8)
    frag_addr(A, AC, TMP + 8)
    A(f's_lshl_b32 {sr(S_MB)}, {sr(S_W)}, 12')
    for s in range(4):
        A(f'v_add_u32 {vr(AX + s)}, {sr(S_MB)}, {vr(AC + s)}')
        A(f'v_add_u32 {vr(AX + 4 + s)}, {2 * SLOT}, {vr(AX + s)}')
        A(f'v_add_u32 {vr(AX + 8 + s)}, {2 * SLOT}, {vr(AC + s)}')
    A(f's_mul_i32 {sr(S_MB2)}, {sr(S_W)}, 3072')
    swz_consts(A, TMP + 4, TMP + 5, TMP + 6, TMP + 7)
    A(f's_lshl_b32 {sr(T0)}, {sr(S_N2)}, 16\ns_lshl_b32 {sr(T1)}, {sr(S_W)}, 8\ns_add_u32 {sr(T0)}, {sr(T0)}, {sr(T1)}')
    A(f'v_lshl_add_u32 {vr(TMP + 4)}, {vr(TMP + 4)}, 10, {sr(T0)}')
    A(f'v_add_u32 {vr(VC)}, {vr(TMP + 4)}, {vr(TMP + 5)}\nv_add_u32 {vr(VC + 1)}, {vr(TMP + 4)}, {vr(TMP + 6)}')
    A(f'v_add_u32 {vr(VC + 2)}, {2 * 7168}, {vr(VC)}\nv_add_u32 {vr(VC + 3)}, {3 * 7168}, {vr(VC + 1)}\nv_add_u32 {vr(VC + 1)}, 7168, {vr(VC + 1)}')
    A(f'v_and_b32 {vr(VEX)}, 31, v0\nv_lshlrev_b32 {vr(VEX)}, 3, {vr(VEX)}\nv_add_u32 {vr(VEX)}, {X_EX}, {vr(VEX)}')
    N0, N1, NS = TMP + 4, TMP + 5, TMP + 6
    A(f's_lshl_b32 {sr(T0)}, {sr(S_W)}, 2\ns_lshl_b32 {sr(T1)}, {sr(S_CG)}, 14\ns_add_u32 {sr(T1)}, {sr(T1)}, {AGG}')
    A(f'v_and_b32 {vr(TMP + 8)}, 15, v0\nv_lshl_add_u32 {vr(TMP + 8)}, {vr(TMP + 8)}, 4, {sr(T1)}\nv_bfe_u32 {vr(TMP + 7)}, v0, 4, 1\nv_lshl_add_u32 {vr(TMP + 8)}, {vr(TMP + 7)}, 9, {vr(TMP + 8)}')
    A(f'v_lshrrev_b32 {vr(TMP + 7)}, 5, v0')
    A(f'v_mov_b32 {vr(TMP + 10)}, {OOB}')
    for j in range(2):
        A(f'v_add_u32 {vr(TMP + 9)}, {sr(T0)}, {vr(TMP + 7)}')
        if j:
            A(f'v_add_u32 {vr(TMP + 9)}, 2, {vr(TMP + 9)}')
        A(f'v_cmp_gt_u32 vcc, {sr(S_RT)}, {vr(TMP + 9)}')
        A(f'v_lshl_add_u32 {vr(VPQ + j)}, {vr(TMP + 9)}, 10, {vr(TMP + 8)}')
        A(f'v_sub_u32 {vr(N0 + j)}, {sr(S_RT)}, {vr(TMP + 9)}')
        A(f'v_cndmask_b32 {vr(VPQ + j)}, {vr(TMP + 10)}, {vr(VPQ + j)}, vcc')
        A(f'v_add_u32 {vr(N0 + j)}, -1, {vr(N0 + j)}\nv_max_i32 {vr(N0 + j)}, 0, {vr(N0 + j)}\nv_lshlrev_b32 {vr(N0 + j)}, 7, {vr(N0 + j)}\nv_cvt_f32_i32 {vr(N0 + j)}, {vr(N0 + j)}')
    A(f's_lshl_b32 {sr(T0)}, {sr(S_W)}, 5\nv_lshl_add_u32 {vr(NS)}, {vr(TMP + 7)}, 4, {sr(T0)}\nv_cvt_f32_i32 {vr(NS)}, {vr(NS)}')
    LRE, LIM, DT, A2, BR = TMP + 1, TMP + 2, TMP + 3, TMP + 7, TMP + 12
    t0, t1 = TMP + 10, TMP + 11
    A(f's_lshl_b32 {sr(T0)}, {sr(S_W)}, 8\nv_add_u32 {vr(TMP + 8)}, {sr(T0)}, {vr(VEX)}')
    A(f's_lshl_b32 {sr(T0)}, {sr(S_CG)}, 4\ns_add_u32 {sr(T0)}, {sr(T0)}, {sr(S_RT)}\ns_lshl_b32 {sr(T0)}, {sr(T0)}, 10\ns_add_u32 {sr(T0)}, {sr(T0)}, {AGG}')
    A(f's_cmp_eq_u32 {sr(S_W)}, 0\ns_cselect_b32 {sr(T0)}, {sr(T0)}, {OOB}')
    lane_pat(A, TMP + 9, t0, sr(T0))
    flag_addr(A, S_GFL, HF)
    prog_addrs(A, VPW, VPR, G2)
    A(f's_lshl_b32 {sr(S_GST)}, {sr(S_QN)}, 15\ns_xor_b32 {sr(S_WDO)}, {sr(S_GST)}, 0x8000')
    AWR, ARD, VST = 200, 202, TMP + 15
    A(f's_lshl_b32 {sr(T0)}, {sr(S_W)}, 11\ns_add_u32 {sr(T0)}, {sr(T0)}, {X_TR}')
    A(f'v_lshrrev_b32 {vr(t0)}, 5, v0\nv_lshlrev_b32 {vr(AWR)}, 1, {vr(t0)}\nv_bfe_u32 {vr(t1)}, v0, 1, 2\nv_xor_b32 {vr(AWR)}, {vr(AWR)}, {vr(t1)}')
    A(f'v_and_b32 {vr(t1)}, 31, v0\nv_lshl_add_u32 {vr(AWR)}, {vr(t1)}, 2, {vr(AWR)}\nv_lshl_add_u32 {vr(AWR)}, {vr(AWR)}, 4, {sr(T0)}\nv_xor_b32 {vr(AWR + 1)}, 16, {vr(AWR)}')
    A(f'v_bfe_u32 {vr(t1)}, v0, 2, 2\nv_lshl_add_u32 {vr(t0)}, {vr(t0)}, 3, {vr(t1)}\nv_lshl_add_u32 {vr(ARD)}, {vr(t0)}, 6, {sr(T0)}')
    A(f'v_and_b32 {vr(t0)}, 1, v0\nv_lshl_add_u32 {vr(ARD)}, {vr(t0)}, 5, {vr(ARD)}')
    A(f'v_bfe_u32 {vr(t0)}, v0, 4, 1\nv_bfe_u32 {vr(t1)}, v0, 3, 1\nv_xor_b32 {vr(t0)}, {vr(t0)}, {vr(t1)}\nv_lshl_add_u32 {vr(ARD)}, {vr(t0)}, 4, {vr(ARD)}')
    A(f'v_bfe_u32 {vr(t0)}, v0, 1, 1\nv_lshl_add_u32 {vr(ARD)}, {vr(t0)}, 3, {vr(ARD)}\nv_xor_b32 {vr(ARD + 1)}, 32, {vr(ARD)}')
    A(f's_lshl_b32 {sr(T1)}, {sr(S_RT)}, 2\ns_add_u32 {sr(T1)}, {sr(T1)}, {sr(S_W)}\ns_mul_i32 {sr(T1)}, {sr(T1)}, {KSP}')
    A(f's_and_b32 {sr(T0)}, {sr(S_CG)}, 14\ns_lshl2_add_u32 {sr(T1)}, {sr(T0)}, {sr(T1)}\ns_and_b32 {sr(T0)}, {sr(S_CG)}, 1\ns_lshl1_add_u32 {sr(T1)}, {sr(T0)}, {sr(T1)}\ns_lshl_b32 {sr(T1)}, {sr(T1)}, 11')
    lane_pat(A, VST, t0, sr(T1))
    VPF = 192
    A(f's_mul_i32 {sr(T1)}, s2, 43\ns_mul_i32 {sr(T0)}, {sr(S_W)}, 11\ns_add_u32 {sr(T0)}, {sr(T0)}, {sr(T1)}\ns_lshl_b32 {sr(T0)}, {sr(T0)}, 7')
    A(f'v_min_u32 {vr(VPF)}, 10, v0\nv_lshl_add_u32 {vr(VPF)}, {vr(VPF)}, 7, {sr(T0)}')
    if cfg.c3pf:
        A(f's_lshr_b32 {sr(T1)}, s2, 3\ns_mul_i32 {sr(T1)}, {sr(T1)}, 43\ns_mul_i32 {sr(T0)}, {sr(S_W)}, 11\ns_add_u32 {sr(T0)}, {sr(T0)}, {sr(T1)}\ns_lshl_b32 {sr(T0)}, {sr(T0)}, 10\ns_add_u32 {sr(T0)}, {sr(T0)}, {384 - 32 * 1024}')
        A(f'v_min_u32 {vr(t1)}, 42, v0\nv_lshl_add_u32 {vr(t1)}, {vr(t1)}, 10, {sr(T0)}\ns_mov_b32 vcc_hi, -1\ns_mov_b32 vcc_lo, 0\nv_cndmask_b32 {vr(VPF)}, {vr(VPF)}, {vr(t1)}, vcc')
    A.wait_lg_all()
    A(f's_add_u32 {sr(S_TAG)}, {sr(S_TAG)}, 0x9E3779B1')
    A.stamp('setup')

    def cpow(dr, di, n):
        A(f'v_mul_f32 {vr(t0)}, {n}, {vr(A2)}\nv_mul_f32 {vr(t1)}, {n}, {vr(BR)}')
        A(f'v_exp_f32 {vr(t0)}, {vr(t0)}\nv_fract_f32 {vr(t1)}, {vr(t1)}')
        A(f'v_cos_f32 {vr(dr)}, {vr(t1)}\nv_sin_f32 {vr(di)}, {vr(t1)}')
        A(f'v_mul_f32 {vr(dr)}, {vr(t0)}, {vr(dr)}\nv_mul_f32 {vr(di)}, {vr(t0)}, {vr(di)}')

    def lam(i):
        if i == 0:
            for r in (LRE, LIM, DT):
                A(f'v_lshlrev_b32 {vr(r)}, 16, {vr(r)}')
            A(f'v_mul_f32 {vr(DT)}, {LOG2E}, {vr(DT)}\nv_exp_f32 {vr(DT)}, {vr(DT)}\ns_nop 0')
            A(f'v_cvt_pk_bf16_f32 {vr(DT)}, {vr(DT)}, {vr(DT)}\nv_lshlrev_b32 {vr(DT)}, 16, {vr(DT)}')
            A(f'v_mul_f32 {vr(A2)}, {vr(DT)}, {vr(LRE)}\nv_mul_f32 {vr(BR)}, {vr(DT)}, {vr(LIM)}')
            A(f'v_mul_f32 {vr(A2)}, {LOG2E}, {vr(A2)}\nv_mul_f32 {vr(BR)}, {INV2PI}, {vr(BR)}')
            cpow(LR, LI, '1.0')
            cpow(L16R, L16I, '0x41800000')
        if i == 1:
            cpow(L32R, L32I, '0x42000000')
        if i == 2:
            cpow(WQ, WQ + 1, vr(N0))
        if i == 3:
            cpow(WQ + 2, WQ + 3, vr(N1))
        if i == 4:
            cpow(WSR, WSI, vr(NS))
        if i == 5:
            A(f'v_mul_f32 {vr(t0)}, {vr(LRE)}, {vr(LRE)}\nv_fmac_f32 {vr(t0)}, {vr(LIM)}, {vr(LIM)}\nv_rcp_f32 {vr(t0)}, {vr(t0)}')
            A(f'v_add_f32 {vr(t1)}, -1.0, {vr(LR)}\nv_add_f32 {vr(t0)}, {vr(t0)}, {vr(t0)}')
            A(f'v_mul_f32 {vr(KR)}, {vr(t1)}, {vr(LRE)}\nv_fmac_f32 {vr(KR)}, {vr(LI)}, {vr(LIM)}')
            A(f'v_mul_f32 {vr(KI)}, {vr(LI)}, {vr(LRE)}\nv_fma_f32 {vr(KI)}, -{vr(t1)}, {vr(LIM)}, {vr(KI)}')
            A(f'v_mul_f32 {vr(KR)}, {vr(t0)}, {vr(KR)}\nv_mul_f32 {vr(KI)}, {vr(t0)}, {vr(KI)}')

    def fb(i):
        return (XF, BF) if i % 2 else (FB2, FB2 + 16)

    def mm(i, s):
        xf, bf = fb(i)
        A.wait_lg(f'a{i}{s}')
        mfma(A, U, xf + 4 * s, bf + 8 * s, i == 0 and s == 0)
        A.wait_lg(f'b{i}{s}')
        mfma(A, V, xf + 4 * s, bf + 8 * s + 4, i == 0 and s == 0)
    for i in range(8):
        A('s_barrier')
        so = (i % 2) * SLOT
        hi = (i >> 1) & 1
        xf, bf = fb(i)
        for s in range(4):
            ab = AX + 8 + s if hi else AC + s
            A.ds(f'ds_read_b128 {vr(xf + 4 * s, 4)}, {vr(AX + 4 * hi + s)} offset:{so}', f'a{i}{s}')
            A.ds(f'ds_read_b128 {vr(bf + 8 * s, 4)}, {vr(ab)} offset:{so + 16384}', f'a{i}{s}')
            A.ds(f'ds_read_b128 {vr(bf + 8 * s + 4, 4)}, {vr(ab)} offset:{so + 20480}', f'b{i}{s}')
            if i and s < 2:
                mm(i - 1, 2 + s)
        if i == 1:
            for j, r in enumerate((LRE, LIM, DT)):
                A.ds(f'ds_read_u16 {vr(r)}, {vr(TMP)} offset:{256 * j}')
        mm(i, 0)
        mm(i, 1)
        A.wait_lg_all()
        lam(i - 1)
    if cfg.prio:
        A(f's_setprio {cfg.p2b}')
    A(f's_add_u32 {sr(S_MB)}, {sr(S_MB)}, {P1B}')
    A('s_barrier')
    GR = XF + 12
    E0R, E0I, E1R, E1I = TMP + 2, TMP + 3, TMP + 4, TMP + 5
    EW = XF
    PA = XF + 8
    PW = TMP + 10
    PQ = XF
    Q = TMP
    PK = XF
    HFR = BF
    VD = 96
    MV = 100 - WQ
    VA, VP, VG, VXS, PD, PG, DS = 1, 3, 4, 5, 6, 8, 10
    done = []

    def cfma(dr, di, ar, ai, br, bi, cr, ci):
        A(f'v_fma_f32 {vr(dr)}, {vr(ar)}, {vr(br)}, {vr(cr)}\nv_fma_f32 {vr(di)}, {vr(ar)}, {vr(bi)}, {vr(ci)}')
        A(f'v_fma_f32 {vr(dr)}, -{vr(ai)}, {vr(bi)}, {vr(dr)}\nv_fma_f32 {vr(di)}, {vr(ai)}, {vr(br)}, {vr(di)}')
        A.tick()

    def scale(rs):
        for r in rs:
            t = TMP + (r & 1)
            A(f'v_mul_f32 {vr(t)}, {vr(KI)}, {vr(V + r)}\nv_mul_f32 {vr(V + r)}, {vr(KR)}, {vr(V + r)}')
            A(f'v_fmac_f32 {vr(V + r)}, {vr(KI)}, {vr(U + r)}\nv_fma_f32 {vr(U + r)}, {vr(KR)}, {vr(U + r)}, -{vr(t)}')
            A.tick()

    def pl_agg():
        for j in range(2):
            A.vmem(f'buffer_load_dwordx4 {vr(PQ + 4 * j, 4)}, {vr(VPQ + j)}, {sr(R_WS, 4)}, 0 offen sc1', 'pagg')

    def ck_agg():
        for j in range(2):
            A(f'v_cmp_eq_u32 {sr(S_C0, 2)}, {sr(S_TAG)}, {vr(PQ + 4 * j + 1)}\nv_cmp_eq_u32 {sr(8, 2)}, {sr(S_TAG)}, {vr(PQ + 4 * j + 3)}')
            A(f'v_cmp_eq_u32 vcc, {OOB}, {vr(VPQ + j)}')
            A(f's_and_b64 {sr(S_C0, 2)}, {sr(S_C0, 2)}, {sr(8, 2)}\ns_or_b64 {sr(S_C0, 2)}, {sr(S_C0, 2)}, vcc')
            if j == 0:
                A(f's_mov_b64 {sr(T2, 2)}, {sr(S_C0, 2)}')
        A(f's_and_b64 {sr(S_C0, 2)}, {sr(S_C0, 2)}, {sr(T2, 2)}\ns_cmp_eq_u64 {sr(S_C0, 2)}, -1')

    def creg(t, na):
        return CR + 8 * t + 4 * na

    def pass2(rs):
        for r in rs:
            pr, pi = (TMP, TMP + 1) if r == 0 else (U + r - 1, V + r - 1)
            cfma(U + r, V + r, LR, LI, pr, pi, U + r, V + r)
            if r % 2:
                A(f'v_cvt_pk_bf16_f32 {vr(PK + r // 2)}, {vr(U + r - 1)}, {vr(U + r)}')
                A(f'v_cvt_pk_bf16_f32 {vr(PK + 8 + r // 2)}, -{vr(V + r - 1)}, -{vr(V + r)}')

    def pl_h():
        if not cfg.spoll:
            A.vmem(f'buffer_load_dword {vr(PD)}, {vr(VP)}, {sr(R_WS, 4)}, 0 offen sc1', 'ph')
        A.vmem(f'buffer_load_dwordx2 {vr(PG, 2)}, {vr(VG)}, {sr(R_WS, 4)}, 0 offen sc1', 'ph')

    def ck_h():
        if cfg.spoll:
            A(f'v_cmp_eq_u32 vcc, {sr(S_TAG)}, {vr(PG + 1)}\ns_cmp_eq_u64 vcc, -1')
            return
        A(f'v_cmp_eq_u32 vcc, {sr(S_TAG)}, {vr(PD)}\nv_cmp_eq_u32 {sr(S_C1, 2)}, {sr(S_TAG)}, {vr(PG + 1)}')
        A(f's_and_b64 vcc, vcc, {sr(S_C1, 2)}\ns_cmp_eq_u64 vcc, -1')

    def after(*deps):
        for d in deps:
            assert d in done, (act, d)

    for act in cfg.sched.replace(',', ' ').split():
        bgd = act[0] == '+'
        act = act.lstrip('+')
        if act == '!':
            A.drain()
            continue
        assert act not in done, act
        k, n = act[0], int(act[1:]) if act[1:].isdigit() else None

        def emit(fn):
            if bgd:
                A.defer(fn)
            else:
                A.drain()
                A.low(fn)
        if k in 'rw' and n is not None:
            if any(t == {'r': f'c{n}', 'w': f'blk{8 + n}'}[k] for _, t in A.bg):
                A.drain()
        if k == 'c' and n is not None:
            if n >= 3:
                after(f'r{n - 3}')
                A.wait_lg(f'mc{n - 3}')

            def f(i=n >> 1, na=n & 1):
                A(f's_add_u32 m0, {sr(S_MB)}, {(n % 3) * 16384}')
                A(f's_add_u32 {sr(S_OA)}, {sr(S_ROT)}, {i}\ns_and_b32 {sr(S_OA)}, {sr(S_OA)}, 2\ns_lshl_b32 {sr(S_OA)}, {sr(S_OA)}, 6\ns_add_u32 {sr(S_OA)}, {sr(S_OA)}, {sr(S_WDO if na else S_GST)}')
                for j in range(4):
                    A.vmem(f'buffer_load_dwordx4 {vr(VC + j)}, {sr(R_E if i & 1 else R_B, 4)}, {sr(S_OA)} offen offset:{1024 * j} lds', f'c{n}')
            emit(f)
        elif k == 'r' and n is not None:
            after(f'c{n}', 'mm')
            A.wait_vm(f'c{n}')
            for s in range(4):
                A.ds(f'ds_read_b128 {vr(creg((n >> 1) * 4 + s, n & 1), 4)}, {vr(AC + s)} offset:{(n % 3) * 16384}', f'mc{n}')
        elif k == 'W':
            if n == 7:
                after('w4')
            if n == 6 and cfg.p2w == 3:
                after('w3')
            if n >= 4:
                await_(A, f'pa{n - 2}', VPR, VPT, G1, n - 2)
            emit(lambda: issue_w(A, 8 + n, VW, S_MB2))
        elif k == 'w':
            after(f'W{n}')
            A.wait_vm(f'blk{8 + n}')
            post(A, VPW, VPT, n)
        elif k == 'd' and n is not None:
            after('vd')
            if n < 3:
                pc = {0: 6, 1: 7, 2: 5}[n]
                after(f'r{pc}')
                A.wait_lg(f'mc{pc}')
            elif n == 3:
                after('w5')
                await_(A, 'g2w5', VPR, VPT, G2, E_W5)
                await_(A, 'pa6', VPR, VPT, G1, 6)
            elif n == 4:
                after('w6', 'd3')
                await_(A, 'pa7', VPR, VPT, G1, 7)
            else:
                after('d4')
            emit(lambda: dma_wd(A, 2 * n, VD, S_MB, R_O))
        elif act == 'pf':
            assert 'c4' not in done
            if cfg.w2pf:
                emit(lambda: A.vmem(f'buffer_load_dword {vr(VPF + 1)}, {vr(VPF)}, {sr(R_O, 4)}, 0 offen'))
        elif act == 'mm':
            mm(7, 2)
            mm(7, 3)
            for s in range(4):
                A(f'v_add_u32 {vr(AC + s)}, {sr(S_MB)}, {vr(AC + s)}')
            for r in range(WQ, WQ + 10):
                A(f'v_mov_b32 {vr(r + MV)}, {vr(r)}')
        elif act == 'p1':
            after('mm')
            pr, pi = U, V
            for r in range(1, 16):
                dr, di = TMP + 2 * (r % 2), TMP + 2 * (r % 2) + 1
                cfma(dr, di, LR, LI, pr, pi, U + r, V + r)
                pr, pi = dr, di
            assert (pr, pi) == (E0R, E0I)
            A(f'v_mov_b32 {vr(E1R)}, {vr(E0R)}\nv_mov_b32 {vr(E1I)}, {vr(E0I)}')
            A(f'v_mov_b32 {vr(GR + 1)}, {sr(S_TAG)}\nv_mov_b32 {vr(GR + 3)}, {sr(S_TAG)}')
            A(f'v_permlane32_swap_b32 {vr(E0R)}, {vr(E1R)}\nv_permlane32_swap_b32 {vr(E0I)}, {vr(E1I)}')
            cfma(TMP + 6, TMP + 7, L16R, L16I, E0R, E0I, E1R, E1I)
            A.ds(f'ds_write_b64 {vr(TMP + 8)}, {vr(TMP + 6, 2)}')
            post(A, VPW, VPT, E_EX, G3 - G2)
        elif act == 'pub':
            after('p1')
            await_(A, 'ex', VPR, VPT, G3, E_EX)
            for w in range(4):
                A.ds(f'ds_read_b64 {vr(EW + 2 * w, 2)}, {vr(VEX)} offset:{256 * w}')
            A.wait_lg_all()
            cfma(PA, PA + 1, L32R, L32I, EW, EW + 1, EW + 2, EW + 3)
            cfma(PA + 2, PA + 3, L32R, L32I, PA, PA + 1, EW + 4, EW + 5)
            cfma(GR, GR + 2, L32R, L32I, PA + 2, PA + 3, EW + 6, EW + 7)
            A('s_mov_b32 exec_hi, 0')
            A.vmem(f'buffer_store_dwordx4 {vr(GR, 4)}, {vr(TMP + 9)}, {sr(R_WS, 4)}, 0 offen sc1')
            A('s_mov_b64 exec, -1')
        elif act == 'lc':
            after('pub')
            A(f'v_mov_b32 {vr(PW)}, 0\nv_mov_b32 {vr(PW + 1)}, 0')
            for w, src in ((1, EW), (2, PA), (3, PA + 2)):
                A(f's_cmp_eq_u32 {sr(S_W)}, {w}\ns_cselect_b64 vcc, -1, 0')
                A(f'v_cndmask_b32 {vr(PW)}, {vr(PW)}, {vr(src)}, vcc\nv_cndmask_b32 {vr(PW + 1)}, {vr(PW + 1)}, {vr(src + 1)}, vcc')
            cfma(LCR, LCI, L16R, L16I, PW, PW + 1, E0R, E0I)
            A('s_mov_b32 vcc_lo, -1\ns_mov_b32 vcc_hi, 0')
            A(f'v_cndmask_b32 {vr(LCR)}, {vr(LCR)}, {vr(PW)}, vcc\nv_cndmask_b32 {vr(LCI)}, {vr(LCI)}, {vr(PW + 1)}, vcc')
        elif k == 's':
            after('p1')
            assert 'car' not in done
            scale(range(8 * n, 8 * n + 8))
        elif act == 'poll':
            after('lc')
            pl_agg()
        elif act == 'q':
            after('poll')
            A.drain()
            A.wait_vm('pagg')
            hiw = max([int(d[1]) for d in done if d[0] == 'W'])
            spin(A, 'agg', pl_agg, ck_agg, cfg, lambda: post(A, VPW, VPT, hiw))
            wq = WQ + MV
            A(f'v_mul_f32 {vr(Q)}, {vr(wq)}, {vr(PQ)}\nv_mul_f32 {vr(Q + 1)}, {vr(wq)}, {vr(PQ + 2)}')
            A(f'v_fma_f32 {vr(Q)}, -{vr(wq + 1)}, {vr(PQ + 2)}, {vr(Q)}\nv_fmac_f32 {vr(Q + 1)}, {vr(wq + 1)}, {vr(PQ)}')
            cfma(Q, Q + 1, wq + 2, wq + 3, PQ + 4, PQ + 6, Q, Q + 1)
            A(f'v_mov_b32 {vr(Q + 2)}, {vr(Q)}\nv_mov_b32 {vr(Q + 3)}, {vr(Q + 1)}\ns_nop 1')
            A(f'v_permlane32_swap_b32 {vr(Q)}, {vr(Q + 2)}\nv_permlane32_swap_b32 {vr(Q + 1)}, {vr(Q + 3)}')
            A(f'v_add_f32 {vr(Q)}, {vr(Q)}, {vr(Q + 2)}\nv_add_f32 {vr(Q + 1)}, {vr(Q + 1)}, {vr(Q + 3)}')
            A.ds(f'ds_write_b64 {vr(TMP + 8)}, {vr(Q, 2)} offset:1024')
            post(A, VPW, VPT, E_EX2, G3 - G2)
            low = [d for d in ('w3', 'w4', 'w5', 'w6', 'w7')[cfg.p2w - 3:] if d not in done and int(d[1]) < hiw]
            assert not low, low
        elif act == 'car':
            after('q', 's0', 's1')
            await_(A, 'ex2', VPR, VPT, G3, E_EX2)
            for w in range(4):
                A.ds(f'ds_read_b64 {vr(EW + 2 * w, 2)}, {vr(VEX)} offset:{1024 + 256 * w}', 'ex2')
            A.wait_lg('ex2')
            for o in (0, 1):
                A(f'v_add_f32 {vr(EW + o)}, {vr(EW + o)}, {vr(EW + 2 + o)}\nv_add_f32 {vr(EW + 4 + o)}, {vr(EW + 4 + o)}, {vr(EW + 6 + o)}')
            A(f'v_add_f32 {vr(EW)}, {vr(EW)}, {vr(EW + 4)}\nv_add_f32 {vr(EW + 1)}, {vr(EW + 1)}, {vr(EW + 5)}')
            cfma(LCR, LCI, WSR + MV, WSI + MV, EW, EW + 1, LCR, LCI)
            A(f'v_mul_f32 {vr(TMP)}, {vr(KR)}, {vr(LCR)}\nv_mul_f32 {vr(TMP + 1)}, {vr(KR)}, {vr(LCI)}')
            A(f'v_fma_f32 {vr(TMP)}, -{vr(KI)}, {vr(LCI)}, {vr(TMP)}\nv_fmac_f32 {vr(TMP + 1)}, {vr(KI)}, {vr(LCR)}')
        elif act == 'pa':
            after('car')
            pass2(range(0, 8))
        elif act == 'pb':
            after('pa')
            pass2(range(8, 16))
        elif act == 'tr':
            after('pb')
            for part in range(2):
                for j in range(2):
                    A.ds(f'ds_write_b128 {vr(AWR + MV + j)}, {vr(PK + 8 * part + 4 * j, 4)}')
                for cj in range(2):
                    for rd in range(2):
                        A.ds(f'ds_read_b64_tr_b16 {vr(HFR + 8 * part + 4 * cj + 2 * rd, 2)}, {vr(ARD + MV + rd)} offset:{(16 * cj + 4 * rd) * 64}', f'h{part}{cj}')
            for part in range(2):
                for cj in range(2):
                    A.wait_lg(f'h{part}{cj}')
                    A.vmem(f'buffer_store_dwordx4 {vr(HFR + 8 * part + 4 * cj, 4)}, {vr(VST)}, {sr(R_WS, 4)}, {fo(4 * part + cj)} sc1', 'h')
            A.flush()
        elif act == 'hf':
            after('tr')
            A(f'v_mov_b32 {vr(TMP + 2)}, {sr(S_TAG)}\nv_lshlrev_b32 {vr(TMP + 3)}, 2, v0')
            A.wait_vm('h')
            A('s_mov_b32 exec_hi, 0' if cfg.fullflag else 's_mov_b64 exec, 1')
            A.vmem(f'buffer_store_dword {vr(TMP + 2)}, {vr(TMP + 3)}, {sr(R_WS, 4)}, {sr(S_GFL)} offen sc1', 'fl')
            A('s_mov_b64 exec, -1')
        elif act == 'vd':
            after('lc')
            wd_voffs(A, VD, TMP + 4, S_CNT)
        elif act == 'ad':
            after('pb', 'W7')
            A.drain()
            A(f's_lshr_b32 {sr(T0)}, {sr(S_W)}, 1\ns_lshl1_add_u32 {sr(T2)}, {sr(S_M2)}, {sr(T0)}\ns_xor_b32 {sr(T3)}, {sr(T2)}, 1')
            A(f's_lshl_b32 {sr(T1)}, {sr(T2)}, 10\ns_add_u32 {sr(T1)}, {sr(T1)}, {GAT}\nv_and_b32 {vr(VG)}, 31, v0\nv_lshl_add_u32 {vr(VG)}, {vr(VG)}, 3, {sr(T1)}')
            A(f's_lshl1_add_u32 {sr(T0)}, {sr(S_N2)}, {sr(S_QN)}\ns_lshl_b32 {sr(T0)}, {sr(T0)}, 6')
            A(f'v_and_b32 {vr(DS)}, 31, v0\nv_lshl_add_u32 {vr(DS)}, {vr(DS)}, 1, {sr(T0)}')
            A(f's_lshl_b32 {sr(T1)}, {sr(T2)}, 15\ns_add_u32 {sr(T1)}, {sr(T1)}, {sr(T0)}\nv_and_b32 {vr(VP)}, 3, v0\nv_lshl_add_u32 {vr(VP)}, {vr(VP)}, 4, {sr(T1)}')
            A(f'v_lshrrev_b32 {vr(VXS)}, 2, v0\nv_lshl_add_u32 {vr(VXS)}, {vr(VXS)}, 10, {vr(VP)}')
            A(f's_lshl_b32 {sr(T0)}, {sr(S_W)}, 4')
            for ma, t in ((0, T2), (1, T3)):
                A(f's_mul_i32 {sr(t)}, {sr(t)}, {KSP}\ns_add_u32 {sr(t)}, {sr(t)}, {sr(T0)}\ns_lshl_b32 {sr(t)}, {sr(t)}, 11')
                lane_pat(A, VA + ma, VP, sr(t))
            A(f's_mul_i32 {sr(T0)}, {sr(S_M2)}, {FST}\ns_lshl_b32 {sr(T1)}, {sr(S_W)}, 11\ns_add_u32 {sr(T0)}, {sr(T0)}, {sr(T1)}\ns_add_u32 {sr(T0)}, {sr(T0)}, {HF}')
            A(f'v_and_b32 {vr(VP)}, 7, v0\nv_lshl_add_u32 {vr(VP)}, {vr(VP)}, 8, {sr(T0)}')
            A(f's_add_u32 s4, s36, {sr(T0)}\ns_addc_u32 s5, s37, 0')
            A.vmem(f'global_load_ushort {vr(DS)}, {vr(DS)}, s[20:21]', 'xs')
            for a in (0, 1, 2, 3):
                A(f's_xor_b32 {sr(T0)}, {sr(S_W)}, {a}\ns_lshl_b32 {sr(T0)}, {sr(T0)}, 12')
                A(f'v_lshl_add_u32 {vr(11 + a)}, v0, 4, {sr(T0)}')
        elif act == 'hp':
            after('ad')
            pl_h()
        elif act == 'hs':
            after('ad', 'hf', 'W7')
            A.drain()
            spoll(A, 'hs', cfg, [(4, 256 * j) for j in range(8)], mode='issue')
        elif act == 'xs':
            after('ad', 'tr')

            def f():
                A(f's_lshl_b32 {sr(S_OA)}, {sr(S_W)}, 11\ns_add_u32 m0, {sr(S_OA)}, {X_TR}\ns_mov_b32 {sr(S_OA)}, {15 * 1024}')
                A.vmem(f'buffer_load_dwordx4 {vr(VXS)}, {sr(R_X, 4)}, 0 offen lds', 'xs')
                A.vmem(f'buffer_load_dwordx4 {vr(VXS)}, {sr(R_X, 4)}, {sr(S_OA)} offen offset:1024 lds', 'xs')
            emit(f)
        else:
            raise AssertionError(act)
        done.append(act)
        if act in cfg.p2st.split(','):
            A.stamp(act)
    A.drain()
    after(*(f'd{i}' for i in range(6)), *(f'r{i}' for i in range(8)), 'hp', 'hs', 'xs', 'w7')
    assert P2B == 0
    if cfg.prio:
        A('s_setprio 2')
    ACC2 = 32
    free = [96, 104, 112, 120]
    areg = {}

    def ld_act(t):
        areg[t] = free.pop(0)
        if t % 2 == 0:
            A(f's_add_u32 {sr(S_OA)}, {sr(S_ROT)}, {t >> 2}\ns_and_b32 {sr(S_OA)}, {sr(S_OA)}, 3\ns_lshl_b32 {sr(S_OA)}, {sr(S_OA)}, 13')
            if t & 2:
                A(f's_add_u32 {sr(S_OA)}, {sr(S_OA)}, 4096')
        for ma in range(2):
            A.vmem(f'buffer_load_dwordx4 {vr(areg[t] + 4 * ma, 4)}, {vr(VA + ma)}, {sr(R_WS, 4)}, {sr(S_OA)} offen offset:{2048 * (t % 2)} sc1', f'act{t}')
    if cfg.spoll:
        spoll(A, 'hs', cfg, [(4, 256 * j) for j in range(8)], lambda: (A('s_waitcnt vmcnt(0)'), post(A, VPW, VPT, E_WD)), mode='check')
    else:
        A.wait_vm('ph')
        spin(A, 'h', pl_h, ck_h, cfg, lambda: post(A, VPW, VPT, E_WD))
    A.stamp('hpoll')
    lastd = max(i for i, t in enumerate(A.vm) if t and t.startswith('wd')) if any(t and t.startswith('wd') for t in A.vm) else None
    if lastd is not None:
        A.vm[lastd] = 'wdlast'
    for t in range(4):
        ld_act(t)
    if cfg.spoll:
        A.wait_vm('ph')
        spin(A, 'h', pl_h, ck_h, cfg)
    A(f's_lshl_b32 {sr(T0)}, {sr(S_W)}, 7\ns_add_u32 {sr(T0)}, {sr(T0)}, {X_G}')
    A(f'v_and_b32 {vr(VP)}, 31, v0\nv_lshl_add_u32 {vr(VP)}, {vr(VP)}, 2, {sr(T0)}')
    A(f'v_lshrrev_b32 {vr(VG)}, 5, v0\nv_lshl_add_u32 {vr(VG)}, {vr(VG)}, 6, {sr(T0)}')
    A(f'v_sub_f32 {vr(PG + 1)}, 1.0, {vr(PG)}')
    A.ds(f'ds_write_b32 {vr(VP)}, {vr(PG)}')
    A.ds(f'ds_write_b32 {vr(VP)}, {vr(PG + 1)} offset:{X_OMG - X_G}')
    if cfg.fine:
        A.stamp('act03')
    A.wait_vm('wdlast')
    if cfg.fine:
        A.stamp('wdl')
    post(A, VPW, VPT, E_WD)
    A.wait_lg_all()
    nxt = 4
    for t in range(16):
        A.wait_vm(f'act{t}')
        for a in (1, 2, 3, 0):
            mfma(A, ACC2 + 16 * a, areg[t] + 4 * (a >> 1), creg(t, a & 1), t == 0)
        free += [areg[t], creg(t, 0)]
        for _ in range(2):
            if nxt < 16:
                ld_act(nxt)
                nxt += 1
        if t == 5 and cfg.prio and cfg.pF:
            A('s_setprio 0')
        if t == 0 or (cfg.fine and t % 2 == 0):
            A.stamp(f'S{t}')
    A.stamp('Send')
    if cfg.prio and cfg.pEnd:
        A(f's_setprio {cfg.pEnd}')
    await_(A, 'pa9', VPR, VPT, G1, 9)
    await_(A, 'g2w7', VPR, VPT, G2, E_W7)
    A('s_nop 2')
    for a in (1, 2, 3):
        for j in range(4):
            A.ds(f'ds_write_b128 v11, {vr(ACC2 + 16 * a + 4 * j, 4)} offset:{(a - 1) * 16384 + j * 1024}')
    post(A, VPW, VPT, E_SP, G3 - G2)
    GV = 96
    for j in range(4):
        A.ds(f'ds_read_b128 {vr(GV + 4 * j, 4)}, {vr(VG)} offset:{16 * j}')
    XS = 176
    A(f's_lshl_b32 {sr(T0)}, {sr(S_W)}, 11\ns_add_u32 {sr(T0)}, {sr(T0)}, {X_TR}\nv_and_b32 {vr(VP)}, 31, v0\nv_lshl_add_u32 {vr(VP)}, {vr(VP)}, 1, {sr(T0)}')
    A(f'v_lshrrev_b32 {vr(VXS)}, 5, v0\nv_lshl_add_u32 {vr(VXS)}, {vr(VXS)}, 10, {vr(VP)}')
    A.wait_vm('xs')
    A.wait_lg_all()
    for r in range(16):
        A.ds(f'ds_read_u16 {vr(XS + r)}, {vr(VXS)} offset:{64 * r}', f'x{r}')
        if r == 8:
            A.wait_lg('x0')
    A(f'v_lshlrev_b32 {vr(DS)}, 16, {vr(DS)}')
    for r in range(16):
        if r % 4 == 0:
            A.wait_lg(f'x{r + 3}')
        A(f'v_lshlrev_b32 {vr(XS + r)}, 16, {vr(XS + r)}')
        A(f'v_fmac_f32 {vr(ACC2 + r)}, {vr(XS + r)}, {vr(DS)}')
    await_(A, 'cntS', VPR, VPT, G3, E_SP)
    A.stamp('X1')
    PB = 128
    for a in (1, 2, 3):
        for j in range(4):
            A.ds(f'ds_read_b128 {vr(PB + 16 * (a - 1) + 4 * j, 4)}, {vr(11 + a)} offset:{(a - 1) * 16384 + j * 1024}', f'r{a}')
    for a in (1, 2, 3):
        A.wait_lg(f'r{a}')
        for r in range(16):
            A(f'v_add_f32 {vr(ACC2 + r)}, {vr(ACC2 + r)}, {vr(PB + 16 * (a - 1) + r)}')
    for r in range(16):
        A(f'v_mul_f32 {vr(ACC2 + r)}, {vr(ACC2 + r)}, {vr(GV + r)}')
    for j in range(4):
        A.ds(f'ds_write_b128 v12, {vr(ACC2 + 4 * j, 4)} offset:{j * 1024}')
    A.wait_lg_all()
    A.stamp('Sfin')
    A('s_barrier')
    A(f's_lshl_b32 {sr(T0)}, {sr(S_M2)}, 5\ns_lshl_b32 {sr(T1)}, {sr(S_N2)}, 2\ns_add_u32 {sr(T0)}, {sr(T0)}, {sr(T1)}\ns_add_u32 {sr(T0)}, {sr(T0)}, {sr(S_W)}')
    A(f's_cmp_lg_u32 {sr(T0)}, {31 << 5}\ns_cbranch_scc1 L_p2_done')
    A(f'v_mov_b32 v1, {sr(S_TAG)}\nv_mov_b32 v2, {GW}\ns_mov_b64 exec, 1')
    A(f'buffer_store_dword v1, v2, {sr(R_WS, 4)}, 0 offen\ns_mov_b64 exec, -1')
    A.label('L_p2_done')
    A.dump_stamps(1)
    A.label('L_end')
    A('s_endpgm')
    A.label('L_codeend')
    return A


HEADER = open(os.path.join(os.path.dirname(os.path.abspath(__file__)), '..', 'cdna_kernels',
                           'gated_mix__ssm_conv_s5__swiglu_ffn__prompt.s.ref')).read().split('; Override launch')[0]


def generate(cfg):
    e, p1, p2 = gen_entry(cfg), gen_p1(cfg), gen_p2(cfg)
    if cfg.dbg:
        i0 = [i for i, l in enumerate(p2.lines) if l == 's_barrier'][8]
        i1 = p2.lines.index('L_hs_try:')
        for i in range(i0, i1):
            l = p2.lines[i]
            if 'nofma' in cfg.dbg and l.startswith(('v_fma', 'v_mul_f32', 'v_cvt_pk')):
                p2.lines[i] = 's_nop 1'
            if 'nodma' in cfg.dbg and l.endswith(' lds'):
                p2.lines[i] = 's_nop 3'
            if 'nods' in cfg.dbg and l.startswith(('ds_read_b128', 'ds_write_b128', 'ds_read_b64_tr')):
                p2.lines[i] = 's_nop 1'
            if 'nodw' in cfg.dbg and l.startswith('ds_write_b128'):
                p2.lines[i] = 's_nop 1'
            if 'nodr' in cfg.dbg and l.startswith('ds_read_b128'):
                p2.lines[i] = 's_nop 1'
            if 'nom0' in cfg.dbg and ' m0,' in l:
                p2.lines[i] = 's_nop 0'
            if 'spdma' in cfg.dbg and l.endswith(' lds'):
                p2.lines[i] = l + '\n    s_nop 7'
            if 'nost' in cfg.dbg and l.startswith('buffer_store_dwordx4') and 'offset' in l:
                p2.lines[i] = 's_nop 1'
    probs = check_hazards(e.lines + p1.lines, 'p1') + (check_hazards(e.lines + p2.lines, 'p2') if not cfg.dbg else [])
    for p in probs:
        print('HAZARD', p, file=sys.stderr)
    assert not probs
    nb1 = sum(l == 's_barrier' for l in p1.lines[:p1.lines.index('L_p1_gate:')])
    nb2 = sum(l == 's_barrier' for l in p2.lines)
    assert nb1 == nb2, (nb1, nb2)
    txt = HEADER + f'; @launch grid=(256,1,1) block=(512,1,1) lds={LDS}\n'
    txt += f'.amdgcn_target "amdgcn-amd-amdhsa--gfx950"\n.text\n.globl {K}\n.p2align 8\n.type {K},@function\n{K}:\n'
    txt += e.text() + p1.text() + p2.text()
    txt += f'''.section .rodata,"a"
.p2align 6
.amdhsa_kernel {K}
  .amdhsa_next_free_vgpr 256
  .amdhsa_next_free_sgpr 102
  .amdhsa_accum_offset 256
  .amdhsa_group_segment_fixed_size 0
  .amdhsa_kernarg_size 136
  .amdhsa_user_sgpr_count 2
  .amdhsa_user_sgpr_kernarg_segment_ptr 1
  .amdhsa_system_sgpr_workgroup_id_x 1
.end_amdhsa_kernel
'''
    return txt, (p1.names, p2.names)


if __name__ == '__main__':
    cfg = Cfg()
    out = sys.argv[1]
    for kv in sys.argv[2:]:
        k, v = kv.split('=')
        old = getattr(cfg, k)
        setattr(cfg, k, (v not in ('0', 'False')) if isinstance(old, bool) else type(old)(v))
    txt, names = generate(cfg)
    open(out, 'w').write(txt)
    if cfg.stamps:
        import json
        json.dump(names, open(out + '.names', 'w'))
```

```python
import sys, os
sys.path.insert(0, os.path.dirname(os.path.abspath(__file__)))
from asmlib import Stream, vr, sr, check_hazards

K = 'gated_mix__ssm_conv_s5__swiglu_ffn__prompt_kernel'

ACT = 0
KSP = 160
AGG = 0x1400000
GAT = 0x1440000
FST = 8192
HF = 0x1480000
GF = 0x14C0000
GW = 0x1500000
WS_SIZE = 0x1510000
STAMP = 0xF000000
OOB = 0x40000000
SLOT = 24576
P2B = 0
P1B = 2 * SLOT
WSLOT = [4, 5, 0, 1, 4, 5, 0, 1]
XB = 6 * SLOT
X_XS, X_EX, X_EX2, X_CNT = XB, XB + 8192, XB + 9216, XB + 11264
X_PAR = XB + 11520
LDS = XB + 16384
S_RT, S_CG, S_M2, S_N2, S_W, S_TAG = 38, 39, 40, 41, 42, 43
R_WS, R_X, R_B, R_WG, R_WU, R_E, R_O = 44, 48, 52, 56, 60, 64, 68
S_OA, S_OW = 72, 73
S_K4 = 73
T0, T1, T2, T3 = 3, 81, 0, 1
S_MB = 82
S_MB2 = 83
S_C0 = 84
S_C1 = 86
S_CNT = 88
S_RHO, S_STAG = 87, 23
S_GST, S_GFL, S_WDO = 34, 35, 22
S_ROT, S_KAP, S_UR, S_U0 = 10, 11, 12, 27
S_ST0 = 90
LOG2E = 0x3fb8aa3b
NLOG2E = 0xbfb8aa3b
INV2PI = 0x3e22f983


class Cfg:
    mapping = '84'
    map2 = '48'
    rot2 = True
    rotj = 'x'
    weave = 2
    sched = 'mm +c0 +pf p1 W4 pub lc +W5 s0 s1 poll w4 W6 w5 q W7 w6 +c1 +c2 car pa w7 r0 +c3 pb tr r1 r2 c4 c5 r3 c6 hf r4 c7 d3 r5 d2 d4 r6 d0 xs r7 hs d1 d5'
    rot = True
    stag0 = 0
    nstag = 4
    rotx = 0
    swap = True
    w2pf = 1
    c3pf = True
    fx = ''
    fb = ''
    fw = ''
    probe = ''
    stamps = 0
    D = 3
    post_exec = False
    pF = 1
    pEnd = 0
    gpl = 3
    p2w = 4
    wres = 5
    pre_b = False
    nfill = 5
    fill0 = 50
    npre = 0
    p2st = 'mm,p1,pub,W4,w4,W5,q,car,W6,pb,W7,tr,hf,c2,c5,c7,r7,d1,d3,d5,w5,w6,w7'
    fine = False
    dbg = ''
    p1b = 2
    p2b = 3
    p2lo = 1
    post_at = 1
    peek_at = 9
    spin = 1 << 15
    code_pf = True
    out_flags = 'nt'
    prio = True


class WS(Stream):
    def __init__(self, cfg, vst):
        super().__init__()
        self.cfg, self.vst = cfg, vst
        self.pend, self.names, self.nst = [], [], 0
        self.bg, self.ticks = [], 0

    def defer(self, fn):
        l0, v0 = len(self.lines), len(self.vm)
        fn()
        lines, tags = self.lines[l0:], self.vm[v0:]
        del self.lines[l0:], self.vm[v0:]
        cur = []
        for ln in lines:
            cur.append(ln)
            if ln.startswith('buffer_'):
                self.bg.append((cur, tags.pop(0)))
                cur = []
        assert not cur and not tags

    def pop_bg(self):
        lines, tag = self.bg.pop(0)
        self.lines += lines
        self.vm.append(tag)

    def low(self, fn):
        if self.cfg.p2lo != self.cfg.p2b:
            self(f's_setprio {self.cfg.p2lo}')
        fn()
        if self.cfg.p2lo != self.cfg.p2b:
            self(f's_setprio {self.cfg.p2b}')

    def tick(self):
        self.ticks += 1
        if self.bg and self.ticks >= self.cfg.weave:
            self.ticks = 0
            self.low(self.pop_bg)

    def drain(self):
        if self.bg:
            self.low(lambda: [self.pop_bg() for _ in list(self.bg)])

    def stamp(self, name):
        role = '1' if self.vst == 7 else '2'
        if self.cfg.probe and self.cfg.probe[0] == role and (name == 'start' or self.cfg.probe[2:] == name):
            self('s_memrealtime s[98:99]')
        if self.cfg.stamps == 4:
            if name in ('start', 'A0', 'A4', 'A7', 'B0', 'B4', 'E', 'epi', 'guflag', 'wdok', 'gupoll', 'F0', 'Fend', 'X2', 'done', 'pub', 'q', 'tr', 'hf', 'hpoll', 'S0', 'Send', 'Sfin'):
                self._stamp(name, 's_memrealtime')
            return
        if self.cfg.stamps == 3:
            if name in ('start', 'A0', 'A4', 'B0', 'B4', 'E', 'guflag', 'F0', 'done') and role == '1':
                self._stamp(name, 's_memtime')
                self._stamp(name + '_ns', 's_memrealtime')
            return
        if self.cfg.stamps != 1:
            return
        self._stamp(name, 's_memtime')

    def _stamp(self, name, op):
        if len(self.pend) == 6:
            self('s_waitcnt lgkmcnt(0)')
            self.lg = []
            self.flush()
        used = {p for p, _ in self.pend}
        p = [x for x in range(6) if x not in used][0]
        self(f'{op} {sr(S_ST0 + 2 * p, 2)}')
        self.pend.append((p, self.nst))
        self.names.append(name)
        self.nst += 1

    def flush(self):
        for p, i in self.pend:
            self(f'v_writelane_b32 {vr(self.vst)}, {sr(S_ST0 + 2 * p)}, {i}')
        self.pend = []

    def wait_lg_all(self):
        super().wait_lg_all()
        self.flush()

    def dump_stamps(self, role):
        if self.cfg.probe and int(self.cfg.probe[0]) == role + 1:
            self('s_waitcnt lgkmcnt(0)\ns_add_u32 s98, s98, 3000')
            self.label('L_hold')
            self('s_memrealtime s[96:97]\ns_waitcnt lgkmcnt(0)\ns_sub_u32 s96, s96, s98\ns_cmp_lt_i32 s96, 0\ns_cbranch_scc1 L_hold')
        if not self.cfg.stamps:
            return
        self(f's_memrealtime {sr(S_C0, 2)}')
        self.wait_lg_all()
        self(f'v_writelane_b32 {vr(self.vst)}, {sr(S_C0)}, 62')
        self(f'v_writelane_b32 {vr(self.vst)}, s89, 63')
        self(f's_lshl_b32 {sr(T0)}, s2, 3\ns_add_u32 {sr(T0)}, {sr(T0)}, {sr(S_W)}\ns_add_u32 {sr(T0)}, {sr(T0)}, {4 * role}')
        self(f's_lshl_b32 {sr(T0)}, {sr(T0)}, 8\ns_add_u32 {sr(T0)}, {sr(T0)}, {STAMP}')
        self(f's_add_u32 s36, s36, {sr(T0)}\ns_addc_u32 s37, s37, 0')
        self('v_lshlrev_b32 v1, 2, v0')
        self(f'global_store_dword v1, {vr(self.vst)}, s[36:37]')


def srd(A, r, ptr, size):
    A(f's_mov_b32 {sr(r)}, {sr(ptr)}\ns_mov_b32 {sr(r + 1)}, {sr(ptr + 1)}\ns_mov_b32 {sr(r + 2)}, {size}\ns_mov_b32 {sr(r + 3)}, 0x20000')


def k4(k):
    return '0' if k == 0 else sr(S_K4 + k if k < 8 else 16 + k)


def fo(n):
    return f'{k4(n // 2)} offen offset:{2048 * (n % 2)}'


def lane_pat(A, d, t, base):
    A(f'v_and_b32 {vr(t)}, 15, v0\nv_lshl_add_u32 {vr(t)}, {vr(t)}, 4, {base}\nv_lshrrev_b32 {vr(d)}, 4, v0\nv_lshl_add_u32 {vr(d)}, {vr(d)}, 9, {vr(t)}')


def swz_consts(A, vq8, vcA, vcB, t):
    A(f'v_lshrrev_b32 {vr(vq8)}, 3, v0')
    A(f'v_lshrrev_b32 {vr(t)}, 4, v0')
    A(f'v_and_b32 {vr(vcA)}, 7, v0')
    A(f'v_xor_b32 {vr(vcA)}, {vr(vcA)}, {vr(t)}')
    A(f'v_lshlrev_b32 {vr(vcA)}, 4, {vr(vcA)}')
    A(f'v_xor_b32 {vr(vcB)}, 64, {vr(vcA)}')


def frag_addr(A, a0, t):
    A(f'v_and_b32 {vr(a0)}, 31, v0')
    A(f'v_bfe_u32 {vr(t)}, v0, 1, 3')
    A(f'v_lshrrev_b32 {vr(a0 + 1)}, 5, v0')
    A(f'v_xor_b32 {vr(t)}, {vr(t)}, {vr(a0 + 1)}')
    A(f'v_lshlrev_b32 {vr(t)}, 4, {vr(t)}')
    A(f'v_lshl_add_u32 {vr(a0)}, {vr(a0)}, 7, {vr(t)}')
    for s in (1, 2, 3):
        A(f'v_xor_b32 {vr(a0 + s)}, {s << 5}, {vr(a0)}')


def first_unit(A):
    A(f's_lshr_b32 {sr(T0)}, {sr(S_CG)}, 2\ns_mul_i32 {sr(S_U0)}, {sr(S_CG)}, 3\ns_sub_u32 {sr(S_U0)}, {sr(S_U0)}, {sr(T0)}')


def frag16_addr(A, a0, t):
    A(f'v_bfe_u32 {vr(t)}, v0, 1, 3\nv_lshrrev_b32 {vr(a0)}, 4, v0\nv_xor_b32 {vr(t)}, {vr(t)}, {vr(a0)}\nv_lshlrev_b32 {vr(t)}, 4, {vr(t)}')
    A(f'v_and_b32 {vr(a0)}, 15, v0\nv_lshl_add_u32 {vr(a0)}, {vr(a0)}, 7, {vr(t)}\nv_xor_b32 {vr(a0 + 1)}, 64, {vr(a0)}')


def wffn_voffs(A, vw, t):
    A(f's_mul_i32 {sr(T0)}, {sr(S_W)}, {16 * 2752}\ns_lshl_b32 {sr(T1)}, {sr(S_U0)}, 6\ns_add_u32 {sr(T0)}, {sr(T0)}, {sr(T1)}')
    A(f's_and_b32 {sr(T1)}, {sr(S_CG)}, 3\ns_cmp_eq_u32 {sr(T1)}, 3\ns_cselect_b32 {sr(T1)}, 8, 12\ns_cmp_eq_u32 {sr(S_CG)}, 15\ns_cselect_b32 {sr(T1)}, 4, {sr(T1)}')
    A(f'v_mov_b32 {vr(t + 3)}, {OOB}')
    for j in range(3):
        A(f'v_add_u32 {vr(t)}, {64 * j}, v0')
        A(f'v_mul_u32_u24 {vr(t + 1)}, 171, {vr(t)}')
        A(f'v_lshrrev_b32 {vr(t + 1)}, 11, {vr(t + 1)}')
        A(f'v_mul_u32_u24 {vr(t + 2)}, 12, {vr(t + 1)}')
        A(f'v_sub_u32 {vr(t)}, {vr(t)}, {vr(t + 2)}')
        A(f'v_cmp_gt_i32 vcc, {sr(T1)}, {vr(t)}')
        A(f'v_lshrrev_b32 {vr(t + 2)}, 2, {vr(t + 1)}\nv_and_b32 {vr(t + 2)}, 2, {vr(t + 2)}\nv_xor_b32 {vr(t)}, {vr(t)}, {vr(t + 2)}')
        A(f'v_mul_u32_u24 {vr(t + 1)}, 2752, {vr(t + 1)}')
        A(f'v_lshl_add_u32 {vr(t + 1)}, {vr(t)}, 4, {vr(t + 1)}')
        if j:
            A(f'v_subrev_u32 {vr(t + 1)}, {1024 * j}, {vr(t + 1)}')
        A(f'v_add_u32 {vr(t + 1)}, {sr(T0)}, {vr(t + 1)}')
        A(f'v_cndmask_b32 {vr(vw + j)}, {vr(t + 3)}, {vr(t + 1)}, vcc')


def issue_a(A, b, vx, vb):
    sl = (b % 4) * SLOT
    A(f's_add_u32 m0, {sr(S_MB)}, {sl}')
    if b:
        pass
    A(f's_bfe_u32 {sr(S_OA)}, {sr(S_RHO)}, {(3 << 16) | (4 * b)}\ns_lshl_b32 {sr(S_OA)}, {sr(S_OA)}, 7')
    for j in range(4):
        A.vmem(f'buffer_load_dwordx4 {vr(vx + j)}, {sr(R_X, 4)}, {sr(S_OA)} offen offset:{1024 * j} {A.cfg.fx} lds', f'blk{b}')
    A(f's_add_u32 m0, {sr(S_MB2)}, {sl + 16384}\ns_nop 0')
    for j in range(2):
        A.vmem(f'buffer_load_dwordx4 {vr(vb + j)}, {sr(R_B, 4)}, {sr(S_OA)} offen offset:{1024 * j} {A.cfg.fb} lds', f'blk{b}')


def issue_w(A, b, vw, smb):
    sl = WSLOT[b - 8] * SLOT
    A(f's_add_u32 m0, {sr(smb)}, {sl}')
    A(f's_bfe_u32 {sr(S_OW)}, {sr(S_RHO)}, {(3 << 16) | (4 * (b - 8))}\ns_mul_i32 {sr(S_OW)}, {sr(S_OW)}, {64 * 2752}')
    for j in range(3):
        A.vmem(f'buffer_load_dwordx4 {vr(vw + j)}, {sr(R_WG, 4)}, {sr(S_OW)} offen offset:{1024 * j} {A.cfg.fw} lds', f'blk{b}')
    A(f's_add_u32 m0, {sr(smb)}, {sl + 12288}\ns_nop 0')
    for j in range(3):
        A.vmem(f'buffer_load_dwordx4 {vr(vw + j)}, {sr(R_WU, 4)}, {sr(S_OW)} offen offset:{1024 * j} {A.cfg.fw} lds', f'blk{b}')


def spin(A, name, loads, check, cfg, extra=None):
    A(f's_mov_b32 {sr(S_CNT)}, {cfg.spin}')
    A.label(f'L_{name}_chk')
    check()
    A(f's_cbranch_scc1 L_{name}_ok')
    A(f's_sub_u32 {sr(S_CNT)}, {sr(S_CNT)}, 1\ns_cmp_eq_u32 {sr(S_CNT)}, 0\ns_cbranch_scc1 L_{name}_ok')
    saved = list(A.vm)
    loads()
    A('s_waitcnt vmcnt(0)')
    A.vm = saved
    if extra:
        lg = list(A.lg)
        extra()
        A.lg = lg
    A(f's_branch L_{name}_chk')
    A.label(f'L_{name}_ok')


G1, G2, G3 = 0, 16, 32
E_W4, E_W5, E_W6, E_W7, E_WD = 4, 5, 6, 7, 8
E_EX, E_EX2, E_SP, E_SF = 1, 2, 3, 4


def prog_addrs(A, vw, vrd, own):
    A(f's_lshl2_add_u32 {sr(T0)}, {sr(S_W)}, {X_CNT + own}\nv_mov_b32 {vr(vw)}, {sr(T0)}')
    A(f'v_and_b32 {vr(vrd)}, 3, v0\nv_lshlrev_b32 {vr(vrd)}, 2, {vr(vrd)}\nv_add_u32 {vr(vrd)}, {X_CNT}, {vr(vrd)}')


def post(A, vw, vt, val, off=0):
    A(f'v_mov_b32 {vr(vt)}, {val}')
    if A.cfg.post_exec:
        A('s_mov_b64 exec, 1')
    A.ds(f'ds_write_b32 {vr(vw)}, {vr(vt)} offset:{off}')
    if A.cfg.post_exec:
        A('s_mov_b64 exec, -1')


def await_(A, name, vrd, vt, off, val):
    A.label(f'L_{name}')
    A.ds(f'ds_read_b32 {vr(vt)}, {vr(vrd)} offset:{off}')
    Stream.wait_lg_all(A)
    A(f'v_cmp_gt_u32 vcc, {val}, {vr(vt)}\ns_cbranch_vccnz L_{name}')
    A.flush()


def rho0(A, cfg, t):
    if not cfg.rot:
        A(f's_mov_b32 {sr(t)}, 0')
        return
    assert cfg.mapping == '84'
    if cfg.rotx:
        A(f's_lshl1_add_u32 {sr(t)}, {sr(S_CG)}, {sr(S_RT)}')
    else:
        A(f's_and_b32 {sr(t)}, s2, 6\ns_add_u32 {sr(t)}, {sr(t)}, {sr(S_RT)}')
    A(f's_and_b32 {sr(t)}, {sr(t)}, 7')


def rho_pre(A, cfg, d, t):
    def pack(o):
        return sum(v << (4 * i) for i, v in enumerate(o))
    tabs = [[0, 1, 2, 3, 5, 4, 6, 7], [0, 2, 1, 3, 4, 6, 5, 7], [0, 1, 3, 2, 4, 5, 7, 6], [0, 1, 2, 4, 3, 5, 6, 7]]
    if cfg.swap:
        A(f's_and_b32 {sr(t)}, {sr(S_CG)}, 3\ns_mov_b32 {sr(d)}, {pack(tabs[0])}')
        for j in (1, 2, 3):
            A(f's_cmp_eq_u32 {sr(t)}, {j}\ns_cselect_b32 {sr(d)}, {pack(tabs[j])}, {sr(d)}')
    else:
        A(f's_mov_b32 {sr(d)}, 0x76543210')
    rho0(A, cfg, t)
    A(f's_mul_i32 {sr(t)}, {sr(t)}, 0x11111111\ns_add_u32 {sr(d)}, {sr(d)}, {sr(t)}')


def spoll(A, name, cfg, loads, extra=None, mode='both'):
    SP = 56

    def issue():
        for i, (b, o) in enumerate(loads):
            A(f's_load_dword {sr(SP + i if i < 8 else 76 + i)}, {sr(b, 2)}, {o} glc')
    if mode == 'issue':
        issue()
        return
    A(f's_mov_b32 {sr(S_CNT)}, {cfg.spin}')
    if mode == 'check':
        A(f's_branch L_{name}_wait')
    A.label(f'L_{name}_try')
    issue()
    A.label(f'L_{name}_wait')
    Stream.wait_lg_all(A)
    for i in range(len(loads)):
        r = SP + i if i < 8 else 76 + i
        A(f's_xor_b32 {sr(r)}, {sr(r)}, {sr(S_TAG)}')
        if i:
            A(f's_or_b32 {sr(SP)}, {sr(SP)}, {sr(r)}')
    A(f's_cbranch_scc0 L_{name}_ok')
    if extra:
        saved = list(A.vm), list(A.lg)
        extra()
        A.vm, A.lg = saved
    A(f's_sub_u32 {sr(S_CNT)}, {sr(S_CNT)}, 1\ns_cmp_lg_u32 {sr(S_CNT)}, 0\ns_cbranch_scc1 L_{name}_try')
    A.label(f'L_{name}_ok')
    A.flush()


def flag_addr(A, d, base):
    A(f's_lshr_b32 {sr(T0)}, {sr(S_W)}, 1\ns_lshl1_add_u32 {sr(T1)}, {sr(S_RT)}, {sr(T0)}\ns_mul_i32 {sr(T1)}, {sr(T1)}, {FST}')
    A(f's_and_b32 {sr(T0)}, {sr(S_W)}, 1\ns_lshl1_add_u32 {sr(T0)}, {sr(S_CG)}, {sr(T0)}\ns_lshl_b32 {sr(T0)}, {sr(T0)}, 8\ns_add_u32 {sr(T1)}, {sr(T0)}, {sr(T1)}')
    A(f's_add_u32 {sr(d)}, {sr(T1)}, {base}')


def wd_voffs(A, VD, TMP):
    A(f'v_lshrrev_b32 {vr(TMP)}, 3, v0\nv_and_b32 {vr(TMP + 1)}, 6, {vr(TMP)}')
    A(f'v_and_b32 {vr(TMP + 2)}, 7, v0\nv_xor_b32 {vr(TMP + 1)}, {vr(TMP + 1)}, {vr(TMP + 2)}\nv_lshlrev_b32 {vr(TMP + 1)}, 4, {vr(TMP + 1)}')
    A(f'v_lshl_add_u32 {vr(TMP)}, {vr(TMP)}, 10, {vr(TMP + 1)}')
    A(f's_mul_i32 {sr(T0)}, {sr(S_W)}, {352 * 1024}\ns_lshl_b32 {sr(T1)}, {sr(S_N2)}, 7\ns_add_u32 {sr(T0)}, {sr(T0)}, {sr(T1)}')
    A(f'v_add_u32 {vr(VD)}, {sr(T0)}, {vr(TMP)}')
    for j in (1, 2, 3):
        A(f'v_add_u32 {vr(VD + j)}, {7168 * j}, {vr(VD)}')


def dma_wd(A, p, VD, smb, r):
    A(f's_add_u32 m0, {sr(smb)}, {(p % 6) * 16384}')
    unit_off(A, S_OW, p, 15)
    for j in range(4):
        A.vmem(f'buffer_load_dwordx4 {vr(VD + j)}, {sr(r, 4)}, {sr(S_OW)} offen offset:{1024 * j} lds', f'wd{p}')


def act_voffs(A, VA, t, first):
    for ap in range(4):
        A(f's_xor_b32 {sr(T1)}, {sr(S_W)}, {ap}\ns_lshr_b32 {sr(T2)}, {sr(T1)}, 1\ns_lshl1_add_u32 {sr(T2)}, {sr(S_M2)}, {sr(T2)}\ns_mul_i32 {sr(T2)}, {sr(T2)}, {KSP}')
        A(f's_and_b32 {sr(T1)}, {sr(T1)}, 1\ns_add_u32 {sr(T2)}, {sr(T2)}, {sr(T1)}\ns_add_u32 {sr(T2)}, {sr(T2)}, {sr(first)}\ns_lshl_b32 {sr(T2)}, {sr(T2)}, 11')
        if ap == 0:
            lane_pat(A, t, VA, 0)
        A(f'v_add_u32 {vr(VA + ap)}, {sr(T2)}, {vr(t)}')


def row0(A, d, t):
    A(f'v_bfe_u32 {vr(d)}, v0, 4, 1\nv_lshrrev_b32 {vr(t)}, 5, v0\nv_lshlrev_b32 {vr(t)}, 2, {vr(t)}\nv_lshl_add_u32 {vr(d)}, {vr(d)}, 4, {vr(t)}')


def tile_row(A, d):
    A(f's_lshr_b32 {sr(d)}, {sr(S_W)}, 1\ns_lshl1_add_u32 {sr(d)}, {sr(S_M2)}, {sr(d)}\ns_and_b32 {sr(T3)}, {sr(S_W)}, 1\ns_lshl2_add_u32 {sr(d)}, {sr(d)}, {sr(T3)}\ns_lshl_b32 {sr(d)}, {sr(d)}, 3')


def out_voff(A, RO, t, half):
    row0(A, RO, t)
    tile_row(A, T0)
    A(f's_lshl_b32 {sr(T0)}, {sr(T0)}, 11\ns_xor_b32 {sr(T1)}, {sr(S_KAP)}, {half}\ns_lshl1_add_u32 {sr(T1)}, {sr(S_N2)}, {sr(T1)}\ns_lshl_b32 {sr(T1)}, {sr(T1)}, 7\ns_add_u32 {sr(T0)}, {sr(T0)}, {sr(T1)}')
    A(f'v_and_b32 {vr(t)}, 15, v0\nv_lshl_add_u32 {vr(t)}, {vr(t)}, 2, {sr(T0)}\nv_lshl_add_u32 {vr(RO)}, {vr(RO)}, 11, {vr(t)}')


def poll_base(A, base):
    A(f's_mul_i32 {sr(T0)}, {sr(S_M2)}, {FST}\ns_lshl_b32 {sr(T1)}, {sr(S_W)}, 11\ns_add_u32 {sr(T0)}, {sr(T0)}, {sr(T1)}\ns_add_u32 {sr(T0)}, {sr(T0)}, {base}')
    A(f's_add_u32 s4, s36, {sr(T0)}\ns_addc_u32 s5, s37, 0')


FL8 = [(4, 256 * j) for j in range(8)]


def mf16(A, d, a, b, first):
    A(f'v_mfma_f32_16x16x32_bf16 {vr(d, 4)}, {vr(a, 4)}, {vr(b, 4)}, {"0" if first else vr(d, 4)}')


def mfma(A, d, a, b, first):
    A(f'v_mfma_f32_32x32x16_bf16 {vr(d, 16)}, {vr(a, 4)}, {vr(b, 4)}, {"0" if first else vr(d, 16)}')


def gen_entry(cfg):
    A = Stream()
    A('s_load_dwordx16 s[4:19], s[0:1], 0\ns_load_dwordx16 s[20:35], s[0:1], 64\ns_load_dwordx2 s[36:37], s[0:1], 128')
    A('s_cmp_ge_u32 s2, 256\ns_cbranch_scc1 L_end')
    if cfg.stamps:
        A('s_memrealtime s[88:89]')
    A('s_lshr_b32 s82, s2, 3')
    if cfg.code_pf:
        A('s_getpc_b64 s[84:85]')
        A.label('L_pc')
        A(f's_and_b32 s83, s82, 3\ns_mul_i32 s83, s83, {56 * 128}\nv_min_u32 v1, 55, v0\nv_lshl_add_u32 v1, v1, 7, s83')
        A(f'v_min_u32 v1, L_codeend-L_pc-4, v1')
        A('global_load_dword v255, v1, s[84:85]')
    A('v_lshrrev_b32 v1, 6, v0\nv_and_b32 v0, 63, v0\nv_readfirstlane_b32 s3, v1')
    if cfg.mapping == '48':
        A(f's_bfe_u32 {sr(S_RT)}, s2, 0x20001\ns_lshl_b32 {sr(S_RT)}, {sr(S_RT)}, 2\ns_and_b32 s83, s82, 3\ns_add_u32 {sr(S_RT)}, {sr(S_RT)}, s83')
        A(f's_and_b32 {sr(S_CG)}, s2, 1\ns_lshl_b32 {sr(S_CG)}, {sr(S_CG)}, 3\ns_lshr_b32 s83, s82, 2\ns_add_u32 {sr(S_CG)}, {sr(S_CG)}, s83')
    else:
        A(f's_and_b32 {sr(S_RT)}, s2, 1\ns_and_b32 s83, s82, 7\ns_lshl3_add_u32 {sr(S_RT)}, {sr(S_RT)}, s83')
        A(f's_and_b32 {sr(S_CG)}, s2, 6\ns_lshr_b32 s83, s82, 3\ns_lshl1_add_u32 {sr(S_CG)}, {sr(S_CG)}, s83')
    A(f's_and_b32 {sr(S_W)}, s3, 3')
    A('s_cmp_ge_u32 s3, 4\ns_cbranch_scc1 L_p2')
    return A


def map2(A, cfg):
    A('s_and_b32 s81, s2, 7\ns_lshr_b32 s3, s2, 3')
    if cfg.map2 == '48':
        A(f's_lshl_b32 {sr(S_M2)}, s81, 2\ns_lshr_b32 s81, s3, 3\ns_add_u32 {sr(S_M2)}, {sr(S_M2)}, s81\ns_and_b32 {sr(S_N2)}, s3, 7')
    else:
        A(f's_lshr_b32 {sr(S_M2)}, s81, 1\ns_lshl_b32 {sr(S_M2)}, {sr(S_M2)}, 3\ns_and_b32 {sr(S_N2)}, s3, 7\ns_add_u32 {sr(S_M2)}, {sr(S_M2)}, {sr(S_N2)}')
        A(f's_and_b32 {sr(S_N2)}, s81, 1\ns_lshl_b32 {sr(S_N2)}, {sr(S_N2)}, 2\ns_lshr_b32 s3, s3, 3\ns_add_u32 {sr(S_N2)}, {sr(S_N2)}, s3')
    if cfg.rot2:
        if cfg.rotj == 'm':
            A(f's_and_b32 s81, {sr(S_M2)}, 7')
        elif cfg.rotj == 'x':
            A(f's_lshr_b32 s81, {sr(S_M2)}, 2')
        A(f's_and_b32 {sr(S_ROT)}, s81, 3\ns_lshr_b32 s3, s81, 2\ns_mov_b32 {sr(S_KAP)}, s3')
        if cfg.rotj == 'm' and cfg.map2 == '48':
            A(f's_lshl1_add_u32 s81, {sr(S_ROT)}, s3')
        A(f's_mul_i32 s3, s81, 11\ns_lshr_b32 {sr(S_UR)}, s3, 3')
    else:
        A(f's_mov_b32 {sr(S_ROT)}, 0\ns_mov_b32 {sr(S_UR)}, 0\ns_mov_b32 {sr(S_KAP)}, 0')


def unit_off(A, d, p, sh):
    A(f's_add_u32 {sr(d)}, {sr(S_UR)}, {p}\ns_sub_u32 {sr(T0)}, {sr(d)}, 11\ns_cselect_b32 {sr(d)}, {sr(d)}, {sr(T0)}\ns_lshl_b32 {sr(d)}, {sr(d)}, {sh}')


def load_tag(A):
    if A.cfg.stamps:
        A('s_mov_b32 s89, s88')
    A(f's_add_u32 {sr(T2)}, s36, {GW}\ns_addc_u32 {sr(T3)}, s37, 0')
    A(f's_load_dword {sr(S_TAG)}, {sr(T2, 2)}, 0')


def consts(A):
    for k in range(1, 3):
        A(f's_mov_b32 {k4(k)}, {4096 * k}')


def gen_p1(cfg):
    A = WS(cfg, 7)
    TB = 0
    VPW, VPR, VPT = 4, 5, 6
    WB = 8
    ACC = 32
    XR = 128
    VX, VB, VW, AX, TMP = 32, 36, 38, 44, 52
    D = cfg.D
    if cfg.stamps:
        A('v_mov_b32 v7, 0')
    A.stamp('start')
    swz_consts(A, TMP, TMP + 1, TMP + 2, TMP + 3)
    A(f's_lshl2_add_u32 {sr(T1)}, {sr(S_RT)}, {sr(S_W)}\ns_lshl_b32 {sr(T1)}, {sr(T1)}, 15')
    A(f'v_lshrrev_b32 {vr(TMP + 5)}, 5, v0')
    A(f'v_and_b32 {vr(TMP + 4)}, 3, {vr(TMP)}')
    A(f'v_lshl_add_u32 {vr(TMP + 3)}, {vr(TMP + 5)}, 4, {vr(TMP + 4)}')
    A(f'v_lshl_add_u32 {vr(TMP + 3)}, {vr(TMP + 3)}, 10, {sr(T1)}')
    A(f'v_add_u32 {vr(VX)}, {vr(TMP + 3)}, {vr(TMP + 1)}')
    A(f'v_add_u32 {vr(VX + 1)}, {vr(TMP + 3)}, {vr(TMP + 2)}')
    A(f'v_add_u32 {vr(VX + 2)}, {2 * 3072}, {vr(VX)}')
    A(f'v_add_u32 {vr(VX + 3)}, {3 * 3072}, {vr(VX + 1)}')
    A(f'v_add_u32 {vr(VX + 1)}, 3072, {vr(VX + 1)}')
    A(f's_lshl_b32 {sr(S_MB)}, {sr(S_W)}, 12\ns_mov_b32 m0, {sr(S_MB)}')
    rho0(A, cfg, S_OA)
    A(f's_lshl_b32 {sr(S_OA)}, {sr(S_OA)}, 7')
    A(f's_mov_b32 {sr(R_X + 2)}, {2048 * 1024}\ns_mov_b32 {sr(R_X + 3)}, 0x20000')
    A.wait_lg_all()
    A(f's_mov_b32 {sr(R_X)}, s4\ns_mov_b32 {sr(R_X + 1)}, s5')
    A.stamp('karg')
    for j in range(4):
        A.vmem(f'buffer_load_dwordx4 {vr(VX + j)}, {sr(R_X, 4)}, {sr(S_OA)} offen offset:{1024 * j} {A.cfg.fx} lds', 'blk0')
    A(f's_and_b32 {sr(T0)}, {sr(S_W)}, 1\ns_lshl1_add_u32 {sr(T1)}, {sr(S_CG)}, {sr(T0)}\ns_lshl_b32 {sr(T1)}, {sr(T1)}, 14')
    A(f'v_lshl_add_u32 {vr(TMP + 3)}, {vr(TMP + 5)}, 3, {vr(TMP + 4)}')
    A(f'v_lshl_add_u32 {vr(TMP + 3)}, {vr(TMP + 3)}, 10, {sr(T1)}')
    A(f'v_add_u32 {vr(VB)}, {vr(TMP + 3)}, {vr(TMP + 1)}')
    A(f'v_add_u32 {vr(VB + 1)}, {vr(TMP + 3)}, {vr(TMP + 2)}')
    A(f'v_add_u32 {vr(VB + 1)}, 3072, {vr(VB + 1)}')
    A(f's_lshl_b32 {sr(S_MB2)}, {sr(S_W)}, 11\ns_add_u32 m0, {sr(S_MB2)}, 16384')
    A(f's_cmp_ge_u32 {sr(S_W)}, 2')
    A(f's_cselect_b32 {sr(R_B)}, s12, s10\ns_cselect_b32 {sr(R_B + 1)}, s13, s11\ns_mov_b32 {sr(R_B + 2)}, {512 * 1024}\ns_mov_b32 {sr(R_B + 3)}, 0x20000')
    for j in range(2):
        A.vmem(f'buffer_load_dwordx4 {vr(VB + j)}, {sr(R_B, 4)}, {sr(S_OA)} offen offset:{1024 * j} {A.cfg.fb} lds', 'blk0')
    rho_pre(A, cfg, S_RHO, T0)
    for b in range(1, D):
        issue_a(A, b, VX, VB)
        if b == 1:
            A(f's_lshl_b32 {sr(T0)}, {sr(S_CG)}, 6\ns_cmp_eq_u32 {sr(S_W)}, 3\ns_cselect_b32 {sr(T0)}, {OOB}, {sr(T0)}')
            A(f'v_and_b32 {vr(TMP + 5)}, 15, v0\nv_lshl_add_u32 {vr(TMP + 5)}, {vr(TMP + 5)}, 2, {sr(T0)}')
            A(f's_mov_b32 {sr(R_E + 2)}, 1024\ns_mov_b32 {sr(R_E + 3)}, 0x20000')
            A(f's_cmp_ge_u32 {sr(S_W)}, 2\ns_cselect_b32 {sr(R_E)}, s18, s6\ns_cselect_b32 {sr(R_E + 1)}, s19, s7')
            A(f's_cmp_eq_u32 {sr(S_W)}, 1\ns_cselect_b32 {sr(R_E)}, s8, {sr(R_E)}\ns_cselect_b32 {sr(R_E + 1)}, s9, {sr(R_E + 1)}')
            A(f's_lshl_b32 {sr(T0)}, {sr(S_W)}, 8\ns_add_u32 m0, {sr(T0)}, {X_PAR}\ns_nop 0')
            A.vmem(f'buffer_load_dword {vr(TMP + 5)}, {sr(R_E, 4)}, 0 offen lds', 'blk1')
            load_tag(A)
            srd(A, R_WG, 24, 512 * 2752)
            srd(A, R_WU, 26, 512 * 2752)
            srd(A, R_WS, 36, WS_SIZE)
            srd(A, R_E, 28, 1376 * 1024)
            srd(A, R_O, 32, 2048 * 2048)
            consts(A)
            first_unit(A)
            wffn_voffs(A, VW, TMP)
            frag16_addr(A, AX, TMP)
            for s in range(2):
                A(f'v_add_u32 {vr(AX + s)}, {sr(S_MB)}, {vr(AX + s)}')
                A(f'v_add_u32 {vr(AX + 2 + s)}, {2 * SLOT}, {vr(AX + s)}')
            prog_addrs(A, VPW, VPR, G1)
            A(f'v_lshrrev_b32 {vr(TMP)}, 4, v0\nv_bfe_u32 {vr(TMP + 1)}, v0, 2, 2\nv_lshl_add_u32 {vr(TMP)}, {vr(TMP)}, 3, {vr(TMP + 1)}')
            A(f'v_mul_u32_u24 {vr(TMP)}, 192, {vr(TMP)}\nv_bfe_u32 {vr(TMP + 1)}, v0, 4, 1\nv_lshl_add_u32 {vr(TMP)}, {vr(TMP + 1)}, 5, {vr(TMP)}')
            A(f'v_and_b32 {vr(TMP + 1)}, 3, v0\nv_lshl_add_u32 {vr(TB)}, {vr(TMP + 1)}, 3, {vr(TMP)}')
            A(f'v_xor_b32 {vr(TB + 1)}, 32, {vr(TB)}\nv_add_u32 {vr(TB + 2)}, {4 * SLOT}, {vr(TB)}\nv_add_u32 {vr(TB + 3)}, {4 * SLOT}, {vr(TB + 1)}')
            A(f's_mul_i32 {sr(S_C1)}, {sr(S_W)}, 3072')
            map2(A, cfg)
            A(f's_lshr_b32 {sr(S_STAG)}, s2, 3\ns_and_b32 {sr(T0)}, s2, 1\ns_mul_i32 {sr(T0)}, {sr(T0)}, {cfg.nstag // 2}\ns_add_u32 {sr(S_STAG)}, {sr(S_STAG)}, {sr(T0)}')
            A(f's_and_b32 {sr(S_STAG)}, {sr(S_STAG)}, {cfg.nstag - 1}')
            A(f's_lshl2_add_u32 {sr(T1)}, {sr(S_RT)}, {sr(S_W)}\ns_mul_i32 {sr(T1)}, {sr(T1)}, {KSP}')
            A(f's_lshl1_add_u32 {sr(T1)}, {sr(S_U0)}, {sr(T1)}\ns_add_u32 {sr(T1)}, {sr(T1)}, 64\ns_lshl_b32 {sr(S_GST)}, {sr(T1)}, 11')
            flag_addr(A, S_GFL, GF)
            poll_base(A, GF)
    A.stamp('issued0')
    A.wait_lg_all()
    A(f's_add_u32 {sr(S_TAG)}, {sr(S_TAG)}, 0x9E3779B1')
    for i in range(8):
        A.wait_vm(f'blk{i}')
        A.wait_lg_all()
        A('s_barrier')
        A.stamp(f'A{i}')
        for kk in range(2):
            for a in range(2):
                A.ds(f'ds_read_b128 {vr(XR + 16 * i + 8 * kk + 4 * a, 4)}, {vr(AX + 2 * ((i >> 1) & 1) + kk)} offset:{(i % 2) * SLOT + 2048 * a}', 'x')
        b = i + D
        if b < 8:
            issue_a(A, b, VX, VB)
        elif b + 1 - 8 < cfg.p2w:
            issue_w(A, b + 1, VW, S_C1)
        if cfg.stag0 <= i < cfg.stag0 + cfg.nstag:
            A(f's_cmp_lg_u32 {sr(S_STAG)}, {i - cfg.stag0}\ns_cbranch_scc1 L_now0_{i}')
            saved = list(A.vm)
            issue_w(A, 8, VW, S_C1)
            A.vm = saved
            A.label(f'L_now0_{i}')
    assert cfg.stag0 + cfg.nstag <= 8 - D
    A.wait_lg_all()
    if cfg.p1b:
        A(f's_setprio {cfg.p1b}')
    if cfg.stamps:
        A('s_mov_b32 s13, 0')

    def need(b):
        return (G1, b) if b < cfg.p2w else (G2, b)

    def rd(n, r):
        b, kk, j = n // 24, (n // 12) % 2, n % 12
        u, mat, fh = j >> 2, (j >> 1) & 1, j & 1
        if n % 24 == 0 and r == 0:
            if b == 0:
                A(f's_waitcnt vmcnt({len(A.vm)})')
                A('s_barrier')
            else:
                A(f's_cbranch_vccnz L_slow{b}')
                A.label(f'L_back{b}')
            if b in (0, 2, 4, 5, 7):
                A.stamp(f'B{b}')
        slot = WSLOT[b]
        off = (slot % 2) * SLOT + mat * 12288 + (32 * kk + 4 * r) * 192 + u * 64
        A.ds(f'ds_read_b64_tr_b16 {vr(WB + 4 * (n % 6) + 2 * r, 2)}, {vr(TB + 2 * (slot // 4) + fh)} offset:{off}', f'w{n}')
    for n in range(5):
        rd(n, 0)
        rd(n, 1)
    for n in range(192):
        ks, j = n // 12, n % 12
        b, m = n // 24, n % 24
        acc = ACC + 32 * (j >> 2) + 16 * ((j >> 1) & 1) + 4 * (j & 1)
        if n % 2 == 0:
            A.wait_lg(f'w{n + 1}')
        mf16(A, acc, WB + 4 * (n % 6), XR + 8 * ks, ks == 0)
        if n + 5 < 192:
            rd(n + 5, 0)
        if m == cfg.post_at:
            A(f'v_mov_b32 {vr(VPT)}, {b + 1}')
        elif m == cfg.post_at + 1:
            A.wait_vm(f'blk{8 + b + 1}')
        elif m == cfg.post_at + 2:
            A.ds(f'ds_write_b32 {vr(VPW)}, {vr(VPT)}')
        elif m == cfg.peek_at and b < 7:
            A.ds(f'ds_read_b32 {vr(VPT)}, {vr(VPR)} offset:{need(b + 1)[0]}', 'pg')
        elif m == 17 and b < 7:
            A.wait_lg('pg')
            A(f'v_cmp_gt_u32 vcc, {need(b + 1)[1]}, {vr(VPT)}')
        mf16(A, acc + 8, WB + 4 * (n % 6), XR + 8 * ks + 4, ks == 0)
        if n + 5 < 192:
            rd(n + 5, 1)
    post(A, VPW, VPT, 9)
    if cfg.p1b:
        A('s_setprio 0')
    A.stamp('E')
    if cfg.stamps:
        A('v_writelane_b32 v7, s13, 61')
    VST = 1
    A('v_mbcnt_lo_u32_b32 v0, -1, 0\nv_mbcnt_hi_u32_b32 v0, -1, v0')
    lane_pat(A, VST, 2, sr(S_GST))
    A(f's_mov_b32 {sr(S_C0)}, {NLOG2E}\ns_mov_b32 {sr(S_C0 + 1)}, {NLOG2E}\ns_mov_b32 s8, 1.0\ns_mov_b32 s9, 1.0')
    for u in range(3):
        G, U, P = ACC + 32 * u, ACC + 32 * u + 16, WB + 8 * u
        if u == 2:
            A(f's_and_b32 {sr(T0)}, {sr(S_CG)}, 3\ns_cmp_eq_u32 {sr(T0)}, 3\ns_cbranch_scc1 L_no_u2')
        for r in range(0, 16, 2):
            A(f'v_pk_mul_f32 {vr(U + r, 2)}, {vr(G + r, 2)}, {vr(U + r, 2)}')
        for r in range(0, 16, 2):
            A(f'v_pk_mul_f32 {vr(G + r, 2)}, {vr(G + r, 2)}, {sr(S_C0, 2)}')
        for r in range(16):
            A(f'v_exp_f32 {vr(G + r)}, {vr(G + r)}')
        for r in range(0, 16, 2):
            A(f'v_pk_add_f32 {vr(G + r, 2)}, {vr(G + r, 2)}, s[8:9]')
        for r in range(16):
            A(f'v_rcp_f32 {vr(G + r)}, {vr(G + r)}')
        for r in range(0, 16, 2):
            A(f'v_pk_mul_f32 {vr(U + r, 2)}, {vr(G + r, 2)}, {vr(U + r, 2)}')
        for r in range(0, 16, 2):
            A(f'v_cvt_pk_bf16_f32 {vr(P + r // 2)}, {vr(U + r)}, {vr(U + r + 1)}')
        if cfg.fine:
            A.stamp(f'u{u}')
        if cfg.prio:
            A('s_setprio 3')
        for n in range(2 * u, 2 * u + 2):
            A.vmem(f'buffer_store_dwordx4 {vr(WB + 4 * n, 4)}, {vr(VST)}, {sr(R_WS, 4)}, {fo(n)} sc1', 'gu')
        if cfg.prio:
            A('s_setprio 0')
    A.label('L_no_u2')
    A.stamp('epi')
    A(f's_cmp_eq_u32 {sr(S_CG)}, 15\ns_cbranch_scc1 L_gate_ld')
    A.label('L_gate_ld_back')
    ACC2 = 32
    RW, RR, RF, RO, VA, VD, AW, TMP = 96, 97, 100, 101, 102, 106, 110, 118
    A(f's_add_u32 {sr(S_MB)}, {sr(S_MB)}, {P1B}')
    wd_voffs(A, VD, TMP)
    A(f's_mul_i32 {sr(T0)}, {sr(S_W)}, 22\ns_add_u32 {sr(T0)}, {sr(T0)}, 64')
    act_voffs(A, VA, TMP, T0)
    A(f'v_lshl_add_u32 {vr(RW)}, v0, 4, {sr(S_MB)}')
    for a in (1, 2, 3):
        A(f'v_xor_b32 {vr(RR + a - 1)}, {a << 12}, {vr(RW)}')
    A(f'v_subrev_u32 {vr(RF)}, {P1B - P2B}, {vr(RR)}')
    out_voff(A, RO, TMP, 0)
    A(f'v_lshrrev_b32 {vr(TMP)}, 2, v0\nv_bfe_u32 {vr(TMP + 1)}, v0, 3, 2\ns_lshl_b32 {sr(T0)}, {sr(S_KAP)}, 1\nv_xor_b32 {vr(TMP + 1)}, {sr(T0)}, {vr(TMP + 1)}')
    A(f'v_lshlrev_b32 {vr(TMP + 1)}, 5, {vr(TMP + 1)}\nv_lshl_add_u32 {vr(TMP)}, {vr(TMP)}, 7, {vr(TMP + 1)}')
    A(f'v_and_b32 {vr(TMP + 1)}, 3, v0\nv_lshl_add_u32 {vr(TMP)}, {vr(TMP + 1)}, 3, {vr(TMP)}\nv_add_u32 {vr(AW)}, {sr(S_MB)}, {vr(TMP)}')
    A(f'v_mov_b32 v2, {sr(S_TAG)}\nv_lshlrev_b32 v3, 2, v0')
    A.wait_vm_all()
    if cfg.prio:
        A('s_setprio 3')
    A('s_mov_b32 exec_hi, 0')
    A.vmem(f'buffer_store_dword v2, v3, {sr(R_WS, 4)}, {sr(S_GFL)} offen sc1', 'fl')
    A('s_mov_b64 exec, -1')
    if cfg.prio:
        A('s_setprio 0')
    A.stamp('guflag')
    A(f's_cmp_eq_u32 {sr(S_CG)}, 15\ns_cbranch_scc1 L_gate')
    A.label('L_gate_back')
    AW0 = AW
    AW = 8
    for n in range(4):
        A(f'v_xor_b32 {vr(AW + n)}, {n << 5}, {vr(AW0)}')
        A(f'v_add_u32 {vr(AW + 4 + n)}, 0x10000, {vr(AW + n)}')
    WR, NR = 112, cfg.wres
    AB = WR + 16 * NR
    NB = (256 - AB) // 4
    ORD = (1, 2, 3, 0)

    def ld_act(f):
        p, ap = f // 4, ORD[f % 4]
        if f % 4 == 0:
            unit_off(A, S_OA, p, 12)
        A.vmem(f'buffer_load_dwordx4 {vr(AB + 4 * (f % NB), 4)}, {vr(VA + ap)}, {sr(R_WS, 4)}, {sr(S_OA)} offen sc1', f'act{f}')

    def rd_wd(p, ns=range(4)):
        A.wait_vm(f'wd{p}')
        for n in ns:
            for r in range(2):
                off = (p % 6) * 16384 + r * 2048
                A.ds(f'ds_read_b64_tr_b16 {vr(WR + 16 * (p % NR) + 4 * n + 2 * r, 2)}, {vr(AW + n + 4 * (off >> 16))} offset:{off & 0xffff}', f'wf{p}')
    await_(A, 'cntW', VPW, VPT, G2 - G1, E_WD)
    A.stamp('wdok')
    for p in range(NR):
        rd_wd(p, (0, 1))
        if p:
            A.wait_lg(f'wf{p - 1}')
        rd_wd(p, (2, 3))
    A.wait_lg_all()
    NP = min(cfg.npre, NR)
    if NP == 0:
        spoll(A, 'gu', cfg, FL8, mode='issue')
    for p in range(NP):
        if p == max(0, NP - cfg.gpl):
            spoll(A, 'gu', cfg, FL8, mode='issue')
        dma_wd(A, 6 + p, VD, S_MB, R_E)
    A.stamp('wres')
    spoll(A, 'gu', cfg, FL8, mode='check')
    A.stamp('gupoll')
    nf = 0
    while nf < NB:
        ld_act(nf)
        nf += 1
    if cfg.prio and cfg.pF:
        A(f's_setprio {cfg.pF}')
    nd = 6 + NP
    for p in range(11):
        A.wait_lg(f'wf{p}')
        if nd < 11 and nd - 6 <= max(p, NR - 1):
            dma_wd(A, nd, VD, S_MB, R_E)
            nd += 1
        for i, ap in enumerate(ORD):
            f = 4 * p + i
            A.wait_vm(f'act{f}')
            for n in range(4):
                mf16(A, ACC2 + 16 * ap + 4 * n, AB + 4 * (f % NB), WR + 16 * (p % NR) + 4 * n, p == 0)
            if nf < 44:
                ld_act(nf)
                nf += 1
            pn = p - 1 + NR
            if p >= 1 and pn < 11:
                assert pn < nd
                rd_wd(pn, (i,))
        if p in (0, 5) or cfg.fine:
            A.stamp(f'F{p}')
    A.stamp('Fend')
    PB = 112
    for a in (1, 2, 3):
        for j in range(4):
            A.ds(f'ds_write_b128 {vr(RW)}, {vr(ACC2 + 16 * a + 4 * j, 4)} offset:{(a - 1) * 16384 + j * 1024}')
    for j in (2, 3):
        A.ds(f'ds_write_b128 {vr(RW)}, {vr(ACC2 + 4 * j, 4)} offset:{3 * 16384 + j * 1024}')
    A.wait_lg_all()
    A('s_barrier')
    A.stamp('X2')
    A.ds(f'ds_read_b128 {vr(PB + 32, 4)}, {vr(RF)} offset:2048', 'r0')
    for j in range(2):
        for a in (1, 2, 3):
            A.ds(f'ds_read_b128 {vr(PB + 8 * (a - 1) + 4 * j, 4)}, {vr(RR + a - 1)} offset:{(a - 1) * 16384 + j * 1024}', f'r{j}')
        A.ds(f'ds_read_b128 {vr(PB + 24 + 4 * j, 4)}, {vr(RF)} offset:{j * 1024}', f'r{j}')
    for j in range(2):
        A.wait_lg(f'r{j}')
        for r in range(4 * j, 4 * j + 4, 2):
            A(f'v_pk_add_f32 {vr(ACC2 + r, 2)}, {vr(ACC2 + r, 2)}, {vr(PB + r, 2)}')
            A(f'v_pk_add_f32 {vr(PB + 8 + r, 2)}, {vr(PB + 8 + r, 2)}, {vr(PB + 16 + r, 2)}')
        for r in range(4 * j, 4 * j + 4, 2):
            A(f'v_pk_add_f32 {vr(ACC2 + r, 2)}, {vr(ACC2 + r, 2)}, {vr(PB + 8 + r, 2)}')
        for r in range(4 * j, 4 * j + 4, 2):
            A(f'v_pk_fma_f32 {vr(ACC2 + r, 2)}, {vr(ACC2 + r, 2)}, {vr(PB + 32 + r % 4, 2)}, {vr(PB + 24 + r, 2)}')
        for r in range(4):
            A.vmem(f'buffer_store_dword {vr(ACC2 + 4 * j + r)}, {vr(RO)}, {sr(R_O, 4)}, {k4(r // 2)} offen offset:{2048 * (r % 2) + 64 * j} {cfg.out_flags}')
    A.stamp('stored')
    if cfg.stamps:
        A.wait_vm_all()
        A.stamp('done')
    A.dump_stamps(0)
    A('s_endpgm')

    for b in range(1, 8):
        A.label(f'L_slow{b}')
        if cfg.stamps:
            A(f's_add_u32 s13, s13, {1 << (4 * b)}')
        A(f'ds_read_b32 {vr(VPT)}, {vr(VPR)} offset:{need(b)[0]}\ns_waitcnt lgkmcnt(0)')
        A(f'v_cmp_gt_u32 vcc, {need(b)[1]}, {vr(VPT)}\ns_cbranch_vccnz L_slow{b}\ns_branch L_back{b}')

    A.label('L_gate_ld')
    srd(A, R_B, 30, 1024)
    A('v_lshrrev_b32 v2, 4, v0\nv_lshlrev_b32 v2, 4, v2')
    for ks in range(16):
        if ks % 2 == 0:
            A(f's_bfe_u32 {sr(S_OA)}, {sr(S_RHO)}, {(3 << 16) | (2 * ks)}\ns_lshl_b32 {sr(S_OA)}, {sr(S_OA)}, 7')
        A(f'buffer_load_dwordx4 {vr(32 + 4 * ks, 4)}, v2, {sr(R_B, 4)}, {sr(S_OA)} offen offset:{64 * (ks % 2)}')
    A('s_branch L_gate_ld_back')
    A.label('L_gate')
    for ks in range(16):
        for a in range(2):
            mf16(A, 16 + 4 * a, 32 + 4 * ks, XR + 8 * ks + 4 * a, ks == 0)
    A('v_bfe_u32 v10, v0, 2, 1\nv_bfe_u32 v11, v0, 3, 2\nv_and_b32 v12, 3, v0\nv_lshl_add_u32 v11, v11, 2, v12\nv_lshl_add_u32 v10, v10, 4, v11\nv_lshlrev_b32 v10, 3, v10')
    A(f's_lshl2_add_u32 {sr(T1)}, {sr(S_RT)}, {sr(S_W)}\ns_lshl_b32 {sr(T1)}, {sr(T1)}, 10\ns_add_u32 {sr(T1)}, {sr(T1)}, {GAT}')
    A('s_mov_b32 vcc_lo, 0xffff0000\ns_mov_b32 vcc_hi, 0\nv_cndmask_b32 v8, v16, v20, vcc')
    A('v_cvt_pk_bf16_f32 v8, v8, v8\nv_lshlrev_b32 v8, 16, v8')
    A(f'v_mul_f32 v8, {NLOG2E}, v8\nv_exp_f32 v8, v8\ns_nop 0\nv_add_f32 v8, 1.0, v8\nv_rcp_f32 v8, v8\ns_nop 0')
    A(f'v_cvt_pk_bf16_f32 v8, v8, v8\nv_lshlrev_b32 v24, 16, v8\nv_mov_b32 v25, {sr(S_TAG)}\nv_mov_b32 v26, v10')
    A('s_mov_b32 exec_hi, 0')
    A(f'buffer_store_dwordx2 v[24:25], v26, {sr(R_WS, 4)}, {sr(T1)} offen sc1')
    A('s_mov_b64 exec, -1')
    A('s_branch L_gate_back')
    return A


def gen_p2(cfg):
    A = WS(cfg, 31)
    VC, VD, VST, VPF, VXS, AC, VPW, VPR, VPT, VA, RA, VG, RO, XA, DA = 1, 5, 9, 10, 12, 13, 15, 16, 17, 18, 22, 26, 27, 28, 30
    U, V = 32, 48
    SC = 64
    LR, LI, L16R, L16I, L32R, L32I, KR, KI, LCR, LCI = range(80, 90)
    WQ, WSR, WSI, SEL, VW, VPQ, VEX, VEXW, VPUB = 90, 94, 95, 96, 104, 107, 109, 110, 111
    TMP = 112
    AX, AB = 128, 136
    FB = (144, 192)
    CR = 128
    A.label('L_p2')
    if cfg.stamps:
        A('v_mov_b32 v31, 0')
    A.stamp('start')
    rho_pre(A, cfg, S_RHO, T0)
    A(f'v_and_b32 {vr(TMP + 4)}, 15, v0\nv_lshlrev_b32 {vr(TMP + 4)}, 2, {vr(TMP + 4)}\nv_add_u32 {vr(TMP + 4)}, {X_CNT}, {vr(TMP + 4)}\nv_mov_b32 {vr(TMP + 6)}, 0')
    A.ds(f'ds_write_b32 {vr(TMP + 4)}, {vr(TMP + 6)}')
    frag_addr(A, AB, TMP + 8)
    A(f's_lshl_b32 {sr(S_MB)}, {sr(S_W)}, 12')
    for s in range(4):
        A(f'v_add_u32 {vr(AX + s)}, {sr(S_MB)}, {vr(AB + s)}')
        A(f'v_add_u32 {vr(AX + 4 + s)}, {2 * SLOT}, {vr(AX + s)}')
        A(f'v_add_u32 {vr(AB + 4 + s)}, {2 * SLOT}, {vr(AB + s)}')
    A.wait_lg_all()
    load_tag(A)
    map2(A, cfg)
    srd(A, R_O, 28, 1376 * 1024)
    srd(A, R_WG, 24, 512 * 2752)
    srd(A, R_WU, 26, 512 * 2752)
    srd(A, R_WS, 36, WS_SIZE)
    srd(A, R_X, 4, 2048 * 1024)
    srd(A, R_B, 14, 512 * 1024)
    srd(A, R_E, 16, 512 * 1024)
    A(f's_bitcmp1_b32 {sr(S_ROT)}, 0\ns_cselect_b32 {sr(R_B)}, s16, s14\ns_cselect_b32 {sr(R_B + 1)}, s17, s15\ns_cselect_b32 {sr(R_E)}, s14, s16\ns_cselect_b32 {sr(R_E + 1)}, s15, s17')
    consts(A)
    first_unit(A)
    N0, N1, NS = TMP + 4, TMP + 5, TMP + 6
    LRE, LIM, DT, A2, BR = TMP + 1, TMP + 2, TMP + 3, TMP + 7, TMP + 12
    t0, t1, t2, t3 = TMP + 8, TMP + 9, TMP + 10, TMP + 11

    def setup_a():
        A(f'v_and_b32 {vr(TMP)}, 0x13, v0\nv_bfe_u32 {vr(t0)}, v0, 2, 1\nv_lshl_add_u32 {vr(TMP)}, {vr(t0)}, 3, {vr(TMP)}\nv_bfe_u32 {vr(t0)}, v0, 3, 1\nv_lshl_add_u32 {vr(TMP)}, {vr(t0)}, 2, {vr(TMP)}')
        A(f'v_lshlrev_b32 {vr(TMP)}, 1, {vr(TMP)}\nv_add_u32 {vr(TMP)}, {X_PAR}, {vr(TMP)}')
        wffn_voffs(A, VW, t0)
        A(f's_mul_i32 {sr(S_MB2)}, {sr(S_W)}, 3072')
        A(f's_add_u32 {sr(S_MB)}, {sr(S_MB)}, {P1B}')
        frag16_addr(A, AC, t0)
        A(f'v_add_u32 {vr(AC)}, {sr(S_MB)}, {vr(AC)}\nv_add_u32 {vr(AC + 1)}, {sr(S_MB)}, {vr(AC + 1)}')
        swz_consts(A, t0, t1, t2, t3)
        A(f's_lshl_b32 {sr(T0)}, {sr(S_N2)}, 16\ns_lshl_b32 {sr(T1)}, {sr(S_W)}, 8\ns_add_u32 {sr(T0)}, {sr(T0)}, {sr(T1)}')
        A(f'v_lshl_add_u32 {vr(t0)}, {vr(t0)}, 10, {sr(T0)}')
        A(f'v_add_u32 {vr(VC)}, {vr(t0)}, {vr(t1)}\nv_add_u32 {vr(VC + 1)}, {vr(t0)}, {vr(t2)}')
        A(f'v_add_u32 {vr(VC + 2)}, {2 * 7168}, {vr(VC)}\nv_add_u32 {vr(VC + 3)}, {3 * 7168}, {vr(VC + 1)}\nv_add_u32 {vr(VC + 1)}, 7168, {vr(VC + 1)}')
        A(f's_lshl_b32 {sr(S_GST)}, {sr(S_KAP)}, 15\ns_xor_b32 {sr(S_WDO)}, {sr(S_GST)}, 0x8000')
        A(f'v_and_b32 {vr(VEX)}, 31, v0\nv_lshlrev_b32 {vr(VEX)}, 3, {vr(VEX)}\nv_add_u32 {vr(VEX)}, {X_EX}, {vr(VEX)}')
        A(f's_lshl_b32 {sr(T0)}, {sr(S_W)}, 8\nv_add_u32 {vr(VEXW)}, {sr(T0)}, {vr(VEX)}')
        A(f's_lshl_b32 {sr(T0)}, {sr(S_W)}, 2\ns_lshl_b32 {sr(T1)}, {sr(S_CG)}, 14\ns_add_u32 {sr(T1)}, {sr(T1)}, {AGG}')
        A(f'v_and_b32 {vr(t0)}, 15, v0\nv_lshl_add_u32 {vr(t0)}, {vr(t0)}, 4, {sr(T1)}\nv_bfe_u32 {vr(t3)}, v0, 4, 1\nv_lshl_add_u32 {vr(t0)}, {vr(t3)}, 9, {vr(t0)}')
        A(f'v_lshrrev_b32 {vr(t3)}, 5, v0')
        A(f'v_mov_b32 {vr(t2)}, {OOB}')
        for j in range(2):
            A(f'v_add_u32 {vr(t1)}, {sr(T0)}, {vr(t3)}')
            if j:
                A(f'v_add_u32 {vr(t1)}, 2, {vr(t1)}')
            A(f'v_cmp_gt_u32 vcc, {sr(S_RT)}, {vr(t1)}')
            A(f'v_lshl_add_u32 {vr(VPQ + j)}, {vr(t1)}, 10, {vr(t0)}')
            A(f'v_sub_u32 {vr(N0 + j)}, {sr(S_RT)}, {vr(t1)}')
            A(f'v_cndmask_b32 {vr(VPQ + j)}, {vr(t2)}, {vr(VPQ + j)}, vcc')
            A(f'v_add_u32 {vr(N0 + j)}, -1, {vr(N0 + j)}\nv_max_i32 {vr(N0 + j)}, 0, {vr(N0 + j)}\nv_lshlrev_b32 {vr(N0 + j)}, 7, {vr(N0 + j)}\nv_cvt_f32_i32 {vr(N0 + j)}, {vr(N0 + j)}')
        A(f's_lshl_b32 {sr(T0)}, {sr(S_W)}, 5\nv_lshl_add_u32 {vr(NS)}, {vr(t3)}, 4, {sr(T0)}\nv_cvt_f32_i32 {vr(NS)}, {vr(NS)}')
        A(f's_lshl4_add_u32 {sr(T0)}, {sr(S_CG)}, {sr(S_RT)}\ns_lshl_b32 {sr(T0)}, {sr(T0)}, 10\ns_add_u32 {sr(T0)}, {sr(T0)}, {AGG}')
        A(f's_cmp_eq_u32 {sr(S_W)}, 0\ns_cselect_b32 {sr(T0)}, {sr(T0)}, {OOB}')
        lane_pat(A, VPUB, t0, sr(T0))
        prog_addrs(A, VPW, VPR, G2)
        A(f's_mul_i32 {sr(T1)}, s2, 43\ns_mul_i32 {sr(T0)}, {sr(S_W)}, 11\ns_add_u32 {sr(T0)}, {sr(T0)}, {sr(T1)}\ns_lshl_b32 {sr(T0)}, {sr(T0)}, 7')
        A(f'v_min_u32 {vr(VPF)}, 10, v0\nv_lshl_add_u32 {vr(VPF)}, {vr(VPF)}, 7, {sr(T0)}')
        if cfg.c3pf:
            A(f's_lshr_b32 {sr(T1)}, s2, 3\ns_mul_i32 {sr(T1)}, {sr(T1)}, 43\ns_mul_i32 {sr(T0)}, {sr(S_W)}, 11\ns_add_u32 {sr(T0)}, {sr(T0)}, {sr(T1)}\ns_lshl_b32 {sr(T0)}, {sr(T0)}, 10\ns_add_u32 {sr(T0)}, {sr(T0)}, {384 - 32 * 1024}')
            A(f'v_min_u32 {vr(t1)}, 42, v0\nv_lshl_add_u32 {vr(t1)}, {vr(t1)}, 10, {sr(T0)}\ns_mov_b32 vcc_hi, -1\ns_mov_b32 vcc_lo, 0\nv_cndmask_b32 {vr(VPF)}, {vr(VPF)}, {vr(t1)}, vcc')

    def setup_b():
        flag_addr(A, S_GFL, HF)
        poll_base(A, HF)
        A(f'v_bfe_u32 {vr(t0)}, v0, 3, 2\nv_bfe_u32 {vr(t1)}, v0, 1, 1\nv_lshl_add_u32 {vr(t0)}, {vr(t0)}, 1, {vr(t1)}')
        A(f'v_bfe_u32 {vr(t1)}, v0, 2, 1\nv_lshrrev_b32 {vr(t2)}, 5, v0\nv_xor_b32 {vr(t1)}, {vr(t1)}, {vr(t2)}\nv_lshl_add_u32 {vr(t0)}, {vr(t1)}, 3, {vr(t0)}')
        A(f'v_and_b32 {vr(t1)}, 1, v0\nv_lshlrev_b32 {vr(t1)}, 4, {vr(t1)}\nv_mov_b32 {vr(t2)}, 0x3f80\nv_lshlrev_b32 {vr(t1)}, {vr(t1)}, {vr(t2)}')
        for r in range(0, 8, 2):
            A(f'v_cmp_eq_u32 vcc, {r}, {vr(t0)}\nv_cmp_eq_u32 s[8:9], {r + 1}, {vr(t0)}\ns_nop 0')
            A(f'v_cndmask_b32 {vr(SEL + r)}, 0, {vr(t1)}, vcc\nv_cndmask_b32 {vr(SEL + r + 1)}, 0, {vr(t1)}, s[8:9]')
        A(f's_lshl2_add_u32 {sr(T1)}, {sr(S_RT)}, {sr(S_W)}\ns_mul_i32 {sr(T1)}, {sr(T1)}, {KSP}')
        A(f's_and_b32 {sr(T0)}, {sr(S_CG)}, 14\ns_lshl2_add_u32 {sr(T1)}, {sr(T0)}, {sr(T1)}\ns_and_b32 {sr(T0)}, {sr(S_CG)}, 1\ns_lshl1_add_u32 {sr(T1)}, {sr(T0)}, {sr(T1)}\ns_lshl_b32 {sr(T1)}, {sr(T1)}, 11')
        A(f'v_and_b32 {vr(t0)}, 15, v0\nv_lshl_add_u32 {vr(t0)}, {vr(t0)}, 4, {sr(T1)}\nv_bfe_u32 {vr(t1)}, v0, 4, 1\nv_lshl_add_u32 {vr(t0)}, {vr(t1)}, 11, {vr(t0)}')
        A(f'v_lshrrev_b32 {vr(t1)}, 5, v0\nv_lshl_add_u32 {vr(VST)}, {vr(t1)}, 9, {vr(t0)}')
        wd_voffs(A, VD, t0)

    def setup_c():
        A(f's_lshl_b32 {sr(T0)}, {sr(S_W)}, 4')
        act_voffs(A, VA, t0, T0)
        A(f's_lshl_b32 {sr(T0)}, {sr(S_W)}, 12\nv_lshl_add_u32 {vr(RA)}, v0, 4, {sr(T0)}')
        for a in (1, 2, 3):
            A(f'v_xor_b32 {vr(RA + a)}, {a << 12}, {vr(RA)}')
        out_voff(A, RO, t0, 1)
        row0(A, VG, t0)
        A(f's_lshr_b32 {sr(T0)}, {sr(S_W)}, 1\ns_lshl1_add_u32 {sr(T0)}, {sr(S_M2)}, {sr(T0)}\ns_lshl_b32 {sr(T0)}, {sr(T0)}, 10\ns_and_b32 {sr(T1)}, {sr(S_W)}, 1\ns_lshl_b32 {sr(T1)}, {sr(T1)}, 6')
        A(f's_add_u32 {sr(T0)}, {sr(T0)}, {sr(T1)}\ns_add_u32 {sr(T0)}, {sr(T0)}, {GAT}\nv_lshl_add_u32 {vr(VG)}, {vr(VG)}, 3, {sr(T0)}')
        tile_row(A, T0)
        A(f's_lshl_b32 {sr(T0)}, {sr(T0)}, 10\ns_lshl_b32 {sr(T1)}, {sr(S_N2)}, 7\ns_add_u32 {sr(T0)}, {sr(T0)}, {sr(T1)}')
        A(f'v_and_b32 {vr(t0)}, 7, v0\nv_lshl_add_u32 {vr(t0)}, {vr(t0)}, 4, {sr(T0)}\nv_lshrrev_b32 {vr(VXS)}, 3, v0\nv_lshl_add_u32 {vr(VXS)}, {vr(VXS)}, 10, {vr(t0)}')
        A(f's_lshl_b32 {sr(T0)}, {sr(S_KAP)}, 6\nv_and_b32 {vr(t0)}, 15, v0\nv_lshl_add_u32 {vr(t0)}, {vr(t0)}, 1, {sr(T0)}\nv_add_u32 {vr(DA)}, {sr(T1)}, {vr(t0)}')
        A(f's_lshl_b32 {sr(T0)}, {sr(S_W)}, 11\ns_add_u32 {sr(T0)}, {sr(T0)}, {X_XS}\nv_add_u32 {vr(t0)}, {sr(T0)}, {vr(t0)}')
        A(f'v_bfe_u32 {vr(t1)}, v0, 4, 1\nv_lshl_add_u32 {vr(t0)}, {vr(t1)}, 10, {vr(t0)}\nv_lshrrev_b32 {vr(t1)}, 5, v0\nv_lshl_add_u32 {vr(XA)}, {vr(t1)}, 9, {vr(t0)}\nv_xor_b32 {vr(XA + 1)}, 64, {vr(XA)}')
    setup_a()
    if cfg.pre_b:
        setup_b()
    A.wait_lg_all()
    A(f's_add_u32 {sr(S_TAG)}, {sr(S_TAG)}, 0x9E3779B1')
    A.stamp('setup')

    def cpow(dr, di, n):
        A(f'v_mul_f32 {vr(t0)}, {n}, {vr(A2)}\nv_mul_f32 {vr(t1)}, {n}, {vr(BR)}')
        A(f'v_exp_f32 {vr(t0)}, {vr(t0)}\nv_fract_f32 {vr(t1)}, {vr(t1)}')
        A(f'v_cos_f32 {vr(dr)}, {vr(t1)}\nv_sin_f32 {vr(di)}, {vr(t1)}')
        A(f'v_mul_f32 {vr(dr)}, {vr(t0)}, {vr(dr)}\nv_mul_f32 {vr(di)}, {vr(t0)}, {vr(di)}')

    def lam(i):
        if i == 0:
            for r in (LRE, LIM, DT):
                A(f'v_lshlrev_b32 {vr(r)}, 16, {vr(r)}')
            A(f'v_mul_f32 {vr(DT)}, {LOG2E}, {vr(DT)}\nv_exp_f32 {vr(DT)}, {vr(DT)}\ns_nop 0')
            A(f'v_cvt_pk_bf16_f32 {vr(DT)}, {vr(DT)}, {vr(DT)}\nv_lshlrev_b32 {vr(DT)}, 16, {vr(DT)}')
            A(f'v_mul_f32 {vr(A2)}, {vr(DT)}, {vr(LRE)}\nv_mul_f32 {vr(BR)}, {vr(DT)}, {vr(LIM)}')
            A(f'v_mul_f32 {vr(A2)}, {LOG2E}, {vr(A2)}\nv_mul_f32 {vr(BR)}, {INV2PI}, {vr(BR)}')
            cpow(LR, LI, '1.0')
            cpow(L16R, L16I, '0x41800000')
        if i == 1:
            cpow(L32R, L32I, '0x42000000')
        if i == 2:
            cpow(WQ, WQ + 1, vr(N0))
        if i == 3:
            cpow(WQ + 2, WQ + 3, vr(N1))
        if i == 4:
            cpow(WSR, WSI, vr(NS))
        if i == 5:
            A(f'v_mul_f32 {vr(t0)}, {vr(LRE)}, {vr(LRE)}\nv_fmac_f32 {vr(t0)}, {vr(LIM)}, {vr(LIM)}\nv_rcp_f32 {vr(t0)}, {vr(t0)}')
            A(f'v_add_f32 {vr(t1)}, -1.0, {vr(LR)}\nv_add_f32 {vr(t0)}, {vr(t0)}, {vr(t0)}')
            A(f'v_mul_f32 {vr(KR)}, {vr(t1)}, {vr(LRE)}\nv_fmac_f32 {vr(KR)}, {vr(LI)}, {vr(LIM)}')
            A(f'v_mul_f32 {vr(KI)}, {vr(LI)}, {vr(LRE)}\nv_fma_f32 {vr(KI)}, -{vr(t1)}, {vr(LIM)}, {vr(KI)}')
            A(f'v_mul_f32 {vr(KR)}, {vr(t0)}, {vr(KR)}\nv_mul_f32 {vr(KI)}, {vr(t0)}, {vr(KI)}')

    l0 = len(A.lines)
    if not cfg.pre_b:
        setup_b()
    setup_c()
    nfree = len(A.lines) - l0
    for i in range(6):
        lam(i)
    work = A.lines[l0:]
    del A.lines[l0:]
    st = {'n': 0, 'ok': False}

    def fill(k):
        while k and work and (st['ok'] or st['n'] < nfree):
            A(work.pop(0))
            st['n'] += 1
            k -= 1

    def mm(i, s):
        xf, bf = FB[i % 2], FB[i % 2] + 16
        A.wait_lg(f'a{i}{s}')
        mfma(A, U, xf + 4 * s, bf + 8 * s, i == 0 and s == 0)
        fill(cfg.nfill)
        A.wait_lg(f'b{i}{s}')
        mfma(A, V, xf + 4 * s, bf + 8 * s + 4, i == 0 and s == 0)
        fill(cfg.nfill if s < 2 else cfg.nfill - 3)
    for i in range(8):
        A('s_barrier')
        so = (i % 2) * SLOT
        hi = (i >> 1) & 1
        xf, bf = FB[i % 2], FB[i % 2] + 16
        for s in range(4):
            A.ds(f'ds_read_b128 {vr(xf + 4 * s, 4)}, {vr(AX + 4 * hi + s)} offset:{so}', f'a{i}{s}')
            A.ds(f'ds_read_b128 {vr(bf + 8 * s, 4)}, {vr(AB + 4 * hi + s)} offset:{so + 16384}', f'a{i}{s}')
            A.ds(f'ds_read_b128 {vr(bf + 8 * s + 4, 4)}, {vr(AB + 4 * hi + s)} offset:{so + 20480}', f'b{i}{s}')
            if i and s < 2:
                mm(i - 1, 2 + s)
        if i == 1:
            for j, r in enumerate((LRE, LIM, DT)):
                A.ds(f'ds_read_u16 {vr(r)}, {vr(TMP)} offset:{256 * j}')
        mm(i, 0)
        mm(i, 1)
        A.wait_lg_all()
        if i == 0:
            fill(cfg.fill0)
        if i == 1:
            st['ok'] = True
        if i == 6:
            fill(1000)
    if cfg.prio:
        A(f's_setprio {cfg.p2b}')
    A('s_barrier')
    GR = SC + 12
    E0R, E0I, E1R, E1I = TMP + 2, TMP + 3, TMP + 4, TMP + 5
    EW = SC
    PA = SC + 8
    PW = TMP + 10
    PQ = SC
    Q = TMP
    PK = SC
    done = []

    def cfma(dr, di, ar, ai, br, bi, cr, ci):
        A(f'v_fma_f32 {vr(dr)}, {vr(ar)}, {vr(br)}, {vr(cr)}\nv_fma_f32 {vr(di)}, {vr(ar)}, {vr(bi)}, {vr(ci)}')
        A(f'v_fma_f32 {vr(dr)}, -{vr(ai)}, {vr(bi)}, {vr(dr)}\nv_fma_f32 {vr(di)}, {vr(ai)}, {vr(br)}, {vr(di)}')
        A.tick()

    def scale(rs):
        for r in rs:
            t = TMP + (r & 1)
            A(f'v_mul_f32 {vr(t)}, {vr(KI)}, {vr(V + r)}\nv_mul_f32 {vr(V + r)}, {vr(KR)}, {vr(V + r)}')
            A(f'v_fmac_f32 {vr(V + r)}, {vr(KI)}, {vr(U + r)}\nv_fma_f32 {vr(U + r)}, {vr(KR)}, {vr(U + r)}, -{vr(t)}')
            A.tick()

    def pl_agg():
        for j in range(2):
            A.vmem(f'buffer_load_dwordx4 {vr(PQ + 4 * j, 4)}, {vr(VPQ + j)}, {sr(R_WS, 4)}, 0 offen sc1', 'pagg')

    def ck_agg():
        for j in range(2):
            A(f'v_cmp_eq_u32 {sr(S_C0, 2)}, {sr(S_TAG)}, {vr(PQ + 4 * j + 1)}\nv_cmp_eq_u32 {sr(8, 2)}, {sr(S_TAG)}, {vr(PQ + 4 * j + 3)}')
            A(f'v_cmp_eq_u32 vcc, {OOB}, {vr(VPQ + j)}')
            A(f's_and_b64 {sr(S_C0, 2)}, {sr(S_C0, 2)}, {sr(8, 2)}\ns_or_b64 {sr(S_C0, 2)}, {sr(S_C0, 2)}, vcc')
            if j == 0:
                A(f's_mov_b64 {sr(T2, 2)}, {sr(S_C0, 2)}')
        A(f's_and_b64 {sr(S_C0, 2)}, {sr(S_C0, 2)}, {sr(T2, 2)}\ns_cmp_eq_u64 {sr(S_C0, 2)}, -1')

    def creg(t, n):
        return CR + 16 * t + 4 * n

    def pass2(rs):
        for r in rs:
            pr, pi = (TMP, TMP + 1) if r == 0 else (U + r - 1, V + r - 1)
            cfma(U + r, V + r, LR, LI, pr, pi, U + r, V + r)
            if r % 2:
                A(f'v_cvt_pk_bf16_f32 {vr(PK + r // 2)}, {vr(U + r - 1)}, {vr(U + r)}')
                A(f'v_cvt_pk_bf16_f32 {vr(PK + 8 + r // 2)}, -{vr(V + r - 1)}, -{vr(V + r)}')

    def after(*deps):
        for d in deps:
            assert d in done, (act, d)

    for act in cfg.sched.replace(',', ' ').split():
        bgd = act[0] == '+'
        act = act.lstrip('+')
        if act == '!':
            A.drain()
            continue
        assert act not in done, act
        k, n = act[0], int(act[1:]) if act[1:].isdigit() else None

        def emit(fn):
            if bgd:
                A.defer(fn)
            else:
                A.drain()
                A.low(fn)
        if k in 'rw' and n is not None:
            if any(t == {'r': f'c{n}', 'w': f'blk{8 + n}'}[k] for _, t in A.bg):
                A.drain()
        if k == 'c' and n is not None:
            if n >= 3:
                after(f'r{n - 3}')
                A.wait_lg(f'mc{n - 3}')

            def f(i=n >> 1, na=n & 1):
                A(f's_add_u32 m0, {sr(S_MB)}, {(n % 3) * 16384}')
                A(f's_add_u32 {sr(S_OA)}, {sr(S_ROT)}, {i}\ns_and_b32 {sr(S_OA)}, {sr(S_OA)}, 2\ns_lshl_b32 {sr(S_OA)}, {sr(S_OA)}, 6\ns_add_u32 {sr(S_OA)}, {sr(S_OA)}, {sr(S_WDO if na else S_GST)}')
                for j in range(4):
                    A.vmem(f'buffer_load_dwordx4 {vr(VC + j)}, {sr(R_E if i & 1 else R_B, 4)}, {sr(S_OA)} offen offset:{1024 * j} lds', f'c{n}')
            emit(f)
        elif k == 'r' and n is not None:
            after(f'c{n}', 'mm')
            A.wait_vm(f'c{n}')
            for kk in range(2):
                for b in range(2):
                    A.ds(f'ds_read_b128 {vr(creg((n >> 1) * 2 + kk, 2 * (n & 1) + b), 4)}, {vr(AC + kk)} offset:{(n % 3) * 16384 + 2048 * b}', f'mc{n}')
        elif k == 'W':
            if n == 7:
                after('w4')
            if n == 6 and cfg.p2w == 3:
                after('w3')
            if n >= 4:
                await_(A, f'pa{n - 2}', VPR, VPT, G1, n - 2)
            emit(lambda: issue_w(A, 8 + n, VW, S_MB2))
        elif k == 'w':
            after(f'W{n}')
            A.wait_vm(f'blk{8 + n}')
            post(A, VPW, VPT, n)
        elif k == 'd' and n is not None:
            if n < 3:
                pc = {0: 6, 1: 7, 2: 5}[n]
                after(f'r{pc}')
                A.wait_lg(f'mc{pc}')
            elif n == 3:
                after('w5')
                await_(A, 'pa6', VPR, VPT, G1, 6)
            elif n == 4:
                after('w6', 'd3')
                await_(A, 'pa7', VPR, VPT, G1, 7)
            else:
                after('d4')
            emit(lambda: dma_wd(A, n, VD, S_MB, R_O))
        elif act == 'pf':
            if cfg.w2pf:
                emit(lambda: A.vmem(f'buffer_load_dword {vr(VPF + 1)}, {vr(VPF)}, {sr(R_O, 4)}, 0 offen'))
        elif act == 'mm':
            mm(7, 2)
            mm(7, 3)
            A(f'v_mov_b32 {vr(GR + 1)}, {sr(S_TAG)}\nv_mov_b32 {vr(GR + 3)}, {sr(S_TAG)}\ns_nop 9')
        elif act == 'p1':
            after('mm')
            pr, pi = U, V
            for r in range(1, 16):
                dr, di = TMP + 2 * (r % 2), TMP + 2 * (r % 2) + 1
                cfma(dr, di, LR, LI, pr, pi, U + r, V + r)
                pr, pi = dr, di
            assert (pr, pi) == (E0R, E0I)
            A(f'v_mov_b32 {vr(E1R)}, {vr(E0R)}\nv_mov_b32 {vr(E1I)}, {vr(E0I)}\ns_nop 1')
            A(f'v_permlane32_swap_b32 {vr(E0R)}, {vr(E1R)}\nv_permlane32_swap_b32 {vr(E0I)}, {vr(E1I)}')
            cfma(TMP + 6, TMP + 7, L16R, L16I, E0R, E0I, E1R, E1I)
            A.ds(f'ds_write_b64 {vr(VEXW)}, {vr(TMP + 6, 2)}')
            post(A, VPW, VPT, E_EX, G3 - G2)
        elif act == 'pub':
            after('p1')
            await_(A, 'ex', VPR, VPT, G3, E_EX)
            for w in range(4):
                A.ds(f'ds_read_b64 {vr(EW + 2 * w, 2)}, {vr(VEX)} offset:{256 * w}')
            A.wait_lg_all()
            cfma(PA, PA + 1, L32R, L32I, EW, EW + 1, EW + 2, EW + 3)
            cfma(PA + 2, PA + 3, L32R, L32I, PA, PA + 1, EW + 4, EW + 5)
            cfma(GR, GR + 2, L32R, L32I, PA + 2, PA + 3, EW + 6, EW + 7)
            A('s_mov_b32 exec_hi, 0')
            A.vmem(f'buffer_store_dwordx4 {vr(GR, 4)}, {vr(VPUB)}, {sr(R_WS, 4)}, 0 offen sc1')
            A('s_mov_b64 exec, -1')
        elif act == 'lc':
            after('pub')
            A(f'v_mov_b32 {vr(PW)}, 0\nv_mov_b32 {vr(PW + 1)}, 0')
            for w, src in ((1, EW), (2, PA), (3, PA + 2)):
                A(f's_cmp_eq_u32 {sr(S_W)}, {w}\ns_cselect_b64 vcc, -1, 0')
                A(f'v_cndmask_b32 {vr(PW)}, {vr(PW)}, {vr(src)}, vcc\nv_cndmask_b32 {vr(PW + 1)}, {vr(PW + 1)}, {vr(src + 1)}, vcc')
            cfma(LCR, LCI, L16R, L16I, PW, PW + 1, E0R, E0I)
            A('s_mov_b32 vcc_lo, -1\ns_mov_b32 vcc_hi, 0')
            A(f'v_cndmask_b32 {vr(LCR)}, {vr(LCR)}, {vr(PW)}, vcc\nv_cndmask_b32 {vr(LCI)}, {vr(LCI)}, {vr(PW + 1)}, vcc')
        elif k == 's':
            after('p1')
            assert 'car' not in done
            scale(range(8 * n, 8 * n + 8))
        elif act == 'poll':
            after('lc')
            pl_agg()
        elif act == 'q':
            after('poll')
            A.drain()
            A.wait_vm('pagg')
            hiw = max([int(d[1]) for d in done if d[0] == 'W'])
            spin(A, 'agg', pl_agg, ck_agg, cfg, lambda: post(A, VPW, VPT, hiw))
            A(f'v_mul_f32 {vr(Q)}, {vr(WQ)}, {vr(PQ)}\nv_mul_f32 {vr(Q + 1)}, {vr(WQ)}, {vr(PQ + 2)}')
            A(f'v_fma_f32 {vr(Q)}, -{vr(WQ + 1)}, {vr(PQ + 2)}, {vr(Q)}\nv_fmac_f32 {vr(Q + 1)}, {vr(WQ + 1)}, {vr(PQ)}')
            cfma(Q, Q + 1, WQ + 2, WQ + 3, PQ + 4, PQ + 6, Q, Q + 1)
            A(f'v_mov_b32 {vr(Q + 2)}, {vr(Q)}\nv_mov_b32 {vr(Q + 3)}, {vr(Q + 1)}\ns_nop 1')
            A(f'v_permlane32_swap_b32 {vr(Q)}, {vr(Q + 2)}\nv_permlane32_swap_b32 {vr(Q + 1)}, {vr(Q + 3)}')
            A(f'v_add_f32 {vr(Q)}, {vr(Q)}, {vr(Q + 2)}\nv_add_f32 {vr(Q + 1)}, {vr(Q + 1)}, {vr(Q + 3)}')
            A.ds(f'ds_write_b64 {vr(VEXW)}, {vr(Q, 2)} offset:1024')
            post(A, VPW, VPT, E_EX2, G3 - G2)
            low = [d for d in ('w3', 'w4', 'w5', 'w6', 'w7')[cfg.p2w - 3:] if d not in done and int(d[1]) < hiw]
            assert not low, low
        elif act == 'car':
            after('q', 's0', 's1')
            await_(A, 'ex2', VPR, VPT, G3, E_EX2)
            for w in range(4):
                A.ds(f'ds_read_b64 {vr(EW + 2 * w, 2)}, {vr(VEX)} offset:{1024 + 256 * w}', 'ex2')
            A.wait_lg('ex2')
            for o in (0, 1):
                A(f'v_add_f32 {vr(EW + o)}, {vr(EW + o)}, {vr(EW + 2 + o)}\nv_add_f32 {vr(EW + 4 + o)}, {vr(EW + 4 + o)}, {vr(EW + 6 + o)}')
            A(f'v_add_f32 {vr(EW)}, {vr(EW)}, {vr(EW + 4)}\nv_add_f32 {vr(EW + 1)}, {vr(EW + 1)}, {vr(EW + 5)}')
            cfma(LCR, LCI, WSR, WSI, EW, EW + 1, LCR, LCI)
            A(f'v_mul_f32 {vr(TMP)}, {vr(KR)}, {vr(LCR)}\nv_mul_f32 {vr(TMP + 1)}, {vr(KR)}, {vr(LCI)}')
            A(f'v_fma_f32 {vr(TMP)}, -{vr(KI)}, {vr(LCI)}, {vr(TMP)}\nv_fmac_f32 {vr(TMP + 1)}, {vr(KI)}, {vr(LCR)}')
        elif act == 'pa':
            after('car')
            pass2(range(0, 8))
        elif act == 'pb':
            after('pa')
            pass2(range(8, 16))
        elif act == 'tr':
            after('pb')
            for s in range(2):
                for part, d in ((0, U), (1, V)):
                    mfma(A, d, PK + 8 * part + 4 * s, SEL + 4 * s, s == 0)
            A('s_nop 10')
            for part, d in ((0, U), (1, V)):
                for m in range(2):
                    for e in range(4):
                        A(f'v_cvt_pk_bf16_f32 {vr(PK + 8 * part + 4 * m + e)}, {vr(d + 8 * m + 2 * e)}, {vr(d + 8 * m + 2 * e + 1)}')
                    A.vmem(f'buffer_store_dwordx4 {vr(PK + 8 * part + 4 * m, 4)}, {vr(VST)}, {sr(R_WS, 4)}, {k4(2 * part)} offen offset:{1024 * m} sc1', 'h')
        elif act == 'hf':
            after('tr')
            A(f'v_mov_b32 {vr(TMP + 2)}, {sr(S_TAG)}\nv_lshlrev_b32 {vr(TMP + 3)}, 2, v0')
            A.wait_vm('h')
            A('s_mov_b32 exec_hi, 0')
            A.vmem(f'buffer_store_dword {vr(TMP + 2)}, {vr(TMP + 3)}, {sr(R_WS, 4)}, {sr(S_GFL)} offen sc1', 'fl')
            A('s_mov_b64 exec, -1')
        elif act == 'hs':
            after('hf', 'W7')
            A.drain()
            spoll(A, 'hs', cfg, FL8, mode='issue')
        elif act == 'xs':
            def f():
                A(f's_lshl_b32 {sr(S_OA)}, {sr(S_W)}, 11\ns_add_u32 m0, {sr(S_OA)}, {X_XS}\ns_mov_b32 {sr(S_OA)}, {15 * 1024}')
                A.vmem(f'buffer_load_dwordx4 {vr(VXS)}, {sr(R_X, 4)}, 0 offen lds', 'xs')
                A.vmem(f'buffer_load_dwordx4 {vr(VXS)}, {sr(R_X, 4)}, {sr(S_OA)} offen offset:1024 lds', 'xs')
            emit(f)
        else:
            raise AssertionError(act)
        done.append(act)
        if act in cfg.p2st.split(','):
            A.stamp(act)
    A.drain()
    after(*(f'd{i}' for i in range(6)), *(f'r{i}' for i in range(8)), 'hs', 'xs', 'w7', 'pf')
    assert P2B == 0
    if cfg.prio:
        A('s_setprio 2')
    ACC2 = 32
    ORD = (1, 2, 3, 0)
    free = list(range(96, 128, 4))
    areg = {}

    def ld_act(f):
        t, ap = f // 4, ORD[f % 4]
        areg[f] = free.pop(0)
        if f % 4 == 0:
            A(f's_add_u32 {sr(S_OA)}, {sr(S_ROT)}, {t >> 1}\ns_and_b32 {sr(S_OA)}, {sr(S_OA)}, 3\ns_lshl_b32 {sr(S_OA)}, {sr(S_OA)}, 13')
            if t & 1:
                A(f's_add_u32 {sr(S_OA)}, {sr(S_OA)}, 4096')
        A.vmem(f'buffer_load_dwordx4 {vr(areg[f], 4)}, {vr(VA + ap)}, {sr(R_WS, 4)}, {sr(S_OA)} offen sc1', f'act{f}')
    spoll(A, 'hs', cfg, FL8, lambda: (A('s_waitcnt vmcnt(0)'), post(A, VPW, VPT, E_WD)), mode='check')
    A.stamp('hpoll')
    wdl = [i for i, t in enumerate(A.vm) if t and t.startswith('wd')]
    if wdl:
        A.vm[wdl[-1]] = 'wdlast'
    nf = 0
    while free:
        ld_act(nf)
        nf += 1
    srd(A, R_O, 32, 2048 * 2048)
    A.wait_vm('wdlast')
    post(A, VPW, VPT, E_WD)
    A.wait_lg_all()
    DS, PG = 1, 2
    DSR = (1, 10, 11, 12)

    def pl_g():
        for j in range(2):
            A.vmem(f'buffer_load_dwordx4 {vr(PG + 4 * j, 4)}, {vr(VG)}, {sr(R_WS, 4)}, 0 offen offset:{16 * j} sc1', 'pg')

    def ck_g():
        A(f'v_cmp_eq_u32 vcc, {sr(S_TAG)}, {vr(PG + 1)}')
        for j in (3, 5, 7):
            A(f'v_cmp_eq_u32 s[8:9], {sr(S_TAG)}, {vr(PG + j)}\ns_and_b64 vcc, vcc, s[8:9]')
        A('s_cmp_eq_u64 vcc, -1')
    small = False
    for t in range(8):
        for i, ap in enumerate(ORD):
            f = 4 * t + i
            A.wait_vm(f'act{f}')
            for n in range(4):
                mf16(A, ACC2 + 16 * ap + 4 * n, areg[f], creg(t, n), t == 0)
            free.append(areg[f])
            if i == 3:
                free += [creg(t, n) for n in range(4)]
            for _ in range(2):
                if nf < 32 and free:
                    ld_act(nf)
                    nf += 1
            if nf == 32 and not small:
                small = True
                A(f'v_xor_b32 {vr(AC)}, 64, {vr(DA)}')
                for n in range(4):
                    A.vmem(f'global_load_ushort {vr(DSR[n])}, {vr(AC if n >> 1 else DA)}, s[20:21] offset:{32 * (n & 1)}', 'ds')
                if cfg.prio and cfg.pF:
                    A('s_setprio 0')
        if t == 0 or cfg.fine:
            A.stamp(f'S{t}')
    pl_g()
    A.stamp('Send')
    if cfg.prio and cfg.pEnd:
        A(f's_setprio {cfg.pEnd}')
    await_(A, 'pa9', VPR, VPT, G1, 9)
    for a in (1, 2, 3):
        for j in range(4):
            A.ds(f'ds_write_b128 {vr(RA)}, {vr(ACC2 + 16 * a + 4 * j, 4)} offset:{(a - 1) * 16384 + j * 1024}')
    post(A, VPW, VPT, E_SP, G3 - G2)
    XS = 176
    A.wait_vm('ds')
    A.wait_lg_all()
    for n in range(4):
        for r in range(4):
            A.ds(f'ds_read_u16 {vr(XS + 4 * n + r)}, {vr(XA + (n >> 1))} offset:{128 * r + 32 * (n & 1)}', f'x{n}')
        if n == 2:
            A.wait_lg('x0')
    for n in range(4):
        A(f'v_lshlrev_b32 {vr(DSR[n])}, 16, {vr(DSR[n])}')
        A.wait_lg(f'x{n}')
        for r in range(4):
            A(f'v_lshlrev_b32 {vr(XS + 4 * n + r)}, 16, {vr(XS + 4 * n + r)}')
            A(f'v_fmac_f32 {vr(ACC2 + 4 * n + r)}, {vr(XS + 4 * n + r)}, {vr(DSR[n])}')
    await_(A, 'cntS', VPR, VPT, G3, E_SP)
    A.stamp('X1')
    PB = 128
    for a in (1, 2, 3):
        for j in range(4):
            A.ds(f'ds_read_b128 {vr(PB + 16 * (a - 1) + 4 * j, 4)}, {vr(RA + a)} offset:{(a - 1) * 16384 + j * 1024}', f'r{a}')
    A.wait_vm('pg')
    spin(A, 'g', pl_g, ck_g, cfg)
    OM = 96
    for r in range(4):
        A(f'v_sub_f32 {vr(OM + r)}, 1.0, {vr(PG + 2 * r)}')
    for a in (1, 2, 3):
        A.wait_lg(f'r{a}')
        for r in range(16):
            A(f'v_add_f32 {vr(ACC2 + r)}, {vr(ACC2 + r)}, {vr(PB + 16 * (a - 1) + r)}')
    for r in range(16):
        A(f'v_mul_f32 {vr(ACC2 + r)}, {vr(ACC2 + r)}, {vr(PG + 2 * (r % 4))}')
    for j in range(2):
        A.ds(f'ds_write_b128 {vr(RA + 1)}, {vr(ACC2 + 4 * j, 4)} offset:{j * 1024}')
    A.ds(f'ds_write_b128 {vr(RA + 1)}, {vr(OM, 4)} offset:2048')
    for a in range(4):
        A(f'v_add_u32 {vr(RA + a)}, {P1B - P2B}, {vr(RA + a)}')
    A.wait_lg_all()
    A.stamp('Sfin')
    A('s_barrier')
    for j in (2, 3):
        for a in range(4):
            A.ds(f'ds_read_b128 {vr(PB + 8 * a + 4 * (j - 2), 4)}, {vr(RA + a)} offset:{((a - 1) % 4) * 16384 + j * 1024}', f'r{j}')
    for j in (2, 3):
        A.wait_lg(f'r{j}')
        o = 4 * (j - 2)
        for r in (0, 2):
            A(f'v_pk_add_f32 {vr(PB + o + r, 2)}, {vr(PB + o + r, 2)}, {vr(PB + 8 + o + r, 2)}')
            A(f'v_pk_add_f32 {vr(PB + 16 + o + r, 2)}, {vr(PB + 16 + o + r, 2)}, {vr(PB + 24 + o + r, 2)}')
        for r in (0, 2):
            A(f'v_pk_add_f32 {vr(PB + o + r, 2)}, {vr(PB + o + r, 2)}, {vr(PB + 16 + o + r, 2)}')
        for r in (0, 2):
            A(f'v_pk_fma_f32 {vr(ACC2 + 4 * j + r, 2)}, {vr(PB + o + r, 2)}, {vr(OM + r, 2)}, {vr(ACC2 + 4 * j + r, 2)}')
        for r in range(4):
            A.vmem(f'buffer_store_dword {vr(ACC2 + 4 * j + r)}, {vr(RO)}, {sr(R_O, 4)}, {k4(r // 2)} offen offset:{2048 * (r % 2) + 64 * (j - 2)} {cfg.out_flags}')
    A(f's_lshl_b32 {sr(T0)}, {sr(S_M2)}, 5\ns_lshl_b32 {sr(T1)}, {sr(S_N2)}, 2\ns_add_u32 {sr(T0)}, {sr(T0)}, {sr(T1)}\ns_add_u32 {sr(T0)}, {sr(T0)}, {sr(S_W)}')
    A(f's_cmp_lg_u32 {sr(T0)}, {31 << 5}\ns_cbranch_scc1 L_p2_done')
    A(f'v_mov_b32 v1, {sr(S_TAG)}\nv_mov_b32 v2, {GW}\ns_mov_b64 exec, 1')
    A(f'buffer_store_dword v1, v2, {sr(R_WS, 4)}, 0 offen\ns_mov_b64 exec, -1')
    A.label('L_p2_done')
    if cfg.stamps:
        A.wait_vm_all()
    A.dump_stamps(1)
    A.label('L_end')
    A('s_endpgm')
    A.label('L_codeend')
    return A


HEADER = open(os.path.join(os.path.dirname(os.path.abspath(__file__)), '..', 'cdna_kernels',
                           'gated_mix__ssm_conv_s5__swiglu_ffn__prompt.s.ref')).read().split('; Override launch')[0]


def generate(cfg):
    e, p1, p2 = gen_entry(cfg), gen_p1(cfg), gen_p2(cfg)
    if cfg.dbg:
        i0 = [i for i, l in enumerate(p2.lines) if l == 's_barrier'][8]
        i1 = p2.lines.index('L_hs_try:')
        for i in range(i0, i1):
            l = p2.lines[i]
            if 'nofma' in cfg.dbg and l.startswith(('v_fma', 'v_mul_f32', 'v_cvt_pk')):
                p2.lines[i] = 's_nop 1'
            if 'nodma' in cfg.dbg and l.endswith(' lds'):
                p2.lines[i] = 's_nop 3'
            if 'nods' in cfg.dbg and l.startswith(('ds_read_b128', 'ds_write_b128', 'ds_read_b64_tr')):
                p2.lines[i] = 's_nop 1'
            if 'nodw' in cfg.dbg and l.startswith('ds_write_b128'):
                p2.lines[i] = 's_nop 1'
            if 'nodr' in cfg.dbg and l.startswith('ds_read_b128'):
                p2.lines[i] = 's_nop 1'
            if 'nom0' in cfg.dbg and ' m0,' in l:
                p2.lines[i] = 's_nop 0'
            if 'spdma' in cfg.dbg and l.endswith(' lds'):
                p2.lines[i] = l + '\n    s_nop 7'
            if 'nost' in cfg.dbg and l.startswith('buffer_store_dwordx4') and 'offset' in l:
                p2.lines[i] = 's_nop 1'
    probs = check_hazards(e.lines + p1.lines, 'p1') + (check_hazards(e.lines + p2.lines, 'p2') if not cfg.dbg else [])
    for p in probs:
        print('HAZARD', p, file=sys.stderr)
    assert not probs
    nb1 = sum(l == 's_barrier' for l in p1.lines)
    nb2 = sum(l == 's_barrier' for l in p2.lines)
    assert nb1 == nb2, (nb1, nb2)
    txt = HEADER + f'; @launch grid=(256,1,1) block=(512,1,1) lds={LDS}\n'
    txt += f'.amdgcn_target "amdgcn-amd-amdhsa--gfx950"\n.text\n.globl {K}\n.p2align 8\n.type {K},@function\n{K}:\n'
    txt += e.text() + p1.text() + p2.text()
    txt += f'''.section .rodata,"a"
.p2align 6
.amdhsa_kernel {K}
  .amdhsa_next_free_vgpr 256
  .amdhsa_next_free_sgpr 102
  .amdhsa_accum_offset 256
  .amdhsa_group_segment_fixed_size 0
  .amdhsa_kernarg_size 136
  .amdhsa_user_sgpr_count 2
  .amdhsa_user_sgpr_kernarg_segment_ptr 1
  .amdhsa_system_sgpr_workgroup_id_x 1
.end_amdhsa_kernel
'''
    return txt, (p1.names, p2.names)


if __name__ == '__main__':
    cfg = Cfg()
    out = sys.argv[1]
    for kv in sys.argv[2:]:
        k, v = kv.split('=')
        old = getattr(cfg, k)
        setattr(cfg, k, (v not in ('0', 'False')) if isinstance(old, bool) else type(old)(v))
    txt, names = generate(cfg)
    open(out, 'w').write(txt)
    if cfg.stamps:
        import json
        json.dump(names, open(out + '.names', 'w'))
```

```python
import sys, os
sys.path.insert(0, os.path.dirname(os.path.abspath(__file__)))
from asmlib import Stream, vr, sr, check_hazards

K = 'gated_mix__ssm_conv_s5__swiglu_ffn__prompt_kernel'

ACT = 0
KSP = 160
AGG = 0x1400000
GAT = 0x1440000
FST = 8192
HF = 0x1480000
GF = 0x14C0000
GW = 0x1500000
WS_SIZE = 0x1510000
STAMP = 0xF000000
OOB = 0x40000000
SLOT = 24576
P2B = 0
P1B = 2 * SLOT
WSLOT = [4, 5, 0, 1, 4, 5, 0, 1]
XB = 6 * SLOT
X_XS, X_EX, X_EX2, X_CNT = XB, XB + 8192, XB + 9216, XB + 11264
X_PAR = XB + 11520
LDS = XB + 16384
S_RT, S_CG, S_M2, S_N2, S_W, S_TAG = 38, 39, 40, 41, 42, 43
R_WS, R_X, R_B, R_WG, R_WU, R_E, R_O = 44, 48, 52, 56, 60, 64, 68
S_OA, S_OW = 72, 73
S_K4 = 73
T0, T1, T2, T3 = 3, 81, 0, 1
S_MB = 82
S_MB2 = 83
S_C0 = 84
S_C1 = 86
S_CNT = 88
S_RHO, S_STAG = 87, 23
S_GST, S_GFL, S_WDO = 34, 35, 22
S_ROT, S_KAP, S_UR, S_U0 = 10, 11, 12, 27
S_ST0 = 90
LOG2E = 0x3fb8aa3b
NLOG2E = 0xbfb8aa3b
INV2PI = 0x3e22f983


class Cfg:
    mapping = '84'
    map2 = '48L'
    rot2 = True
    rotj = 'x'
    weave = 2
    sched = 'mm +c0 +pf +xs p1 W4 pub c1 lc +W5 s0 poll s1 c2 w4 W6 r0 w5 q +W7 +c3 car w6 r1 r2 pa +c4 +c5 pb tr w7 d3 r3 c6 r4 c7 hf d4 d5 r5 d2 hs r6 d0 r7 d1'
    rot = True
    stag0 = 0
    nstag = 4
    rotx = 0
    swap = True
    w2pf = 1
    c3pf = True
    fx = ''
    fb = ''
    fw = ''
    probe = ''
    stamps = 0
    D = 3
    post_exec = False
    pF = 1
    pEnd = 0
    gpl = 3
    p2w = 4
    wres = 5
    pre_b = False
    ntail = 4
    nfill = 5
    fill0 = 50
    npre = 0
    p2st = 'mm,p1,pub,W4,w4,W5,q,car,W6,pb,W7,tr,hf,c2,c5,c7,r7,d1,d3,d5,w5,w6,w7'
    fine = False
    dbg = ''
    p1b = 2
    p2b = 3
    p2lo = 3
    post_at = 1
    peek_at = 9
    spin = 1 << 15
    code_pf = True
    out_flags = 'sc0 sc1 nt'
    prio = True


class WS(Stream):
    def __init__(self, cfg, vst):
        super().__init__()
        self.cfg, self.vst = cfg, vst
        self.pend, self.names, self.nst = [], [], 0
        self.bg, self.ticks = [], 0

    def defer(self, fn):
        l0, v0 = len(self.lines), len(self.vm)
        fn()
        lines, tags = self.lines[l0:], self.vm[v0:]
        del self.lines[l0:], self.vm[v0:]
        cur = []
        for ln in lines:
            cur.append(ln)
            if ln.startswith('buffer_'):
                self.bg.append((cur, tags.pop(0)))
                cur = []
        assert not cur and not tags

    def pop_bg(self):
        lines, tag = self.bg.pop(0)
        self.lines += lines
        self.vm.append(tag)

    def low(self, fn):
        if self.cfg.p2lo != self.cfg.p2b:
            self(f's_setprio {self.cfg.p2lo}')
        fn()
        if self.cfg.p2lo != self.cfg.p2b:
            self(f's_setprio {self.cfg.p2b}')

    def tick(self):
        self.ticks += 1
        if self.bg and self.ticks >= self.cfg.weave:
            self.ticks = 0
            self.low(self.pop_bg)

    def drain(self):
        if self.bg:
            self.low(lambda: [self.pop_bg() for _ in list(self.bg)])

    def stamp(self, name):
        role = '1' if self.vst == 7 else '2'
        if self.cfg.probe and self.cfg.probe[0] == role and (name == 'start' or self.cfg.probe[2:] == name):
            self('s_memrealtime s[98:99]')
        if self.cfg.stamps == 4:
            if name in ('start', 'A0', 'A4', 'A7', 'B0', 'B4', 'E', 'epi', 'guflag', 'wdok', 'gupoll', 'F0', 'Fend', 'X2', 'done', 'pub', 'q', 'tr', 'hf', 'hpoll', 'S0', 'Send', 'Sfin'):
                self._stamp(name, 's_memrealtime')
            return
        if self.cfg.stamps == 3:
            if name in ('start', 'A0', 'A4', 'B0', 'B4', 'E', 'guflag', 'F0', 'done') and role == '1':
                self._stamp(name, 's_memtime')
                self._stamp(name + '_ns', 's_memrealtime')
            return
        if self.cfg.stamps != 1:
            return
        self._stamp(name, 's_memtime')

    def _stamp(self, name, op):
        if len(self.pend) == 6:
            self('s_waitcnt lgkmcnt(0)')
            self.lg = []
            self.flush()
        used = {p for p, _ in self.pend}
        p = [x for x in range(6) if x not in used][0]
        self(f'{op} {sr(S_ST0 + 2 * p, 2)}')
        self.pend.append((p, self.nst))
        self.names.append(name)
        self.nst += 1

    def flush(self):
        for p, i in self.pend:
            self(f'v_writelane_b32 {vr(self.vst)}, {sr(S_ST0 + 2 * p)}, {i}')
        self.pend = []

    def wait_lg_all(self):
        super().wait_lg_all()
        self.flush()

    def dump_stamps(self, role):
        if self.cfg.probe and int(self.cfg.probe[0]) == role + 1:
            self('s_waitcnt lgkmcnt(0)\ns_add_u32 s98, s98, 3000')
            self.label('L_hold')
            self('s_memrealtime s[96:97]\ns_waitcnt lgkmcnt(0)\ns_sub_u32 s96, s96, s98\ns_cmp_lt_i32 s96, 0\ns_cbranch_scc1 L_hold')
        if not self.cfg.stamps:
            return
        self(f's_memrealtime {sr(S_C0, 2)}')
        self.wait_lg_all()
        self(f'v_writelane_b32 {vr(self.vst)}, {sr(S_C0)}, 62')
        self(f'v_writelane_b32 {vr(self.vst)}, s89, 63')
        self(f's_lshl_b32 {sr(T0)}, s2, 3\ns_add_u32 {sr(T0)}, {sr(T0)}, {sr(S_W)}\ns_add_u32 {sr(T0)}, {sr(T0)}, {4 * role}')
        self(f's_lshl_b32 {sr(T0)}, {sr(T0)}, 8\ns_add_u32 {sr(T0)}, {sr(T0)}, {STAMP}')
        self(f's_add_u32 s36, s36, {sr(T0)}\ns_addc_u32 s37, s37, 0')
        self('v_lshlrev_b32 v1, 2, v0')
        self(f'global_store_dword v1, {vr(self.vst)}, s[36:37]')


def srd(A, r, ptr, size):
    A(f's_mov_b32 {sr(r)}, {sr(ptr)}\ns_mov_b32 {sr(r + 1)}, {sr(ptr + 1)}\ns_mov_b32 {sr(r + 2)}, {size}\ns_mov_b32 {sr(r + 3)}, 0x20000')


def k4(k):
    return '0' if k == 0 else sr(S_K4 + k if k < 8 else 16 + k)


def fo(n):
    return f'{k4(n // 2)} offen offset:{2048 * (n % 2)}'


def lane_pat(A, d, t, base):
    A(f'v_and_b32 {vr(t)}, 15, v0\nv_lshl_add_u32 {vr(t)}, {vr(t)}, 4, {base}\nv_lshrrev_b32 {vr(d)}, 4, v0\nv_lshl_add_u32 {vr(d)}, {vr(d)}, 9, {vr(t)}')


def swz_consts(A, vq8, vcA, vcB, t):
    A(f'v_lshrrev_b32 {vr(vq8)}, 3, v0')
    A(f'v_lshrrev_b32 {vr(t)}, 4, v0')
    A(f'v_and_b32 {vr(vcA)}, 7, v0')
    A(f'v_xor_b32 {vr(vcA)}, {vr(vcA)}, {vr(t)}')
    A(f'v_lshlrev_b32 {vr(vcA)}, 4, {vr(vcA)}')
    A(f'v_xor_b32 {vr(vcB)}, 64, {vr(vcA)}')


def frag_addr(A, a0, t):
    A(f'v_and_b32 {vr(a0)}, 31, v0')
    A(f'v_bfe_u32 {vr(t)}, v0, 1, 3')
    A(f'v_lshrrev_b32 {vr(a0 + 1)}, 5, v0')
    A(f'v_xor_b32 {vr(t)}, {vr(t)}, {vr(a0 + 1)}')
    A(f'v_lshlrev_b32 {vr(t)}, 4, {vr(t)}')
    A(f'v_lshl_add_u32 {vr(a0)}, {vr(a0)}, 7, {vr(t)}')
    for s in (1, 2, 3):
        A(f'v_xor_b32 {vr(a0 + s)}, {s << 5}, {vr(a0)}')


def first_unit(A):
    A(f's_lshr_b32 {sr(T0)}, {sr(S_CG)}, 2\ns_mul_i32 {sr(S_U0)}, {sr(S_CG)}, 3\ns_sub_u32 {sr(S_U0)}, {sr(S_U0)}, {sr(T0)}')


def frag16_addr(A, a0, t):
    A(f'v_bfe_u32 {vr(t)}, v0, 1, 3\nv_lshrrev_b32 {vr(a0)}, 4, v0\nv_xor_b32 {vr(t)}, {vr(t)}, {vr(a0)}\nv_lshlrev_b32 {vr(t)}, 4, {vr(t)}')
    A(f'v_and_b32 {vr(a0)}, 15, v0\nv_lshl_add_u32 {vr(a0)}, {vr(a0)}, 7, {vr(t)}\nv_xor_b32 {vr(a0 + 1)}, 64, {vr(a0)}')


def wffn_voffs(A, vw, t):
    A(f's_mul_i32 {sr(T0)}, {sr(S_W)}, {16 * 2752}\ns_lshl_b32 {sr(T1)}, {sr(S_U0)}, 6\ns_add_u32 {sr(T0)}, {sr(T0)}, {sr(T1)}')
    A(f's_and_b32 {sr(T1)}, {sr(S_CG)}, 3\ns_cmp_eq_u32 {sr(T1)}, 3\ns_cselect_b32 {sr(T1)}, 8, 12\ns_cmp_eq_u32 {sr(S_CG)}, 15\ns_cselect_b32 {sr(T1)}, 4, {sr(T1)}')
    A(f'v_mov_b32 {vr(t + 3)}, {OOB}')
    for j in range(3):
        A(f'v_add_u32 {vr(t)}, {64 * j}, v0')
        A(f'v_mul_u32_u24 {vr(t + 1)}, 171, {vr(t)}')
        A(f'v_lshrrev_b32 {vr(t + 1)}, 11, {vr(t + 1)}')
        A(f'v_mul_u32_u24 {vr(t + 2)}, 12, {vr(t + 1)}')
        A(f'v_sub_u32 {vr(t)}, {vr(t)}, {vr(t + 2)}')
        A(f'v_cmp_gt_i32 vcc, {sr(T1)}, {vr(t)}')
        A(f'v_lshrrev_b32 {vr(t + 2)}, 2, {vr(t + 1)}\nv_and_b32 {vr(t + 2)}, 2, {vr(t + 2)}\nv_xor_b32 {vr(t)}, {vr(t)}, {vr(t + 2)}')
        A(f'v_mul_u32_u24 {vr(t + 1)}, 2752, {vr(t + 1)}')
        A(f'v_lshl_add_u32 {vr(t + 1)}, {vr(t)}, 4, {vr(t + 1)}')
        if j:
            A(f'v_subrev_u32 {vr(t + 1)}, {1024 * j}, {vr(t + 1)}')
        A(f'v_add_u32 {vr(t + 1)}, {sr(T0)}, {vr(t + 1)}')
        A(f'v_cndmask_b32 {vr(vw + j)}, {vr(t + 3)}, {vr(t + 1)}, vcc')


def issue_a(A, b, vx, vb):
    sl = (b % 4) * SLOT
    A(f's_add_u32 m0, {sr(S_MB)}, {sl}')
    if b:
        pass
    A(f's_bfe_u32 {sr(S_OA)}, {sr(S_RHO)}, {(3 << 16) | (4 * b)}\ns_lshl_b32 {sr(S_OA)}, {sr(S_OA)}, 7')
    for j in range(4):
        A.vmem(f'buffer_load_dwordx4 {vr(vx + j)}, {sr(R_X, 4)}, {sr(S_OA)} offen offset:{1024 * j} {A.cfg.fx} lds', f'blk{b}')
    A(f's_add_u32 m0, {sr(S_MB2)}, {sl + 16384}\ns_nop 0')
    for j in range(2):
        A.vmem(f'buffer_load_dwordx4 {vr(vb + j)}, {sr(R_B, 4)}, {sr(S_OA)} offen offset:{1024 * j} {A.cfg.fb} lds', f'blk{b}')


def issue_w(A, b, vw, smb):
    sl = WSLOT[b - 8] * SLOT
    A(f's_add_u32 m0, {sr(smb)}, {sl}')
    A(f's_bfe_u32 {sr(S_OW)}, {sr(S_RHO)}, {(3 << 16) | (4 * (b - 8))}\ns_mul_i32 {sr(S_OW)}, {sr(S_OW)}, {64 * 2752}')
    for j in range(3):
        A.vmem(f'buffer_load_dwordx4 {vr(vw + j)}, {sr(R_WG, 4)}, {sr(S_OW)} offen offset:{1024 * j} {A.cfg.fw} lds', f'blk{b}')
    A(f's_add_u32 m0, {sr(smb)}, {sl + 12288}\ns_nop 0')
    for j in range(3):
        A.vmem(f'buffer_load_dwordx4 {vr(vw + j)}, {sr(R_WU, 4)}, {sr(S_OW)} offen offset:{1024 * j} {A.cfg.fw} lds', f'blk{b}')


def spin(A, name, loads, check, cfg, extra=None):
    A(f's_mov_b32 {sr(S_CNT)}, {cfg.spin}')
    A.label(f'L_{name}_chk')
    check()
    A(f's_cbranch_scc1 L_{name}_ok')
    A(f's_sub_u32 {sr(S_CNT)}, {sr(S_CNT)}, 1\ns_cmp_eq_u32 {sr(S_CNT)}, 0\ns_cbranch_scc1 L_{name}_ok')
    saved = list(A.vm)
    loads()
    A('s_waitcnt vmcnt(0)')
    A.vm = saved
    if extra:
        lg = list(A.lg)
        extra()
        A.lg = lg
    A(f's_branch L_{name}_chk')
    A.label(f'L_{name}_ok')


G1, G2, G3 = 0, 16, 32
E_W4, E_W5, E_W6, E_W7, E_WD = 4, 5, 6, 7, 8
E_EX, E_EX2, E_SP, E_SF = 1, 2, 3, 4


def prog_addrs(A, vw, vrd, own):
    A(f's_lshl2_add_u32 {sr(T0)}, {sr(S_W)}, {X_CNT + own}\nv_mov_b32 {vr(vw)}, {sr(T0)}')
    A(f'v_and_b32 {vr(vrd)}, 3, v0\nv_lshlrev_b32 {vr(vrd)}, 2, {vr(vrd)}\nv_add_u32 {vr(vrd)}, {X_CNT}, {vr(vrd)}')


def post(A, vw, vt, val, off=0):
    A(f'v_mov_b32 {vr(vt)}, {val}')
    if A.cfg.post_exec:
        A('s_mov_b64 exec, 1')
    A.ds(f'ds_write_b32 {vr(vw)}, {vr(vt)} offset:{off}')
    if A.cfg.post_exec:
        A('s_mov_b64 exec, -1')


def await_(A, name, vrd, vt, off, val):
    A.label(f'L_{name}')
    A.ds(f'ds_read_b32 {vr(vt)}, {vr(vrd)} offset:{off}')
    Stream.wait_lg_all(A)
    A(f'v_cmp_gt_u32 vcc, {val}, {vr(vt)}\ns_cbranch_vccnz L_{name}')
    A.flush()


def rho0(A, cfg, t):
    if not cfg.rot:
        A(f's_mov_b32 {sr(t)}, 0')
        return
    assert cfg.mapping == '84'
    if cfg.rotx:
        A(f's_lshl1_add_u32 {sr(t)}, {sr(S_CG)}, {sr(S_RT)}')
    else:
        A(f's_and_b32 {sr(t)}, s2, 6\ns_add_u32 {sr(t)}, {sr(t)}, {sr(S_RT)}')
    A(f's_and_b32 {sr(t)}, {sr(t)}, 7')


def rho_pre(A, cfg, d, t):
    def pack(o):
        return sum(v << (4 * i) for i, v in enumerate(o))
    tabs = [[0, 1, 2, 3, 5, 4, 6, 7], [0, 2, 1, 3, 4, 6, 5, 7], [0, 1, 3, 2, 4, 5, 7, 6], [0, 1, 2, 4, 3, 5, 6, 7]]
    if cfg.swap:
        A(f's_and_b32 {sr(t)}, {sr(S_CG)}, 3\ns_mov_b32 {sr(d)}, {pack(tabs[0])}')
        for j in (1, 2, 3):
            A(f's_cmp_eq_u32 {sr(t)}, {j}\ns_cselect_b32 {sr(d)}, {pack(tabs[j])}, {sr(d)}')
    else:
        A(f's_mov_b32 {sr(d)}, 0x76543210')
    rho0(A, cfg, t)
    A(f's_mul_i32 {sr(t)}, {sr(t)}, 0x11111111\ns_add_u32 {sr(d)}, {sr(d)}, {sr(t)}')


def spoll(A, name, cfg, loads, extra=None, mode='both'):
    SP = 56

    def issue():
        for i, (b, o) in enumerate(loads):
            A(f's_load_dword {sr(SP + i if i < 8 else 76 + i)}, {sr(b, 2)}, {o} glc')
    if mode == 'issue':
        issue()
        return
    A(f's_mov_b32 {sr(S_CNT)}, {cfg.spin}')
    if mode == 'check':
        A(f's_branch L_{name}_wait')
    A.label(f'L_{name}_try')
    issue()
    A.label(f'L_{name}_wait')
    Stream.wait_lg_all(A)
    for i in range(len(loads)):
        r = SP + i if i < 8 else 76 + i
        A(f's_xor_b32 {sr(r)}, {sr(r)}, {sr(S_TAG)}')
        if i:
            A(f's_or_b32 {sr(SP)}, {sr(SP)}, {sr(r)}')
    A(f's_cbranch_scc0 L_{name}_ok')
    if extra:
        saved = list(A.vm), list(A.lg)
        extra()
        A.vm, A.lg = saved
    A(f's_sub_u32 {sr(S_CNT)}, {sr(S_CNT)}, 1\ns_cmp_lg_u32 {sr(S_CNT)}, 0\ns_cbranch_scc1 L_{name}_try')
    A.label(f'L_{name}_ok')
    A.flush()


def flag_addr(A, d, base):
    A(f's_lshr_b32 {sr(T0)}, {sr(S_W)}, 1\ns_lshl1_add_u32 {sr(T1)}, {sr(S_RT)}, {sr(T0)}\ns_mul_i32 {sr(T1)}, {sr(T1)}, {FST}')
    A(f's_and_b32 {sr(T0)}, {sr(S_W)}, 1\ns_lshl1_add_u32 {sr(T0)}, {sr(S_CG)}, {sr(T0)}\ns_lshl_b32 {sr(T0)}, {sr(T0)}, 8\ns_add_u32 {sr(T1)}, {sr(T0)}, {sr(T1)}')
    A(f's_add_u32 {sr(d)}, {sr(T1)}, {base}')


def wd_voffs(A, VD, TMP):
    A(f'v_lshrrev_b32 {vr(TMP)}, 3, v0\nv_and_b32 {vr(TMP + 1)}, 6, {vr(TMP)}')
    A(f'v_and_b32 {vr(TMP + 2)}, 7, v0\nv_xor_b32 {vr(TMP + 1)}, {vr(TMP + 1)}, {vr(TMP + 2)}\nv_lshlrev_b32 {vr(TMP + 1)}, 4, {vr(TMP + 1)}')
    A(f'v_lshl_add_u32 {vr(TMP)}, {vr(TMP)}, 10, {vr(TMP + 1)}')
    A(f's_mul_i32 {sr(T0)}, {sr(S_W)}, {352 * 1024}\ns_lshl_b32 {sr(T1)}, {sr(S_N2)}, 7\ns_add_u32 {sr(T0)}, {sr(T0)}, {sr(T1)}')
    A(f'v_add_u32 {vr(VD)}, {sr(T0)}, {vr(TMP)}')
    for j in (1, 2, 3):
        A(f'v_add_u32 {vr(VD + j)}, {7168 * j}, {vr(VD)}')


def dma_wd(A, p, VD, smb, r):
    A(f's_add_u32 m0, {sr(smb)}, {(p % 6) * 16384}')
    unit_off(A, S_OW, p, 15)
    for j in range(4):
        A.vmem(f'buffer_load_dwordx4 {vr(VD + j)}, {sr(r, 4)}, {sr(S_OW)} offen offset:{1024 * j} lds', f'wd{p}')


def act_voffs(A, VA, t, first):
    for ap in range(4):
        A(f's_xor_b32 {sr(T1)}, {sr(S_W)}, {ap}\ns_lshr_b32 {sr(T2)}, {sr(T1)}, 1\ns_lshl1_add_u32 {sr(T2)}, {sr(S_M2)}, {sr(T2)}\ns_mul_i32 {sr(T2)}, {sr(T2)}, {KSP}')
        A(f's_and_b32 {sr(T1)}, {sr(T1)}, 1\ns_add_u32 {sr(T2)}, {sr(T2)}, {sr(T1)}\ns_add_u32 {sr(T2)}, {sr(T2)}, {sr(first)}\ns_lshl_b32 {sr(T2)}, {sr(T2)}, 11')
        if ap == 0:
            lane_pat(A, t, VA, 0)
        A(f'v_add_u32 {vr(VA + ap)}, {sr(T2)}, {vr(t)}')


def row0(A, d, t):
    A(f'v_bfe_u32 {vr(d)}, v0, 4, 1\nv_lshrrev_b32 {vr(t)}, 5, v0\nv_lshlrev_b32 {vr(t)}, 2, {vr(t)}\nv_lshl_add_u32 {vr(d)}, {vr(d)}, 4, {vr(t)}')


def tile_row(A, d):
    A(f's_lshr_b32 {sr(d)}, {sr(S_W)}, 1\ns_lshl1_add_u32 {sr(d)}, {sr(S_M2)}, {sr(d)}\ns_and_b32 {sr(T3)}, {sr(S_W)}, 1\ns_lshl2_add_u32 {sr(d)}, {sr(d)}, {sr(T3)}\ns_lshl_b32 {sr(d)}, {sr(d)}, 3')


def out_voff(A, RO, t, half):
    row0(A, RO, t)
    tile_row(A, T0)
    A(f's_lshl_b32 {sr(T0)}, {sr(T0)}, 11\ns_xor_b32 {sr(T1)}, {sr(S_KAP)}, {half}\ns_lshl1_add_u32 {sr(T1)}, {sr(S_N2)}, {sr(T1)}\ns_lshl_b32 {sr(T1)}, {sr(T1)}, 7\ns_add_u32 {sr(T0)}, {sr(T0)}, {sr(T1)}')
    A(f'v_and_b32 {vr(t)}, 15, v0\nv_lshl_add_u32 {vr(t)}, {vr(t)}, 2, {sr(T0)}\nv_lshl_add_u32 {vr(RO)}, {vr(RO)}, 11, {vr(t)}')


def poll_base(A, base):
    A(f's_mul_i32 {sr(T0)}, {sr(S_M2)}, {FST}\ns_lshl_b32 {sr(T1)}, {sr(S_W)}, 11\ns_add_u32 {sr(T0)}, {sr(T0)}, {sr(T1)}\ns_add_u32 {sr(T0)}, {sr(T0)}, {base}')
    A(f's_add_u32 s4, s36, {sr(T0)}\ns_addc_u32 s5, s37, 0')


FL8 = [(4, 256 * j) for j in range(8)]


def mf16(A, d, a, b, first):
    A(f'v_mfma_f32_16x16x32_bf16 {vr(d, 4)}, {vr(a, 4)}, {vr(b, 4)}, {"0" if first else vr(d, 4)}')


def mfma(A, d, a, b, first):
    A(f'v_mfma_f32_32x32x16_bf16 {vr(d, 16)}, {vr(a, 4)}, {vr(b, 4)}, {"0" if first else vr(d, 16)}')


def gen_entry(cfg):
    A = Stream()
    A('s_load_dwordx16 s[4:19], s[0:1], 0\ns_load_dwordx16 s[20:35], s[0:1], 64\ns_load_dwordx2 s[36:37], s[0:1], 128')
    A('s_cmp_ge_u32 s2, 256\ns_cbranch_scc1 L_end')
    if cfg.stamps:
        A('s_memrealtime s[88:89]')
    A('s_lshr_b32 s82, s2, 3')
    if cfg.code_pf:
        A('s_getpc_b64 s[84:85]')
        A.label('L_pc')
        A(f's_and_b32 s83, s82, 3\ns_mul_i32 s83, s83, {56 * 128}\nv_min_u32 v1, 55, v0\nv_lshl_add_u32 v1, v1, 7, s83')
        A(f'v_min_u32 v1, L_codeend-L_pc-4, v1')
        A('global_load_dword v255, v1, s[84:85]')
    A('v_lshrrev_b32 v1, 6, v0\nv_and_b32 v0, 63, v0\nv_readfirstlane_b32 s3, v1')
    if cfg.mapping == '48':
        A(f's_bfe_u32 {sr(S_RT)}, s2, 0x20001\ns_lshl_b32 {sr(S_RT)}, {sr(S_RT)}, 2\ns_and_b32 s83, s82, 3\ns_add_u32 {sr(S_RT)}, {sr(S_RT)}, s83')
        A(f's_and_b32 {sr(S_CG)}, s2, 1\ns_lshl_b32 {sr(S_CG)}, {sr(S_CG)}, 3\ns_lshr_b32 s83, s82, 2\ns_add_u32 {sr(S_CG)}, {sr(S_CG)}, s83')
    else:
        A(f's_and_b32 {sr(S_RT)}, s2, 1\ns_and_b32 s83, s82, 7\ns_lshl3_add_u32 {sr(S_RT)}, {sr(S_RT)}, s83')
        A(f's_and_b32 {sr(S_CG)}, s2, 6\ns_lshr_b32 s83, s82, 3\ns_lshl1_add_u32 {sr(S_CG)}, {sr(S_CG)}, s83')
    A(f's_and_b32 {sr(S_W)}, s3, 3')
    A('s_cmp_ge_u32 s3, 4\ns_cbranch_scc1 L_p2')
    return A


def map2(A, cfg):
    A('s_and_b32 s81, s2, 7\ns_lshr_b32 s3, s2, 3')
    if cfg.map2 == '48L':
        A(f's_bfe_u32 {sr(S_M2)}, s3, 0x20001\ns_lshl2_add_u32 {sr(S_M2)}, s81, {sr(S_M2)}\ns_and_b32 s81, s3, 1\ns_lshr_b32 s3, s3, 3\ns_lshl2_add_u32 {sr(S_N2)}, s81, s3')
    elif cfg.map2 == '48':
        A(f's_lshl_b32 {sr(S_M2)}, s81, 2\ns_lshr_b32 s81, s3, 3\ns_add_u32 {sr(S_M2)}, {sr(S_M2)}, s81\ns_and_b32 {sr(S_N2)}, s3, 7')
    else:
        A(f's_lshr_b32 {sr(S_M2)}, s81, 1\ns_lshl_b32 {sr(S_M2)}, {sr(S_M2)}, 3\ns_and_b32 {sr(S_N2)}, s3, 7\ns_add_u32 {sr(S_M2)}, {sr(S_M2)}, {sr(S_N2)}')
        A(f's_and_b32 {sr(S_N2)}, s81, 1\ns_lshl_b32 {sr(S_N2)}, {sr(S_N2)}, 2\ns_lshr_b32 s3, s3, 3\ns_add_u32 {sr(S_N2)}, {sr(S_N2)}, s3')
    if cfg.rot2:
        if cfg.rotj == 'm':
            A(f's_and_b32 s81, {sr(S_M2)}, 7')
        elif cfg.rotj == 'x':
            A(f's_lshr_b32 s81, {sr(S_M2)}, 2')
        A(f's_and_b32 {sr(S_ROT)}, s81, 3\ns_lshr_b32 s3, s81, 2\ns_mov_b32 {sr(S_KAP)}, s3')
        if cfg.rotj == 'm' and cfg.map2 == '48':
            A(f's_lshl1_add_u32 s81, {sr(S_ROT)}, s3')
        A(f's_mul_i32 s3, s81, 11\ns_lshr_b32 {sr(S_UR)}, s3, 3')
    else:
        A(f's_mov_b32 {sr(S_ROT)}, 0\ns_mov_b32 {sr(S_UR)}, 0\ns_mov_b32 {sr(S_KAP)}, 0')


def unit_off(A, d, p, sh):
    A(f's_add_u32 {sr(d)}, {sr(S_UR)}, {p}\ns_sub_u32 {sr(T0)}, {sr(d)}, 11\ns_cselect_b32 {sr(d)}, {sr(d)}, {sr(T0)}\ns_lshl_b32 {sr(d)}, {sr(d)}, {sh}')


def load_tag(A):
    if A.cfg.stamps:
        A('s_mov_b32 s89, s88')
    A(f's_add_u32 {sr(T2)}, s36, {GW}\ns_addc_u32 {sr(T3)}, s37, 0')
    A(f's_load_dword {sr(S_TAG)}, {sr(T2, 2)}, 0')


def consts(A):
    for k in range(1, 3):
        A(f's_mov_b32 {k4(k)}, {4096 * k}')


def gen_p1(cfg):
    A = WS(cfg, 7)
    TB = 0
    VPW, VPR, VPT = 4, 5, 6
    WB = 8
    ACC = 32
    XR = 128
    VX, VB, VW, AX, TMP = 32, 36, 38, 44, 52
    D = cfg.D
    if cfg.stamps:
        A('v_mov_b32 v7, 0')
    A.stamp('start')
    swz_consts(A, TMP, TMP + 1, TMP + 2, TMP + 3)
    A(f's_lshl2_add_u32 {sr(T1)}, {sr(S_RT)}, {sr(S_W)}\ns_lshl_b32 {sr(T1)}, {sr(T1)}, 15')
    A(f'v_lshrrev_b32 {vr(TMP + 5)}, 5, v0')
    A(f'v_and_b32 {vr(TMP + 4)}, 3, {vr(TMP)}')
    A(f'v_lshl_add_u32 {vr(TMP + 3)}, {vr(TMP + 5)}, 4, {vr(TMP + 4)}')
    A(f'v_lshl_add_u32 {vr(TMP + 3)}, {vr(TMP + 3)}, 10, {sr(T1)}')
    A(f'v_add_u32 {vr(VX)}, {vr(TMP + 3)}, {vr(TMP + 1)}')
    A(f'v_add_u32 {vr(VX + 1)}, {vr(TMP + 3)}, {vr(TMP + 2)}')
    A(f'v_add_u32 {vr(VX + 2)}, {2 * 3072}, {vr(VX)}')
    A(f'v_add_u32 {vr(VX + 3)}, {3 * 3072}, {vr(VX + 1)}')
    A(f'v_add_u32 {vr(VX + 1)}, 3072, {vr(VX + 1)}')
    A(f's_lshl_b32 {sr(S_MB)}, {sr(S_W)}, 12\ns_mov_b32 m0, {sr(S_MB)}')
    rho0(A, cfg, S_OA)
    A(f's_lshl_b32 {sr(S_OA)}, {sr(S_OA)}, 7')
    A(f's_mov_b32 {sr(R_X + 2)}, {2048 * 1024}\ns_mov_b32 {sr(R_X + 3)}, 0x20000')
    A.wait_lg_all()
    A(f's_mov_b32 {sr(R_X)}, s4\ns_mov_b32 {sr(R_X + 1)}, s5')
    A.stamp('karg')
    for j in range(4):
        A.vmem(f'buffer_load_dwordx4 {vr(VX + j)}, {sr(R_X, 4)}, {sr(S_OA)} offen offset:{1024 * j} {A.cfg.fx} lds', 'blk0')
    A(f's_and_b32 {sr(T0)}, {sr(S_W)}, 1\ns_lshl1_add_u32 {sr(T1)}, {sr(S_CG)}, {sr(T0)}\ns_lshl_b32 {sr(T1)}, {sr(T1)}, 14')
    A(f'v_lshl_add_u32 {vr(TMP + 3)}, {vr(TMP + 5)}, 3, {vr(TMP + 4)}')
    A(f'v_lshl_add_u32 {vr(TMP + 3)}, {vr(TMP + 3)}, 10, {sr(T1)}')
    A(f'v_add_u32 {vr(VB)}, {vr(TMP + 3)}, {vr(TMP + 1)}')
    A(f'v_add_u32 {vr(VB + 1)}, {vr(TMP + 3)}, {vr(TMP + 2)}')
    A(f'v_add_u32 {vr(VB + 1)}, 3072, {vr(VB + 1)}')
    A(f's_lshl_b32 {sr(S_MB2)}, {sr(S_W)}, 11\ns_add_u32 m0, {sr(S_MB2)}, 16384')
    A(f's_cmp_ge_u32 {sr(S_W)}, 2')
    A(f's_cselect_b32 {sr(R_B)}, s12, s10\ns_cselect_b32 {sr(R_B + 1)}, s13, s11\ns_mov_b32 {sr(R_B + 2)}, {512 * 1024}\ns_mov_b32 {sr(R_B + 3)}, 0x20000')
    for j in range(2):
        A.vmem(f'buffer_load_dwordx4 {vr(VB + j)}, {sr(R_B, 4)}, {sr(S_OA)} offen offset:{1024 * j} {A.cfg.fb} lds', 'blk0')
    rho_pre(A, cfg, S_RHO, T0)
    for b in range(1, D):
        issue_a(A, b, VX, VB)
        if b == 1:
            A(f's_lshl_b32 {sr(T0)}, {sr(S_CG)}, 6\ns_cmp_eq_u32 {sr(S_W)}, 3\ns_cselect_b32 {sr(T0)}, {OOB}, {sr(T0)}')
            A(f'v_and_b32 {vr(TMP + 5)}, 15, v0\nv_lshl_add_u32 {vr(TMP + 5)}, {vr(TMP + 5)}, 2, {sr(T0)}')
            A(f's_mov_b32 {sr(R_E + 2)}, 1024\ns_mov_b32 {sr(R_E + 3)}, 0x20000')
            A(f's_cmp_ge_u32 {sr(S_W)}, 2\ns_cselect_b32 {sr(R_E)}, s18, s6\ns_cselect_b32 {sr(R_E + 1)}, s19, s7')
            A(f's_cmp_eq_u32 {sr(S_W)}, 1\ns_cselect_b32 {sr(R_E)}, s8, {sr(R_E)}\ns_cselect_b32 {sr(R_E + 1)}, s9, {sr(R_E + 1)}')
            A(f's_lshl_b32 {sr(T0)}, {sr(S_W)}, 8\ns_add_u32 m0, {sr(T0)}, {X_PAR}\ns_nop 0')
            A.vmem(f'buffer_load_dword {vr(TMP + 5)}, {sr(R_E, 4)}, 0 offen lds', 'blk1')
            load_tag(A)
            srd(A, R_WG, 24, 512 * 2752)
            srd(A, R_WU, 26, 512 * 2752)
            srd(A, R_WS, 36, WS_SIZE)
            srd(A, R_E, 28, 1376 * 1024)
            srd(A, R_O, 32, 2048 * 2048)
            consts(A)
            first_unit(A)
            wffn_voffs(A, VW, TMP)
            frag16_addr(A, AX, TMP)
            for s in range(2):
                A(f'v_add_u32 {vr(AX + s)}, {sr(S_MB)}, {vr(AX + s)}')
                A(f'v_add_u32 {vr(AX + 2 + s)}, {2 * SLOT}, {vr(AX + s)}')
            prog_addrs(A, VPW, VPR, G1)
            A(f'v_lshrrev_b32 {vr(TMP)}, 4, v0\nv_bfe_u32 {vr(TMP + 1)}, v0, 2, 2\nv_lshl_add_u32 {vr(TMP)}, {vr(TMP)}, 3, {vr(TMP + 1)}')
            A(f'v_mul_u32_u24 {vr(TMP)}, 192, {vr(TMP)}\nv_bfe_u32 {vr(TMP + 1)}, v0, 4, 1\nv_lshl_add_u32 {vr(TMP)}, {vr(TMP + 1)}, 5, {vr(TMP)}')
            A(f'v_and_b32 {vr(TMP + 1)}, 3, v0\nv_lshl_add_u32 {vr(TB)}, {vr(TMP + 1)}, 3, {vr(TMP)}')
            A(f'v_xor_b32 {vr(TB + 1)}, 32, {vr(TB)}\nv_add_u32 {vr(TB + 2)}, {4 * SLOT}, {vr(TB)}\nv_add_u32 {vr(TB + 3)}, {4 * SLOT}, {vr(TB + 1)}')
            A(f's_mul_i32 {sr(S_C1)}, {sr(S_W)}, 3072')
            map2(A, cfg)
            A(f's_lshr_b32 {sr(S_STAG)}, s2, 3\ns_and_b32 {sr(T0)}, s2, 1\ns_mul_i32 {sr(T0)}, {sr(T0)}, {cfg.nstag // 2}\ns_add_u32 {sr(S_STAG)}, {sr(S_STAG)}, {sr(T0)}')
            A(f's_and_b32 {sr(S_STAG)}, {sr(S_STAG)}, {cfg.nstag - 1}')
            A(f's_lshl2_add_u32 {sr(T1)}, {sr(S_RT)}, {sr(S_W)}\ns_mul_i32 {sr(T1)}, {sr(T1)}, {KSP}')
            A(f's_lshl1_add_u32 {sr(T1)}, {sr(S_U0)}, {sr(T1)}\ns_add_u32 {sr(T1)}, {sr(T1)}, 64\ns_lshl_b32 {sr(S_GST)}, {sr(T1)}, 11')
            flag_addr(A, S_GFL, GF)
            poll_base(A, GF)
    A.stamp('issued0')
    A.wait_lg_all()
    A(f's_add_u32 {sr(S_TAG)}, {sr(S_TAG)}, 0x9E3779B1')
    for i in range(8):
        A.wait_vm(f'blk{i}')
        A.wait_lg_all()
        A('s_barrier')
        A.stamp(f'A{i}')
        for kk in range(2):
            for a in range(2):
                A.ds(f'ds_read_b128 {vr(XR + 16 * i + 8 * kk + 4 * a, 4)}, {vr(AX + 2 * ((i >> 1) & 1) + kk)} offset:{(i % 2) * SLOT + 2048 * a}', 'x')
        b = i + D
        if b < 8:
            issue_a(A, b, VX, VB)
        elif b + 1 - 8 < cfg.p2w:
            issue_w(A, b + 1, VW, S_C1)
        if cfg.stag0 <= i < cfg.stag0 + cfg.nstag:
            A(f's_cmp_lg_u32 {sr(S_STAG)}, {i - cfg.stag0}\ns_cbranch_scc1 L_now0_{i}')
            saved = list(A.vm)
            issue_w(A, 8, VW, S_C1)
            A.vm = saved
            A.label(f'L_now0_{i}')
    assert cfg.stag0 + cfg.nstag <= 8 - D
    A.wait_lg_all()
    if cfg.p1b:
        A(f's_setprio {cfg.p1b}')
    if cfg.stamps:
        A('s_mov_b32 s13, 0')

    def need(b):
        return (G1, b) if b < cfg.p2w else (G2, b)

    def rd(n, r):
        b, kk, j = n // 24, (n // 12) % 2, n % 12
        u, mat, fh = j >> 2, (j >> 1) & 1, j & 1
        if n % 24 == 0 and r == 0:
            if b == 0:
                A(f's_waitcnt vmcnt({len(A.vm)})')
                A('s_barrier')
            else:
                A(f's_cbranch_vccnz L_slow{b}')
                A.label(f'L_back{b}')
            if b in (0, 2, 4, 5, 7):
                A.stamp(f'B{b}')
        slot = WSLOT[b]
        off = (slot % 2) * SLOT + mat * 12288 + (32 * kk + 4 * r) * 192 + u * 64
        A.ds(f'ds_read_b64_tr_b16 {vr(WB + 4 * (n % 6) + 2 * r, 2)}, {vr(TB + 2 * (slot // 4) + fh)} offset:{off}', f'w{n}')
    for n in range(5):
        rd(n, 0)
        rd(n, 1)
    for n in range(192):
        ks, j = n // 12, n % 12
        b, m = n // 24, n % 24
        acc = ACC + 32 * (j >> 2) + 16 * ((j >> 1) & 1) + 4 * (j & 1)
        if n % 2 == 0:
            A.wait_lg(f'w{n + 1}')
        mf16(A, acc, WB + 4 * (n % 6), XR + 8 * ks, ks == 0)
        if n + 5 < 192:
            rd(n + 5, 0)
        if m == cfg.post_at:
            A(f'v_mov_b32 {vr(VPT)}, {b + 1}')
        elif m == cfg.post_at + 1:
            A.wait_vm(f'blk{8 + b + 1}')
        elif m == cfg.post_at + 2:
            A.ds(f'ds_write_b32 {vr(VPW)}, {vr(VPT)}')
        elif m == cfg.peek_at and b < 7:
            A.ds(f'ds_read_b32 {vr(VPT)}, {vr(VPR)} offset:{need(b + 1)[0]}', 'pg')
        elif m == 17 and b < 7:
            A.wait_lg('pg')
            A(f'v_cmp_gt_u32 vcc, {need(b + 1)[1]}, {vr(VPT)}')
        mf16(A, acc + 8, WB + 4 * (n % 6), XR + 8 * ks + 4, ks == 0)
        if n + 5 < 192:
            rd(n + 5, 1)
    post(A, VPW, VPT, 9)
    if cfg.p1b:
        A('s_setprio 0')
    A.stamp('E')
    if cfg.stamps:
        A('v_writelane_b32 v7, s13, 61')
    VST = 1
    A('v_mbcnt_lo_u32_b32 v0, -1, 0\nv_mbcnt_hi_u32_b32 v0, -1, v0')
    lane_pat(A, VST, 2, sr(S_GST))
    A(f's_mov_b32 {sr(S_C0)}, {NLOG2E}\ns_mov_b32 {sr(S_C0 + 1)}, {NLOG2E}\ns_mov_b32 s8, 1.0\ns_mov_b32 s9, 1.0')
    for u in range(3):
        G, U, P = ACC + 32 * u, ACC + 32 * u + 16, WB + 8 * u
        if u == 2:
            A(f's_and_b32 {sr(T0)}, {sr(S_CG)}, 3\ns_cmp_eq_u32 {sr(T0)}, 3\ns_cbranch_scc1 L_no_u2')
        for r in range(0, 16, 2):
            A(f'v_pk_mul_f32 {vr(U + r, 2)}, {vr(G + r, 2)}, {vr(U + r, 2)}')
        for r in range(0, 16, 2):
            A(f'v_pk_mul_f32 {vr(G + r, 2)}, {vr(G + r, 2)}, {sr(S_C0, 2)}')
        for r in range(16):
            A(f'v_exp_f32 {vr(G + r)}, {vr(G + r)}')
        for r in range(0, 16, 2):
            A(f'v_pk_add_f32 {vr(G + r, 2)}, {vr(G + r, 2)}, s[8:9]')
        for r in range(16):
            A(f'v_rcp_f32 {vr(G + r)}, {vr(G + r)}')
        for r in range(0, 16, 2):
            A(f'v_pk_mul_f32 {vr(U + r, 2)}, {vr(G + r, 2)}, {vr(U + r, 2)}')
        for r in range(0, 16, 2):
            A(f'v_cvt_pk_bf16_f32 {vr(P + r // 2)}, {vr(U + r)}, {vr(U + r + 1)}')
        if cfg.fine:
            A.stamp(f'u{u}')
        if cfg.prio:
            A('s_setprio 3')
        for n in range(2 * u, 2 * u + 2):
            A.vmem(f'buffer_store_dwordx4 {vr(WB + 4 * n, 4)}, {vr(VST)}, {sr(R_WS, 4)}, {fo(n)} sc1', 'gu')
        if cfg.prio:
            A('s_setprio 0')
    A.label('L_no_u2')
    A.stamp('epi')
    A(f's_cmp_eq_u32 {sr(S_CG)}, 15\ns_cbranch_scc1 L_gate_ld')
    A.label('L_gate_ld_back')
    ACC2 = 32
    RW, RR, RF, RO, VA, VD, AW, TMP = 96, 97, 100, 101, 102, 106, 110, 118
    A(f's_add_u32 {sr(S_MB)}, {sr(S_MB)}, {P1B}')
    wd_voffs(A, VD, TMP)
    A(f's_mul_i32 {sr(T0)}, {sr(S_W)}, 22\ns_add_u32 {sr(T0)}, {sr(T0)}, 64')
    act_voffs(A, VA, TMP, T0)
    A(f'v_lshl_add_u32 {vr(RW)}, v0, 4, {sr(S_MB)}')
    for a in (1, 2, 3):
        A(f'v_xor_b32 {vr(RR + a - 1)}, {a << 12}, {vr(RW)}')
    A(f'v_subrev_u32 {vr(RF)}, {P1B - P2B}, {vr(RR)}')
    out_voff(A, RO, TMP, 0)
    A(f'v_lshrrev_b32 {vr(TMP)}, 2, v0\nv_bfe_u32 {vr(TMP + 1)}, v0, 3, 2\ns_lshl_b32 {sr(T0)}, {sr(S_KAP)}, 1\nv_xor_b32 {vr(TMP + 1)}, {sr(T0)}, {vr(TMP + 1)}')
    A(f'v_lshlrev_b32 {vr(TMP + 1)}, 5, {vr(TMP + 1)}\nv_lshl_add_u32 {vr(TMP)}, {vr(TMP)}, 7, {vr(TMP + 1)}')
    A(f'v_and_b32 {vr(TMP + 1)}, 3, v0\nv_lshl_add_u32 {vr(TMP)}, {vr(TMP + 1)}, 3, {vr(TMP)}\nv_add_u32 {vr(AW)}, {sr(S_MB)}, {vr(TMP)}')
    A(f'v_mov_b32 v2, {sr(S_TAG)}\nv_lshlrev_b32 v3, 2, v0')
    A.wait_vm_all()
    if cfg.prio:
        A('s_setprio 3')
    A('s_mov_b32 exec_hi, 0')
    A.vmem(f'buffer_store_dword v2, v3, {sr(R_WS, 4)}, {sr(S_GFL)} offen sc1', 'fl')
    A('s_mov_b64 exec, -1')
    if cfg.prio:
        A('s_setprio 0')
    A.stamp('guflag')
    A(f's_cmp_eq_u32 {sr(S_CG)}, 15\ns_cbranch_scc1 L_gate')
    A.label('L_gate_back')
    AW0 = AW
    AW = 8
    for n in range(4):
        A(f'v_xor_b32 {vr(AW + n)}, {n << 5}, {vr(AW0)}')
        A(f'v_add_u32 {vr(AW + 4 + n)}, 0x10000, {vr(AW + n)}')
    WR, NR = 112, cfg.wres
    AB = WR + 16 * NR
    NB = (256 - AB) // 4
    ORD = (1, 2, 3, 0)

    NT = cfg.ntail
    seq = [(p, ap) for p in range(11 - NT) for ap in ORD] + [(p, ap) for ap in ORD for p in range(11 - NT, 11)]
    assert NT <= min(NR - 1, 4)

    def ld_act(f):
        p, ap = seq[f]
        so = S_OA if p < 11 - NT else 56 + p - (11 - NT)
        if ap == ORD[0]:
            unit_off(A, so, p, 12)
        A.vmem(f'buffer_load_dwordx4 {vr(AB + 4 * (f % NB), 4)}, {vr(VA + ap)}, {sr(R_WS, 4)}, {sr(so)} offen sc1', f'act{f}')

    def rd_wd(p, ns=range(4)):
        A.wait_vm(f'wd{p}')
        for n in ns:
            for r in range(2):
                off = (p % 6) * 16384 + r * 2048
                A.ds(f'ds_read_b64_tr_b16 {vr(WR + 16 * (p % NR) + 4 * n + 2 * r, 2)}, {vr(AW + n + 4 * (off >> 16))} offset:{off & 0xffff}', f'wf{p}')
    await_(A, 'cntW', VPW, VPT, G2 - G1, E_WD)
    A.stamp('wdok')
    for p in range(NR):
        rd_wd(p, (0, 1))
        if p:
            A.wait_lg(f'wf{p - 1}')
        rd_wd(p, (2, 3))
    A.wait_lg_all()
    NP = min(cfg.npre, NR)
    if NP == 0:
        spoll(A, 'gu', cfg, FL8, mode='issue')
    for p in range(NP):
        if p == max(0, NP - cfg.gpl):
            spoll(A, 'gu', cfg, FL8, mode='issue')
        dma_wd(A, 6 + p, VD, S_MB, R_E)
    A.stamp('wres')
    spoll(A, 'gu', cfg, FL8, mode='check')
    A.stamp('gupoll')
    nf = 0
    while nf < NB:
        ld_act(nf)
        nf += 1
    if cfg.prio and cfg.pF:
        A(f's_setprio {cfg.pF}')
    nd = 6 + NP
    wq = []

    def wr(k):
        while k and wq:
            a, j = wq.pop(0)
            A.ds(f'ds_write_b128 {vr(RW)}, {vr(ACC2 + 16 * a + 4 * j, 4)} offset:{((a - 1) % 4) * 16384 + j * 1024}')
            k -= 1
    for f, (p, ap) in enumerate(seq):
        if ap == ORD[0]:
            A.wait_lg(f'wf{p}')
            if nd < 11 and nd - 6 <= max(p, NR - 1):
                dma_wd(A, nd, VD, S_MB, R_E)
                nd += 1
        A.wait_vm(f'act{f}')
        for n in range(4):
            mf16(A, ACC2 + 16 * ap + 4 * n, AB + 4 * (f % NB), WR + 16 * (p % NR) + 4 * n, p == 0)
            if f > 44 - 3 * NT and (p > 11 - NT or NT == 1) and n % 2 == 1:
                wr(1 if NT > 2 else 2)
        if nf < 44:
            ld_act(nf)
            nf += 1
        pn = p - 1 + NR
        if p >= 1 and pn < 11:
            assert pn < nd and p < 11 - NT
            rd_wd(pn, (ORD.index(ap),))
        if p == 10:
            wq += [(ap, j) for j in (range(4) if ap else (2, 3))]
        if ap == ORD[-1] and (p in (0, 5) or cfg.fine):
            A.stamp(f'F{p}')
    A.stamp('Fend')
    PB = 112
    if len(wq) < 10:
        wr(len(wq) - 2)
        A('s_nop 7')
    wr(100)
    A.wait_lg_all()
    A('s_barrier')
    A.stamp('X2')
    A.ds(f'ds_read_b128 {vr(PB + 32, 4)}, {vr(RF)} offset:2048', 'r0')
    for j in range(2):
        for a in (1, 2, 3):
            A.ds(f'ds_read_b128 {vr(PB + 8 * (a - 1) + 4 * j, 4)}, {vr(RR + a - 1)} offset:{(a - 1) * 16384 + j * 1024}', f'r{j}')
        A.ds(f'ds_read_b128 {vr(PB + 24 + 4 * j, 4)}, {vr(RF)} offset:{j * 1024}', f'r{j}')
    for j in range(2):
        A.wait_lg(f'r{j}')
        for r in range(4 * j, 4 * j + 4, 2):
            A(f'v_pk_add_f32 {vr(ACC2 + r, 2)}, {vr(ACC2 + r, 2)}, {vr(PB + r, 2)}')
            A(f'v_pk_add_f32 {vr(PB + 8 + r, 2)}, {vr(PB + 8 + r, 2)}, {vr(PB + 16 + r, 2)}')
        for r in range(4 * j, 4 * j + 4, 2):
            A(f'v_pk_add_f32 {vr(ACC2 + r, 2)}, {vr(ACC2 + r, 2)}, {vr(PB + 8 + r, 2)}')
        for r in range(4 * j, 4 * j + 4, 2):
            A(f'v_pk_fma_f32 {vr(ACC2 + r, 2)}, {vr(ACC2 + r, 2)}, {vr(PB + 32 + r % 4, 2)}, {vr(PB + 24 + r, 2)}')
        for r in range(4):
            A.vmem(f'buffer_store_dword {vr(ACC2 + 4 * j + r)}, {vr(RO)}, {sr(R_O, 4)}, {k4(r // 2)} offen offset:{2048 * (r % 2) + 64 * j} {cfg.out_flags}')
    A.stamp('stored')
    if cfg.stamps:
        A.wait_vm_all()
        A.stamp('done')
    A.dump_stamps(0)
    A('s_endpgm')

    for b in range(1, 8):
        A.label(f'L_slow{b}')
        if cfg.stamps:
            A(f's_add_u32 s13, s13, {1 << (4 * b)}')
        A(f'ds_read_b32 {vr(VPT)}, {vr(VPR)} offset:{need(b)[0]}\ns_waitcnt lgkmcnt(0)')
        A(f'v_cmp_gt_u32 vcc, {need(b)[1]}, {vr(VPT)}\ns_cbranch_vccnz L_slow{b}\ns_branch L_back{b}')

    A.label('L_gate_ld')
    srd(A, R_B, 30, 1024)
    A('v_lshrrev_b32 v2, 4, v0\nv_lshlrev_b32 v2, 4, v2')
    for ks in range(16):
        if ks % 2 == 0:
            A(f's_bfe_u32 {sr(S_OA)}, {sr(S_RHO)}, {(3 << 16) | (2 * ks)}\ns_lshl_b32 {sr(S_OA)}, {sr(S_OA)}, 7')
        A(f'buffer_load_dwordx4 {vr(32 + 4 * ks, 4)}, v2, {sr(R_B, 4)}, {sr(S_OA)} offen offset:{64 * (ks % 2)}')
    A('s_branch L_gate_ld_back')
    A.label('L_gate')
    for ks in range(16):
        for a in range(2):
            mf16(A, 16 + 4 * a, 32 + 4 * ks, XR + 8 * ks + 4 * a, ks == 0)
    A('v_bfe_u32 v10, v0, 2, 1\nv_bfe_u32 v11, v0, 3, 2\nv_and_b32 v12, 3, v0\nv_lshl_add_u32 v11, v11, 2, v12\nv_lshl_add_u32 v10, v10, 4, v11\nv_lshlrev_b32 v10, 3, v10')
    A(f's_lshl2_add_u32 {sr(T1)}, {sr(S_RT)}, {sr(S_W)}\ns_lshl_b32 {sr(T1)}, {sr(T1)}, 10\ns_add_u32 {sr(T1)}, {sr(T1)}, {GAT}')
    A('s_mov_b32 vcc_lo, 0xffff0000\ns_mov_b32 vcc_hi, 0\nv_cndmask_b32 v8, v16, v20, vcc')
    A('v_cvt_pk_bf16_f32 v8, v8, v8\nv_lshlrev_b32 v8, 16, v8')
    A(f'v_mul_f32 v8, {NLOG2E}, v8\nv_exp_f32 v8, v8\ns_nop 0\nv_add_f32 v8, 1.0, v8\nv_rcp_f32 v8, v8\ns_nop 0')
    A(f'v_cvt_pk_bf16_f32 v8, v8, v8\nv_lshlrev_b32 v24, 16, v8\nv_mov_b32 v25, {sr(S_TAG)}\nv_mov_b32 v26, v10')
    A('s_mov_b32 exec_hi, 0')
    A(f'buffer_store_dwordx2 v[24:25], v26, {sr(R_WS, 4)}, {sr(T1)} offen sc1')
    A('s_mov_b64 exec, -1')
    A('s_branch L_gate_back')
    return A


def gen_p2(cfg):
    A = WS(cfg, 31)
    VC, VD, VST, VPF, VXS, AC, VPW, VPR, VPT, VA, RA, VG, RO, XA, DA = 1, 5, 9, 10, 12, 13, 15, 16, 17, 18, 22, 26, 27, 28, 30
    U, V = 32, 48
    SC = 64
    LR, LI, L16R, L16I, L32R, L32I, KR, KI, LCR, LCI = range(80, 90)
    WQ, WSR, WSI, SEL, VW, VPQ, VEX, VEXW, VPUB = 90, 94, 95, 96, 104, 107, 109, 110, 111
    TMP = 112
    AX, AB = 128, 136
    FB = (144, 192)
    CR = 128
    A.label('L_p2')
    if cfg.stamps:
        A('v_mov_b32 v31, 0')
    A.stamp('start')
    rho_pre(A, cfg, S_RHO, T0)
    A(f'v_and_b32 {vr(TMP + 4)}, 15, v0\nv_lshlrev_b32 {vr(TMP + 4)}, 2, {vr(TMP + 4)}\nv_add_u32 {vr(TMP + 4)}, {X_CNT}, {vr(TMP + 4)}\nv_mov_b32 {vr(TMP + 6)}, 0')
    A.ds(f'ds_write_b32 {vr(TMP + 4)}, {vr(TMP + 6)}')
    frag_addr(A, AB, TMP + 8)
    A(f's_lshl_b32 {sr(S_MB)}, {sr(S_W)}, 12')
    for s in range(4):
        A(f'v_add_u32 {vr(AX + s)}, {sr(S_MB)}, {vr(AB + s)}')
        A(f'v_add_u32 {vr(AX + 4 + s)}, {2 * SLOT}, {vr(AX + s)}')
        A(f'v_add_u32 {vr(AB + 4 + s)}, {2 * SLOT}, {vr(AB + s)}')
    A.wait_lg_all()
    load_tag(A)
    map2(A, cfg)
    srd(A, R_O, 28, 1376 * 1024)
    srd(A, R_WG, 24, 512 * 2752)
    srd(A, R_WU, 26, 512 * 2752)
    srd(A, R_WS, 36, WS_SIZE)
    srd(A, R_X, 4, 2048 * 1024)
    srd(A, R_B, 14, 512 * 1024)
    srd(A, R_E, 16, 512 * 1024)
    A(f's_bitcmp1_b32 {sr(S_ROT)}, 0\ns_cselect_b32 {sr(R_B)}, s16, s14\ns_cselect_b32 {sr(R_B + 1)}, s17, s15\ns_cselect_b32 {sr(R_E)}, s14, s16\ns_cselect_b32 {sr(R_E + 1)}, s15, s17')
    consts(A)
    first_unit(A)
    N0, N1, NS = TMP + 4, TMP + 5, TMP + 6
    LRE, LIM, DT, A2, BR = TMP + 1, TMP + 2, TMP + 3, TMP + 7, TMP + 12
    t0, t1, t2, t3 = TMP + 8, TMP + 9, TMP + 10, TMP + 11

    def setup_a():
        A(f'v_and_b32 {vr(TMP)}, 0x13, v0\nv_bfe_u32 {vr(t0)}, v0, 2, 1\nv_lshl_add_u32 {vr(TMP)}, {vr(t0)}, 3, {vr(TMP)}\nv_bfe_u32 {vr(t0)}, v0, 3, 1\nv_lshl_add_u32 {vr(TMP)}, {vr(t0)}, 2, {vr(TMP)}')
        A(f'v_lshlrev_b32 {vr(TMP)}, 1, {vr(TMP)}\nv_add_u32 {vr(TMP)}, {X_PAR}, {vr(TMP)}')
        wffn_voffs(A, VW, t0)
        A(f's_mul_i32 {sr(S_MB2)}, {sr(S_W)}, 3072')
        A(f's_add_u32 {sr(S_MB)}, {sr(S_MB)}, {P1B}')
        frag16_addr(A, AC, t0)
        A(f'v_add_u32 {vr(AC)}, {sr(S_MB)}, {vr(AC)}\nv_add_u32 {vr(AC + 1)}, {sr(S_MB)}, {vr(AC + 1)}')
        swz_consts(A, t0, t1, t2, t3)
        A(f's_lshl_b32 {sr(T0)}, {sr(S_N2)}, 16\ns_lshl_b32 {sr(T1)}, {sr(S_W)}, 8\ns_add_u32 {sr(T0)}, {sr(T0)}, {sr(T1)}')
        A(f'v_lshl_add_u32 {vr(t0)}, {vr(t0)}, 10, {sr(T0)}')
        A(f'v_add_u32 {vr(VC)}, {vr(t0)}, {vr(t1)}\nv_add_u32 {vr(VC + 1)}, {vr(t0)}, {vr(t2)}')
        A(f'v_add_u32 {vr(VC + 2)}, {2 * 7168}, {vr(VC)}\nv_add_u32 {vr(VC + 3)}, {3 * 7168}, {vr(VC + 1)}\nv_add_u32 {vr(VC + 1)}, 7168, {vr(VC + 1)}')
        A(f's_lshl_b32 {sr(S_GST)}, {sr(S_KAP)}, 15\ns_xor_b32 {sr(S_WDO)}, {sr(S_GST)}, 0x8000')
        A(f'v_and_b32 {vr(VEX)}, 31, v0\nv_lshlrev_b32 {vr(VEX)}, 3, {vr(VEX)}\nv_add_u32 {vr(VEX)}, {X_EX}, {vr(VEX)}')
        A(f's_lshl_b32 {sr(T0)}, {sr(S_W)}, 8\nv_add_u32 {vr(VEXW)}, {sr(T0)}, {vr(VEX)}')
        A(f's_lshl_b32 {sr(T0)}, {sr(S_W)}, 2\ns_lshl_b32 {sr(T1)}, {sr(S_CG)}, 14\ns_add_u32 {sr(T1)}, {sr(T1)}, {AGG}')
        A(f'v_and_b32 {vr(t0)}, 15, v0\nv_lshl_add_u32 {vr(t0)}, {vr(t0)}, 4, {sr(T1)}\nv_bfe_u32 {vr(t3)}, v0, 4, 1\nv_lshl_add_u32 {vr(t0)}, {vr(t3)}, 9, {vr(t0)}')
        A(f'v_lshrrev_b32 {vr(t3)}, 5, v0')
        A(f'v_mov_b32 {vr(t2)}, {OOB}')
        for j in range(2):
            A(f'v_add_u32 {vr(t1)}, {sr(T0)}, {vr(t3)}')
            if j:
                A(f'v_add_u32 {vr(t1)}, 2, {vr(t1)}')
            A(f'v_cmp_gt_u32 vcc, {sr(S_RT)}, {vr(t1)}')
            A(f'v_lshl_add_u32 {vr(VPQ + j)}, {vr(t1)}, 10, {vr(t0)}')
            A(f'v_sub_u32 {vr(N0 + j)}, {sr(S_RT)}, {vr(t1)}')
            A(f'v_cndmask_b32 {vr(VPQ + j)}, {vr(t2)}, {vr(VPQ + j)}, vcc')
            A(f'v_add_u32 {vr(N0 + j)}, -1, {vr(N0 + j)}\nv_max_i32 {vr(N0 + j)}, 0, {vr(N0 + j)}\nv_lshlrev_b32 {vr(N0 + j)}, 7, {vr(N0 + j)}\nv_cvt_f32_i32 {vr(N0 + j)}, {vr(N0 + j)}')
        A(f's_lshl_b32 {sr(T0)}, {sr(S_W)}, 5\nv_lshl_add_u32 {vr(NS)}, {vr(t3)}, 4, {sr(T0)}\nv_cvt_f32_i32 {vr(NS)}, {vr(NS)}')
        A(f's_lshl4_add_u32 {sr(T0)}, {sr(S_CG)}, {sr(S_RT)}\ns_lshl_b32 {sr(T0)}, {sr(T0)}, 10\ns_add_u32 {sr(T0)}, {sr(T0)}, {AGG}')
        A(f's_cmp_eq_u32 {sr(S_W)}, 0\ns_cselect_b32 {sr(T0)}, {sr(T0)}, {OOB}')
        lane_pat(A, VPUB, t0, sr(T0))
        prog_addrs(A, VPW, VPR, G2)
        A(f's_mul_i32 {sr(T1)}, s2, 43\ns_mul_i32 {sr(T0)}, {sr(S_W)}, 11\ns_add_u32 {sr(T0)}, {sr(T0)}, {sr(T1)}\ns_lshl_b32 {sr(T0)}, {sr(T0)}, 7')
        A(f'v_min_u32 {vr(VPF)}, 10, v0\nv_lshl_add_u32 {vr(VPF)}, {vr(VPF)}, 7, {sr(T0)}')
        if cfg.c3pf and 'p3' not in cfg.sched:
            A(f's_lshr_b32 {sr(T1)}, s2, 3\ns_mul_i32 {sr(T1)}, {sr(T1)}, 43\ns_mul_i32 {sr(T0)}, {sr(S_W)}, 11\ns_add_u32 {sr(T0)}, {sr(T0)}, {sr(T1)}\ns_lshl_b32 {sr(T0)}, {sr(T0)}, 10\ns_add_u32 {sr(T0)}, {sr(T0)}, {384 - 32 * 1024}')
            A(f'v_min_u32 {vr(t1)}, 42, v0\nv_lshl_add_u32 {vr(t1)}, {vr(t1)}, 10, {sr(T0)}\ns_mov_b32 vcc_hi, -1\ns_mov_b32 vcc_lo, 0\nv_cndmask_b32 {vr(VPF)}, {vr(VPF)}, {vr(t1)}, vcc')

    def setup_b():
        flag_addr(A, S_GFL, HF)
        poll_base(A, HF)
        A(f'v_bfe_u32 {vr(t0)}, v0, 3, 2\nv_bfe_u32 {vr(t1)}, v0, 1, 1\nv_lshl_add_u32 {vr(t0)}, {vr(t0)}, 1, {vr(t1)}')
        A(f'v_bfe_u32 {vr(t1)}, v0, 2, 1\nv_lshrrev_b32 {vr(t2)}, 5, v0\nv_xor_b32 {vr(t1)}, {vr(t1)}, {vr(t2)}\nv_lshl_add_u32 {vr(t0)}, {vr(t1)}, 3, {vr(t0)}')
        A(f'v_and_b32 {vr(t1)}, 1, v0\nv_lshlrev_b32 {vr(t1)}, 4, {vr(t1)}\nv_mov_b32 {vr(t2)}, 0x3f80\nv_lshlrev_b32 {vr(t1)}, {vr(t1)}, {vr(t2)}')
        for r in range(0, 8, 2):
            A(f'v_cmp_eq_u32 vcc, {r}, {vr(t0)}\nv_cmp_eq_u32 s[8:9], {r + 1}, {vr(t0)}\ns_nop 0')
            A(f'v_cndmask_b32 {vr(SEL + r)}, 0, {vr(t1)}, vcc\nv_cndmask_b32 {vr(SEL + r + 1)}, 0, {vr(t1)}, s[8:9]')
        A(f's_lshl2_add_u32 {sr(T1)}, {sr(S_RT)}, {sr(S_W)}\ns_mul_i32 {sr(T1)}, {sr(T1)}, {KSP}')
        A(f's_and_b32 {sr(T0)}, {sr(S_CG)}, 14\ns_lshl2_add_u32 {sr(T1)}, {sr(T0)}, {sr(T1)}\ns_and_b32 {sr(T0)}, {sr(S_CG)}, 1\ns_lshl1_add_u32 {sr(T1)}, {sr(T0)}, {sr(T1)}\ns_lshl_b32 {sr(T1)}, {sr(T1)}, 11')
        A(f'v_and_b32 {vr(t0)}, 15, v0\nv_lshl_add_u32 {vr(t0)}, {vr(t0)}, 4, {sr(T1)}\nv_bfe_u32 {vr(t1)}, v0, 4, 1\nv_lshl_add_u32 {vr(t0)}, {vr(t1)}, 11, {vr(t0)}')
        A(f'v_lshrrev_b32 {vr(t1)}, 5, v0\nv_lshl_add_u32 {vr(VST)}, {vr(t1)}, 9, {vr(t0)}')
        wd_voffs(A, VD, t0)

    def setup_c():
        A(f's_lshl_b32 {sr(T0)}, {sr(S_W)}, 4')
        act_voffs(A, VA, t0, T0)
        A(f's_lshl_b32 {sr(T0)}, {sr(S_W)}, 12\nv_lshl_add_u32 {vr(RA)}, v0, 4, {sr(T0)}')
        for a in (1, 2, 3):
            A(f'v_xor_b32 {vr(RA + a)}, {a << 12}, {vr(RA)}')
        out_voff(A, RO, t0, 1)
        row0(A, VG, t0)
        A(f's_lshr_b32 {sr(T0)}, {sr(S_W)}, 1\ns_lshl1_add_u32 {sr(T0)}, {sr(S_M2)}, {sr(T0)}\ns_lshl_b32 {sr(T0)}, {sr(T0)}, 10\ns_and_b32 {sr(T1)}, {sr(S_W)}, 1\ns_lshl_b32 {sr(T1)}, {sr(T1)}, 6')
        A(f's_add_u32 {sr(T0)}, {sr(T0)}, {sr(T1)}\ns_add_u32 {sr(T0)}, {sr(T0)}, {GAT}\nv_lshl_add_u32 {vr(VG)}, {vr(VG)}, 3, {sr(T0)}')
        tile_row(A, T0)
        A(f's_lshl_b32 {sr(T0)}, {sr(T0)}, 10\ns_lshl_b32 {sr(T1)}, {sr(S_N2)}, 7\ns_add_u32 {sr(T0)}, {sr(T0)}, {sr(T1)}')
        A(f'v_and_b32 {vr(t0)}, 7, v0\nv_lshl_add_u32 {vr(t0)}, {vr(t0)}, 4, {sr(T0)}\nv_lshrrev_b32 {vr(VXS)}, 3, v0\nv_lshl_add_u32 {vr(VXS)}, {vr(VXS)}, 10, {vr(t0)}')
        A(f's_lshl_b32 {sr(T0)}, {sr(S_KAP)}, 6\nv_and_b32 {vr(t0)}, 15, v0\nv_lshl_add_u32 {vr(t0)}, {vr(t0)}, 1, {sr(T0)}\nv_add_u32 {vr(DA)}, {sr(T1)}, {vr(t0)}')
        A(f's_lshl_b32 {sr(T0)}, {sr(S_W)}, 11\ns_add_u32 {sr(T0)}, {sr(T0)}, {X_XS}\nv_add_u32 {vr(t0)}, {sr(T0)}, {vr(t0)}')
        A(f'v_bfe_u32 {vr(t1)}, v0, 4, 1\nv_lshl_add_u32 {vr(t0)}, {vr(t1)}, 10, {vr(t0)}\nv_lshrrev_b32 {vr(t1)}, 5, v0\nv_lshl_add_u32 {vr(XA)}, {vr(t1)}, 9, {vr(t0)}\nv_xor_b32 {vr(XA + 1)}, 64, {vr(XA)}')
    setup_a()
    if cfg.pre_b:
        setup_b()
    A.wait_lg_all()
    A(f's_add_u32 {sr(S_TAG)}, {sr(S_TAG)}, 0x9E3779B1')
    A.stamp('setup')

    def cpow(dr, di, n):
        A(f'v_mul_f32 {vr(t0)}, {n}, {vr(A2)}\nv_mul_f32 {vr(t1)}, {n}, {vr(BR)}')
        A(f'v_exp_f32 {vr(t0)}, {vr(t0)}\nv_fract_f32 {vr(t1)}, {vr(t1)}')
        A(f'v_cos_f32 {vr(dr)}, {vr(t1)}\nv_sin_f32 {vr(di)}, {vr(t1)}')
        A(f'v_mul_f32 {vr(dr)}, {vr(t0)}, {vr(dr)}\nv_mul_f32 {vr(di)}, {vr(t0)}, {vr(di)}')

    def lam(i):
        if i == 0:
            for r in (LRE, LIM, DT):
                A(f'v_lshlrev_b32 {vr(r)}, 16, {vr(r)}')
            A(f'v_mul_f32 {vr(DT)}, {LOG2E}, {vr(DT)}\nv_exp_f32 {vr(DT)}, {vr(DT)}\ns_nop 0')
            A(f'v_cvt_pk_bf16_f32 {vr(DT)}, {vr(DT)}, {vr(DT)}\nv_lshlrev_b32 {vr(DT)}, 16, {vr(DT)}')
            A(f'v_mul_f32 {vr(A2)}, {vr(DT)}, {vr(LRE)}\nv_mul_f32 {vr(BR)}, {vr(DT)}, {vr(LIM)}')
            A(f'v_mul_f32 {vr(A2)}, {LOG2E}, {vr(A2)}\nv_mul_f32 {vr(BR)}, {INV2PI}, {vr(BR)}')
            cpow(LR, LI, '1.0')
            cpow(L16R, L16I, '0x41800000')
        if i == 1:
            cpow(L32R, L32I, '0x42000000')
        if i == 2:
            cpow(WQ, WQ + 1, vr(N0))
        if i == 3:
            cpow(WQ + 2, WQ + 3, vr(N1))
        if i == 4:
            cpow(WSR, WSI, vr(NS))
        if i == 5:
            A(f'v_mul_f32 {vr(t0)}, {vr(LRE)}, {vr(LRE)}\nv_fmac_f32 {vr(t0)}, {vr(LIM)}, {vr(LIM)}\nv_rcp_f32 {vr(t0)}, {vr(t0)}')
            A(f'v_add_f32 {vr(t1)}, -1.0, {vr(LR)}\nv_add_f32 {vr(t0)}, {vr(t0)}, {vr(t0)}')
            A(f'v_mul_f32 {vr(KR)}, {vr(t1)}, {vr(LRE)}\nv_fmac_f32 {vr(KR)}, {vr(LI)}, {vr(LIM)}')
            A(f'v_mul_f32 {vr(KI)}, {vr(LI)}, {vr(LRE)}\nv_fma_f32 {vr(KI)}, -{vr(t1)}, {vr(LIM)}, {vr(KI)}')
            A(f'v_mul_f32 {vr(KR)}, {vr(t0)}, {vr(KR)}\nv_mul_f32 {vr(KI)}, {vr(t0)}, {vr(KI)}')

    l0 = len(A.lines)
    if not cfg.pre_b:
        setup_b()
    setup_c()
    nfree = len(A.lines) - l0
    for i in range(6):
        lam(i)
    work = A.lines[l0:]
    del A.lines[l0:]
    st = {'n': 0, 'ok': False}

    def fill(k):
        while k and work and (st['ok'] or st['n'] < nfree):
            A(work.pop(0))
            st['n'] += 1
            k -= 1

    def mm(i, s):
        xf, bf = FB[i % 2], FB[i % 2] + 16
        A.wait_lg(f'a{i}{s}')
        mfma(A, U, xf + 4 * s, bf + 8 * s, i == 0 and s == 0)
        fill(cfg.nfill)
        A.wait_lg(f'b{i}{s}')
        mfma(A, V, xf + 4 * s, bf + 8 * s + 4, i == 0 and s == 0)
        fill(cfg.nfill if s < 2 else cfg.nfill - 3)
    for i in range(8):
        A('s_barrier')
        so = (i % 2) * SLOT
        hi = (i >> 1) & 1
        xf, bf = FB[i % 2], FB[i % 2] + 16
        for s in range(4):
            A.ds(f'ds_read_b128 {vr(xf + 4 * s, 4)}, {vr(AX + 4 * hi + s)} offset:{so}', f'a{i}{s}')
            A.ds(f'ds_read_b128 {vr(bf + 8 * s, 4)}, {vr(AB + 4 * hi + s)} offset:{so + 16384}', f'a{i}{s}')
            A.ds(f'ds_read_b128 {vr(bf + 8 * s + 4, 4)}, {vr(AB + 4 * hi + s)} offset:{so + 20480}', f'b{i}{s}')
            if i and s < 2:
                mm(i - 1, 2 + s)
        if i == 1:
            for j, r in enumerate((LRE, LIM, DT)):
                A.ds(f'ds_read_u16 {vr(r)}, {vr(TMP)} offset:{256 * j}')
        mm(i, 0)
        mm(i, 1)
        A.wait_lg_all()
        if i == 0:
            fill(cfg.fill0)
        if i == 1:
            st['ok'] = True
        if i == 6:
            fill(1000)
    if cfg.prio:
        A(f's_setprio {cfg.p2b}')
    A('s_barrier')
    GR = SC + 12
    E0R, E0I, E1R, E1I = TMP + 2, TMP + 3, TMP + 4, TMP + 5
    EW = SC
    PA = SC + 8
    PW = TMP + 10
    PQ = SC
    Q = TMP
    PK = SC
    done = []

    def cfma(dr, di, ar, ai, br, bi, cr, ci):
        A(f'v_fma_f32 {vr(dr)}, {vr(ar)}, {vr(br)}, {vr(cr)}\nv_fma_f32 {vr(di)}, {vr(ar)}, {vr(bi)}, {vr(ci)}')
        A(f'v_fma_f32 {vr(dr)}, -{vr(ai)}, {vr(bi)}, {vr(dr)}\nv_fma_f32 {vr(di)}, {vr(ai)}, {vr(br)}, {vr(di)}')
        A.tick()

    def scale(rs):
        for r in rs:
            t = TMP + (r & 1)
            A(f'v_mul_f32 {vr(t)}, {vr(KI)}, {vr(V + r)}\nv_mul_f32 {vr(V + r)}, {vr(KR)}, {vr(V + r)}')
            A(f'v_fmac_f32 {vr(V + r)}, {vr(KI)}, {vr(U + r)}\nv_fma_f32 {vr(U + r)}, {vr(KR)}, {vr(U + r)}, -{vr(t)}')
            A.tick()

    def pl_agg():
        for j in range(2):
            A.vmem(f'buffer_load_dwordx4 {vr(PQ + 4 * j, 4)}, {vr(VPQ + j)}, {sr(R_WS, 4)}, 0 offen sc1', 'pagg')

    def ck_agg():
        for j in range(2):
            A(f'v_cmp_eq_u32 {sr(S_C0, 2)}, {sr(S_TAG)}, {vr(PQ + 4 * j + 1)}\nv_cmp_eq_u32 {sr(8, 2)}, {sr(S_TAG)}, {vr(PQ + 4 * j + 3)}')
            A(f'v_cmp_eq_u32 vcc, {OOB}, {vr(VPQ + j)}')
            A(f's_and_b64 {sr(S_C0, 2)}, {sr(S_C0, 2)}, {sr(8, 2)}\ns_or_b64 {sr(S_C0, 2)}, {sr(S_C0, 2)}, vcc')
            if j == 0:
                A(f's_mov_b64 {sr(T2, 2)}, {sr(S_C0, 2)}')
        A(f's_and_b64 {sr(S_C0, 2)}, {sr(S_C0, 2)}, {sr(T2, 2)}\ns_cmp_eq_u64 {sr(S_C0, 2)}, -1')

    def creg(t, n):
        return CR + 16 * t + 4 * n

    def pass2(rs):
        for r in rs:
            pr, pi = (TMP, TMP + 1) if r == 0 else (U + r - 1, V + r - 1)
            cfma(U + r, V + r, LR, LI, pr, pi, U + r, V + r)
            if r % 2:
                A(f'v_cvt_pk_bf16_f32 {vr(PK + r // 2)}, {vr(U + r - 1)}, {vr(U + r)}')
                A(f'v_cvt_pk_bf16_f32 {vr(PK + 8 + r // 2)}, -{vr(V + r - 1)}, -{vr(V + r)}')

    def after(*deps):
        for d in deps:
            assert d in done, (act, d)

    for act in cfg.sched.replace(',', ' ').split():
        bgd = act[0] == '+'
        act = act.lstrip('+')
        if act == '!':
            A.drain()
            continue
        assert act not in done, act
        k, n = act[0], int(act[1:]) if act[1:].isdigit() else None

        def emit(fn):
            if bgd:
                A.defer(fn)
            else:
                A.drain()
                A.low(fn)
        if k in 'rw' and n is not None:
            if any(t == {'r': f'c{n}', 'w': f'blk{8 + n}'}[k] for _, t in A.bg):
                A.drain()
        if k == 'c' and n is not None:
            if n >= 3:
                after(f'r{n - 3}')
                A.wait_lg(f'mc{n - 3}')

            def f(i=n >> 1, na=n & 1):
                A(f's_add_u32 m0, {sr(S_MB)}, {(n % 3) * 16384}')
                A(f's_add_u32 {sr(S_OA)}, {sr(S_ROT)}, {i}\ns_and_b32 {sr(S_OA)}, {sr(S_OA)}, 2\ns_lshl_b32 {sr(S_OA)}, {sr(S_OA)}, 6\ns_add_u32 {sr(S_OA)}, {sr(S_OA)}, {sr(S_WDO if na else S_GST)}')
                for j in range(4):
                    A.vmem(f'buffer_load_dwordx4 {vr(VC + j)}, {sr(R_E if i & 1 else R_B, 4)}, {sr(S_OA)} offen offset:{1024 * j} lds', f'c{n}')
            emit(f)
        elif k == 'r' and n is not None:
            after(f'c{n}', 'mm')
            A.wait_vm(f'c{n}')
            for kk in range(2):
                for b in range(2):
                    A.ds(f'ds_read_b128 {vr(creg((n >> 1) * 2 + kk, 2 * (n & 1) + b), 4)}, {vr(AC + kk)} offset:{(n % 3) * 16384 + 2048 * b}', f'mc{n}')
        elif k == 'W':
            if n == 7:
                after('w4')
            if n == 6 and cfg.p2w == 3:
                after('w3')
            if n >= 4:
                await_(A, f'pa{n - 2}', VPR, VPT, G1, n - 2)
            emit(lambda: issue_w(A, 8 + n, VW, S_MB2))
        elif k == 'w':
            after(f'W{n}')
            A.wait_vm(f'blk{8 + n}')
            post(A, VPW, VPT, n)
        elif k == 'd' and n is not None:
            if n < 3:
                pc = {0: 6, 1: 7, 2: 5}[n]
                after(f'r{pc}')
                A.wait_lg(f'mc{pc}')
            elif n == 3:
                after('w5')
                await_(A, 'pa6', VPR, VPT, G1, 6)
            elif n == 4:
                after('w6', 'd3')
                await_(A, 'pa7', VPR, VPT, G1, 7)
            else:
                after('d4')
            emit(lambda: dma_wd(A, n, VD, S_MB, R_O))
        elif act == 'pf':
            if cfg.w2pf:
                emit(lambda: A.vmem(f'buffer_load_dword {vr(VPF + 1)}, {vr(VPF)}, {sr(R_O, 4)}, 0 offen'))
        elif act == 'p3':
            after('pf')
            A.drain()
            A(f's_lshr_b32 {sr(T1)}, s2, 3\ns_mul_i32 {sr(T1)}, {sr(T1)}, 43\ns_mul_i32 {sr(T0)}, {sr(S_W)}, 11\ns_add_u32 {sr(T0)}, {sr(T0)}, {sr(T1)}\ns_lshl_b32 {sr(T0)}, {sr(T0)}, 10\ns_add_u32 {sr(T0)}, {sr(T0)}, 384')
            A(f'v_min_u32 {vr(VPF)}, 10, v0\nv_lshl_add_u32 {vr(VPF)}, {vr(VPF)}, 10, {sr(T0)}')
            A.vmem(f'buffer_load_dword {vr(VPF + 1)}, {vr(VPF)}, {sr(R_O, 4)}, 0 offen')
        elif act == 'mm':
            mm(7, 2)
            mm(7, 3)
            A(f'v_mov_b32 {vr(GR + 1)}, {sr(S_TAG)}\nv_mov_b32 {vr(GR + 3)}, {sr(S_TAG)}\ns_nop 9')
        elif act == 'p1':
            after('mm')
            pr, pi = U, V
            for r in range(1, 16):
                dr, di = TMP + 2 * (r % 2), TMP + 2 * (r % 2) + 1
                cfma(dr, di, LR, LI, pr, pi, U + r, V + r)
                pr, pi = dr, di
            assert (pr, pi) == (E0R, E0I)
            A(f'v_mov_b32 {vr(E1R)}, {vr(E0R)}\nv_mov_b32 {vr(E1I)}, {vr(E0I)}\ns_nop 1')
            A(f'v_permlane32_swap_b32 {vr(E0R)}, {vr(E1R)}\nv_permlane32_swap_b32 {vr(E0I)}, {vr(E1I)}')
            cfma(TMP + 6, TMP + 7, L16R, L16I, E0R, E0I, E1R, E1I)
            A.ds(f'ds_write_b64 {vr(VEXW)}, {vr(TMP + 6, 2)}')
            post(A, VPW, VPT, E_EX, G3 - G2)
        elif act == 'pub':
            after('p1')
            await_(A, 'ex', VPR, VPT, G3, E_EX)
            for w in range(4):
                A.ds(f'ds_read_b64 {vr(EW + 2 * w, 2)}, {vr(VEX)} offset:{256 * w}')
            A.wait_lg_all()
            cfma(PA, PA + 1, L32R, L32I, EW, EW + 1, EW + 2, EW + 3)
            cfma(PA + 2, PA + 3, L32R, L32I, PA, PA + 1, EW + 4, EW + 5)
            cfma(GR, GR + 2, L32R, L32I, PA + 2, PA + 3, EW + 6, EW + 7)
            A('s_mov_b32 exec_hi, 0')
            A.vmem(f'buffer_store_dwordx4 {vr(GR, 4)}, {vr(VPUB)}, {sr(R_WS, 4)}, 0 offen sc1')
            A('s_mov_b64 exec, -1')
        elif act == 'lc':
            after('pub')
            A(f'v_mov_b32 {vr(PW)}, 0\nv_mov_b32 {vr(PW + 1)}, 0')
            for w, src in ((1, EW), (2, PA), (3, PA + 2)):
                A(f's_cmp_eq_u32 {sr(S_W)}, {w}\ns_cselect_b64 vcc, -1, 0')
                A(f'v_cndmask_b32 {vr(PW)}, {vr(PW)}, {vr(src)}, vcc\nv_cndmask_b32 {vr(PW + 1)}, {vr(PW + 1)}, {vr(src + 1)}, vcc')
            cfma(LCR, LCI, L16R, L16I, PW, PW + 1, E0R, E0I)
            A('s_mov_b32 vcc_lo, -1\ns_mov_b32 vcc_hi, 0')
            A(f'v_cndmask_b32 {vr(LCR)}, {vr(LCR)}, {vr(PW)}, vcc\nv_cndmask_b32 {vr(LCI)}, {vr(LCI)}, {vr(PW + 1)}, vcc')
        elif k == 's':
            after('p1')
            assert 'car' not in done
            scale(range(8 * n, 8 * n + 8))
        elif act == 'poll':
            after('lc')
            pl_agg()
        elif act == 'q':
            after('poll')
            A.drain()
            A.wait_vm('pagg')
            hiw = max([int(d[1]) for d in done if d[0] == 'W'])
            spin(A, 'agg', pl_agg, ck_agg, cfg, lambda: post(A, VPW, VPT, hiw))
            A(f'v_mul_f32 {vr(Q)}, {vr(WQ)}, {vr(PQ)}\nv_mul_f32 {vr(Q + 1)}, {vr(WQ)}, {vr(PQ + 2)}')
            A(f'v_fma_f32 {vr(Q)}, -{vr(WQ + 1)}, {vr(PQ + 2)}, {vr(Q)}\nv_fmac_f32 {vr(Q + 1)}, {vr(WQ + 1)}, {vr(PQ)}')
            cfma(Q, Q + 1, WQ + 2, WQ + 3, PQ + 4, PQ + 6, Q, Q + 1)
            A(f'v_mov_b32 {vr(Q + 2)}, {vr(Q)}\nv_mov_b32 {vr(Q + 3)}, {vr(Q + 1)}\ns_nop 1')
            A(f'v_permlane32_swap_b32 {vr(Q)}, {vr(Q + 2)}\nv_permlane32_swap_b32 {vr(Q + 1)}, {vr(Q + 3)}')
            A(f'v_add_f32 {vr(Q)}, {vr(Q)}, {vr(Q + 2)}\nv_add_f32 {vr(Q + 1)}, {vr(Q + 1)}, {vr(Q + 3)}')
            A.ds(f'ds_write_b64 {vr(VEXW)}, {vr(Q, 2)} offset:1024')
            post(A, VPW, VPT, E_EX2, G3 - G2)
            low = [d for d in ('w3', 'w4', 'w5', 'w6', 'w7')[cfg.p2w - 3:] if d not in done and int(d[1]) < hiw]
            assert not low, low
        elif act == 'car':
            after('q', 's0', 's1')
            await_(A, 'ex2', VPR, VPT, G3, E_EX2)
            for w in range(4):
                A.ds(f'ds_read_b64 {vr(EW + 2 * w, 2)}, {vr(VEX)} offset:{1024 + 256 * w}', 'ex2')
            A.wait_lg('ex2')
            for o in (0, 1):
                A(f'v_add_f32 {vr(EW + o)}, {vr(EW + o)}, {vr(EW + 2 + o)}\nv_add_f32 {vr(EW + 4 + o)}, {vr(EW + 4 + o)}, {vr(EW + 6 + o)}')
            A(f'v_add_f32 {vr(EW)}, {vr(EW)}, {vr(EW + 4)}\nv_add_f32 {vr(EW + 1)}, {vr(EW + 1)}, {vr(EW + 5)}')
            cfma(LCR, LCI, WSR, WSI, EW, EW + 1, LCR, LCI)
            A(f'v_mul_f32 {vr(TMP)}, {vr(KR)}, {vr(LCR)}\nv_mul_f32 {vr(TMP + 1)}, {vr(KR)}, {vr(LCI)}')
            A(f'v_fma_f32 {vr(TMP)}, -{vr(KI)}, {vr(LCI)}, {vr(TMP)}\nv_fmac_f32 {vr(TMP + 1)}, {vr(KI)}, {vr(LCR)}')
        elif act == 'pa':
            after('car')
            pass2(range(0, 8))
        elif act == 'pb':
            after('pa')
            pass2(range(8, 16))
        elif act == 'tr':
            after('pb')
            for s in range(2):
                for part, d in ((0, U), (1, V)):
                    mfma(A, d, PK + 8 * part + 4 * s, SEL + 4 * s, s == 0)
            A('s_nop 10')
            for part, d in ((0, U), (1, V)):
                for m in range(2):
                    for e in range(4):
                        A(f'v_cvt_pk_bf16_f32 {vr(PK + 8 * part + 4 * m + e)}, {vr(d + 8 * m + 2 * e)}, {vr(d + 8 * m + 2 * e + 1)}')
                    A.vmem(f'buffer_store_dwordx4 {vr(PK + 8 * part + 4 * m, 4)}, {vr(VST)}, {sr(R_WS, 4)}, {k4(2 * part)} offen offset:{1024 * m} sc1', 'h')
        elif act == 'hf':
            after('tr')
            A(f'v_mov_b32 {vr(TMP + 2)}, {sr(S_TAG)}\nv_lshlrev_b32 {vr(TMP + 3)}, 2, v0')
            A.wait_vm('h')
            A('s_mov_b32 exec_hi, 0')
            A.vmem(f'buffer_store_dword {vr(TMP + 2)}, {vr(TMP + 3)}, {sr(R_WS, 4)}, {sr(S_GFL)} offen sc1', 'fl')
            A('s_mov_b64 exec, -1')
        elif act == 'hs':
            after('hf', 'W7')
            A.drain()
            spoll(A, 'hs', cfg, FL8, mode='issue')
        elif act == 'xs':
            def f():
                A(f's_lshl_b32 {sr(S_OA)}, {sr(S_W)}, 11\ns_add_u32 m0, {sr(S_OA)}, {X_XS}\ns_mov_b32 {sr(S_OA)}, {15 * 1024}')
                A.vmem(f'buffer_load_dwordx4 {vr(VXS)}, {sr(R_X, 4)}, 0 offen lds', 'xs')
                A.vmem(f'buffer_load_dwordx4 {vr(VXS)}, {sr(R_X, 4)}, {sr(S_OA)} offen offset:1024 lds', 'xs')
            emit(f)
        else:
            raise AssertionError(act)
        done.append(act)
        if act in cfg.p2st.split(','):
            A.stamp(act)
    A.drain()
    after(*(f'd{i}' for i in range(6)), *(f'r{i}' for i in range(8)), 'hs', 'xs', 'w7', 'pf')
    assert P2B == 0
    if cfg.prio:
        A('s_setprio 2')
    ACC2 = 32
    ORD = (1, 2, 3, 0)
    free = list(range(96, 128, 4))
    areg = {}

    def ld_act(f):
        t, ap = f // 4, ORD[f % 4]
        areg[f] = free.pop(0)
        if f % 4 == 0:
            A(f's_add_u32 {sr(S_OA)}, {sr(S_ROT)}, {t >> 1}\ns_and_b32 {sr(S_OA)}, {sr(S_OA)}, 3\ns_lshl_b32 {sr(S_OA)}, {sr(S_OA)}, 13')
            if t & 1:
                A(f's_add_u32 {sr(S_OA)}, {sr(S_OA)}, 4096')
        A.vmem(f'buffer_load_dwordx4 {vr(areg[f], 4)}, {vr(VA + ap)}, {sr(R_WS, 4)}, {sr(S_OA)} offen sc1', f'act{f}')
    spoll(A, 'hs', cfg, FL8, lambda: (A('s_waitcnt vmcnt(0)'), post(A, VPW, VPT, E_WD)), mode='check')
    A.stamp('hpoll')
    wdl = [i for i, t in enumerate(A.vm) if t and t.startswith('wd')]
    if wdl:
        A.vm[wdl[-1]] = 'wdlast'
    nf = 0
    while free:
        ld_act(nf)
        nf += 1
    srd(A, R_O, 32, 2048 * 2048)
    A.wait_vm('wdlast')
    post(A, VPW, VPT, E_WD)
    A.wait_lg_all()
    DS, PG = 1, 2
    DSR = (1, 10, 11, 12)

    def pl_g():
        for j in range(2):
            A.vmem(f'buffer_load_dwordx4 {vr(PG + 4 * j, 4)}, {vr(VG)}, {sr(R_WS, 4)}, 0 offen offset:{16 * j} sc1', 'pg')

    def ck_g():
        A(f'v_cmp_eq_u32 vcc, {sr(S_TAG)}, {vr(PG + 1)}')
        for j in (3, 5, 7):
            A(f'v_cmp_eq_u32 s[8:9], {sr(S_TAG)}, {vr(PG + j)}\ns_and_b64 vcc, vcc, s[8:9]')
        A('s_cmp_eq_u64 vcc, -1')
    small = False
    for t in range(8):
        for i, ap in enumerate(ORD):
            f = 4 * t + i
            A.wait_vm(f'act{f}')
            for n in range(4):
                mf16(A, ACC2 + 16 * ap + 4 * n, areg[f], creg(t, n), t == 0)
            free.append(areg[f])
            if i == 3:
                free += [creg(t, n) for n in range(4)]
            for _ in range(2):
                if nf < 32 and free:
                    ld_act(nf)
                    nf += 1
            if nf == 32 and not small:
                small = True
                A(f'v_xor_b32 {vr(AC)}, 64, {vr(DA)}')
                for n in range(4):
                    A.vmem(f'global_load_ushort {vr(DSR[n])}, {vr(AC if n >> 1 else DA)}, s[20:21] offset:{32 * (n & 1)}', 'ds')
                if cfg.prio and cfg.pF:
                    A('s_setprio 0')
        if t == 0 or cfg.fine:
            A.stamp(f'S{t}')
    pl_g()
    A.stamp('Send')
    if cfg.prio and cfg.pEnd:
        A(f's_setprio {cfg.pEnd}')
    await_(A, 'pa9', VPR, VPT, G1, 9)
    for a in (1, 2, 3):
        for j in range(4):
            A.ds(f'ds_write_b128 {vr(RA)}, {vr(ACC2 + 16 * a + 4 * j, 4)} offset:{(a - 1) * 16384 + j * 1024}')
    post(A, VPW, VPT, E_SP, G3 - G2)
    XS = 176
    A.wait_vm('ds')
    A.wait_lg_all()
    for n in range(4):
        for r in range(4):
            A.ds(f'ds_read_u16 {vr(XS + 4 * n + r)}, {vr(XA + (n >> 1))} offset:{128 * r + 32 * (n & 1)}', f'x{n}')
        if n == 2:
            A.wait_lg('x0')
    for n in range(4):
        A(f'v_lshlrev_b32 {vr(DSR[n])}, 16, {vr(DSR[n])}')
        A.wait_lg(f'x{n}')
        for r in range(4):
            A(f'v_lshlrev_b32 {vr(XS + 4 * n + r)}, 16, {vr(XS + 4 * n + r)}')
            A(f'v_fmac_f32 {vr(ACC2 + 4 * n + r)}, {vr(XS + 4 * n + r)}, {vr(DSR[n])}')
    await_(A, 'cntS', VPR, VPT, G3, E_SP)
    A.stamp('X1')
    PB = 128
    for a in (1, 2, 3):
        for j in range(4):
            A.ds(f'ds_read_b128 {vr(PB + 16 * (a - 1) + 4 * j, 4)}, {vr(RA + a)} offset:{(a - 1) * 16384 + j * 1024}', f'r{a}')
    A.wait_vm('pg')
    spin(A, 'g', pl_g, ck_g, cfg)
    OM = 96
    for r in range(4):
        A(f'v_sub_f32 {vr(OM + r)}, 1.0, {vr(PG + 2 * r)}')
    for a in (1, 2, 3):
        A.wait_lg(f'r{a}')
        for r in range(16):
            A(f'v_add_f32 {vr(ACC2 + r)}, {vr(ACC2 + r)}, {vr(PB + 16 * (a - 1) + r)}')
    for r in range(16):
        A(f'v_mul_f32 {vr(ACC2 + r)}, {vr(ACC2 + r)}, {vr(PG + 2 * (r % 4))}')
    for j in range(2):
        A.ds(f'ds_write_b128 {vr(RA + 1)}, {vr(ACC2 + 4 * j, 4)} offset:{j * 1024}')
    A.ds(f'ds_write_b128 {vr(RA + 1)}, {vr(OM, 4)} offset:2048')
    for a in range(4):
        A(f'v_add_u32 {vr(RA + a)}, {P1B - P2B}, {vr(RA + a)}')
    A.wait_lg_all()
    A.stamp('Sfin')
    A('s_barrier')
    for j in (2, 3):
        for a in range(4):
            A.ds(f'ds_read_b128 {vr(PB + 8 * a + 4 * (j - 2), 4)}, {vr(RA + a)} offset:{((a - 1) % 4) * 16384 + j * 1024}', f'r{j}')
    for j in (2, 3):
        A.wait_lg(f'r{j}')
        o = 4 * (j - 2)
        for r in (0, 2):
            A(f'v_pk_add_f32 {vr(PB + o + r, 2)}, {vr(PB + o + r, 2)}, {vr(PB + 8 + o + r, 2)}')
            A(f'v_pk_add_f32 {vr(PB + 16 + o + r, 2)}, {vr(PB + 16 + o + r, 2)}, {vr(PB + 24 + o + r, 2)}')
        for r in (0, 2):
            A(f'v_pk_add_f32 {vr(PB + o + r, 2)}, {vr(PB + o + r, 2)}, {vr(PB + 16 + o + r, 2)}')
        for r in (0, 2):
            A(f'v_pk_fma_f32 {vr(ACC2 + 4 * j + r, 2)}, {vr(PB + o + r, 2)}, {vr(OM + r, 2)}, {vr(ACC2 + 4 * j + r, 2)}')
        for r in range(4):
            A.vmem(f'buffer_store_dword {vr(ACC2 + 4 * j + r)}, {vr(RO)}, {sr(R_O, 4)}, {k4(r // 2)} offen offset:{2048 * (r % 2) + 64 * (j - 2)} {cfg.out_flags}')
    A(f's_lshl_b32 {sr(T0)}, {sr(S_M2)}, 5\ns_lshl_b32 {sr(T1)}, {sr(S_N2)}, 2\ns_add_u32 {sr(T0)}, {sr(T0)}, {sr(T1)}\ns_add_u32 {sr(T0)}, {sr(T0)}, {sr(S_W)}')
    A(f's_cmp_lg_u32 {sr(T0)}, {31 << 5}\ns_cbranch_scc1 L_p2_done')
    A(f'v_mov_b32 v1, {sr(S_TAG)}\nv_mov_b32 v2, {GW}\ns_mov_b64 exec, 1')
    A(f'buffer_store_dword v1, v2, {sr(R_WS, 4)}, 0 offen sc1\ns_mov_b64 exec, -1')
    A.label('L_p2_done')
    if cfg.stamps:
        A.wait_vm_all()
    A.dump_stamps(1)
    A.label('L_end')
    A('s_endpgm')
    A.label('L_codeend')
    return A


HEADER = open(os.path.join(os.path.dirname(os.path.abspath(__file__)), '..', 'cdna_kernels',
                           'gated_mix__ssm_conv_s5__swiglu_ffn__prompt.s.ref')).read().split('; Override launch')[0]


def generate(cfg):
    e, p1, p2 = gen_entry(cfg), gen_p1(cfg), gen_p2(cfg)
    if cfg.dbg:
        i0 = [i for i, l in enumerate(p2.lines) if l == 's_barrier'][8]
        i1 = p2.lines.index('L_hs_try:')
        for i in range(i0, i1):
            l = p2.lines[i]
            if 'nofma' in cfg.dbg and l.startswith(('v_fma', 'v_mul_f32', 'v_cvt_pk')):
                p2.lines[i] = 's_nop 1'
            if 'nodma' in cfg.dbg and l.endswith(' lds'):
                p2.lines[i] = 's_nop 3'
            if 'nods' in cfg.dbg and l.startswith(('ds_read_b128', 'ds_write_b128', 'ds_read_b64_tr')):
                p2.lines[i] = 's_nop 1'
            if 'nodw' in cfg.dbg and l.startswith('ds_write_b128'):
                p2.lines[i] = 's_nop 1'
            if 'nodr' in cfg.dbg and l.startswith('ds_read_b128'):
                p2.lines[i] = 's_nop 1'
            if 'nom0' in cfg.dbg and ' m0,' in l:
                p2.lines[i] = 's_nop 0'
            if 'spdma' in cfg.dbg and l.endswith(' lds'):
                p2.lines[i] = l + '\n    s_nop 7'
            if 'nost' in cfg.dbg and l.startswith('buffer_store_dwordx4') and 'offset' in l:
                p2.lines[i] = 's_nop 1'
    probs = check_hazards(e.lines + p1.lines, 'p1') + (check_hazards(e.lines + p2.lines, 'p2') if not cfg.dbg else [])
    for p in probs:
        print('HAZARD', p, file=sys.stderr)
    assert not probs
    nb1 = sum(l == 's_barrier' for l in p1.lines)
    nb2 = sum(l == 's_barrier' for l in p2.lines)
    assert nb1 == nb2, (nb1, nb2)
    txt = HEADER + f'; @launch grid=(256,1,1) block=(512,1,1) lds={LDS}\n'
    txt += f'.amdgcn_target "amdgcn-amd-amdhsa--gfx950"\n.text\n.globl {K}\n.p2align 8\n.type {K},@function\n{K}:\n'
    txt += e.text() + p1.text() + p2.text()
    txt += f'''.section .rodata,"a"
.p2align 6
.amdhsa_kernel {K}
  .amdhsa_next_free_vgpr 256
  .amdhsa_next_free_sgpr 102
  .amdhsa_accum_offset 256
  .amdhsa_group_segment_fixed_size 0
  .amdhsa_kernarg_size 136
  .amdhsa_user_sgpr_count 2
  .amdhsa_user_sgpr_kernarg_segment_ptr 1
  .amdhsa_system_sgpr_workgroup_id_x 1
.end_amdhsa_kernel
'''
    return txt, (p1.names, p2.names)


if __name__ == '__main__':
    cfg = Cfg()
    out = sys.argv[1]
    for kv in sys.argv[2:]:
        k, v = kv.split('=')
        old = getattr(cfg, k)
        setattr(cfg, k, (v not in ('0', 'False')) if isinstance(old, bool) else type(old)(v))
    txt, names = generate(cfg)
    open(out, 'w').write(txt)
    if cfg.stamps:
        import json
        json.dump(names, open(out + '.names', 'w'))
```

```python
import sys, os
sys.path.insert(0, os.path.dirname(os.path.abspath(__file__)))
from asmlib import Stream, vr, sr, check_hazards

K = 'gated_mix__ssm_conv_s5__swiglu_ffn__prompt_kernel'

ACT = 0
KSP = 160
AGG = 0x1400000
HF = 0x1480000
GF = 0x14C0000
GW = 0x1500000
PF = 0x1600000
PART = 0x1800000
WS_SIZE = 0x2800000
STAMP = 0xF000000
OOB = 0x40000000
SLOT = 24576
CB = 0
WSLOT = [4, 5, 0, 1, 2, 3, 4, 5]
XB = 6 * SLOT
WDA = [XB] + [65536 + 8192 * i for i in range(10)]
X_EX, X_EX2, X_CNT, X_GT = XB + 8192, XB + 9216, XB + 10240, XB + 10496
X_PAR = XB + 11264
LDS = XB + 16384
S_RT, S_CG, S_Q, S_J, S_W, S_TAG = 38, 39, 40, 41, 42, 43
R_WS, R_X, R_B, R_WG, R_WU, R_E, R_O = 44, 48, 52, 56, 60, 64, 68
S_OA, S_OW = 72, 73
S_K4 = 73
T0, T1, T2, T3 = 3, 81, 0, 1
S_MB = 82
S_MB2 = 83
S_C0 = 84
S_C1 = 86
S_CNT = 88
S_RHO, S_STAG = 87, 23
S_GST, S_GFL, S_WDO = 34, 35, 22
S_MG, S_IDX, S_UR, S_U0 = 10, 11, 12, 27
S_ST0 = 90
LOG2E = 0x3fb8aa3b
NLOG2E = 0xbfb8aa3b
INV2PI = 0x3e22f983


class Cfg:
    mapping = '84'
    weave = 2
    sched = 'mm B0 +W4 +pf p1 pub +W5 +xs lc s0 s1 poll W6 g1 w5 q car +W7 th pa w6 pb tr c0 c1 w7 xr hf c2 c3 d0 d1 gs hs xm d2 d3 d4 ha ec'
    rot = True
    stag0 = 0
    nstag = 4
    rotx = 0
    swap = True
    w2pf = 1
    fx = ''
    fb = ''
    fw = ''
    probe = ''
    stamps = 0
    D = 3
    post_exec = False
    w0late = False
    p2w = 4
    nfill = 5
    fill0 = 50
    ntail = 5
    p2st = 'pub,q,tr,hf,ha'
    fine = False
    dbg = ''
    p1b = 2
    p2b = 3
    p2lo = 3
    pS = 1
    pO = 2
    pF = 2
    p1d = 5
    p1pre = 0
    own_at = 24
    gu_at = 72
    nfirst = 0
    fweave = 1
    endbar = True
    p1lo = True
    touch = 'hpG'
    epi_at = 2
    early = 'd'
    selfw = False
    vp = 'x'
    sgate = True
    post_at = 1
    peek_at = 11
    spin = 1 << 15
    code_pf = True
    out_flags = ''
    prio = True


class WS(Stream):
    def __init__(self, cfg, vst):
        super().__init__()
        self.cfg, self.vst = cfg, vst
        self.pend, self.names, self.nst = [], [], 0
        self.bg, self.ticks = [], 0

    def defer(self, fn):
        l0, v0 = len(self.lines), len(self.vm)
        fn()
        lines, tags = self.lines[l0:], self.vm[v0:]
        del self.lines[l0:], self.vm[v0:]
        cur = []
        for ln in lines:
            cur.append(ln)
            if ln.startswith('buffer_'):
                self.bg.append((cur, tags.pop(0)))
                cur = []
        assert not cur and not tags

    def pop_bg(self):
        lines, tag = self.bg.pop(0)
        self.lines += lines
        self.vm.append(tag)

    def low(self, fn):
        if self.cfg.p2lo != self.cfg.p2b:
            self(f's_setprio {self.cfg.p2lo}')
        fn()
        if self.cfg.p2lo != self.cfg.p2b:
            self(f's_setprio {self.cfg.p2b}')

    def tick(self):
        self.ticks += 1
        if self.bg and self.ticks >= self.cfg.weave:
            self.ticks = 0
            self.low(self.pop_bg)

    def drain(self):
        if self.bg:
            self.low(lambda: [self.pop_bg() for _ in list(self.bg)])

    def stamp(self, name):
        role = '1' if self.vst == 7 else '2'
        if self.cfg.probe and self.cfg.probe[0] == role and (name == 'start' or self.cfg.probe[2:] == name):
            self('s_memrealtime s[98:99]')
        if self.cfg.stamps == 4:
            if name in ('start', 'A0', 'A4', 'A7', 'B0', 'B4', 'E', 'epi', 'guflag', 'wdok', 'gupoll', 'F0', 'Fend', 'X2', 'done', 'pub', 'q', 'tr', 'hf', 'hpoll', 'S0', 'Send', 'Sfin', 'wd1', 'own', 'ppoll', 'ps1', 'ps3', 'pflag', 'e1', 'pld', 'stored', 'sflag', 'spoll', 'gu', 'ack'):
                self._stamp(name, 's_memrealtime')
            return
        if self.cfg.stamps == 3:
            if name in ('start', 'A0', 'A4', 'B0', 'B4', 'E', 'guflag', 'F0', 'done') and role == '1':
                self._stamp(name, 's_memtime')
                self._stamp(name + '_ns', 's_memrealtime')
            return
        if self.cfg.stamps != 1:
            return
        self._stamp(name, 's_memtime')

    def _stamp(self, name, op):
        if len(self.pend) == 6:
            self('s_waitcnt lgkmcnt(0)')
            self.lg = []
            self.flush()
        used = {p for p, _ in self.pend}
        p = [x for x in range(6) if x not in used][0]
        self(f'{op} {sr(S_ST0 + 2 * p, 2)}')
        self.pend.append((p, self.nst))
        self.names.append(name)
        self.nst += 1

    def flush(self):
        for p, i in self.pend:
            self(f'v_writelane_b32 {vr(self.vst)}, {sr(S_ST0 + 2 * p)}, {i}')
        self.pend = []

    def wait_lg_all(self):
        super().wait_lg_all()
        self.flush()

    def dump_stamps(self, role):
        if self.cfg.probe and int(self.cfg.probe[0]) == role + 1:
            self('s_waitcnt lgkmcnt(0)\ns_add_u32 s98, s98, 3000')
            self.label('L_hold')
            self('s_memrealtime s[96:97]\ns_waitcnt lgkmcnt(0)\ns_sub_u32 s96, s96, s98\ns_cmp_lt_i32 s96, 0\ns_cbranch_scc1 L_hold')
        if not self.cfg.stamps:
            return
        self(f's_memrealtime {sr(S_C0, 2)}')
        self.wait_lg_all()
        self(f'v_writelane_b32 {vr(self.vst)}, {sr(S_C0)}, 62')
        self(f'v_writelane_b32 {vr(self.vst)}, s89, 63')
        self(f's_lshl_b32 {sr(T0)}, s2, 3\ns_add_u32 {sr(T0)}, {sr(T0)}, {sr(S_W)}\ns_add_u32 {sr(T0)}, {sr(T0)}, {4 * role}')
        self(f's_lshl_b32 {sr(T0)}, {sr(T0)}, 8\ns_add_u32 {sr(T0)}, {sr(T0)}, {STAMP}')
        self(f's_add_u32 s36, s36, {sr(T0)}\ns_addc_u32 s37, s37, 0')
        self('v_lshlrev_b32 v1, 2, v0')
        self(f'global_store_dword v1, {vr(self.vst)}, s[36:37]')


def srd(A, r, ptr, size):
    A(f's_mov_b32 {sr(r)}, {sr(ptr)}\ns_mov_b32 {sr(r + 1)}, {sr(ptr + 1)}\ns_mov_b32 {sr(r + 2)}, {size}\ns_mov_b32 {sr(r + 3)}, 0x20000')


def k4(k):
    return '0' if k == 0 else sr(S_K4 + k if k < 8 else 16 + k)


def fo(n):
    return f'{k4(n // 2)} offen offset:{2048 * (n % 2)}'


def lane_pat(A, d, t, base):
    A(f'v_and_b32 {vr(t)}, 15, v0\nv_lshl_add_u32 {vr(t)}, {vr(t)}, 4, {base}\nv_lshrrev_b32 {vr(d)}, 4, v0\nv_lshl_add_u32 {vr(d)}, {vr(d)}, 9, {vr(t)}')


def swz_consts(A, vq8, vcA, vcB, t):
    A(f'v_lshrrev_b32 {vr(vq8)}, 3, v0')
    A(f'v_lshrrev_b32 {vr(t)}, 4, v0')
    A(f'v_and_b32 {vr(vcA)}, 7, v0')
    A(f'v_xor_b32 {vr(vcA)}, {vr(vcA)}, {vr(t)}')
    A(f'v_lshlrev_b32 {vr(vcA)}, 4, {vr(vcA)}')
    A(f'v_xor_b32 {vr(vcB)}, 64, {vr(vcA)}')


def frag_addr(A, a0, t):
    A(f'v_and_b32 {vr(a0)}, 31, v0')
    A(f'v_bfe_u32 {vr(t)}, v0, 1, 3')
    A(f'v_lshrrev_b32 {vr(a0 + 1)}, 5, v0')
    A(f'v_xor_b32 {vr(t)}, {vr(t)}, {vr(a0 + 1)}')
    A(f'v_lshlrev_b32 {vr(t)}, 4, {vr(t)}')
    A(f'v_lshl_add_u32 {vr(a0)}, {vr(a0)}, 7, {vr(t)}')
    for s in (1, 2, 3):
        A(f'v_xor_b32 {vr(a0 + s)}, {s << 5}, {vr(a0)}')


def first_unit(A):
    A(f's_lshr_b32 {sr(T0)}, {sr(S_CG)}, 2\ns_mul_i32 {sr(S_U0)}, {sr(S_CG)}, 3\ns_sub_u32 {sr(S_U0)}, {sr(S_U0)}, {sr(T0)}')


def frag16_addr(A, a0, t):
    A(f'v_bfe_u32 {vr(t)}, v0, 1, 3\nv_lshrrev_b32 {vr(a0)}, 4, v0\nv_xor_b32 {vr(t)}, {vr(t)}, {vr(a0)}\nv_lshlrev_b32 {vr(t)}, 4, {vr(t)}')
    A(f'v_and_b32 {vr(a0)}, 15, v0\nv_lshl_add_u32 {vr(a0)}, {vr(a0)}, 7, {vr(t)}\nv_xor_b32 {vr(a0 + 1)}, 64, {vr(a0)}')


def wffn_voffs(A, vw, t):
    A(f's_mul_i32 {sr(T0)}, {sr(S_W)}, {16 * 2752}\ns_lshl_b32 {sr(T1)}, {sr(S_U0)}, 6\ns_add_u32 {sr(T0)}, {sr(T0)}, {sr(T1)}')
    A(f's_and_b32 {sr(T1)}, {sr(S_CG)}, 3\ns_cmp_eq_u32 {sr(T1)}, 3\ns_cselect_b32 {sr(T1)}, 8, 12\ns_cmp_eq_u32 {sr(S_CG)}, 15\ns_cselect_b32 {sr(T1)}, 4, {sr(T1)}')
    A(f'v_mov_b32 {vr(t + 3)}, {OOB}')
    for j in range(3):
        A(f'v_add_u32 {vr(t)}, {64 * j}, v0')
        A(f'v_mul_u32_u24 {vr(t + 1)}, 171, {vr(t)}')
        A(f'v_lshrrev_b32 {vr(t + 1)}, 11, {vr(t + 1)}')
        A(f'v_mul_u32_u24 {vr(t + 2)}, 12, {vr(t + 1)}')
        A(f'v_sub_u32 {vr(t)}, {vr(t)}, {vr(t + 2)}')
        A(f'v_cmp_gt_i32 vcc, {sr(T1)}, {vr(t)}')
        A(f'v_lshrrev_b32 {vr(t + 2)}, 2, {vr(t + 1)}\nv_and_b32 {vr(t + 2)}, 2, {vr(t + 2)}\nv_xor_b32 {vr(t)}, {vr(t)}, {vr(t + 2)}')
        A(f'v_mul_u32_u24 {vr(t + 1)}, 2752, {vr(t + 1)}')
        A(f'v_lshl_add_u32 {vr(t + 1)}, {vr(t)}, 4, {vr(t + 1)}')
        if j:
            A(f'v_subrev_u32 {vr(t + 1)}, {1024 * j}, {vr(t + 1)}')
        A(f'v_add_u32 {vr(t + 1)}, {sr(T0)}, {vr(t + 1)}')
        A(f'v_cndmask_b32 {vr(vw + j)}, {vr(t + 3)}, {vr(t + 1)}, vcc')


def issue_a(A, b, vx, vb):
    sl = (b % 4) * SLOT
    A(f's_add_u32 m0, {sr(S_MB)}, {sl}')
    if b:
        pass
    A(f's_bfe_u32 {sr(S_OA)}, {sr(S_RHO)}, {(3 << 16) | (4 * b)}\ns_lshl_b32 {sr(S_OA)}, {sr(S_OA)}, 7')
    for j in range(4):
        A.vmem(f'buffer_load_dwordx4 {vr(vx + j)}, {sr(R_X, 4)}, {sr(S_OA)} offen offset:{1024 * j} {A.cfg.fx} lds', f'blk{b}')
    A(f's_add_u32 m0, {sr(S_MB2)}, {sl + 16384}\ns_nop 0')
    for j in range(2):
        A.vmem(f'buffer_load_dwordx4 {vr(vb + j)}, {sr(R_B, 4)}, {sr(S_OA)} offen offset:{1024 * j} {A.cfg.fb} lds', f'blk{b}')


def issue_w(A, b, vw, smb):
    sl = WSLOT[b - 8] * SLOT
    A(f's_add_u32 m0, {sr(smb)}, {sl}')
    A(f's_bfe_u32 {sr(S_OW)}, {sr(S_RHO)}, {(3 << 16) | (4 * (b - 8))}\ns_mul_i32 {sr(S_OW)}, {sr(S_OW)}, {64 * 2752}')
    for j in range(3):
        A.vmem(f'buffer_load_dwordx4 {vr(vw + j)}, {sr(R_WG, 4)}, {sr(S_OW)} offen offset:{1024 * j} {A.cfg.fw} lds', f'blk{b}')
    A(f's_add_u32 m0, {sr(smb)}, {sl + 12288}\ns_nop 0')
    for j in range(3):
        A.vmem(f'buffer_load_dwordx4 {vr(vw + j)}, {sr(R_WU, 4)}, {sr(S_OW)} offen offset:{1024 * j} {A.cfg.fw} lds', f'blk{b}')


def spin(A, name, loads, check, cfg, extra=None):
    A(f's_mov_b32 {sr(S_CNT)}, {cfg.spin}')
    A.label(f'L_{name}_chk')
    check()
    A(f's_cbranch_scc1 L_{name}_ok')
    A(f's_sub_u32 {sr(S_CNT)}, {sr(S_CNT)}, 1\ns_cmp_eq_u32 {sr(S_CNT)}, 0\ns_cbranch_scc1 L_{name}_ok')
    saved = list(A.vm)
    loads()
    A('s_waitcnt vmcnt(0)')
    A.vm = saved
    if extra:
        lg = list(A.lg)
        extra()
        A.lg = lg
    A(f's_branch L_{name}_chk')
    A.label(f'L_{name}_ok')


G1, G2, G3 = 0, 16, 32
E_W4, E_W5, E_W6, E_W7, E_C, E_WD = 4, 5, 6, 7, 8, 9
E_EX, E_EX2, E_SD, E_SF = 1, 2, 3, 4
E_EPI, E_ACK, E_GU, E_D, E_PP = 10, 11, 12, 13, 14


def prog_addrs(A, vw, vrd, own):
    A(f's_lshl2_add_u32 {sr(T0)}, {sr(S_W)}, {X_CNT + own}\nv_mov_b32 {vr(vw)}, {sr(T0)}')
    A(f'v_and_b32 {vr(vrd)}, 3, v0\nv_lshlrev_b32 {vr(vrd)}, 2, {vr(vrd)}\nv_add_u32 {vr(vrd)}, {X_CNT}, {vr(vrd)}')


def post(A, vw, vt, val, off=0):
    A(f'v_mov_b32 {vr(vt)}, {val}')
    if A.cfg.post_exec:
        A('s_mov_b64 exec, 1')
    A.ds(f'ds_write_b32 {vr(vw)}, {vr(vt)} offset:{off}')
    if A.cfg.post_exec:
        A('s_mov_b64 exec, -1')


def await_(A, name, vrd, vt, off, val):
    A.label(f'L_{name}')
    A.ds(f'ds_read_b32 {vr(vt)}, {vr(vrd)} offset:{off}')
    Stream.wait_lg_all(A)
    A(f'v_cmp_gt_u32 vcc, {val}, {vr(vt)}\ns_cbranch_vccnz L_{name}')
    A.flush()


def check_(A, name, vrd, vt, off, val):
    A.wait_lg('peek')
    A(f'v_cmp_gt_u32 vcc, {val}, {vr(vt)}\ns_cbranch_vccz L_{name}_go')
    saved = list(A.lg)
    A.label(f'L_{name}')
    A(f'ds_read_b32 {vr(vt)}, {vr(vrd)} offset:{off}\ns_waitcnt lgkmcnt(0)')
    A(f'v_cmp_gt_u32 vcc, {val}, {vr(vt)}\ns_cbranch_vccnz L_{name}')
    A.label(f'L_{name}_go')
    A.lg = saved


def rho0(A, cfg, t):
    if not cfg.rot:
        A(f's_mov_b32 {sr(t)}, 0')
        return
    assert cfg.mapping == '84'
    if cfg.rotx:
        A(f's_lshl1_add_u32 {sr(t)}, {sr(S_CG)}, {sr(S_RT)}')
    else:
        A(f's_and_b32 {sr(t)}, s2, 6\ns_add_u32 {sr(t)}, {sr(t)}, {sr(S_RT)}')
    A(f's_and_b32 {sr(t)}, {sr(t)}, 7')


def rho_pre(A, cfg, d, t):
    def pack(o):
        return sum(v << (4 * i) for i, v in enumerate(o))
    tabs = [[0, 1, 2, 3, 5, 4, 6, 7], [0, 2, 1, 3, 4, 6, 5, 7], [0, 1, 3, 2, 4, 5, 7, 6], [0, 1, 2, 4, 3, 5, 6, 7]]
    if cfg.swap:
        A(f's_and_b32 {sr(t)}, {sr(S_CG)}, 3\ns_mov_b32 {sr(d)}, {pack(tabs[0])}')
        for j in (1, 2, 3):
            A(f's_cmp_eq_u32 {sr(t)}, {j}\ns_cselect_b32 {sr(d)}, {pack(tabs[j])}, {sr(d)}')
    else:
        A(f's_mov_b32 {sr(d)}, 0x76543210')
    rho0(A, cfg, t)
    A(f's_mul_i32 {sr(t)}, {sr(t)}, 0x11111111\ns_add_u32 {sr(d)}, {sr(d)}, {sr(t)}')


def spoll(A, name, cfg, loads, extra=None, mode='both'):
    SP = 56

    def issue():
        for i, (b, o) in enumerate(loads):
            A(f's_load_dword {sr(SP + i if i < 8 else 76 + i)}, {sr(b, 2)}, {o} glc')
    if mode == 'issue':
        issue()
        return
    A(f's_mov_b32 {sr(S_CNT)}, {cfg.spin}')
    if mode == 'check':
        A(f's_branch L_{name}_wait')
    A.label(f'L_{name}_try')
    issue()
    A.label(f'L_{name}_wait')
    Stream.wait_lg_all(A)
    for i in range(len(loads)):
        r = SP + i if i < 8 else 76 + i
        A(f's_xor_b32 {sr(r)}, {sr(r)}, {sr(S_TAG)}')
        if i:
            A(f's_or_b32 {sr(SP)}, {sr(SP)}, {sr(r)}')
    A(f's_cbranch_scc0 L_{name}_ok')
    if extra:
        saved = list(A.vm), list(A.lg)
        extra()
        A.vm, A.lg = saved
    A(f's_sub_u32 {sr(S_CNT)}, {sr(S_CNT)}, 1\ns_cmp_lg_u32 {sr(S_CNT)}, 0\ns_cbranch_scc1 L_{name}_try')
    A.label(f'L_{name}_ok')
    A.flush()


def flag_addr(A, d, base):
    A(f's_lshl_b32 {sr(d)}, {sr(S_IDX)}, 8\ns_add_u32 {sr(d)}, {sr(d)}, {base}')


def act_voff(A, VA, t, mul, add):
    A(f's_mul_i32 {sr(T0)}, {sr(S_MG)}, {KSP}\ns_mul_i32 {sr(T1)}, {sr(S_Q)}, {mul}\ns_add_u32 {sr(T0)}, {sr(T0)}, {sr(T1)}\ns_add_u32 {sr(T0)}, {sr(T0)}, {add}\ns_lshl_b32 {sr(T0)}, {sr(T0)}, 11')
    lane_pat(A, VA, t, sr(T0))


def row0(A, d, t):
    A(f'v_bfe_u32 {vr(d)}, v0, 4, 1\nv_lshrrev_b32 {vr(t)}, 5, v0\nv_lshlrev_b32 {vr(t)}, 2, {vr(t)}\nv_lshl_add_u32 {vr(d)}, {vr(d)}, 4, {vr(t)}')


def out_voff(A, d, t, a):
    A(f's_lshl2_add_u32 {sr(T1)}, {sr(S_J)}, {sr(S_Q)}\ns_lshl_b32 {sr(T1)}, {sr(T1)}, 7\ns_lshl_b32 {sr(T0)}, {sr(S_MG)}, 16\ns_add_u32 {sr(T0)}, {sr(T0)}, {sr(T1)}')
    if a:
        A(f's_add_u32 {sr(T0)}, {sr(T0)}, 16384')
    A(f'v_and_b32 {vr(t)}, 31, v0\nv_lshl_add_u32 {vr(t)}, {vr(t)}, 2, {sr(T0)}\nv_lshrrev_b32 {vr(d)}, 5, v0\nv_lshl_add_u32 {vr(d)}, {vr(d)}, 13, {vr(t)}')


def part_addrs(A, VL, VS, VF, t, kind):
    A(f's_lshl_b32 {sr(T0)}, {sr(S_IDX)}, 14\ns_add_u32 {sr(T0)}, {sr(T0)}, {PART + (kind << 24)}')
    lane_pat(A, VL, t, sr(T0))
    for m in (1, 2, 3):
        A(f'v_xor_b32 {vr(VS + m - 1)}, {(m << 16) | (m << 12)}, {vr(VL)}')
    A(f'v_lshrrev_b32 {vr(t)}, 4, v0\nv_mul_u32_u24 {vr(t)}, 0x1100, {vr(t)}\ns_lshl_b32 {sr(T0)}, {sr(S_IDX)}, 10\nv_xor_b32 {vr(t)}, {sr(T0)}, {vr(t)}')
    A(f'v_and_b32 {vr(VF)}, 15, v0\nv_lshl_add_u32 {vr(t)}, {vr(VF)}, 3, {vr(t)}\nv_add_u32 {vr(VF)}, {PF + (kind << 20)}, {vr(t)}')


def wd_voffs(A, VD, t):
    A(f'v_lshrrev_b32 {vr(t)}, 3, v0\nv_and_b32 {vr(t + 1)}, 6, {vr(t)}\nv_and_b32 {vr(VD)}, 7, v0\nv_xor_b32 {vr(t + 1)}, {vr(t + 1)}, {vr(VD)}\nv_lshlrev_b32 {vr(t + 1)}, 4, {vr(t + 1)}\nv_lshl_add_u32 {vr(t)}, {vr(t)}, 10, {vr(t + 1)}')
    A(f's_mul_i32 {sr(T0)}, {sr(S_Q)}, 44\ns_add_u32 {sr(T0)}, {sr(T0)}, {sr(S_W)}\ns_lshl_b32 {sr(T0)}, {sr(T0)}, 13')
    A(f's_lshr_b32 {sr(T1)}, {sr(S_Q)}, 1\ns_lshl1_add_u32 {sr(T1)}, {sr(S_J)}, {sr(T1)}\ns_lshl_b32 {sr(T1)}, {sr(T1)}, 7\ns_add_u32 {sr(T0)}, {sr(T0)}, {sr(T1)}')
    A(f'v_add_u32 {vr(VD)}, {sr(T0)}, {vr(t)}\nv_xor_b32 {vr(VD + 1)}, 0x80, {vr(VD)}')
    A(f's_lshl_b32 {sr(S_WDO)}, {sr(S_W)}, 11')


def dma_wd(A, n, VD, r):
    unit_off(A, S_OW, n, 15)
    for hh in range(2):
        A(f's_add_u32 m0, {sr(S_WDO)}, {WDA[n] + 1024 * hh}\ns_nop 0')
        A.vmem(f'buffer_load_dwordx4 {vr(VD + hh)}, {sr(r, 4)}, {sr(S_OW)} offen lds', f'wd{n}')


def poll_bases(A, base, kind):
    A(f's_and_b32 {sr(T0)}, {sr(S_IDX)}, -4\ns_lshl_b32 {sr(T0)}, {sr(T0)}, 8\ns_add_u32 {sr(T0)}, {sr(T0)}, {base}')
    A(f's_add_u32 s4, s36, {sr(T0)}\ns_addc_u32 s5, s37, 0')
    A(f's_lshl_b32 {sr(T0)}, {sr(S_IDX)}, 10\ns_add_u32 {sr(T0)}, {sr(T0)}, {PF + (kind << 20)}\ns_add_u32 s6, s36, {sr(T0)}\ns_addc_u32 s7, s37, 0')


FL4 = [(4, 256 * j) for j in range(4)]
FL3 = [(6, 256 * j) for j in (1, 2, 3)]


def vpoll(A, name, cfg, base, lo, t):
    A(f'v_and_b32 {vr(t)}, 3, v0\nv_max_u32 {vr(t)}, {lo}, {vr(t)}\nv_lshlrev_b32 {vr(t)}, 8, {vr(t)}')
    A(f's_mov_b32 {sr(S_CNT)}, {cfg.spin}')
    A.label(f'L_{name}_try')
    A(f'global_load_dword {vr(t + 1)}, {vr(t)}, {sr(base, 2)} sc1')
    A(f's_sub_u32 {sr(S_CNT)}, {sr(S_CNT)}, 1\ns_cbranch_scc1 L_{name}_ok')
    A.wait_vm_all()
    A(f'v_cmp_ne_u32 vcc, {sr(S_TAG)}, {vr(t + 1)}\ns_cbranch_vccnz L_{name}_try')
    A.label(f'L_{name}_ok')


def finish(A, cfg, c, own, VL, RO, PB):
    A.stamp('ppoll')
    for m in (1, 2, 3):
        A.vmem(f'buffer_load_dwordx4 {vr(PB + 4 * (m - 1), 4)}, {vr(VL)}, {sr(R_WS, 4)}, {k4(m)} offen offset:{2048 * c} sc1', f'pp{m}')
    for m in (1, 2, 3):
        A.wait_vm(f'pp{m}')
        if m == 3:
            A.stamp('pld')
        for e in range(4):
            s = PB + 4 * (m - 1) + e
            A(f'v_lshlrev_b32 {vr(PB + 12 + 2 * e)}, 16, {vr(s)}\nv_and_b32 {vr(PB + 13 + 2 * e)}, 0xffff0000, {vr(s)}')
        for e in range(4):
            A(f'v_pk_add_f32 {vr(own + 2 * e, 2)}, {vr(own + 2 * e, 2)}, {vr(PB + 12 + 2 * e, 2)}')
    A('s_nop 0')
    for r in range(4):
        A(f'v_permlane16_swap_b32 {vr(own + r)}, {vr(own + 4 + r)}')
        for y in range(2):
            A.vmem(f'buffer_store_dword {vr(own + 4 * y + r)}, {vr(RO)}, {sr(R_O, 4)}, {k4(8 * y + (r >> 1))} offen offset:{2048 * (r & 1)} {cfg.out_flags}')


def mf16(A, d, a, b, first):
    A(f'v_mfma_f32_16x16x32_bf16 {vr(d, 4)}, {vr(a, 4)}, {vr(b, 4)}, {"0" if first else vr(d, 4)}')


def mfma(A, d, a, b, first):
    A(f'v_mfma_f32_32x32x16_bf16 {vr(d, 16)}, {vr(a, 4)}, {vr(b, 4)}, {"0" if first else vr(d, 16)}')


def gen_entry(cfg):
    A = Stream()
    A('s_load_dwordx16 s[4:19], s[0:1], 0\ns_load_dwordx16 s[20:35], s[0:1], 64\ns_load_dwordx2 s[36:37], s[0:1], 128')
    A('s_cmp_ge_u32 s2, 256\ns_cbranch_scc1 L_end')
    if cfg.stamps:
        A('s_memrealtime s[88:89]')
    A('s_lshr_b32 s82, s2, 3')
    if cfg.code_pf:
        A('s_getpc_b64 s[84:85]')
        A.label('L_pc')
        A(f's_and_b32 s83, s82, 3\ns_mul_i32 s83, s83, {60 * 128}\nv_min_u32 v1, 59, v0\nv_lshl_add_u32 v1, v1, 7, s83')
        A(f'v_min_u32 v1, L_codeend-L_pc-4, v1')
        A('global_load_dword v255, v1, s[84:85]')
    A('v_lshrrev_b32 v1, 6, v0\nv_and_b32 v0, 63, v0\nv_readfirstlane_b32 s3, v1')
    if cfg.mapping == '48':
        A(f's_bfe_u32 {sr(S_RT)}, s2, 0x20001\ns_lshl_b32 {sr(S_RT)}, {sr(S_RT)}, 2\ns_and_b32 s83, s82, 3\ns_add_u32 {sr(S_RT)}, {sr(S_RT)}, s83')
        A(f's_and_b32 {sr(S_CG)}, s2, 1\ns_lshl_b32 {sr(S_CG)}, {sr(S_CG)}, 3\ns_lshr_b32 s83, s82, 2\ns_add_u32 {sr(S_CG)}, {sr(S_CG)}, s83')
    else:
        A(f's_and_b32 {sr(S_RT)}, s2, 1\ns_and_b32 s83, s82, 7\ns_lshl3_add_u32 {sr(S_RT)}, {sr(S_RT)}, s83')
        A(f's_and_b32 {sr(S_CG)}, s2, 6\ns_lshr_b32 s83, s82, 3\ns_lshl1_add_u32 {sr(S_CG)}, {sr(S_CG)}, s83')
    A(f's_and_b32 {sr(S_W)}, s3, 3')
    A('s_cmp_ge_u32 s3, 4\ns_cbranch_scc1 L_p2')
    return A


def map2(A, cfg):
    A(f's_lshr_b32 {sr(S_Q)}, {sr(S_CG)}, 2\ns_and_b32 {sr(S_J)}, {sr(S_CG)}, 3\ns_mul_i32 {sr(S_UR)}, {sr(S_J)}, 3')
    A(f's_lshl2_add_u32 {sr(S_MG)}, {sr(S_RT)}, {sr(S_W)}\ns_lshl4_add_u32 {sr(S_IDX)}, {sr(S_MG)}, {sr(S_CG)}')


def unit_off(A, d, p, sh):
    A(f's_add_u32 {sr(d)}, {sr(S_UR)}, {p}\ns_sub_u32 {sr(T0)}, {sr(d)}, 11\ns_cselect_b32 {sr(d)}, {sr(d)}, {sr(T0)}\ns_lshl_b32 {sr(d)}, {sr(d)}, {sh}')


def load_tag(A):
    if A.cfg.stamps:
        A('s_mov_b32 s89, s88')
    A(f's_add_u32 {sr(T2)}, s36, {GW}\ns_addc_u32 {sr(T3)}, s37, 0')
    A(f's_load_dword {sr(S_TAG)}, {sr(T2, 2)}, 0')


def consts(A):
    for k in range(1, 10):
        A(f's_mov_b32 {k4(k)}, {4096 * k}')


def gen_p1(cfg):
    A = WS(cfg, 7)
    TB = 0
    VPW, VPR, VPT = 4, 5, 6
    WB = 8
    ACC = 32
    XR = 128
    VX, VB, VW, AX, AG, TMP, GWF, GL = 32, 36, 40, 44, 48, 52, 64, 80
    D = cfg.D
    if cfg.stamps:
        A('v_mov_b32 v7, 0')
    A.stamp('start')
    swz_consts(A, TMP, TMP + 1, TMP + 2, TMP + 3)
    A(f's_lshl2_add_u32 {sr(T1)}, {sr(S_RT)}, {sr(S_W)}\ns_lshl_b32 {sr(T1)}, {sr(T1)}, 15')
    A(f'v_lshrrev_b32 {vr(TMP + 5)}, 5, v0')
    A(f'v_and_b32 {vr(TMP + 4)}, 3, {vr(TMP)}')
    A(f'v_lshl_add_u32 {vr(TMP + 3)}, {vr(TMP + 5)}, 4, {vr(TMP + 4)}')
    A(f'v_lshl_add_u32 {vr(TMP + 3)}, {vr(TMP + 3)}, 10, {sr(T1)}')
    A(f'v_add_u32 {vr(VX)}, {vr(TMP + 3)}, {vr(TMP + 1)}')
    A(f'v_add_u32 {vr(VX + 1)}, {vr(TMP + 3)}, {vr(TMP + 2)}')
    A(f'v_add_u32 {vr(VX + 2)}, {2 * 3072}, {vr(VX)}')
    A(f'v_add_u32 {vr(VX + 3)}, {3 * 3072}, {vr(VX + 1)}')
    A(f'v_add_u32 {vr(VX + 1)}, 3072, {vr(VX + 1)}')
    A(f's_lshl_b32 {sr(S_MB)}, {sr(S_W)}, 12\ns_mov_b32 m0, {sr(S_MB)}')
    rho0(A, cfg, S_OA)
    A(f's_lshl_b32 {sr(S_OA)}, {sr(S_OA)}, 7')
    A(f's_mov_b32 {sr(R_X + 2)}, {2048 * 1024}\ns_mov_b32 {sr(R_X + 3)}, 0x20000')
    A.wait_lg_all()
    A(f's_mov_b32 {sr(R_X)}, s4\ns_mov_b32 {sr(R_X + 1)}, s5')
    A.stamp('karg')
    for j in range(4):
        A.vmem(f'buffer_load_dwordx4 {vr(VX + j)}, {sr(R_X, 4)}, {sr(S_OA)} offen offset:{1024 * j} {A.cfg.fx} lds', 'blk0')
    A(f's_and_b32 {sr(T0)}, {sr(S_W)}, 1\ns_lshl1_add_u32 {sr(T1)}, {sr(S_CG)}, {sr(T0)}\ns_lshl_b32 {sr(T1)}, {sr(T1)}, 14')
    A(f'v_lshl_add_u32 {vr(TMP + 3)}, {vr(TMP + 5)}, 3, {vr(TMP + 4)}')
    A(f'v_lshl_add_u32 {vr(TMP + 3)}, {vr(TMP + 3)}, 10, {sr(T1)}')
    A(f'v_add_u32 {vr(VB)}, {vr(TMP + 3)}, {vr(TMP + 1)}')
    A(f'v_add_u32 {vr(VB + 1)}, {vr(TMP + 3)}, {vr(TMP + 2)}')
    A(f'v_add_u32 {vr(VB + 1)}, 3072, {vr(VB + 1)}')
    A(f's_lshl_b32 {sr(S_MB2)}, {sr(S_W)}, 11\ns_add_u32 m0, {sr(S_MB2)}, 16384')
    A(f's_cmp_ge_u32 {sr(S_W)}, 2')
    A(f's_cselect_b32 {sr(R_B)}, s12, s10\ns_cselect_b32 {sr(R_B + 1)}, s13, s11\ns_mov_b32 {sr(R_B + 2)}, {512 * 1024}\ns_mov_b32 {sr(R_B + 3)}, 0x20000')
    for j in range(2):
        A.vmem(f'buffer_load_dwordx4 {vr(VB + j)}, {sr(R_B, 4)}, {sr(S_OA)} offen offset:{1024 * j} {A.cfg.fb} lds', 'blk0')
    rho_pre(A, cfg, S_RHO, T0)
    for b in range(1, D):
        issue_a(A, b, VX, VB)
        if b == 1:
            A(f's_lshl_b32 {sr(T0)}, {sr(S_CG)}, 6\ns_cmp_eq_u32 {sr(S_W)}, 3\ns_cselect_b32 {sr(T0)}, 0, {sr(T0)}\ns_cselect_b32 {sr(T1)}, 63, 3')
            A(f's_cselect_b32 {sr(R_E)}, s30, s18\ns_cselect_b32 {sr(R_E + 1)}, s31, s19')
            A(f'v_and_b32 {vr(TMP + 5)}, {sr(T1)}, v0\nv_lshl_add_u32 {vr(TMP + 5)}, {vr(TMP + 5)}, 4, {sr(T0)}')
            A(f's_mov_b32 {sr(R_E + 2)}, 1024\ns_mov_b32 {sr(R_E + 3)}, 0x20000')
            A(f's_cmp_eq_u32 {sr(S_W)}, 0\ns_cselect_b32 {sr(R_E)}, s6, {sr(R_E)}\ns_cselect_b32 {sr(R_E + 1)}, s7, {sr(R_E + 1)}')
            A(f's_cmp_eq_u32 {sr(S_W)}, 1\ns_cselect_b32 {sr(R_E)}, s8, {sr(R_E)}\ns_cselect_b32 {sr(R_E + 1)}, s9, {sr(R_E + 1)}')
            A(f's_lshl_b32 {sr(T0)}, {sr(S_W)}, 10\ns_add_u32 m0, {sr(T0)}, {X_PAR}\ns_nop 0')
            A.vmem(f'buffer_load_dwordx4 {vr(TMP + 5)}, {sr(R_E, 4)}, 0 offen lds', 'blk1')
            load_tag(A)
            srd(A, R_WG, 24, 512 * 2752)
            srd(A, R_WU, 26, 512 * 2752)
            srd(A, R_WS, 36, WS_SIZE)
            srd(A, R_O, 32, 2048 * 2048)
            consts(A)
            first_unit(A)
            wffn_voffs(A, VW, TMP)
            frag16_addr(A, AX, TMP)
            for s in range(2):
                A(f'v_add_u32 {vr(AX + s)}, {sr(S_MB)}, {vr(AX + s)}')
                A(f'v_add_u32 {vr(AX + 2 + s)}, {2 * SLOT}, {vr(AX + s)}')
            prog_addrs(A, VPW, VPR, G1)
            A(f'v_lshrrev_b32 {vr(AG)}, 4, v0\nv_lshlrev_b32 {vr(AG)}, 4, {vr(AG)}\nv_add_u32 {vr(AG)}, {X_PAR + 3072}, {vr(AG)}')
            A(f's_lshl_b32 {sr(S_WDO)}, {sr(S_W)}, 7\ns_add_u32 {sr(S_WDO)}, {sr(S_WDO)}, {X_GT}\nv_and_b32 {vr(AG + 2)}, 31, v0\nv_lshl_add_u32 {vr(AG + 2)}, {vr(AG + 2)}, 2, {sr(S_WDO)}')
            A(f's_cmp_eq_u32 {sr(S_W)}, 3\ns_cselect_b32 {sr(T0)}, 4, {sr(S_W)}\ns_lshl_b32 {sr(T0)}, {sr(T0)}, 10\ns_add_u32 {sr(T0)}, {sr(T0)}, {X_PAR}\nv_lshl_add_u32 {vr(AG + 3)}, v0, 4, {sr(T0)}')
            A(f'v_lshrrev_b32 {vr(TMP)}, 4, v0\nv_bfe_u32 {vr(TMP + 1)}, v0, 2, 2\nv_lshl_add_u32 {vr(TMP)}, {vr(TMP)}, 3, {vr(TMP + 1)}')
            A(f'v_mul_u32_u24 {vr(TMP)}, 192, {vr(TMP)}\nv_bfe_u32 {vr(TMP + 1)}, v0, 4, 1\nv_lshl_add_u32 {vr(TMP)}, {vr(TMP + 1)}, 5, {vr(TMP)}')
            A(f'v_and_b32 {vr(TMP + 1)}, 3, v0\nv_lshl_add_u32 {vr(TB)}, {vr(TMP + 1)}, 3, {vr(TMP)}')
            A(f'v_xor_b32 {vr(TB + 1)}, 32, {vr(TB)}\nv_add_u32 {vr(TB + 2)}, {4 * SLOT}, {vr(TB)}\nv_add_u32 {vr(TB + 3)}, {4 * SLOT}, {vr(TB + 1)}')
            A(f's_mul_i32 {sr(S_C1)}, {sr(S_W)}, 3072')
            map2(A, cfg)
            A(f's_lshr_b32 {sr(S_STAG)}, s2, 3\ns_and_b32 {sr(T0)}, s2, 1\ns_mul_i32 {sr(T0)}, {sr(T0)}, {cfg.nstag // 2}\ns_add_u32 {sr(S_STAG)}, {sr(S_STAG)}, {sr(T0)}')
            A(f's_and_b32 {sr(S_STAG)}, {sr(S_STAG)}, {cfg.nstag - 1}')
            A(f's_mul_i32 {sr(T1)}, {sr(S_MG)}, {KSP}')
            A(f's_lshl1_add_u32 {sr(T1)}, {sr(S_U0)}, {sr(T1)}\ns_add_u32 {sr(T1)}, {sr(T1)}, 64\ns_lshl_b32 {sr(S_GST)}, {sr(T1)}, 11')
            flag_addr(A, S_GFL, GF)
            poll_bases(A, GF, 0)
    A.stamp('issued0')
    A.wait_lg_all()
    A(f's_add_u32 {sr(S_TAG)}, {sr(S_TAG)}, 0x9E3779B1')
    def g_rd(i):
        A(f's_bfe_u32 {sr(T0)}, {sr(S_RHO)}, {(3 << 16) | (4 * i)}\ns_lshl_b32 {sr(T0)}, {sr(T0)}, 7\nv_add_u32 {vr(AG + 1)}, {sr(T0)}, {vr(AG)}')
        for kk in range(2):
            A.ds(f'ds_read_b128 {vr(GWF + 8 * (i % 2) + 4 * kk, 4)}, {vr(AG + 1)} offset:{64 * kk}', 'x')

    def g_mm(i):
        for kk in range(2):
            for a in range(2):
                mf16(A, GL + 4 * a, GWF + 8 * (i % 2) + 4 * kk, XR + 16 * i + 8 * kk + 4 * a, i == 0 and kk == 0)
    for i in range(8):
        A.wait_vm(f'blk{i}')
        A.wait_lg_all()
        A('s_barrier')
        A.stamp(f'A{i}')
        for kk in range(2):
            for a in range(2):
                A.ds(f'ds_read_b128 {vr(XR + 16 * i + 8 * kk + 4 * a, 4)}, {vr(AX + 2 * ((i >> 1) & 1) + kk)} offset:{(i % 2) * SLOT + 2048 * a}', 'x')
        if i == 2:
            g_mm(0)
        if i >= 2:
            g_mm(i - 1)
        if i == 1:
            g_rd(0)
        if i >= 1:
            g_rd(i)
        if i == 3 and cfg.selfw:
            A.ds(f'ds_write_b128 {vr(AG + 3)}, {vr(VW, 4)}')
        if i == 7:
            A.wait_lg_all()
            g_mm(7)
            A(f's_mov_b32 vcc_lo, 0xffff0000\ns_mov_b32 vcc_hi, 0xffff0000\ns_nop 5\nv_cndmask_b32 {vr(GL)}, {vr(GL)}, {vr(GL + 4)}, vcc')
            A.ds(f'ds_write_b32 {vr(AG + 2)}, {vr(GL)}')
        b = i + D
        if b < 8:
            issue_a(A, b, VX, VB)
        elif cfg.w0late:
            if b - 8 < cfg.p2w:
                issue_w(A, b, VW, S_C1)
        elif b + 1 - 8 < cfg.p2w:
            issue_w(A, b + 1, VW, S_C1)
        if cfg.stag0 <= i < cfg.stag0 + cfg.nstag and not cfg.w0late:
            A(f's_cmp_lg_u32 {sr(S_STAG)}, {i - cfg.stag0}\ns_cbranch_scc1 L_now0_{i}')
            saved = list(A.vm)
            issue_w(A, 8, VW, S_C1)
            A.vm = saved
            A.label(f'L_now0_{i}')
    assert cfg.stag0 + cfg.nstag <= 8 - D
    if cfg.selfw:
        A(f's_cmp_eq_u32 {sr(S_W)}, 3\ns_cselect_b32 {sr(S_MB2)}, 4, {sr(S_W)}\ns_lshl_b32 {sr(S_MB2)}, {sr(S_MB2)}, 10\ns_add_u32 {sr(S_MB2)}, {sr(S_MB2)}, {X_PAR}')
    A.wait_lg_all()
    if cfg.p1b:
        A(f's_setprio {cfg.p1b}')
    if cfg.stamps:
        A('s_mov_b32 s13, 0')

    def need(b):
        return (G1, b) if b < cfg.p2w or cfg.selfw else (G2, b)

    def rd(n, r):
        b, kk, j = n // 24, (n // 12) % 2, n % 12
        u, mat, fh = j >> 2, (j >> 1) & 1, j & 1
        if n % 24 == 0 and r == 0:
            if b == 0:
                if cfg.w0late:
                    A.wait_vm('blk8')
                else:
                    A(f's_waitcnt vmcnt({len(A.vm)})')
                A('s_barrier')
            else:
                A(f's_cbranch_vccnz L_slow{b}')
                A.label(f'L_back{b}')
            if b == 4:
                A(f'v_add_u32 {vr(TB)}, {2 * SLOT}, {vr(TB)}\nv_add_u32 {vr(TB + 1)}, {2 * SLOT}, {vr(TB + 1)}')
            if b in (0, 2, 4, 5, 7):
                A.stamp(f'B{b}')
        slot = WSLOT[b]
        off = (slot % 2) * SLOT + mat * 12288 + (32 * kk + 4 * r) * 192 + u * 64
        A.ds(f'ds_read_b64_tr_b16 {vr(WB + 4 * (n % 6) + 2 * r, 2)}, {vr(TB + 2 * (slot // 4) + fh)} offset:{off}', f'w{n}')
    for n in range(5):
        rd(n, 0)
        rd(n, 1)
    wq = []
    for n in range(192):
        ks, j = n // 12, n % 12
        b, m = n // 24, n % 24
        acc = ACC + 32 * (j >> 2) + 16 * ((j >> 1) & 1) + 4 * (j & 1)
        if n % 2 == 0:
            A.wait_lg(f'w{n + 1}')
        mf16(A, acc, WB + 4 * (n % 6), XR + 8 * ks, ks == 0)
        if n + 5 < 192:
            rd(n + 5, 0)
        if m == cfg.post_at:
            A(f'v_mov_b32 {vr(VPT)}, {b + 1}')
        elif m == cfg.post_at + 1:
            A.wait_vm(f'blk{8 + b + 1}')
        elif m == cfg.post_at + 2:
            A.ds(f'ds_write_b32 {vr(VPW)}, {vr(VPT)}')
        elif m == cfg.peek_at and b < 7:
            A.ds(f'ds_read_b32 {vr(VPT)}, {vr(VPR)} offset:{need(b + 1)[0]}', 'pg')
        elif m == 17 and b < 7:
            A.wait_lg('pg')
            A(f'v_cmp_gt_u32 vcc, {need(b + 1)[1]}, {vr(VPT)}')
        elif cfg.selfw and n in (13, 14, 15, 16):
            if n == 13:
                A(f'v_mbcnt_lo_u32_b32 {vr(XR + 4)}, -1, 0')
            elif n == 14:
                A(f'v_mbcnt_hi_u32_b32 {vr(XR + 4)}, -1, {vr(XR + 4)}')
            elif n == 15:
                A(f'v_lshl_add_u32 {vr(XR + 4)}, {vr(XR + 4)}, 4, {sr(S_MB2)}')
            else:
                A.ds(f'ds_read_b128 {vr(XR, 4)}, {vr(XR + 4)}', 'vw')
        elif wq:
            ln, tag = wq.pop(0)
            if tag:
                A.wait_lg('vw')
                A.vmem(ln, tag)
            else:
                A(ln)
        if cfg.selfw and m == 19 and b < 5:
            assert not wq
            l0, v0 = len(A.lines), len(A.vm)
            issue_w(A, 8 + b + 3, XR, S_C1)
            tags = A.vm[v0:]
            wq.extend((ln, tags.pop(0) if ln.startswith('buffer_') else None) for ln in A.lines[l0:] if ln != 's_nop 0')
            del A.lines[l0:], A.vm[v0:]
        mf16(A, acc + 8, WB + 4 * (n % 6), XR + 8 * ks + 4, ks == 0)
        if n + 5 < 192:
            rd(n + 5, 1)
    post(A, VPW, VPT, 9)
    if cfg.p1b:
        A('s_setprio 0')
    A.stamp('E')
    if cfg.stamps:
        A('v_writelane_b32 v7, s13, 61')
    VST = 1
    A('v_mbcnt_lo_u32_b32 v0, -1, 0\nv_mbcnt_hi_u32_b32 v0, -1, v0')
    A(f'v_and_b32 v1, 15, v0\nv_lshl_add_u32 v1, v1, 2, {sr(S_WDO)}')
    A.ds('ds_read_b32 v2, v1')
    A.ds('ds_read_b32 v3, v1 offset:64')
    lane_pat(A, VST, VPT, sr(S_GST))
    A(f's_mov_b32 {sr(S_C0)}, {NLOG2E}\ns_mov_b32 {sr(S_C0 + 1)}, {NLOG2E}')
    for u in range(3):
        G, U, P = ACC + 32 * u, ACC + 32 * u + 16, WB + 8 * u
        if u == 2:
            A(f's_cmp_eq_u32 {sr(S_J)}, 3\ns_cbranch_scc1 L_no_u2')
        pk = u <= cfg.epi_at

        def mul(d, x, y):
            for r in range(0, 16, 2):
                if pk:
                    A(f'v_pk_mul_f32 {vr(d + r, 2)}, {vr(x + r, 2)}, {vr(y + r, 2) if y else sr(S_C0, 2)}')
                else:
                    for e in (r, r + 1):
                        A(f'v_mul_f32 {vr(d + e)}, {vr(y + e) if y else sr(S_C0)}, {vr(x + e)}')
        mul(U, G, U)
        mul(G, G, None)
        if u == 0:
            A.wait_lg_all()
            A(f'v_mul_f32 v2, {LOG2E}, v2\nv_mul_f32 v3, {LOG2E}, v3\nv_exp_f32 v2, v2\nv_exp_f32 v3, v3')
        for r in range(16):
            A(f'v_exp_f32 {vr(G + r)}, {vr(G + r)}')
        if u == 0:
            A('v_add_f32 v2, 1.0, v2\nv_add_f32 v3, 1.0, v3')
            for r in range(4):
                A(f'v_min_f32 {vr(XR + r)}, 0x7149f2ca, {vr(2 + r // 2)}')
        for r in range(0, 16, 2):
            iv = XR + 2 * (r // 8)
            if pk:
                A(f'v_pk_fma_f32 {vr(G + r, 2)}, {vr(G + r, 2)}, {vr(iv, 2)}, {vr(iv, 2)}')
            else:
                for e in (r, r + 1):
                    A(f'v_fma_f32 {vr(G + e)}, {vr(G + e)}, {vr(iv)}, {vr(iv)}')
        for r in range(16):
            A(f'v_rcp_f32 {vr(G + r)}, {vr(G + r)}')
        mul(U, G, U)
        if u == cfg.epi_at:
            post(A, VPW, VPT, E_EPI)
        for r in range(0, 16, 2):
            A(f'v_cvt_pk_bf16_f32 {vr(P + r // 2)}, {vr(U + r)}, {vr(U + r + 1)}')
        if cfg.fine:
            A.stamp(f'u{u}')
        if cfg.prio:
            A('s_setprio 3')
        for n in range(2 * u, 2 * u + 2):
            A.vmem(f'buffer_store_dwordx4 {vr(WB + 4 * n, 4)}, {vr(VST)}, {sr(R_WS, 4)}, {fo(n)} sc1', 'gu')
        if cfg.prio:
            A('s_setprio 0')
    A.label('L_no_u2')
    post(A, VPW, VPT, E_EPI)
    A.stamp('epi')
    OWN, VD, RW, VL, RO, PB, TMP = 32, 40, 42, 43, 44, 48, 72
    if cfg.prio:
        A('s_setprio 3')
    if cfg.p1d < 11:
        srd(A, R_E, 28, 1376 * 1024)
        wd_voffs(A, VD, TMP)
        await_(A, 'pa9', VPR, VPT, G1, 9)
    if 'G' in cfg.touch:
        for b, o in FL4:
            A(f's_load_dword s14, {sr(b, 2)}, {o} glc')
    for n in range(cfg.p1d, cfg.p1d + cfg.p1pre):
        dma_wd(A, n, VD, R_E)
    A(f's_lshl_b32 {sr(T0)}, {sr(S_W)}, 11\ns_add_u32 {sr(T0)}, {sr(T0)}, {CB}\nv_lshl_add_u32 {vr(RW)}, v0, 4, {sr(T0)}')
    A(f's_lshl_b32 {sr(T0)}, {sr(S_IDX)}, 14\ns_add_u32 {sr(T0)}, {sr(T0)}, {PART}')
    lane_pat(A, VL, TMP, sr(T0))
    out_voff(A, RO, TMP, 0)
    A(f'v_mov_b32 v2, {sr(S_TAG)}\nv_lshlrev_b32 v3, 2, v0')
    A(f's_waitcnt vmcnt({2 * cfg.p1pre})')
    A.vm = A.vm[len(A.vm) - 2 * cfg.p1pre:]
    A('s_mov_b32 exec_hi, 0')
    A.vmem(f'buffer_store_dword v2, v3, {sr(R_WS, 4)}, {sr(S_GFL)} offen sc1', 'fl')
    A('s_mov_b64 exec, -1')
    post(A, VPW, VPT, E_ACK)
    A.stamp('guflag')
    if cfg.prio and cfg.p1lo:
        A('s_setprio 0')
    for n in range(cfg.p1d + cfg.p1pre, 11):
        dma_wd(A, n, VD, R_E)
    if cfg.prio and cfg.p1lo:
        A('s_setprio 3')
    spoll(A, 'gu', cfg, FL4)
    post(A, VPW, VPT, E_GU)
    A.stamp('gupoll')
    if cfg.p1d < 11:
        A.wait_vm('wd10')
        post(A, VPW, VPT, E_D)
    if 'p' in cfg.touch:
        for b, o in FL3:
            A(f's_load_dword s14, {sr(b, 2)}, {o} glc')
    if cfg.prio:
        A('s_setprio 0')
    if cfg.endbar:
        A('s_barrier')
    else:
        await_(A, 'sf', VPW, VPT, G3 - G1, E_SF)
    for k in range(2):
        A.ds(f'ds_read_b128 {vr(OWN + 4 * k, 4)}, {vr(RW)} offset:{1024 * k}')
    spoll(A, 'pp', cfg, FL3)
    post(A, VPW, VPT, E_PP)
    finish(A, cfg, 0, OWN, VL, RO, PB)
    A(f's_cmp_lg_u32 {sr(S_IDX)}, {60 * 16}\ns_cbranch_scc1 L_p1_done')
    A(f'v_mov_b32 v1, {sr(S_TAG)}\nv_mov_b32 v2, {GW}\ns_mov_b64 exec, 1')
    A(f'buffer_store_dword v1, v2, {sr(R_WS, 4)}, 0 offen sc1\ns_mov_b64 exec, -1')
    A.label('L_p1_done')
    A.stamp('stored')
    if cfg.stamps:
        A.wait_vm_all()
        A.stamp('done')
    A.dump_stamps(0)
    A('s_endpgm')

    for b in range(1, 8):
        A.label(f'L_slow{b}')
        if cfg.stamps:
            A(f's_add_u32 s13, s13, {1 << (4 * b)}')
        A(f'ds_read_b32 {vr(VPT)}, {vr(VPR)} offset:{need(b)[0]}\ns_waitcnt lgkmcnt(0)')
        A(f'v_cmp_gt_u32 vcc, {need(b)[1]}, {vr(VPT)}\ns_cbranch_vccnz L_slow{b}\ns_branch L_back{b}')

    return A


def gen_p2(cfg):
    A = WS(cfg, 31)
    VC, VD, VST, VPF, VXS, AC, VPW, VPR, VPT, VA, RW, VG, RO, VL, VS, VF, DS = 1, 5, 7, 8, 10, 11, 15, 16, 17, 18, 19, 20, 21, 22, 23, 26, 28
    U, V = 32, 48
    VPK, XA, VAF, AW = 14, 13, 27, 240
    SC = 64
    LR, LI, L16R, L16I, L32R, L32I, KR, KI, LCR, LCI = range(80, 90)
    WQ, WSR, WSI, SEL, VW, VPQ, VEX, VEXW, VPUB = 90, 94, 95, 96, 104, 107, 109, 110, 111
    TMP = 112
    AX, AB = 128, 136
    FB = (144, 192)
    A.label('L_p2')
    if cfg.stamps:
        A('v_mov_b32 v31, 0')
    A.stamp('start')
    rho_pre(A, cfg, S_RHO, T0)
    A(f'v_and_b32 {vr(TMP + 4)}, 15, v0\nv_lshlrev_b32 {vr(TMP + 4)}, 2, {vr(TMP + 4)}\nv_add_u32 {vr(TMP + 4)}, {X_CNT}, {vr(TMP + 4)}\nv_mov_b32 {vr(TMP + 6)}, 0')
    A.ds(f'ds_write_b32 {vr(TMP + 4)}, {vr(TMP + 6)}')
    frag_addr(A, AB, TMP + 8)
    A(f's_lshl_b32 {sr(S_MB)}, {sr(S_W)}, 12')
    for s in range(4):
        A(f'v_add_u32 {vr(AX + s)}, {sr(S_MB)}, {vr(AB + s)}')
        A(f'v_add_u32 {vr(AX + 4 + s)}, {2 * SLOT}, {vr(AX + s)}')
        A(f'v_add_u32 {vr(AB + 4 + s)}, {2 * SLOT}, {vr(AB + s)}')
    A.wait_lg_all()
    load_tag(A)
    map2(A, cfg)
    srd(A, R_O, 28, 1376 * 1024)
    srd(A, R_WG, 24, 512 * 2752)
    srd(A, R_WU, 26, 512 * 2752)
    srd(A, R_WS, 36, WS_SIZE)
    srd(A, R_X, 4, 2048 * 1024)
    srd(A, R_B, 14, 512 * 1024)
    srd(A, R_E, 16, 512 * 1024)
    consts(A)
    first_unit(A)
    N0, N1, NS = TMP + 4, TMP + 5, TMP + 6
    LRE, LIM, DT, A2, BR = TMP + 1, TMP + 2, TMP + 3, TMP + 7, TMP + 12
    t0, t1, t2, t3 = TMP + 8, TMP + 9, TMP + 10, TMP + 11

    def setup_a():
        A(f'v_and_b32 {vr(TMP)}, 0x13, v0\nv_bfe_u32 {vr(t0)}, v0, 2, 1\nv_lshl_add_u32 {vr(TMP)}, {vr(t0)}, 3, {vr(TMP)}\nv_bfe_u32 {vr(t0)}, v0, 3, 1\nv_lshl_add_u32 {vr(TMP)}, {vr(t0)}, 2, {vr(TMP)}')
        A(f'v_lshlrev_b32 {vr(TMP)}, 1, {vr(TMP)}\nv_add_u32 {vr(TMP)}, {X_PAR}, {vr(TMP)}')
        if not cfg.selfw:
            wffn_voffs(A, VW, t0)
        A(f's_mul_i32 {sr(S_MB2)}, {sr(S_W)}, 3072')
        A(f'v_and_b32 {vr(VEX)}, 31, v0\nv_lshlrev_b32 {vr(VEX)}, 3, {vr(VEX)}\nv_add_u32 {vr(VEX)}, {X_EX}, {vr(VEX)}')
        A(f's_lshl_b32 {sr(T0)}, {sr(S_W)}, 8\nv_add_u32 {vr(VEXW)}, {sr(T0)}, {vr(VEX)}')
        A(f's_lshl_b32 {sr(T0)}, {sr(S_W)}, 2\ns_lshl_b32 {sr(T1)}, {sr(S_CG)}, 14\ns_add_u32 {sr(T1)}, {sr(T1)}, {AGG}')
        A(f'v_and_b32 {vr(t0)}, 15, v0\nv_lshl_add_u32 {vr(t0)}, {vr(t0)}, 4, {sr(T1)}\nv_bfe_u32 {vr(t3)}, v0, 4, 1\nv_lshl_add_u32 {vr(t0)}, {vr(t3)}, 9, {vr(t0)}')
        A(f'v_lshrrev_b32 {vr(t3)}, 5, v0')
        A(f'v_mov_b32 {vr(t2)}, {OOB}')
        for j in range(2):
            A(f'v_add_u32 {vr(t1)}, {sr(T0)}, {vr(t3)}')
            if j:
                A(f'v_add_u32 {vr(t1)}, 2, {vr(t1)}')
            A(f'v_cmp_gt_u32 vcc, {sr(S_RT)}, {vr(t1)}')
            A(f'v_lshl_add_u32 {vr(VPQ + j)}, {vr(t1)}, 10, {vr(t0)}')
            A(f'v_sub_u32 {vr(N0 + j)}, {sr(S_RT)}, {vr(t1)}')
            A(f'v_cndmask_b32 {vr(VPQ + j)}, {vr(t2)}, {vr(VPQ + j)}, vcc')
            A(f'v_add_u32 {vr(N0 + j)}, -1, {vr(N0 + j)}\nv_max_i32 {vr(N0 + j)}, 0, {vr(N0 + j)}\nv_lshlrev_b32 {vr(N0 + j)}, 7, {vr(N0 + j)}\nv_cvt_f32_i32 {vr(N0 + j)}, {vr(N0 + j)}')
        A(f's_lshl_b32 {sr(T0)}, {sr(S_W)}, 5\nv_lshl_add_u32 {vr(NS)}, {vr(t3)}, 4, {sr(T0)}\nv_cvt_f32_i32 {vr(NS)}, {vr(NS)}')
        A(f's_lshl4_add_u32 {sr(T0)}, {sr(S_CG)}, {sr(S_RT)}\ns_lshl_b32 {sr(T0)}, {sr(T0)}, 10\ns_add_u32 {sr(T0)}, {sr(T0)}, {AGG}')
        A(f's_cmp_eq_u32 {sr(S_W)}, 0\ns_cselect_b32 {sr(T0)}, {sr(T0)}, {OOB}')
        lane_pat(A, VPUB, t0, sr(T0))
        prog_addrs(A, VPW, VPR, G2)
        A(f's_lshl_b32 {sr(T0)}, s2, 4\ns_mul_i32 {sr(T1)}, s2, 43\ns_and_b32 {sr(T2)}, {sr(S_W)}, 1\ns_mul_i32 {sr(T2)}, {sr(T2)}, 22\ns_add_u32 {sr(T1)}, {sr(T1)}, {sr(T2)}')
        A(f's_cmp_ge_u32 {sr(S_W)}, 2\ns_cselect_b32 {sr(T0)}, {sr(T1)}, {sr(T0)}\ns_cselect_b32 {sr(T1)}, 21, 15\ns_lshl_b32 {sr(T0)}, {sr(T0)}, 7')
        A(f'v_min_u32 {vr(VPF)}, {sr(T1)}, v0\nv_lshl_add_u32 {vr(VPF)}, {vr(VPF)}, 7, {sr(T0)}')
        A(f's_cmp_eq_u32 {sr(S_W)}, 1\ns_cselect_b32 s16, s16, s14\ns_cselect_b32 s17, s17, s15\ns_cmp_ge_u32 {sr(S_W)}, 2\ns_cselect_b32 s16, s28, s16\ns_cselect_b32 s17, s29, s17')
        A(f's_cselect_b32 s18, {sr(R_O + 2)}, {sr(R_B + 2)}\ns_mov_b32 s19, 0x20000')

    def setup_b():
        flag_addr(A, S_GFL, HF)
        poll_bases(A, HF, 0)
        A(f'v_bfe_u32 {vr(t0)}, v0, 3, 2\nv_bfe_u32 {vr(t1)}, v0, 1, 1\nv_lshl_add_u32 {vr(t0)}, {vr(t0)}, 1, {vr(t1)}')
        A(f'v_bfe_u32 {vr(t1)}, v0, 2, 1\nv_lshrrev_b32 {vr(t2)}, 5, v0\nv_xor_b32 {vr(t1)}, {vr(t1)}, {vr(t2)}\nv_lshl_add_u32 {vr(t0)}, {vr(t1)}, 3, {vr(t0)}')
        A(f'v_and_b32 {vr(t1)}, 1, v0\nv_lshlrev_b32 {vr(t1)}, 4, {vr(t1)}\nv_mov_b32 {vr(t2)}, 0xffff\nv_lshlrev_b32 {vr(t1)}, {vr(t1)}, {vr(t2)}')
        for r in range(0, 8, 2):
            A(f'v_cmp_eq_u32 vcc, {r}, {vr(t0)}\nv_cmp_eq_u32 s[8:9], {r + 1}, {vr(t0)}\ns_nop 0')
            A(f'v_cndmask_b32 {vr(SEL + r)}, 0, {vr(t1)}, vcc\nv_cndmask_b32 {vr(SEL + r + 1)}, 0, {vr(t1)}, s[8:9]')
        A(f's_mul_i32 {sr(T1)}, {sr(S_MG)}, {KSP}')
        A(f's_and_b32 {sr(T0)}, {sr(S_CG)}, 14\ns_lshl2_add_u32 {sr(T1)}, {sr(T0)}, {sr(T1)}\ns_and_b32 {sr(T0)}, {sr(S_CG)}, 1\ns_lshl1_add_u32 {sr(T1)}, {sr(T0)}, {sr(T1)}\ns_lshl_b32 {sr(T1)}, {sr(T1)}, 11')
        A(f'v_and_b32 {vr(t0)}, 15, v0\nv_lshl_add_u32 {vr(t0)}, {vr(t0)}, 4, {sr(T1)}\nv_bfe_u32 {vr(t1)}, v0, 4, 1\nv_lshl_add_u32 {vr(t0)}, {vr(t1)}, 11, {vr(t0)}')
        A(f'v_lshrrev_b32 {vr(t1)}, 5, v0\nv_lshl_add_u32 {vr(VST)}, {vr(t1)}, 9, {vr(t0)}')

    def setup_c():
        swz_consts(A, t0, t1, t2, t3)
        A(f's_xor_b32 {sr(T0)}, {sr(S_W)}, {sr(S_Q)}\ns_lshl2_add_u32 {sr(T0)}, {sr(S_J)}, {sr(T0)}\ns_lshl_b32 {sr(T0)}, {sr(T0)}, 15\ns_lshl_b32 {sr(T1)}, {sr(S_Q)}, 8\ns_add_u32 {sr(T0)}, {sr(T0)}, {sr(T1)}')
        A(f'v_lshl_add_u32 {vr(t3)}, {vr(t0)}, 10, {sr(T0)}')
        A(f'v_add_u32 {vr(VC)}, {vr(t3)}, {vr(t1)}\nv_add_u32 {vr(VC + 1)}, {vr(t3)}, {vr(t2)}')
        A(f'v_add_u32 {vr(VC + 2)}, {2 * 7168}, {vr(VC)}\nv_add_u32 {vr(VC + 3)}, {3 * 7168}, {vr(VC + 1)}\nv_add_u32 {vr(VC + 1)}, 7168, {vr(VC + 1)}')
        wd_voffs(A, VD, t0)
        frag16_addr(A, AC, t0)
        A(f'v_add_u32 {vr(AC)}, {CB}, {vr(AC)}\nv_add_u32 {vr(AC + 1)}, {CB}, {vr(AC + 1)}')
        act_voff(A, VA, t0, 16, 0)
        A(f's_lshl_b32 {sr(T0)}, {sr(S_W)}, 11\ns_add_u32 {sr(T0)}, {sr(T0)}, {CB}\nv_lshl_add_u32 {vr(RW)}, v0, 4, {sr(T0)}')
        A(f'v_bfe_u32 {vr(t1)}, v0, 3, 2\ns_and_b32 {sr(T0)}, {sr(S_Q)}, 1\ns_lshl_b32 {sr(T0)}, {sr(T0)}, 1\nv_xor_b32 {vr(t1)}, {sr(T0)}, {vr(t1)}')
        A(f'v_lshlrev_b32 {vr(t1)}, 5, {vr(t1)}\nv_bfe_u32 {vr(t0)}, v0, 2, 3\nv_lshl_add_u32 {vr(t0)}, {vr(t0)}, 7, {vr(t1)}')
        A(f'v_and_b32 {vr(t1)}, 3, v0\nv_lshl_add_u32 {vr(t0)}, {vr(t1)}, 3, {vr(t0)}\nv_lshrrev_b32 {vr(t1)}, 5, v0\nv_lshl_add_u32 {vr(AW)}, {vr(t1)}, 11, {vr(t0)}\nv_add_u32 {vr(AW)}, {2 * SLOT}, {vr(AW)}')
        for n in range(4):
            if n:
                A(f'v_xor_b32 {vr(AW + n)}, {n << 5}, {vr(AW)}')
            A(f'v_add_u32 {vr(AW + 4 + n)}, {2 * SLOT}, {vr(AW + n)}')
        act_voff(A, VAF, t0, 22, 64)
        A(f's_lshl_b32 {sr(T0)}, {sr(S_W)}, 7\ns_add_u32 {sr(T0)}, {sr(T0)}, {X_GT}\nv_lshrrev_b32 {vr(VG)}, 4, v0\nv_lshl_add_u32 {vr(VG)}, {vr(VG)}, 4, {sr(T0)}')
        out_voff(A, RO, t0, 1)
        A(f's_lshl2_add_u32 {sr(T1)}, {sr(S_J)}, {sr(S_Q)}\ns_lshl_b32 {sr(T1)}, {sr(T1)}, 6\nv_and_b32 {vr(t1)}, 15, v0')
        A(f's_lshl_b32 {sr(T0)}, {sr(S_MG)}, 15\ns_add_u32 {sr(T0)}, {sr(T0)}, {sr(T1)}\nv_and_b32 {vr(t0)}, 3, v0\nv_lshl_add_u32 {vr(t0)}, {vr(t0)}, 4, {sr(T0)}')
        A(f'v_lshrrev_b32 {vr(VXS)}, 2, v0\nv_lshl_add_u32 {vr(VXS)}, {vr(VXS)}, 10, {vr(t0)}')
        row0(A, XA, t0)
        A(f's_add_u32 {sr(T0)}, {sr(S_WDO)}, {WDA[0]}\nv_lshl_add_u32 {vr(t1)}, {vr(t1)}, 1, {sr(T0)}\nv_lshl_add_u32 {vr(XA)}, {vr(XA)}, 6, {vr(t1)}')
        part_addrs(A, VL, VS, VF, t0, 0)

    def ld_d():
        A.vmem(f'global_load_ushort {vr(DS + 1)}, {vr(DS)}, s[20:21] offset:32', 'xs')
        A.vmem(f'global_load_ushort {vr(DS)}, {vr(DS)}, s[20:21]', 'xs')
    setup_a()
    A(f's_lshl2_add_u32 {sr(T1)}, {sr(S_J)}, {sr(S_Q)}\ns_lshl_b32 {sr(T1)}, {sr(T1)}, 6\nv_and_b32 {vr(t1)}, 15, v0\nv_lshl_add_u32 {vr(DS)}, {vr(t1)}, 1, {sr(T1)}')
    if 'w' in cfg.early:
        A(f's_lshr_b32 {sr(S_STAG)}, s2, 3\ns_and_b32 {sr(T0)}, s2, 1\ns_mul_i32 {sr(T0)}, {sr(T0)}, {cfg.nstag // 2}\ns_add_u32 {sr(S_STAG)}, {sr(S_STAG)}, {sr(T0)}')
        A(f's_and_b32 {sr(S_STAG)}, {sr(S_STAG)}, {cfg.nstag - 1}')
    if 'd' in cfg.early:
        ld_d()
    if 'p' in cfg.early:
        A.vmem(f'buffer_load_dword {vr(VPF + 1)}, {vr(VPF)}, s[16:19], 0 offen')
    if 'a' in cfg.early:
        for j in range(2):
            A.vmem(f'buffer_load_dword {vr(SC + j)}, {vr(VPQ + j)}, {sr(R_WS, 4)}, 0 offen sc1')
    A.wait_lg_all()
    A(f's_add_u32 {sr(S_TAG)}, {sr(S_TAG)}, 0x9E3779B1')
    A.stamp('setup')

    def cpow(dr, di, n):
        A(f'v_mul_f32 {vr(t0)}, {n}, {vr(A2)}\nv_mul_f32 {vr(t1)}, {n}, {vr(BR)}')
        A(f'v_exp_f32 {vr(t0)}, {vr(t0)}\nv_fract_f32 {vr(t1)}, {vr(t1)}')
        A(f'v_cos_f32 {vr(dr)}, {vr(t1)}\nv_sin_f32 {vr(di)}, {vr(t1)}')
        A(f'v_mul_f32 {vr(dr)}, {vr(t0)}, {vr(dr)}\nv_mul_f32 {vr(di)}, {vr(t0)}, {vr(di)}')

    def lam(i):
        if i == 0:
            for r in (LRE, LIM, DT):
                A(f'v_lshlrev_b32 {vr(r)}, 16, {vr(r)}')
            A(f'v_mul_f32 {vr(DT)}, {LOG2E}, {vr(DT)}\nv_exp_f32 {vr(DT)}, {vr(DT)}\ns_nop 0')
            A(f'v_cvt_pk_bf16_f32 {vr(DT)}, {vr(DT)}, {vr(DT)}\nv_lshlrev_b32 {vr(DT)}, 16, {vr(DT)}')
            A(f'v_mul_f32 {vr(A2)}, {vr(DT)}, {vr(LRE)}\nv_mul_f32 {vr(BR)}, {vr(DT)}, {vr(LIM)}')
            A(f'v_mul_f32 {vr(A2)}, {LOG2E}, {vr(A2)}\nv_mul_f32 {vr(BR)}, {INV2PI}, {vr(BR)}')
            cpow(LR, LI, '1.0')
            cpow(L16R, L16I, '0x41800000')
        if i == 1:
            cpow(L32R, L32I, '0x42000000')
        if i == 2:
            cpow(WQ, WQ + 1, vr(N0))
        if i == 3:
            cpow(WQ + 2, WQ + 3, vr(N1))
        if i == 4:
            cpow(WSR, WSI, vr(NS))
        if i == 5:
            A(f'v_mul_f32 {vr(t0)}, {vr(LRE)}, {vr(LRE)}\nv_fmac_f32 {vr(t0)}, {vr(LIM)}, {vr(LIM)}\nv_rcp_f32 {vr(t0)}, {vr(t0)}')
            A(f'v_add_f32 {vr(t1)}, -1.0, {vr(LR)}\nv_add_f32 {vr(t0)}, {vr(t0)}, {vr(t0)}')
            A(f'v_mul_f32 {vr(KR)}, {vr(t1)}, {vr(LRE)}\nv_fmac_f32 {vr(KR)}, {vr(LI)}, {vr(LIM)}')
            A(f'v_mul_f32 {vr(KI)}, {vr(LI)}, {vr(LRE)}\nv_fma_f32 {vr(KI)}, -{vr(t1)}, {vr(LIM)}, {vr(KI)}')
            A(f'v_mul_f32 {vr(KR)}, {vr(t0)}, {vr(KR)}\nv_mul_f32 {vr(KI)}, {vr(t0)}, {vr(KI)}')

    l0 = len(A.lines)
    setup_b()
    setup_c()
    nfree = len(A.lines) - l0
    for i in range(6):
        lam(i)
    work = A.lines[l0:]
    del A.lines[l0:]
    st = {'n': 0, 'ok': False}

    def fill(k):
        while k and work and (st['ok'] or st['n'] < nfree):
            A(work.pop(0))
            st['n'] += 1
            k -= 1

    def mm(i, s):
        xf, bf = FB[i % 2], FB[i % 2] + 16
        A.wait_lg(f'a{i}{s}')
        mfma(A, U, xf + 4 * s, bf + 8 * s, i == 0 and s == 0)
        fill(cfg.nfill)
        A.wait_lg(f'b{i}{s}')
        mfma(A, V, xf + 4 * s, bf + 8 * s + 4, i == 0 and s == 0)
        fill(cfg.nfill if s < 2 else cfg.nfill - 3)
    for i in range(8):
        A('s_barrier')
        so = (i % 2) * SLOT
        hi = (i >> 1) & 1
        xf, bf = FB[i % 2], FB[i % 2] + 16
        for s in range(4):
            A.ds(f'ds_read_b128 {vr(xf + 4 * s, 4)}, {vr(AX + 4 * hi + s)} offset:{so}', f'a{i}{s}')
            A.ds(f'ds_read_b128 {vr(bf + 8 * s, 4)}, {vr(AB + 4 * hi + s)} offset:{so + 16384}', f'a{i}{s}')
            A.ds(f'ds_read_b128 {vr(bf + 8 * s + 4, 4)}, {vr(AB + 4 * hi + s)} offset:{so + 20480}', f'b{i}{s}')
            if i and s < 2:
                mm(i - 1, 2 + s)
        if i == 1:
            for j, r in enumerate((LRE, LIM, DT)):
                A.ds(f'ds_read_u16 {vr(r)}, {vr(TMP)} offset:{1024 * j}')
        mm(i, 0)
        mm(i, 1)
        A.wait_lg_all()
        if 'w' in cfg.early and cfg.stag0 <= i < cfg.stag0 + cfg.nstag:
            A(f's_mov_b32 s15, scc\ns_cmp_lg_u32 {sr(S_STAG)}, {i - cfg.stag0}\ns_cbranch_scc1 L_nopf_{i}')
            A(f'buffer_load_dword {vr(VPF + 1)}, {vr(VPF)}, s[16:19], 0 offen')
            A.label(f'L_nopf_{i}')
            A('s_cmp_lg_u32 s15, 0')
        if i == 0:
            fill(cfg.fill0)
        if i == 1:
            st['ok'] = True
        if i == 6:
            fill(1000)
    if cfg.prio:
        A(f's_setprio {cfg.p2b}')
    GR = SC + 12
    E0R, E0I, E1R, E1I = TMP + 2, TMP + 3, TMP + 4, TMP + 5
    EW = SC
    PA = SC + 8
    PW = TMP + 10
    PQ = SC
    Q = TMP
    PK = SC
    done = []

    def cfma(dr, di, ar, ai, br, bi, cr, ci):
        A(f'v_fma_f32 {vr(dr)}, {vr(ar)}, {vr(br)}, {vr(cr)}\nv_fma_f32 {vr(di)}, {vr(ar)}, {vr(bi)}, {vr(ci)}')
        A(f'v_fma_f32 {vr(dr)}, -{vr(ai)}, {vr(bi)}, {vr(dr)}\nv_fma_f32 {vr(di)}, {vr(ai)}, {vr(br)}, {vr(di)}')
        A.tick()

    def scale(rs):
        for r in rs:
            t = TMP + (r & 1)
            A(f'v_mul_f32 {vr(t)}, {vr(KI)}, {vr(V + r)}\nv_mul_f32 {vr(V + r)}, {vr(KR)}, {vr(V + r)}')
            A(f'v_fmac_f32 {vr(V + r)}, {vr(KI)}, {vr(U + r)}\nv_fma_f32 {vr(U + r)}, {vr(KR)}, {vr(U + r)}, -{vr(t)}')
            A.tick()

    def pl_agg():
        for j in range(2):
            A.vmem(f'buffer_load_dwordx4 {vr(PQ + 4 * j, 4)}, {vr(VPQ + j)}, {sr(R_WS, 4)}, 0 offen sc1', 'pagg')

    def ck_agg():
        for j in range(2):
            A(f'v_cmp_eq_u32 {sr(S_C0, 2)}, {sr(S_TAG)}, {vr(PQ + 4 * j + 1)}\nv_cmp_eq_u32 {sr(8, 2)}, {sr(S_TAG)}, {vr(PQ + 4 * j + 3)}')
            A(f'v_cmp_eq_u32 vcc, {OOB}, {vr(VPQ + j)}')
            A(f's_and_b64 {sr(S_C0, 2)}, {sr(S_C0, 2)}, {sr(8, 2)}\ns_or_b64 {sr(S_C0, 2)}, {sr(S_C0, 2)}, vcc')
            if j == 0:
                A(f's_mov_b64 {sr(T2, 2)}, {sr(S_C0, 2)}')
        A(f's_and_b64 {sr(S_C0, 2)}, {sr(S_C0, 2)}, {sr(T2, 2)}\ns_cmp_eq_u64 {sr(S_C0, 2)}, -1')

    ACT0, FBS, XS, GV = 128, 192, 216, 232

    def pass2(rs):
        for r in rs:
            pr, pi = (TMP, TMP + 1) if r == 0 else (U + r - 1, V + r - 1)
            cfma(U + r, V + r, LR, LI, pr, pi, U + r, V + r)
            if r % 2:
                A(f'v_cvt_pk_bf16_f32 {vr(PK + r // 2)}, {vr(U + r - 1)}, {vr(U + r)}')
                A(f'v_cvt_pk_bf16_f32 {vr(PK + 8 + r // 2)}, -{vr(V + r - 1)}, -{vr(V + r)}')

    def after(*deps):
        for d in deps:
            assert d in done, (act, d)

    for act in cfg.sched.replace(',', ' ').split():
        bgd = act[0] == '+'
        act = act.lstrip('+')
        if act == '!':
            A.drain()
            continue
        if act == '?':
            A.ds(f'ds_read_b32 {vr(VPK)}, {vr(VPR)} offset:{G1}', 'peek')
            st['peek'] = True
            continue

        def pwait(v):
            if st.pop('peek', False):
                check_(A, f'pa{v}', VPR, VPK, G1, v)
            else:
                await_(A, f'pa{v}', VPR, VPT, G1, v)
        assert act not in done, act
        k, n = act[0], int(act[1:]) if act[1:].isdigit() else None

        def emit(fn):
            if bgd:
                A.defer(fn)
            else:
                A.drain()
                A.low(fn)
        if k == 'w' and n is not None:
            if any(t == f'blk{8 + n}' for _, t in A.bg):
                A.drain()

        def pa(v):
            if v > st.get('pa', 0):
                after('B0')
                assert v - 1 < cfg.p2w or st.get('w', 0) >= min(v - 1, 7)
                pwait(v)
                st['pa'] = v
        if k == 'c' and n is not None:
            pa((4, 5, 5, 6)[n])

            def f():
                A(f's_add_u32 m0, {sr(S_MB)}, {CB + n * 16384}\ns_mov_b32 {sr(S_OA)}, {128 * (n >> 1)}')
                for j in range(4):
                    A.vmem(f'buffer_load_dwordx4 {vr(VC + j)}, {sr(R_E if n & 1 else R_B, 4)}, {sr(S_OA)} offen offset:{1024 * j} lds', f'c{n}')
            emit(f)
        elif k == 'W':
            if n >= 4:
                after('B0')
            if n >= 6:
                pa(n - 4)
            emit(lambda: issue_w(A, 8 + n, VW, S_MB2))
        elif k == 'w':
            after(f'W{n}')
            A.wait_vm(f'blk{8 + n}')
            assert n > st.get('w', 0) and n >= st.get('hiw', 0) and all(f'W{x}' in done and done.index(f'W{x}') < done.index(f'W{n}') for x in range(cfg.p2w, n))
            st['w'] = n
            post(A, VPW, VPT, n)
        elif k == 'd' and n is not None:
            if n == 0:
                after('xr')
                A.wait_lg('xr11')
            if n >= 1:
                pa({1: 6, 2: 7, 3: 7, 4: 7, 5: 8, 6: 8, 7: 8}.get(n, 9))

            assert n < cfg.p1d
            emit(lambda: dma_wd(A, n, VD, R_O))
        elif act == 'ec':
            tags = ('c0', 'c1', 'c2', 'c3')
            after(*tags, 'mm' if cfg.selfw else 'w7')
            A.drain()
            last = [t for t in A.vm if t in tags]
            if last:
                A.wait_vm(last[-1])
            post(A, VPW, VPT, E_C)
        elif act == 'pf':
            if cfg.w2pf and 'p' not in cfg.early and 'w' not in cfg.early:
                emit(lambda: A.vmem(f'buffer_load_dword {vr(VPF + 1)}, {vr(VPF)}, s[16:19], 0 offen'))
        elif act == 'g1':
            after('B0')
            tg = TMP + 12
            A(f's_lshl_b32 {sr(T1)}, {sr(S_W)}, 7\ns_add_u32 {sr(T1)}, {sr(T1)}, {X_GT}\nv_and_b32 {vr(tg)}, 31, v0\nv_lshl_add_u32 {vr(tg)}, {vr(tg)}, 2, {sr(T1)}')
            A.ds(f'ds_read_b32 {vr(tg)}, {vr(tg)}')
            A.wait_lg_all()
            A(f'v_mul_f32 {vr(tg)}, {NLOG2E}, {vr(tg)}\nv_exp_f32 {vr(tg)}, {vr(tg)}\ns_nop 0\nv_add_f32 {vr(tg)}, 1.0, {vr(tg)}\nv_rcp_f32 {vr(tg)}, {vr(tg)}\ns_nop 0')
            A(f'v_cvt_pk_bf16_f32 {vr(tg)}, {vr(tg)}, {vr(tg)}')
            for r in range(8):
                A(f'v_and_b32 {vr(SEL + r)}, {vr(tg)}, {vr(SEL + r)}')
        elif act == 'gs':
            after('mm', 'B0')
            for a in range(2):
                A.ds(f'ds_read_b128 {vr(GV + 4 * a, 4)}, {vr(VG)} offset:{64 * a}')
            A.wait_lg_all()
            for r in range(8):
                A(f'v_mul_f32 {vr(GV + r)}, {NLOG2E}, {vr(GV + r)}')
            A.tick()
            A.tick()
            for r in range(8):
                A(f'v_exp_f32 {vr(GV + r)}, {vr(GV + r)}')
            A.tick()
            A.tick()
            for r in range(8):
                A(f'v_add_f32 {vr(GV + r)}, 1.0, {vr(GV + r)}')
            A.tick()
            A.tick()
            for r in range(8):
                A(f'v_rcp_f32 {vr(GV + r)}, {vr(GV + r)}')
            A.tick()
            A.tick()
        elif act == 'B0':
            A('s_barrier')
        elif act == 'mm':
            mm(7, 2)
            mm(7, 3)
            A(f'v_mov_b32 {vr(GR + 1)}, {sr(S_TAG)}\nv_mov_b32 {vr(GR + 3)}, {sr(S_TAG)}\ns_nop 9')
        elif act == 'p1':
            after('mm')
            pr, pi = U, V
            for r in range(1, 16):
                dr, di = TMP + 2 * (r % 2), TMP + 2 * (r % 2) + 1
                cfma(dr, di, LR, LI, pr, pi, U + r, V + r)
                pr, pi = dr, di
            assert (pr, pi) == (E0R, E0I)
            A(f'v_mov_b32 {vr(E1R)}, {vr(E0R)}\nv_mov_b32 {vr(E1I)}, {vr(E0I)}\ns_nop 1')
            A(f'v_permlane32_swap_b32 {vr(E0R)}, {vr(E1R)}\nv_permlane32_swap_b32 {vr(E0I)}, {vr(E1I)}')
            cfma(TMP + 6, TMP + 7, L16R, L16I, E0R, E0I, E1R, E1I)
            A.ds(f'ds_write_b64 {vr(VEXW)}, {vr(TMP + 6, 2)}')
            post(A, VPW, VPT, E_EX, G3 - G2)
        elif act == 'pub':
            after('p1')
            await_(A, 'ex', VPR, VPT, G3, E_EX)
            for w in range(4):
                A.ds(f'ds_read_b64 {vr(EW + 2 * w, 2)}, {vr(VEX)} offset:{256 * w}')
            A.wait_lg_all()
            cfma(PA, PA + 1, L32R, L32I, EW, EW + 1, EW + 2, EW + 3)
            cfma(PA + 2, PA + 3, L32R, L32I, PA, PA + 1, EW + 4, EW + 5)
            cfma(GR, GR + 2, L32R, L32I, PA + 2, PA + 3, EW + 6, EW + 7)
            A('s_mov_b32 exec_hi, 0')
            A.vmem(f'buffer_store_dwordx4 {vr(GR, 4)}, {vr(VPUB)}, {sr(R_WS, 4)}, 0 offen sc1')
            A('s_mov_b64 exec, -1')
        elif act == 'lc':
            after('pub')
            A(f'v_mov_b32 {vr(PW)}, 0\nv_mov_b32 {vr(PW + 1)}, 0')
            for w, src in ((1, EW), (2, PA), (3, PA + 2)):
                A(f's_cmp_eq_u32 {sr(S_W)}, {w}\ns_cselect_b64 vcc, -1, 0')
                A(f'v_cndmask_b32 {vr(PW)}, {vr(PW)}, {vr(src)}, vcc\nv_cndmask_b32 {vr(PW + 1)}, {vr(PW + 1)}, {vr(src + 1)}, vcc')
            cfma(LCR, LCI, L16R, L16I, PW, PW + 1, E0R, E0I)
            A('s_mov_b32 vcc_lo, -1\ns_mov_b32 vcc_hi, 0')
            A(f'v_cndmask_b32 {vr(LCR)}, {vr(LCR)}, {vr(PW)}, vcc\nv_cndmask_b32 {vr(LCI)}, {vr(LCI)}, {vr(PW + 1)}, vcc')
        elif k == 's':
            after('p1')
            assert 'car' not in done
            scale(range(8 * n, 8 * n + 8))
        elif act == 'poll':
            after('lc')
            pl_agg()
        elif act == 'q':
            after('poll', 'B0')
            A.drain()
            A.wait_vm('pagg')
            hiw = max([int(d[1]) for d in done if d[0] == 'W'] + [0])
            spin(A, 'agg', pl_agg, ck_agg, cfg, (lambda: post(A, VPW, VPT, hiw)) if hiw else None)
            A(f'v_mul_f32 {vr(Q)}, {vr(WQ)}, {vr(PQ)}\nv_mul_f32 {vr(Q + 1)}, {vr(WQ)}, {vr(PQ + 2)}')
            A(f'v_fma_f32 {vr(Q)}, -{vr(WQ + 1)}, {vr(PQ + 2)}, {vr(Q)}\nv_fmac_f32 {vr(Q + 1)}, {vr(WQ + 1)}, {vr(PQ)}')
            cfma(Q, Q + 1, WQ + 2, WQ + 3, PQ + 4, PQ + 6, Q, Q + 1)
            A(f'v_mov_b32 {vr(Q + 2)}, {vr(Q)}\nv_mov_b32 {vr(Q + 3)}, {vr(Q + 1)}\ns_nop 1')
            A(f'v_permlane32_swap_b32 {vr(Q)}, {vr(Q + 2)}\nv_permlane32_swap_b32 {vr(Q + 1)}, {vr(Q + 3)}')
            A(f'v_add_f32 {vr(Q)}, {vr(Q)}, {vr(Q + 2)}\nv_add_f32 {vr(Q + 1)}, {vr(Q + 1)}, {vr(Q + 3)}')
            A.ds(f'ds_write_b64 {vr(VEXW)}, {vr(Q, 2)} offset:1024')
            post(A, VPW, VPT, E_EX2, G3 - G2)
            st['hiw'] = hiw
        elif act == 'car':
            after('q', 's0', 's1')
            await_(A, 'ex2', VPR, VPT, G3, E_EX2)
            for w in range(4):
                A.ds(f'ds_read_b64 {vr(EW + 2 * w, 2)}, {vr(VEX)} offset:{1024 + 256 * w}', 'ex2')
            A.wait_lg('ex2')
            for o in (0, 1):
                A(f'v_add_f32 {vr(EW + o)}, {vr(EW + o)}, {vr(EW + 2 + o)}\nv_add_f32 {vr(EW + 4 + o)}, {vr(EW + 4 + o)}, {vr(EW + 6 + o)}')
            A(f'v_add_f32 {vr(EW)}, {vr(EW)}, {vr(EW + 4)}\nv_add_f32 {vr(EW + 1)}, {vr(EW + 1)}, {vr(EW + 5)}')
            cfma(LCR, LCI, WSR, WSI, EW, EW + 1, LCR, LCI)
            A(f'v_mul_f32 {vr(TMP)}, {vr(KR)}, {vr(LCR)}\nv_mul_f32 {vr(TMP + 1)}, {vr(KR)}, {vr(LCI)}')
            A(f'v_fma_f32 {vr(TMP)}, -{vr(KI)}, {vr(LCI)}, {vr(TMP)}\nv_fmac_f32 {vr(TMP + 1)}, {vr(KI)}, {vr(LCR)}')
        elif act == 'pa':
            after('car')
            pass2(range(0, 8))
        elif act == 'pb':
            after('pa')
            pass2(range(8, 16))
        elif act == 'tr':
            after('pb', 'g1')
            for s in range(2):
                for part, d in ((0, U), (1, V)):
                    mfma(A, d, PK + 8 * part + 4 * s, SEL + 4 * s, s == 0)
            A('s_nop 10')
            for part, d in ((0, U), (1, V)):
                for m in range(2):
                    for e in range(4):
                        A(f'v_cvt_pk_bf16_f32 {vr(PK + 8 * part + 4 * m + e)}, {vr(d + 8 * m + 2 * e)}, {vr(d + 8 * m + 2 * e + 1)}')
                    A.vmem(f'buffer_store_dwordx4 {vr(PK + 8 * part + 4 * m, 4)}, {vr(VST)}, {sr(R_WS, 4)}, {k4(2 * part)} offen offset:{1024 * m} sc1', 'h')
        elif act == 'hf':
            after('tr')
            A(f'v_mov_b32 {vr(TMP + 2)}, {sr(S_TAG)}\nv_lshlrev_b32 {vr(TMP + 3)}, 2, v0')
            A.wait_vm('h')
            A('s_mov_b32 exec_hi, 0')
            A.vmem(f'buffer_store_dword {vr(TMP + 2)}, {vr(TMP + 3)}, {sr(R_WS, 4)}, {sr(S_GFL)} offen sc1', 'fl')
            A('s_mov_b64 exec, -1')
        elif act == 'hs':
            after('hf', 'mm' if cfg.selfw else 'W7')
            A.drain()
            spoll(A, 'hs', cfg, FL4, mode='issue')
        elif act == 'th':
            if 'h' in cfg.touch:
                for b, o in FL4:
                    A(f's_load_dword s13, {sr(b, 2)}, {o} glc')
        elif act == 'ha':
            after('hs')
            A.drain()
            spoll(A, 'hs', cfg, FL4, mode='check')
            A.stamp('hpoll')
            for f in range(16):
                A.vmem(f'buffer_load_dwordx4 {vr(ACT0 + 4 * f, 4)}, {vr(VA)}, {sr(R_WS, 4)}, {fo(f)} sc1', f'act{f // 2}')
        elif act == 'xs':
            assert 'd0' not in done
            if 'd' not in cfg.early:
                ld_d()

            def f():
                A(f's_add_u32 m0, {sr(S_WDO)}, {WDA[0]}\ns_mov_b32 {sr(S_OA)}, {15 * 1024}')
                A.vmem(f'buffer_load_dwordx4 {vr(VXS)}, {sr(R_X, 4)}, 0 offen lds', 'xs')
                A.vmem(f'buffer_load_dwordx4 {vr(VXS)}, {sr(R_X, 4)}, {sr(S_OA)} offen offset:1024 lds', 'xs')
            emit(f)
        elif act == 'xm':
            after('xr', 'gs')
            A.wait_lg('xr11')
            A(f'v_lshlrev_b32 {vr(DS)}, 16, {vr(DS)}\nv_lshlrev_b32 {vr(DS + 1)}, 16, {vr(DS + 1)}')
            for r in range(16):
                A(f'v_lshlrev_b32 {vr(XS + r)}, 16, {vr(XS + r)}')
                A(f'v_mul_f32 {vr(XS + r)}, {vr(XS + r)}, {vr(DS + ((r >> 2) & 1))}')
                A(f'v_mul_f32 {vr(XS + r)}, {vr(XS + r)}, {vr(GV + 4 * (r >> 3) + (r & 3))}')
                A.tick()
        elif act == 'xr':
            after('xs', 'mm')
            if any(t == 'xs' for _, t in A.bg):
                A.drain()
            A.wait_vm('xs')
            for c in range(2):
                for a in range(2):
                    for r in range(4):
                        A.ds(f'ds_read_u16 {vr(XS + 8 * a + 4 * c + r)}, {vr(XA)} offset:{512 * a + 64 * r + 32 * c}', f'xr{c}{a}')
                    if c:
                        A.wait_lg(f'xr0{a}')
        else:
            raise AssertionError(act)
        done.append(act)
        if act in cfg.p2st.split(','):
            A.stamp(act)
    A.drain()
    after(*(f'd{i}' for i in range(cfg.p1d)), 'ha', 'xm', 'ec', 'pf', 'gs')
    ACC2, OA, PK, PB = 32, 96, 96, 216
    wdl = [i for i, t in enumerate(A.vm) if t and t.startswith('wd')]
    if wdl:
        A.vm[wdl[-1]] = 'wdlast'
    srd(A, R_O, 32, 2048 * 2048)
    if 'g' in cfg.touch:
        for b, o in FL4:
            A(f's_load_dword s13, {sr(b, 2)}, {o + GF - HF} glc')
    A(f'v_subrev_u32 {vr(VPF)}, {G2 - G1}, {vr(VPW)}')
    A(f'v_mov_b32 {vr(DS)}, {sr(S_TAG)}\nv_mov_b32 {vr(DS + 1)}, {sr(S_TAG)}')
    for p in range(11):
        unit_off(A, 48 + p, p, 12)
    await_(A, 'call', VPR, VPT, G2, E_C)
    if cfg.sgate:
        await_(A, 'epi', VPF, VPT, 0, E_EPI)
    if cfg.prio:
        A(f's_setprio {cfg.pS}')
    A.stamp('S0')

    def areg(p, a):
        return OA + 8 * p + 4 * a if p < 3 else ACT0 + 8 * (p - 3) + 4 * a

    def ld_act(p, track=True):
        saved = list(A.vm)
        for a in range(2):
            A.vmem(f'buffer_load_dwordx4 {vr(areg(p, a), 4)}, {vr(VAF)}, {sr(R_WS, 4)}, {sr(48 + p)} offen offset:{2048 * a} sc1', f'fa{p}')
        if not track:
            A.vm = saved

    NT = cfg.ntail
    items = [('s', t, n) for t in range(8) for n in range(8)] + [('f', p, n) for p in range(11 - NT) for n in range(8)]
    t0 = len(items)
    items += [('f', p, 2 * m + c) for m in (1, 2, 3, 0) for p in range(11 - NT, 11) for c in range(2)]
    G = 2 * NT
    N = len(items)
    ifd = min([i for i, (k, p, n) in enumerate(items) if k == 'f' and p >= cfg.p1d] + [1000])
    assert G >= 8

    def rd(i, r):
        k, p, n = items[i]
        if k == 's':
            if r == 0:
                A.ds(f'ds_read_b128 {vr(FBS + 4 * (i % 6), 4)}, {vr(AC + (p & 1))} offset:{16384 * (p >> 1) + 2048 * n}', f's{i}')
            return
        hi = WDA[p] >= 4 * SLOT
        off = WDA[p] - (4 * SLOT if hi else 2 * SLOT) + 4096 * r + 1024 * (n >> 2)
        A.ds(f'ds_read_b64_tr_b16 {vr(FBS + 4 * (i % 6) + 2 * r, 2)}, {vr(AW + (n & 3) + 4 * hi)} offset:{off}', f's{i}')

    def look(i, at, name, va, off, val):
        if i == at - 4:
            A.ds(f'ds_read_b32 {vr(VPK)}, {vr(va)} offset:{off}', 'peek')
        if i == at:
            check_(A, name, va, VPK, off, val)
        return i == at

    def extra(i):
        if i == cfg.own_at - 8:
            A.wait_vm('wdlast')
            post(A, VPW, VPT, E_WD)
        if look(i, cfg.own_at, 'ack', VPF, 0, E_ACK):
            A.stamp('ack')
            A(f's_cmp_eq_u32 {sr(S_J)}, 3\ns_cbranch_scc1 L_no_l2a')
            ld_act(2, False)
            A.label('L_no_l2a')
            A.defer(lambda: ld_act(0))
            A.defer(lambda: ld_act(1))
        look(i, 58, 'wd', VPR, G2, E_WD)
        if look(i, cfg.gu_at, 'gu', VPF, 0, E_GU):
            A.stamp('gu')
            assert not A.bg
            A(f's_cmp_lg_u32 {sr(S_J)}, 3\ns_cbranch_scc1 L_no_l2b')
            ld_act(2, False)
            A.label('L_no_l2b')
            for p in range(3, 11):
                A.defer(lambda: ld_act(p))
        elif A.bg and i % cfg.fweave == 0:
            tag = A.bg[0][1]
            if int(tag[2:]) < 3 or 8 * (int(tag[2:]) - 2) <= i:
                A.pop_bg()
        if i == 64:
            post(A, VPW, VPT, E_SD, G3 - G2)
            A.stamp('Send')
        if i == 64 + 15:
            A(f's_waitcnt vmcnt({sum(1 for t in A.vm if t and t.startswith("fa") and int(t[2:]) >= 3)})')
        look(i, ifd - 6, 'dall', VPR, G1, E_D)
        look(i, N - 3, 'sd', VPR, G3, E_SD)
        if i >= t0 + G:
            m, k = (i - t0) // G, (i - t0) % G
            if 2 <= k < 6:
                for e in (2 * (k - 2), 2 * (k - 2) + 1):
                    A(f'v_cvt_pk_bf16_f32 {vr(PK + 8 * (m - 1) + e)}, {vr(ACC2 + 16 * m + 2 * e)}, {vr(ACC2 + 16 * m + 2 * e + 1)}')
            if k in (4, 6):
                c = (k - 4) // 2
                A.vmem(f'buffer_store_dwordx4 {vr(PK + 8 * (m - 1) + 4 * c, 4)}, {vr(VS + m - 1)}, {sr(R_WS, 4)}, 0 offen offset:{2048 * c} sc1', 'ps')
        if cfg.fine and i % 16 == 0:
            A.stamp(f'F{i}')
    pts = sorted([cfg.own_at, 58, cfg.gu_at, ifd - 6, N - 3])
    assert all(y - x > 4 for x, y in zip(pts, pts[1:])) and cfg.own_at < 58 and cfg.gu_at < 64 + 15
    for i in range(5):
        rd(i, 0)
    for i, (k, p, n) in enumerate(items):
        if i % 2 == 0:
            A.wait_lg(f's{i + 1}')
        tag = f'act{p}' if k == 's' else f'fa{p}'
        assert not any(t == tag for _, t in A.bg)
        A.wait_vm(tag)
        for a in range(2):
            o = 16 * (n >> 1) + 8 * a + 4 * (n & 1)
            c = vr(ACC2 + o, 4) if i >= 8 else ('0' if n >= 2 else vr(XS + o, 4))
            A(f'v_mfma_f32_16x16x32_bf16 {vr(ACC2 + o, 4)}, {vr(ACT0 + 8 * p + 4 * a if k == "s" else areg(p, a), 4)}, {vr(FBS + 4 * (i % 6), 4)}, {c}')
            if i + 5 < N:
                rd(i + 5, a)
            if a == 0:
                extra(i)
    A.stamp('Fend')
    A('s_nop 6')
    for k in range(2):
        A.ds(f'ds_write_b128 {vr(RW)}, {vr(ACC2 + 4 * k, 4)} offset:{1024 * k}')
    if not cfg.endbar:
        post(A, VPW, VPT, E_SF, G3 - G2)
    A.wait_vm('ps')
    A.vmem(f'buffer_store_dwordx2 {vr(DS, 2)}, {vr(VF)}, {sr(R_WS, 4)}, 0 offen sc1', 'fl')
    A.stamp('pflag')
    if cfg.endbar:
        A.wait_lg_all()
        A('s_barrier')
    await_(A, 'pp', VPF, VPT, 0, E_PP)
    finish(A, cfg, 1, ACC2 + 8, VL, RO, PB)
    A.label('L_p2_done')
    if cfg.stamps:
        A.wait_vm_all()
    A.dump_stamps(1)
    A.label('L_end')
    A('s_endpgm')
    A.label('L_codeend')
    return A


HEADER = open(os.path.join(os.path.dirname(os.path.abspath(__file__)), '..', 'cdna_kernels',
                           'gated_mix__ssm_conv_s5__swiglu_ffn__prompt.s.ref')).read().split('; Override launch')[0]


def generate(cfg):
    e, p1, p2 = gen_entry(cfg), gen_p1(cfg), gen_p2(cfg)
    if cfg.dbg:
        i0 = [i for i, l in enumerate(p2.lines) if l == 's_barrier'][8]
        i1 = p2.lines.index('L_hs_try:')
        for i in range(i0, i1):
            l = p2.lines[i]
            if 'nofma' in cfg.dbg and l.startswith(('v_fma', 'v_mul_f32', 'v_cvt_pk')):
                p2.lines[i] = 's_nop 1'
            if 'nodma' in cfg.dbg and l.endswith(' lds'):
                p2.lines[i] = 's_nop 3'
            if 'nods' in cfg.dbg and l.startswith(('ds_read_b128', 'ds_write_b128', 'ds_read_b64_tr')):
                p2.lines[i] = 's_nop 1'
            if 'nodw' in cfg.dbg and l.startswith('ds_write_b128'):
                p2.lines[i] = 's_nop 1'
            if 'nodr' in cfg.dbg and l.startswith('ds_read_b128'):
                p2.lines[i] = 's_nop 1'
            if 'nom0' in cfg.dbg and ' m0,' in l:
                p2.lines[i] = 's_nop 0'
            if 'spdma' in cfg.dbg and l.endswith(' lds'):
                p2.lines[i] = l + '\n    s_nop 7'
            if 'nost' in cfg.dbg and l.startswith('buffer_store_dwordx4') and 'offset' in l:
                p2.lines[i] = 's_nop 1'
    probs = check_hazards(e.lines + p1.lines, 'p1') + (check_hazards(e.lines + p2.lines, 'p2') if not cfg.dbg else [])
    for p in probs:
        print('HAZARD', p, file=sys.stderr)
    assert not probs
    nb1 = sum(l == 's_barrier' for l in p1.lines)
    nb2 = sum(l == 's_barrier' for l in p2.lines)
    assert nb1 == nb2, (nb1, nb2)
    txt = HEADER + f'; @launch grid=(256,1,1) block=(512,1,1) lds={LDS}\n'
    txt += f'.amdgcn_target "amdgcn-amd-amdhsa--gfx950"\n.text\n.globl {K}\n.p2align 8\n.type {K},@function\n{K}:\n'
    txt += e.text() + p1.text() + p2.text()
    txt += f'''.section .rodata,"a"
.p2align 6
.amdhsa_kernel {K}
  .amdhsa_next_free_vgpr 256
  .amdhsa_next_free_sgpr 102
  .amdhsa_accum_offset 256
  .amdhsa_group_segment_fixed_size 0
  .amdhsa_kernarg_size 136
  .amdhsa_user_sgpr_count 2
  .amdhsa_user_sgpr_kernarg_segment_ptr 1
  .amdhsa_system_sgpr_workgroup_id_x 1
.end_amdhsa_kernel
'''
    return txt, (p1.names, p2.names)


if __name__ == '__main__':
    cfg = Cfg()
    out = sys.argv[1]
    for kv in sys.argv[2:]:
        k, v = kv.split('=')
        old = getattr(cfg, k)
        setattr(cfg, k, (v not in ('0', 'False')) if isinstance(old, bool) else type(old)(v))
    txt, names = generate(cfg)
    open(out, 'w').write(txt)
    if cfg.stamps:
        import json
        json.dump(names, open(out + '.names', 'w'))
```

```python
import sys, os
sys.path.insert(0, os.path.dirname(os.path.abspath(__file__)))
from asmlib import Stream, vr, sr, check_hazards

K = 'gated_mix__ssm_conv_s5__swiglu_ffn__prompt_kernel'

ACT = 0
KSP = 160
AGG = 0x1400000
HF = 0x1480000
GF = 0x14C0000
GW = 0x1500000
PF = 0x1600000
PART = 0x1800000
WS_SIZE = 0x2800000
STAMP = 0xF000000
OOB = 0x40000000
SLOT = 24576
CB = 0
WSLOT = [4, 5, 0, 1, 2, 3, 4, 5]
XB = 6 * SLOT
WDA = [XB] + [65536 + 8192 * i for i in range(10)]
X_EX, X_EX2, X_CNT, X_GT = XB + 8192, XB + 14336, XB + 10240, XB + 10496
X_PAR = XB + 11264
X_GW, X_DS = X_PAR + 1024, X_PAR + 2048
LDS = XB + 16384
S_RT, S_CG, S_Q, S_J, S_W, S_TAG = 38, 39, 40, 41, 42, 43
R_WS, R_X, R_B, R_WG, R_WU, R_E, R_O = 44, 48, 52, 56, 60, 64, 68
S_OA, S_OW = 72, 73
S_K4 = 73
T0, T1, T2, T3 = 3, 81, 0, 1
S_MB = 82
S_MB2 = 83
S_C0 = 84
S_C1 = 86
S_CNT = 88
S_RHO, S_STAG = 87, 23
S_GST, S_GFL, S_WDO = 34, 35, 22
S_MG, S_IDX, S_UR, S_U0 = 10, 11, 12, 27
S_ST0 = 90
LOG2E = 0x3fb8aa3b
NLOG2E = 0xbfb8aa3b
INV2PI = 0x3e22f983


class Cfg:
    mapping = '84'
    weave = 2
    sched = 'mm +W3 +pf p1 pub B0 +W4 +xs lc s0 s1 poll W5 g1 q W6 car +W7 th pa pb tr c0 c1 xr hf c2 c3 ec d0 d1 gs hs xm d2 d3 d4 ha'
    rot = True
    stag0 = 0
    nstag = 4
    rotx = 0
    swap = True
    w2pf = 1
    fx = ''
    fb = ''
    fw = ''
    probe = ''
    stamps = 0
    D = 3
    post_exec = False
    es = 7
    ew = 6
    post0 = 10
    fact = 'sc1'
    ffl = 'sc1'
    fld = 'sc1'
    dp1 = True
    p2w = 3
    nfill = 5
    fill0 = 50
    ntail = 6
    p2st = 'pub,q,tr,hf,ha'
    fine = False
    dbg = ''
    p1b = 2
    p2b = 3
    p2lo = 1
    pS = 1
    pO = 2
    pF = 2
    p1d = 5
    p1pre = 0
    p1mid = 11
    ex1 = False
    nown = 11
    gweave = 1
    fl_at = 0
    own_at = 40
    gu_at = 68
    nfirst = 0
    fweave = 1
    endbar = True
    p1lo = False
    touch = 'hpG'
    epi_at = 2
    early = 'd'
    selfw = False
    vp = 'x'
    sgate = True
    post_at = 1
    peek_at = 11
    spin = 1 << 15
    code_pf = True
    out_flags = 'nt'
    prio = True


class WS(Stream):
    def __init__(self, cfg, vst):
        super().__init__()
        self.cfg, self.vst = cfg, vst
        self.pend, self.names, self.nst = [], [], 0
        self.bg, self.ticks = [], 0

    def defer(self, fn):
        l0, v0 = len(self.lines), len(self.vm)
        fn()
        lines, tags = self.lines[l0:], self.vm[v0:]
        del self.lines[l0:], self.vm[v0:]
        cur = []
        for ln in lines:
            cur.append(ln)
            if ln == 's_mov_b64 exec, -1':
                self.bg[-1][0].extend(cur)
                cur = []
            elif ln.startswith('buffer_'):
                self.bg.append((cur, tags.pop(0)))
                cur = []
        assert not cur and not tags

    def pop_bg(self):
        lines, tag = self.bg.pop(0)
        self.lines += lines
        self.vm.append(tag)

    def low(self, fn):
        if self.cfg.p2lo != self.cfg.p2b:
            self(f's_setprio {self.cfg.p2lo}')
        fn()
        if self.cfg.p2lo != self.cfg.p2b:
            self(f's_setprio {self.cfg.p2b}')

    def tick(self):
        self.ticks += 1
        if self.bg and self.ticks >= self.cfg.weave:
            self.ticks = 0
            self.low(self.pop_bg)

    def drain(self):
        if self.bg:
            self.low(lambda: [self.pop_bg() for _ in list(self.bg)])

    def stamp(self, name):
        role = '1' if self.vst == 7 else '2'
        if self.cfg.probe and self.cfg.probe[0] == role and (name == 'start' or self.cfg.probe[2:] == name):
            self('s_memrealtime s[98:99]')
        if self.cfg.stamps == 4:
            if name in ('start', 'A0', 'A4', 'A7', 'B0', 'B4', 'E', 'epi', 'guflag', 'wdok', 'gupoll', 'F0', 'Fend', 'X2', 'done', 'pub', 'q', 'tr', 'hf', 'hpoll', 'S0', 'Send', 'Sfin', 'wd1', 'own', 'ppoll', 'ps1', 'ps3', 'pflag', 'e1', 'pld', 'stored', 'sflag', 'spoll', 'gu', 'ack'):
                self._stamp(name, 's_memrealtime')
            return
        if self.cfg.stamps == 3:
            if name in ('start', 'A0', 'A4', 'B0', 'B4', 'E', 'guflag', 'F0', 'done') and role == '1':
                self._stamp(name, 's_memtime')
                self._stamp(name + '_ns', 's_memrealtime')
            return
        if self.cfg.stamps != 1:
            return
        self._stamp(name, 's_memtime')

    def _stamp(self, name, op):
        if len(self.pend) == 6:
            self('s_waitcnt lgkmcnt(0)')
            self.lg = []
            self.flush()
        used = {p for p, _ in self.pend}
        p = [x for x in range(6) if x not in used][0]
        self(f'{op} {sr(S_ST0 + 2 * p, 2)}')
        self.pend.append((p, self.nst))
        self.names.append(name)
        self.nst += 1

    def flush(self):
        for p, i in self.pend:
            self(f'v_writelane_b32 {vr(self.vst)}, {sr(S_ST0 + 2 * p)}, {i}')
        self.pend = []

    def wait_lg_all(self):
        super().wait_lg_all()
        self.flush()

    def dump_stamps(self, role):
        if self.cfg.probe and int(self.cfg.probe[0]) == role + 1:
            self('s_waitcnt lgkmcnt(0)\ns_add_u32 s98, s98, 3000')
            self.label('L_hold')
            self('s_memrealtime s[96:97]\ns_waitcnt lgkmcnt(0)\ns_sub_u32 s96, s96, s98\ns_cmp_lt_i32 s96, 0\ns_cbranch_scc1 L_hold')
        if not self.cfg.stamps:
            return
        self(f's_memrealtime {sr(S_C0, 2)}')
        self.wait_lg_all()
        self(f'v_writelane_b32 {vr(self.vst)}, {sr(S_C0)}, 62')
        self(f'v_writelane_b32 {vr(self.vst)}, s89, 63')
        self(f's_lshl_b32 {sr(T0)}, s2, 3\ns_add_u32 {sr(T0)}, {sr(T0)}, {sr(S_W)}\ns_add_u32 {sr(T0)}, {sr(T0)}, {4 * role}')
        self(f's_lshl_b32 {sr(T0)}, {sr(T0)}, 8\ns_add_u32 {sr(T0)}, {sr(T0)}, {STAMP}')
        self(f's_add_u32 s36, s36, {sr(T0)}\ns_addc_u32 s37, s37, 0')
        self('v_lshlrev_b32 v1, 2, v0')
        self(f'global_store_dword v1, {vr(self.vst)}, s[36:37]')


def srd(A, r, ptr, size):
    A(f's_mov_b32 {sr(r)}, {sr(ptr)}\ns_mov_b32 {sr(r + 1)}, {sr(ptr + 1)}\ns_mov_b32 {sr(r + 2)}, {size}\ns_mov_b32 {sr(r + 3)}, 0x20000')


def k4(k):
    return '0' if k == 0 else sr(S_K4 + k if k < 8 else 16 + k)


def fo(n):
    return f'{k4(n // 2)} offen offset:{2048 * (n % 2)}'


def lane_pat(A, d, t, base):
    A(f'v_and_b32 {vr(t)}, 15, v0\nv_lshl_add_u32 {vr(t)}, {vr(t)}, 4, {base}\nv_lshrrev_b32 {vr(d)}, 4, v0\nv_lshl_add_u32 {vr(d)}, {vr(d)}, 9, {vr(t)}')


def swz_consts(A, vq8, vcA, vcB, t):
    A(f'v_lshrrev_b32 {vr(vq8)}, 3, v0')
    A(f'v_lshrrev_b32 {vr(t)}, 4, v0')
    A(f'v_and_b32 {vr(vcA)}, 7, v0')
    A(f'v_xor_b32 {vr(vcA)}, {vr(vcA)}, {vr(t)}')
    A(f'v_lshlrev_b32 {vr(vcA)}, 4, {vr(vcA)}')
    A(f'v_xor_b32 {vr(vcB)}, 64, {vr(vcA)}')


def frag_addr(A, a0, t):
    A(f'v_and_b32 {vr(a0)}, 31, v0')
    A(f'v_bfe_u32 {vr(t)}, v0, 1, 3')
    A(f'v_lshrrev_b32 {vr(a0 + 1)}, 5, v0')
    A(f'v_xor_b32 {vr(t)}, {vr(t)}, {vr(a0 + 1)}')
    A(f'v_lshlrev_b32 {vr(t)}, 4, {vr(t)}')
    A(f'v_lshl_add_u32 {vr(a0)}, {vr(a0)}, 7, {vr(t)}')
    for s in (1, 2, 3):
        A(f'v_xor_b32 {vr(a0 + s)}, {s << 5}, {vr(a0)}')


def first_unit(A):
    A(f's_lshr_b32 {sr(T0)}, {sr(S_CG)}, 2\ns_mul_i32 {sr(S_U0)}, {sr(S_CG)}, 3\ns_sub_u32 {sr(S_U0)}, {sr(S_U0)}, {sr(T0)}')


def frag16_addr(A, a0, t):
    A(f'v_bfe_u32 {vr(t)}, v0, 1, 3\nv_lshrrev_b32 {vr(a0)}, 4, v0\nv_xor_b32 {vr(t)}, {vr(t)}, {vr(a0)}\nv_lshlrev_b32 {vr(t)}, 4, {vr(t)}')
    A(f'v_and_b32 {vr(a0)}, 15, v0\nv_lshl_add_u32 {vr(a0)}, {vr(a0)}, 7, {vr(t)}\nv_xor_b32 {vr(a0 + 1)}, 64, {vr(a0)}')


def wffn_voffs(A, vw, t):
    A(f's_mul_i32 {sr(T0)}, {sr(S_W)}, {16 * 2752}\ns_lshl_b32 {sr(T1)}, {sr(S_U0)}, 6\ns_add_u32 {sr(T0)}, {sr(T0)}, {sr(T1)}')
    A(f's_and_b32 {sr(T1)}, {sr(S_CG)}, 3\ns_cmp_eq_u32 {sr(T1)}, 3\ns_cselect_b32 {sr(T1)}, 8, 12\ns_cmp_eq_u32 {sr(S_CG)}, 15\ns_cselect_b32 {sr(T1)}, 4, {sr(T1)}')
    A(f'v_mov_b32 {vr(t + 3)}, {OOB}')
    for j in range(3):
        A(f'v_add_u32 {vr(t)}, {64 * j}, v0')
        A(f'v_mul_u32_u24 {vr(t + 1)}, 171, {vr(t)}')
        A(f'v_lshrrev_b32 {vr(t + 1)}, 11, {vr(t + 1)}')
        A(f'v_mul_u32_u24 {vr(t + 2)}, 12, {vr(t + 1)}')
        A(f'v_sub_u32 {vr(t)}, {vr(t)}, {vr(t + 2)}')
        A(f'v_cmp_gt_i32 vcc, {sr(T1)}, {vr(t)}')
        A(f'v_lshrrev_b32 {vr(t + 2)}, 2, {vr(t + 1)}\nv_and_b32 {vr(t + 2)}, 2, {vr(t + 2)}\nv_xor_b32 {vr(t)}, {vr(t)}, {vr(t + 2)}')
        A(f'v_mul_u32_u24 {vr(t + 1)}, 2752, {vr(t + 1)}')
        A(f'v_lshl_add_u32 {vr(t + 1)}, {vr(t)}, 4, {vr(t + 1)}')
        if j:
            A(f'v_subrev_u32 {vr(t + 1)}, {1024 * j}, {vr(t + 1)}')
        A(f'v_add_u32 {vr(t + 1)}, {sr(T0)}, {vr(t + 1)}')
        A(f'v_cndmask_b32 {vr(vw + j)}, {vr(t + 3)}, {vr(t + 1)}, vcc')


def issue_a(A, b, vx, vb):
    sl = (b % 4) * SLOT
    A(f's_add_u32 m0, {sr(S_MB)}, {sl}')
    if b:
        pass
    A(f's_bfe_u32 {sr(S_OA)}, {sr(S_RHO)}, {(3 << 16) | (4 * b)}\ns_lshl_b32 {sr(S_OA)}, {sr(S_OA)}, 7')
    for j in range(4):
        A.vmem(f'buffer_load_dwordx4 {vr(vx + j)}, {sr(R_X, 4)}, {sr(S_OA)} offen offset:{1024 * j} {A.cfg.fx} lds', f'blk{b}')
    A(f's_add_u32 m0, {sr(S_MB2)}, {sl + 16384}\ns_nop 0')
    for j in range(2):
        A.vmem(f'buffer_load_dwordx4 {vr(vb + j)}, {sr(R_B, 4)}, {sr(S_OA)} offen offset:{1024 * j} {A.cfg.fb} lds', f'blk{b}')


def issue_w(A, b, vw, smb):
    sl = WSLOT[b - 8] * SLOT
    A(f's_add_u32 m0, {sr(smb)}, {sl}')
    A(f's_bfe_u32 {sr(S_OW)}, {sr(S_RHO)}, {(3 << 16) | (4 * (b - 8))}\ns_mul_i32 {sr(S_OW)}, {sr(S_OW)}, {64 * 2752}')
    for j in range(3):
        A.vmem(f'buffer_load_dwordx4 {vr(vw + j)}, {sr(R_WG, 4)}, {sr(S_OW)} offen offset:{1024 * j} {A.cfg.fw} lds', f'blk{b}')
    A(f's_add_u32 m0, {sr(smb)}, {sl + 12288}\ns_nop 0')
    for j in range(3):
        A.vmem(f'buffer_load_dwordx4 {vr(vw + j)}, {sr(R_WU, 4)}, {sr(S_OW)} offen offset:{1024 * j} {A.cfg.fw} lds', f'blk{b}')


def spin(A, name, loads, check, cfg, extra=None):
    A(f's_mov_b32 {sr(S_CNT)}, {cfg.spin}')
    A.label(f'L_{name}_chk')
    check()
    A(f's_cbranch_scc1 L_{name}_ok')
    A(f's_sub_u32 {sr(S_CNT)}, {sr(S_CNT)}, 1\ns_cmp_eq_u32 {sr(S_CNT)}, 0\ns_cbranch_scc1 L_{name}_ok')
    saved = list(A.vm)
    loads()
    A('s_waitcnt vmcnt(0)')
    A.vm = saved
    if extra:
        lg = list(A.lg)
        extra()
        A.lg = lg
    A(f's_branch L_{name}_chk')
    A.label(f'L_{name}_ok')


G1, G2, G3, G4 = 0, 16, 32, 48
E_W4, E_W5, E_W6, E_W7, E_C, E_WD = 4, 5, 6, 7, 8, 9
E_EX, E_EX2, E_SD, E_SF = 1, 2, 3, 4
E_EPI, E_ACK, E_GU, E_D, E_PP = 10, 11, 12, 13, 14


def prog_addrs(A, vw, vrd, own):
    A(f's_lshl2_add_u32 {sr(T0)}, {sr(S_W)}, {X_CNT + own}\nv_mov_b32 {vr(vw)}, {sr(T0)}')
    A(f'v_and_b32 {vr(vrd)}, 3, v0\nv_lshlrev_b32 {vr(vrd)}, 2, {vr(vrd)}\nv_add_u32 {vr(vrd)}, {X_CNT}, {vr(vrd)}')


def post(A, vw, vt, val, off=0):
    A(f'v_mov_b32 {vr(vt)}, {val}')
    if A.cfg.post_exec:
        A('s_mov_b64 exec, 1')
    A.ds(f'ds_write_b32 {vr(vw)}, {vr(vt)} offset:{off}')
    if A.cfg.post_exec:
        A('s_mov_b64 exec, -1')


R_T, S_PW = 28, 26


def table_srd(A):
    A(f's_add_u32 {sr(R_T)}, s84, L_tab-L_pc\ns_addc_u32 {sr(R_T + 1)}, s85, 0\ns_mov_b32 {sr(R_T + 2)}, 64\ns_mov_b32 {sr(R_T + 3)}, 0x20000')
    A(f's_lshl2_add_u32 {sr(S_PW)}, {sr(S_W)}, {X_CNT}')


def dpost(A, val, off, m0=True):
    if m0:
        A(f's_add_u32 m0, {sr(S_PW)}, {off}')
    A('s_mov_b64 exec, 1')
    A.vmem(f'buffer_load_dword off, {sr(R_T, 4)}, {4 * val} lds', 'dp')
    A('s_mov_b64 exec, -1')


def await_(A, name, vrd, vt, off, val):
    A.label(f'L_{name}')
    A.ds(f'ds_read_b32 {vr(vt)}, {vr(vrd)} offset:{off}')
    Stream.wait_lg_all(A)
    A(f'v_cmp_gt_u32 vcc, {val}, {vr(vt)}\ns_cbranch_vccnz L_{name}')
    A.flush()


def check_(A, name, vrd, vt, off, val):
    A.wait_lg('peek')
    A(f'v_cmp_gt_u32 vcc, {val}, {vr(vt)}\ns_cbranch_vccz L_{name}_go')
    saved = list(A.lg)
    A.label(f'L_{name}')
    A(f'ds_read_b32 {vr(vt)}, {vr(vrd)} offset:{off}\ns_waitcnt lgkmcnt(0)')
    A(f'v_cmp_gt_u32 vcc, {val}, {vr(vt)}\ns_cbranch_vccnz L_{name}')
    A.label(f'L_{name}_go')
    A.lg = saved


def rho0(A, cfg, t):
    if not cfg.rot:
        A(f's_mov_b32 {sr(t)}, 0')
        return
    assert cfg.mapping == '84'
    if cfg.rotx:
        A(f's_lshl1_add_u32 {sr(t)}, {sr(S_CG)}, {sr(S_RT)}')
    else:
        A(f's_and_b32 {sr(t)}, s2, 6\ns_add_u32 {sr(t)}, {sr(t)}, {sr(S_RT)}')
    A(f's_and_b32 {sr(t)}, {sr(t)}, 7')


def rho_pre(A, cfg, d, t):
    def pack(o):
        return sum(v << (4 * i) for i, v in enumerate(o))
    tabs = [[0, 1, 2, 3, 5, 4, 6, 7], [0, 2, 1, 3, 4, 6, 5, 7], [0, 1, 3, 2, 4, 5, 7, 6], [0, 1, 2, 4, 3, 5, 6, 7]]
    if cfg.swap:
        A(f's_and_b32 {sr(t)}, {sr(S_CG)}, 3\ns_mov_b32 {sr(d)}, {pack(tabs[0])}')
        for j in (1, 2, 3):
            A(f's_cmp_eq_u32 {sr(t)}, {j}\ns_cselect_b32 {sr(d)}, {pack(tabs[j])}, {sr(d)}')
    else:
        A(f's_mov_b32 {sr(d)}, 0x76543210')
    rho0(A, cfg, t)
    A(f's_mul_i32 {sr(t)}, {sr(t)}, 0x11111111\ns_add_u32 {sr(d)}, {sr(d)}, {sr(t)}')


def spoll(A, name, cfg, loads, extra=None, mode='both'):
    SP = 56

    def issue():
        for i, (b, o) in enumerate(loads):
            A(f's_load_dword {sr(SP + i if i < 8 else 76 + i)}, {sr(b, 2)}, {o} glc')
    if mode == 'issue':
        issue()
        return
    A(f's_mov_b32 {sr(S_CNT)}, {cfg.spin}')
    if mode == 'check':
        A(f's_branch L_{name}_wait')
    A.label(f'L_{name}_try')
    issue()
    A.label(f'L_{name}_wait')
    Stream.wait_lg_all(A)
    for i in range(len(loads)):
        r = SP + i if i < 8 else 76 + i
        A(f's_xor_b32 {sr(r)}, {sr(r)}, {sr(S_TAG)}')
        if i:
            A(f's_or_b32 {sr(SP)}, {sr(SP)}, {sr(r)}')
    A(f's_cbranch_scc0 L_{name}_ok')
    if extra:
        saved = list(A.vm), list(A.lg)
        extra()
        A.vm, A.lg = saved
    A(f's_sub_u32 {sr(S_CNT)}, {sr(S_CNT)}, 1\ns_cmp_lg_u32 {sr(S_CNT)}, 0\ns_cbranch_scc1 L_{name}_try')
    A.label(f'L_{name}_ok')
    A.flush()


def flag_addr(A, d, base):
    A(f's_lshl_b32 {sr(d)}, {sr(S_IDX)}, 8\ns_add_u32 {sr(d)}, {sr(d)}, {base}')


def act_voff(A, VA, t, mul, add):
    A(f's_mul_i32 {sr(T0)}, {sr(S_MG)}, {KSP}\ns_mul_i32 {sr(T1)}, {sr(S_Q)}, {mul}\ns_add_u32 {sr(T0)}, {sr(T0)}, {sr(T1)}\ns_add_u32 {sr(T0)}, {sr(T0)}, {add}\ns_lshl_b32 {sr(T0)}, {sr(T0)}, 11')
    lane_pat(A, VA, t, sr(T0))


def row0(A, d, t):
    A(f'v_bfe_u32 {vr(d)}, v0, 4, 1\nv_lshrrev_b32 {vr(t)}, 5, v0\nv_lshlrev_b32 {vr(t)}, 2, {vr(t)}\nv_lshl_add_u32 {vr(d)}, {vr(d)}, 4, {vr(t)}')


def out_voff(A, d, t, a):
    A(f's_lshl2_add_u32 {sr(T1)}, {sr(S_J)}, {sr(S_Q)}\ns_lshl_b32 {sr(T1)}, {sr(T1)}, 7\ns_lshl_b32 {sr(T0)}, {sr(S_MG)}, 16\ns_add_u32 {sr(T0)}, {sr(T0)}, {sr(T1)}')
    if a:
        A(f's_add_u32 {sr(T0)}, {sr(T0)}, 16384')
    A(f'v_and_b32 {vr(t)}, 31, v0\nv_lshl_add_u32 {vr(t)}, {vr(t)}, 2, {sr(T0)}\nv_lshrrev_b32 {vr(d)}, 5, v0\nv_lshl_add_u32 {vr(d)}, {vr(d)}, 13, {vr(t)}')


def part_addrs(A, VL, VS, VF, t, kind):
    A(f's_lshl_b32 {sr(T0)}, {sr(S_IDX)}, 14\ns_add_u32 {sr(T0)}, {sr(T0)}, {PART + (kind << 24)}')
    lane_pat(A, VL, t, sr(T0))
    for m in (1, 2, 3):
        A(f'v_xor_b32 {vr(VS + m - 1)}, {(m << 16) | (m << 12)}, {vr(VL)}')
    A(f'v_lshrrev_b32 {vr(t)}, 4, v0\nv_mul_u32_u24 {vr(t)}, 0x1100, {vr(t)}\ns_lshl_b32 {sr(T0)}, {sr(S_IDX)}, 10\nv_xor_b32 {vr(t)}, {sr(T0)}, {vr(t)}')
    A(f'v_and_b32 {vr(VF)}, 15, v0\nv_lshl_add_u32 {vr(t)}, {vr(VF)}, 3, {vr(t)}\nv_add_u32 {vr(VF)}, {PF + (kind << 20)}, {vr(t)}')


def wd_voffs(A, VD, t):
    A(f'v_lshrrev_b32 {vr(t)}, 3, v0\nv_and_b32 {vr(t + 1)}, 6, {vr(t)}\nv_and_b32 {vr(VD)}, 7, v0\nv_xor_b32 {vr(t + 1)}, {vr(t + 1)}, {vr(VD)}\nv_lshlrev_b32 {vr(t + 1)}, 4, {vr(t + 1)}\nv_lshl_add_u32 {vr(t)}, {vr(t)}, 10, {vr(t + 1)}')
    A(f's_mul_i32 {sr(T0)}, {sr(S_Q)}, 44\ns_add_u32 {sr(T0)}, {sr(T0)}, {sr(S_W)}\ns_lshl_b32 {sr(T0)}, {sr(T0)}, 13')
    A(f's_lshr_b32 {sr(T1)}, {sr(S_Q)}, 1\ns_lshl1_add_u32 {sr(T1)}, {sr(S_J)}, {sr(T1)}\ns_lshl_b32 {sr(T1)}, {sr(T1)}, 7\ns_add_u32 {sr(T0)}, {sr(T0)}, {sr(T1)}')
    A(f'v_add_u32 {vr(VD)}, {sr(T0)}, {vr(t)}\nv_xor_b32 {vr(VD + 1)}, 0x80, {vr(VD)}')
    A(f's_lshl_b32 {sr(S_WDO)}, {sr(S_W)}, 11')


def dma_wd(A, n, VD, r):
    unit_off(A, S_OW, n, 15)
    for hh in range(2):
        A(f's_add_u32 m0, {sr(S_WDO)}, {WDA[n] + 1024 * hh}\ns_nop 0')
        A.vmem(f'buffer_load_dwordx4 {vr(VD + hh)}, {sr(r, 4)}, {sr(S_OW)} offen lds', f'wd{n}')


def poll_bases(A, base, kind):
    A(f's_and_b32 {sr(T0)}, {sr(S_IDX)}, -4\ns_lshl_b32 {sr(T0)}, {sr(T0)}, 8\ns_add_u32 {sr(T0)}, {sr(T0)}, {base}')
    A(f's_add_u32 s4, s36, {sr(T0)}\ns_addc_u32 s5, s37, 0')
    A(f's_lshl_b32 {sr(T0)}, {sr(S_IDX)}, 10\ns_add_u32 {sr(T0)}, {sr(T0)}, {PF + (kind << 20)}\ns_add_u32 s6, s36, {sr(T0)}\ns_addc_u32 s7, s37, 0')


FL4 = [(4, 256 * j) for j in range(4)]
FL3 = [(6, 256 * j) for j in (1, 2, 3)]


def vpoll(A, name, cfg, base, lo, t):
    A(f'v_and_b32 {vr(t)}, 3, v0\nv_max_u32 {vr(t)}, {lo}, {vr(t)}\nv_lshlrev_b32 {vr(t)}, 8, {vr(t)}')
    A(f's_mov_b32 {sr(S_CNT)}, {cfg.spin}')
    A.label(f'L_{name}_try')
    A(f'global_load_dword {vr(t + 1)}, {vr(t)}, {sr(base, 2)} sc1')
    A(f's_sub_u32 {sr(S_CNT)}, {sr(S_CNT)}, 1\ns_cbranch_scc1 L_{name}_ok')
    A.wait_vm_all()
    A(f'v_cmp_ne_u32 vcc, {sr(S_TAG)}, {vr(t + 1)}\ns_cbranch_vccnz L_{name}_try')
    A.label(f'L_{name}_ok')


def finish(A, cfg, c, own, VL, RO, PB):
    A.stamp('ppoll')
    for m in (1, 2, 3):
        A.vmem(f'buffer_load_dwordx4 {vr(PB + 4 * (m - 1), 4)}, {vr(VL)}, {sr(R_WS, 4)}, {k4(m)} offen offset:{2048 * c} sc1', f'pp{m}')
    for m in (1, 2, 3):
        A.wait_vm(f'pp{m}')
        if m == 3:
            A.stamp('pld')
        for e in range(4):
            s = PB + 4 * (m - 1) + e
            A(f'v_lshlrev_b32 {vr(PB + 12 + 2 * e)}, 16, {vr(s)}\nv_and_b32 {vr(PB + 13 + 2 * e)}, 0xffff0000, {vr(s)}')
        for e in range(4):
            A(f'v_pk_add_f32 {vr(own + 2 * e, 2)}, {vr(own + 2 * e, 2)}, {vr(PB + 12 + 2 * e, 2)}')
    A('s_nop 0')
    for r in range(4):
        A(f'v_permlane16_swap_b32 {vr(own + r)}, {vr(own + 4 + r)}')
        for y in range(2):
            A.vmem(f'buffer_store_dword {vr(own + 4 * y + r)}, {vr(RO)}, {sr(R_O, 4)}, {k4(8 * y + (r >> 1))} offen offset:{2048 * (r & 1)} {cfg.out_flags}')


def mf16(A, d, a, b, first):
    A(f'v_mfma_f32_16x16x32_bf16 {vr(d, 4)}, {vr(a, 4)}, {vr(b, 4)}, {"0" if first else vr(d, 4)}')


def mfma(A, d, a, b, first):
    A(f'v_mfma_f32_32x32x16_bf16 {vr(d, 16)}, {vr(a, 4)}, {vr(b, 4)}, {"0" if first else vr(d, 16)}')


def gen_entry(cfg):
    A = Stream()
    A('s_load_dwordx16 s[4:19], s[0:1], 0\ns_load_dwordx16 s[20:35], s[0:1], 64\ns_load_dwordx2 s[36:37], s[0:1], 128')
    A('s_cmp_ge_u32 s2, 256\ns_cbranch_scc1 L_end')
    if cfg.stamps:
        A('s_memrealtime s[88:89]')
    A('s_lshr_b32 s82, s2, 3')
    if cfg.code_pf:
        A('s_getpc_b64 s[84:85]')
        A.label('L_pc')
        A(f's_and_b32 s83, s82, 3\ns_mul_i32 s83, s83, {60 * 128}\nv_min_u32 v1, 59, v0\nv_lshl_add_u32 v1, v1, 7, s83')
        A(f'v_min_u32 v1, L_codeend-L_pc-4, v1')
        A('global_load_dword v255, v1, s[84:85]')
    A('v_lshrrev_b32 v1, 6, v0\nv_and_b32 v0, 63, v0\nv_readfirstlane_b32 s3, v1')
    if cfg.mapping == '48':
        A(f's_bfe_u32 {sr(S_RT)}, s2, 0x20001\ns_lshl_b32 {sr(S_RT)}, {sr(S_RT)}, 2\ns_and_b32 s83, s82, 3\ns_add_u32 {sr(S_RT)}, {sr(S_RT)}, s83')
        A(f's_and_b32 {sr(S_CG)}, s2, 1\ns_lshl_b32 {sr(S_CG)}, {sr(S_CG)}, 3\ns_lshr_b32 s83, s82, 2\ns_add_u32 {sr(S_CG)}, {sr(S_CG)}, s83')
    else:
        A(f's_and_b32 {sr(S_RT)}, s2, 1\ns_and_b32 s83, s82, 7\ns_lshl3_add_u32 {sr(S_RT)}, {sr(S_RT)}, s83')
        A(f's_and_b32 {sr(S_CG)}, s2, 6\ns_lshr_b32 s83, s82, 3\ns_lshl1_add_u32 {sr(S_CG)}, {sr(S_CG)}, s83')
    A(f's_and_b32 {sr(S_W)}, s3, 3')
    A('s_cmp_ge_u32 s3, 4\ns_cbranch_scc1 L_p2')
    return A


def map2(A, cfg):
    A(f's_lshr_b32 {sr(S_Q)}, {sr(S_CG)}, 2\ns_and_b32 {sr(S_J)}, {sr(S_CG)}, 3\ns_mul_i32 {sr(S_UR)}, {sr(S_J)}, 3')
    A(f's_lshl2_add_u32 {sr(S_MG)}, {sr(S_RT)}, {sr(S_W)}\ns_lshl4_add_u32 {sr(S_IDX)}, {sr(S_MG)}, {sr(S_CG)}')


def unit_off(A, d, p, sh):
    A(f's_add_u32 {sr(d)}, {sr(S_UR)}, {p}\ns_sub_u32 {sr(T0)}, {sr(d)}, 11\ns_cselect_b32 {sr(d)}, {sr(d)}, {sr(T0)}\ns_lshl_b32 {sr(d)}, {sr(d)}, {sh}')


def load_tag(A):
    if A.cfg.stamps:
        A('s_mov_b32 s89, s88')
    A(f's_add_u32 {sr(T2)}, s36, {GW}\ns_addc_u32 {sr(T3)}, s37, 0')
    A(f's_load_dword {sr(S_TAG)}, {sr(T2, 2)}, 0')


def consts(A):
    for k in range(1, 10):
        A(f's_mov_b32 {k4(k)}, {4096 * k}')


def gen_p1(cfg):
    A = WS(cfg, 7)
    TB = 0
    VPW, VPR, VPT = 4, 5, 6
    WB = 8
    ACC = 32
    XR = 128
    VX, VB, AX, TMP = 32, 36, 44, 52
    GL, GWF, VW, AXH, AG = 96, 104, 120, 123, 125
    D = cfg.D
    if cfg.stamps:
        A('v_mov_b32 v7, 0')
    A.stamp('start')
    swz_consts(A, TMP, TMP + 1, TMP + 2, TMP + 3)
    A(f's_lshl2_add_u32 {sr(T1)}, {sr(S_RT)}, {sr(S_W)}\ns_lshl_b32 {sr(T1)}, {sr(T1)}, 15')
    A(f'v_lshrrev_b32 {vr(TMP + 5)}, 5, v0')
    A(f'v_and_b32 {vr(TMP + 4)}, 3, {vr(TMP)}')
    A(f'v_lshl_add_u32 {vr(TMP + 3)}, {vr(TMP + 5)}, 4, {vr(TMP + 4)}')
    A(f'v_lshl_add_u32 {vr(TMP + 3)}, {vr(TMP + 3)}, 10, {sr(T1)}')
    A(f'v_add_u32 {vr(VX)}, {vr(TMP + 3)}, {vr(TMP + 1)}')
    A(f'v_add_u32 {vr(VX + 1)}, {vr(TMP + 3)}, {vr(TMP + 2)}')
    A(f'v_add_u32 {vr(VX + 2)}, {2 * 3072}, {vr(VX)}')
    A(f'v_add_u32 {vr(VX + 3)}, {3 * 3072}, {vr(VX + 1)}')
    A(f'v_add_u32 {vr(VX + 1)}, 3072, {vr(VX + 1)}')
    A(f's_lshl_b32 {sr(S_MB)}, {sr(S_W)}, 12\ns_mov_b32 m0, {sr(S_MB)}')
    rho0(A, cfg, S_OA)
    A(f's_lshl_b32 {sr(S_OA)}, {sr(S_OA)}, 7')
    A(f's_mov_b32 {sr(R_X + 2)}, {2048 * 1024}\ns_mov_b32 {sr(R_X + 3)}, 0x20000')
    A.wait_lg_all()
    A(f's_mov_b32 {sr(R_X)}, s4\ns_mov_b32 {sr(R_X + 1)}, s5')
    A.stamp('karg')
    for j in range(4):
        A.vmem(f'buffer_load_dwordx4 {vr(VX + j)}, {sr(R_X, 4)}, {sr(S_OA)} offen offset:{1024 * j} {A.cfg.fx} lds', 'blk0')
    A(f's_and_b32 {sr(T0)}, {sr(S_W)}, 1\ns_lshl1_add_u32 {sr(T1)}, {sr(S_CG)}, {sr(T0)}\ns_lshl_b32 {sr(T1)}, {sr(T1)}, 14')
    A(f'v_lshl_add_u32 {vr(TMP + 3)}, {vr(TMP + 5)}, 3, {vr(TMP + 4)}')
    A(f'v_lshl_add_u32 {vr(TMP + 3)}, {vr(TMP + 3)}, 10, {sr(T1)}')
    A(f'v_add_u32 {vr(VB)}, {vr(TMP + 3)}, {vr(TMP + 1)}')
    A(f'v_add_u32 {vr(VB + 1)}, {vr(TMP + 3)}, {vr(TMP + 2)}')
    A(f'v_add_u32 {vr(VB + 1)}, 3072, {vr(VB + 1)}')
    A(f's_lshl_b32 {sr(S_MB2)}, {sr(S_W)}, 11\ns_add_u32 m0, {sr(S_MB2)}, 16384')
    A(f's_cmp_ge_u32 {sr(S_W)}, 2')
    A(f's_cselect_b32 {sr(R_B)}, s12, s10\ns_cselect_b32 {sr(R_B + 1)}, s13, s11\ns_mov_b32 {sr(R_B + 2)}, {512 * 1024}\ns_mov_b32 {sr(R_B + 3)}, 0x20000')
    for j in range(2):
        A.vmem(f'buffer_load_dwordx4 {vr(VB + j)}, {sr(R_B, 4)}, {sr(S_OA)} offen offset:{1024 * j} {A.cfg.fb} lds', 'blk0')
    rho_pre(A, cfg, S_RHO, T0)
    for b in range(1, D):
        issue_a(A, b, VX, VB)
        if b == 1:
            A(f's_lshl_b32 {sr(T0)}, {sr(S_CG)}, 6\ns_cmp_eq_u32 {sr(S_W)}, 3\ns_cselect_b32 {sr(T0)}, 0, {sr(T0)}\ns_cselect_b32 {sr(T1)}, 63, 3')
            A(f's_cselect_b32 {sr(R_E)}, s30, s18\ns_cselect_b32 {sr(R_E + 1)}, s31, s19')
            A(f'v_and_b32 {vr(TMP + 5)}, {sr(T1)}, v0\nv_lshl_add_u32 {vr(TMP + 5)}, {vr(TMP + 5)}, 4, {sr(T0)}')
            A(f's_mov_b32 {sr(R_E + 2)}, 1024\ns_mov_b32 {sr(R_E + 3)}, 0x20000')
            A(f's_cmp_eq_u32 {sr(S_W)}, 0\ns_cselect_b32 {sr(R_E)}, s6, {sr(R_E)}\ns_cselect_b32 {sr(R_E + 1)}, s7, {sr(R_E + 1)}')
            A(f's_cmp_eq_u32 {sr(S_W)}, 1\ns_cselect_b32 {sr(R_E)}, s8, {sr(R_E)}\ns_cselect_b32 {sr(R_E + 1)}, s9, {sr(R_E + 1)}')
            A(f's_cmp_eq_u32 {sr(S_W)}, 3\ns_cselect_b32 {sr(T0)}, 4, {sr(S_W)}\ns_cselect_b64 exec, -1, 15\ns_lshl_b32 {sr(T0)}, {sr(T0)}, 8\ns_add_u32 m0, {sr(T0)}, {X_PAR}\ns_nop 0')
            A.vmem(f'buffer_load_dwordx4 {vr(TMP + 5)}, {sr(R_E, 4)}, 0 offen lds', 'blk1')
            A('s_mov_b64 exec, -1')
            A(f's_cmp_lg_u32 {sr(S_W)}, 0\ns_cbranch_scc1 L_no_ds\ns_mov_b32 {sr(R_E)}, s20\ns_mov_b32 {sr(R_E + 1)}, s21\ns_mov_b32 m0, {X_DS}\nv_lshlrev_b32 {vr(TMP + 5)}, 4, v0')
            A(f'buffer_load_dwordx4 {vr(TMP + 5)}, {sr(R_E, 4)}, 0 offen lds')
            A.label('L_no_ds')
            load_tag(A)
            srd(A, R_WG, 24, 512 * 2752)
            srd(A, R_WU, 26, 512 * 2752)
            srd(A, R_WS, 36, WS_SIZE)
            srd(A, R_O, 32, 2048 * 2048)
            srd(A, R_E, 28, 1376 * 1024)
            table_srd(A)
            consts(A)
            first_unit(A)
            wffn_voffs(A, VW, TMP)
            frag16_addr(A, AX, TMP)
            for s in range(2):
                A(f'v_add_u32 {vr(AX + s)}, {sr(S_MB)}, {vr(AX + s)}')
                A(f'v_add_u32 {vr(AXH + s)}, {2 * SLOT}, {vr(AX + s)}')
            prog_addrs(A, VPW, VPR, G1)
            A(f'v_lshrrev_b32 {vr(AG)}, 4, v0\nv_lshlrev_b32 {vr(AG)}, 4, {vr(AG)}\nv_add_u32 {vr(AG)}, {X_GW}, {vr(AG)}')
            A(f's_lshl_b32 {sr(S_WDO)}, {sr(S_W)}, 7\ns_add_u32 {sr(S_WDO)}, {sr(S_WDO)}, {X_GT}\nv_and_b32 {vr(AG + 2)}, 31, v0\nv_lshl_add_u32 {vr(AG + 2)}, {vr(AG + 2)}, 2, {sr(S_WDO)}')
            A(f'v_lshrrev_b32 {vr(TMP)}, 4, v0\nv_bfe_u32 {vr(TMP + 1)}, v0, 2, 2\nv_lshl_add_u32 {vr(TMP)}, {vr(TMP)}, 3, {vr(TMP + 1)}')
            A(f'v_mul_u32_u24 {vr(TMP)}, 192, {vr(TMP)}\nv_bfe_u32 {vr(TMP + 1)}, v0, 4, 1\nv_lshl_add_u32 {vr(TMP)}, {vr(TMP + 1)}, 5, {vr(TMP)}')
            A(f'v_and_b32 {vr(TMP + 1)}, 3, v0\nv_lshl_add_u32 {vr(TB)}, {vr(TMP + 1)}, 3, {vr(TMP)}')
            A(f'v_xor_b32 {vr(TB + 1)}, 32, {vr(TB)}\nv_add_u32 {vr(TB + 2)}, {4 * SLOT}, {vr(TB)}\nv_add_u32 {vr(TB + 3)}, {4 * SLOT}, {vr(TB + 1)}')
            A(f's_mul_i32 {sr(S_C1)}, {sr(S_W)}, 3072')
            map2(A, cfg)
            A(f's_lshr_b32 {sr(S_STAG)}, s2, 3\ns_and_b32 {sr(T0)}, s2, 1\ns_mul_i32 {sr(T0)}, {sr(T0)}, {cfg.nstag // 2}\ns_add_u32 {sr(S_STAG)}, {sr(S_STAG)}, {sr(T0)}')
            A(f's_and_b32 {sr(S_STAG)}, {sr(S_STAG)}, {cfg.nstag - 1}')
            A(f's_mul_i32 {sr(T1)}, {sr(S_MG)}, {KSP}')
            A(f's_lshl1_add_u32 {sr(T1)}, {sr(S_U0)}, {sr(T1)}\ns_add_u32 {sr(T1)}, {sr(T1)}, 64\ns_lshl_b32 {sr(S_GST)}, {sr(T1)}, 11')
            flag_addr(A, S_GFL, GF)
            poll_bases(A, GF, 0)
    A.stamp('issued0')
    A.wait_lg_all()
    A(f's_add_u32 {sr(S_TAG)}, {sr(S_TAG)}, 0x9E3779B1')
    def g_rd(i):
        A(f's_bfe_u32 {sr(T0)}, {sr(S_RHO)}, {(3 << 16) | (4 * i)}\ns_lshl_b32 {sr(T0)}, {sr(T0)}, 7\nv_add_u32 {vr(AG + 1)}, {sr(T0)}, {vr(AG)}')
        for kk in range(2):
            A.ds(f'ds_read_b128 {vr(GWF + 8 * (i % 2) + 4 * kk, 4)}, {vr(AG + 1)} offset:{64 * kk}', 'x')

    def g_mm(i):
        for kk in range(2):
            for a in range(2):
                mf16(A, GL + 4 * a, GWF + 8 * (i % 2) + 4 * kk, XR + 16 * i + 8 * kk + 4 * a, i == 0 and kk == 0)

    seq = [(0, kk, j) for kk in range(2) for j in range(8)] + [(0, kk, j) for kk in range(2) for j in range(8, 12)]
    seq += [(b, kk, j) for b in range(1, 8) for kk in range(2) for j in range(12)]
    st = {'n': 0}
    house = {}

    def need(b):
        return (G4, b) if b < cfg.p2w else (G2, b)

    def rd(n, r):
        b, kk, j = seq[n]
        u, mat, fh = j >> 2, (j >> 1) & 1, j & 1
        if n % 24 == 0 and r == 0:
            if b:
                if 'nochk' not in cfg.dbg:
                    A(f's_cbranch_vccnz L_slow{b}')
                A.label(f'L_back{b}')
            if b == 4:
                A(f'v_add_u32 {vr(TB)}, {2 * SLOT}, {vr(TB)}\nv_add_u32 {vr(TB + 1)}, {2 * SLOT}, {vr(TB + 1)}')
            if b in (0, 1, 2, 4, 5, 7):
                A.stamp(f'B{b}')
        slot = WSLOT[b]
        off = (slot % 2) * SLOT + mat * 12288 + (32 * kk + 4 * r) * 192 + u * 64
        A.ds(f'ds_read_b64_tr_b16 {vr(WB + 4 * (n % 6) + 2 * r, 2)}, {vr(TB + 2 * (slot // 4) + fh)} offset:{off}', f'w{n}')

    def adv(k):
        for n in range(st['n'], st['n'] + k):
            b, kk, j = seq[n]
            ks = 2 * b + kk
            acc = ACC + 32 * (j >> 2) + 16 * ((j >> 1) & 1) + 4 * (j & 1)
            if n % 2 == 0:
                A.wait_lg(f'w{n + 1}')
            mf16(A, acc, WB + 4 * (n % 6), XR + 8 * ks, ks == 0)
            if n + 5 < 192:
                rd(n + 5, 0)
            if n in house:
                house[n]()
            mf16(A, acc + 8, WB + 4 * (n % 6), XR + 8 * ks + 4, ks == 0)
            if n + 5 < 192:
                rd(n + 5, 1)
        st['n'] += k

    def plan(b, post_at, peek_at):
        if cfg.dp1:
            house[24 * b + post_at] = lambda: (A.wait_lg('gt'), dpost(A, b + 1, G1, b == 0))
        else:
            house[24 * b + post_at] = lambda: A(f'v_mov_b32 {vr(VPT)}, {b + 1}')
            house[24 * b + post_at + 1] = lambda: A.ds(f'ds_write_b32 {vr(VPW)}, {vr(VPT)}')
        if b < 7:
            house[24 * b + peek_at] = lambda: A.ds(f'ds_read_b32 {vr(VPT)}, {vr(VPR)} offset:{need(b + 1)[0]}', 'pg')
            house[24 * b + 18] = lambda: (A.wait_lg('pg'), A(f'v_cmp_gt_u32 vcc, {need(b + 1)[1]}, {vr(VPT)}'))
    for b in range(1, 8):
        plan(b, cfg.post_at, cfg.peek_at)
    assert cfg.p2w == 3 and cfg.stag0 + cfg.nstag + 2 <= cfg.es
    for i in range(8):
        A.wait_vm(f'blk{i}')
        A.wait_lg('x')
        if i <= cfg.es:
            A.flush()
        A('s_barrier')
        A.stamp(f'A{i}')
        b = i + D
        if i < cfg.es and cfg.gweave:
            if b < 8:
                A.defer(lambda: issue_a(A, b, VX, VB))
            elif b + 1 - 8 < cfg.p2w:
                A.defer(lambda: (issue_w(A, b + 1, VW, S_C1), dpost(A, b + 1 - 8, G4)))
        jobs = [lambda: [A.ds(f'ds_read_b128 {vr(XR + 16 * i + 8 * kk + 4 * a, 4)}, {vr((AXH if i & 2 else AX) + kk)} offset:{(i % 2) * SLOT + 2048 * a}', 'x')
                         for kk in range(2) for a in range(2)]]
        if i == 2:
            jobs.append(lambda: g_mm(0))
        if i >= 2:
            jobs.append(lambda: g_mm(i - 1))
        if i == 1:
            jobs.append(lambda: g_rd(0))
        if i >= 1:
            jobs.append(lambda: g_rd(i))
        for job in jobs:
            for _ in range(cfg.gweave):
                if A.bg:
                    A.pop_bg()
            job()
        while A.bg:
            A.pop_bg()
        if i == cfg.es:
            if cfg.stamps:
                A('s_mov_b32 s13, 0')
            A.wait_lg('x')
            for n in range(5):
                rd(n, 0)
                rd(n, 1)
        if i < cfg.es and cfg.gweave:
            pass
        elif b < 8:
            issue_a(A, b, VX, VB)
        elif b + 1 - 8 < cfg.p2w:
            if i < cfg.es:
                issue_w(A, b + 1, VW, S_C1)
                dpost(A, b + 1 - 8, G4)
            else:
                A.defer(lambda: issue_w(A, b + 1, VW, S_C1))
                for k in range(6):
                    A.pop_bg()
                    adv((cfg.ew * (k + 1)) // 6 - (cfg.ew * k) // 6)
                dpost(A, b + 1 - 8, G4)
        if cfg.stag0 <= i < cfg.stag0 + cfg.nstag:
            A(f's_cmp_lg_u32 {sr(S_STAG)}, {i - cfg.stag0}\ns_cbranch_scc1 L_now0_{i}')
            saved = list(A.vm)
            issue_w(A, 8, VW, S_C1)
            A.vm = saved
            A.label(f'L_now0_{i}')
    if cfg.p1b:
        A(f's_setprio {cfg.p1b}')
    n0 = st['n']
    assert n0 <= 8
    house[n0 + 1] = lambda: (A.wait_lg('x'), g_mm(7), A('s_mov_b32 vcc_lo, 0xffff0000\ns_mov_b32 vcc_hi, 0xffff0000'))
    house[n0 + 3] = lambda: A(f'v_cndmask_b32 {vr(GL)}, {vr(GL)}, {vr(GL + 4)}, vcc')
    house[n0 + 4] = lambda: A.ds(f'ds_write_b32 {vr(AG + 2)}, {vr(GL)}', 'gt')
    p0 = max(n0 + 5, cfg.post0)
    plan(0, p0, max(p0 + 2, 14))
    adv(192 - n0)
    A.wait_vm('dp')
    post(A, VPW, VPT, 9)
    if cfg.p1b:
        A('s_setprio 0')
    A.stamp('E')
    if cfg.stamps:
        A('v_writelane_b32 v7, s13, 61')
    VST = 1
    A('v_mbcnt_lo_u32_b32 v0, -1, 0\nv_mbcnt_hi_u32_b32 v0, -1, v0')
    A(f'v_and_b32 v1, 15, v0\nv_lshl_add_u32 v1, v1, 2, {sr(S_WDO)}')
    A.ds('ds_read_b32 v2, v1')
    A.ds('ds_read_b32 v3, v1 offset:64')
    lane_pat(A, VST, VPT, sr(S_GST))
    A(f's_mov_b32 {sr(S_C0)}, {NLOG2E}\ns_mov_b32 {sr(S_C0 + 1)}, {NLOG2E}')
    for u in range(3):
        G, U, P = ACC + 32 * u, ACC + 32 * u + 16, WB + 8 * u
        if u == 2:
            A(f's_cmp_eq_u32 {sr(S_J)}, 3\ns_cbranch_scc1 {"L_j3" if cfg.epi_at == 2 else "L_no_u2"}')
        pk = u <= cfg.epi_at

        def mul(d, x, y):
            for r in range(0, 16, 2):
                if pk:
                    A(f'v_pk_mul_f32 {vr(d + r, 2)}, {vr(x + r, 2)}, {vr(y + r, 2) if y else sr(S_C0, 2)}')
                else:
                    for e in (r, r + 1):
                        A(f'v_mul_f32 {vr(d + e)}, {vr(y + e) if y else sr(S_C0)}, {vr(x + e)}')
        mul(U, G, U)
        mul(G, G, None)
        if u == 0:
            A.wait_lg_all()
            A(f'v_mul_f32 v2, {LOG2E}, v2\nv_mul_f32 v3, {LOG2E}, v3\nv_exp_f32 v2, v2\nv_exp_f32 v3, v3')
        for r in range(16):
            A(f'v_exp_f32 {vr(G + r)}, {vr(G + r)}')
        if u == 0:
            A('v_add_f32 v2, 1.0, v2\nv_add_f32 v3, 1.0, v3')
            for r in range(4):
                A(f'v_min_f32 {vr(XR + r)}, 0x7149f2ca, {vr(2 + r // 2)}')
        for r in range(0, 16, 2):
            iv = XR + 2 * (r // 8)
            if pk:
                A(f'v_pk_fma_f32 {vr(G + r, 2)}, {vr(G + r, 2)}, {vr(iv, 2)}, {vr(iv, 2)}')
            else:
                for e in (r, r + 1):
                    A(f'v_fma_f32 {vr(G + e)}, {vr(G + e)}, {vr(iv)}, {vr(iv)}')
        for r in range(16):
            A(f'v_rcp_f32 {vr(G + r)}, {vr(G + r)}')
        mul(U, G, U)
        if u == cfg.epi_at:
            post(A, VPW, VPT, E_EPI)
        for r in range(0, 16, 2):
            A(f'v_cvt_pk_bf16_f32 {vr(P + r // 2)}, {vr(U + r)}, {vr(U + r + 1)}')
        if cfg.fine:
            A.stamp(f'u{u}')
        if cfg.prio:
            A('s_setprio 3')
        for n in range(2 * u, 2 * u + 2):
            A.vmem(f'buffer_store_dwordx4 {vr(WB + 4 * n, 4)}, {vr(VST)}, {sr(R_WS, 4)}, {fo(n)} {cfg.fact}', 'gu')
        if cfg.prio:
            A('s_setprio 0')
    A.label('L_no_u2')
    A.stamp('epi')
    OWN, VD, RW, VL, RO, PB, TMP = 32, 40, 42, 43, 44, 48, 72
    if cfg.prio:
        A('s_setprio 3')
    if cfg.p1d < 11:
        wd_voffs(A, VD, TMP)
        await_(A, 'pa9', VPR, VPT, G1, 9)
    if 'G' in cfg.touch:
        for b, o in FL4:
            A(f's_load_dword s14, {sr(b, 2)}, {o} glc')
    for n in range(cfg.p1d, cfg.p1d + cfg.p1pre):
        dma_wd(A, n, VD, R_E)
    A(f's_lshl_b32 {sr(T0)}, {sr(S_W)}, 11\ns_add_u32 {sr(T0)}, {sr(T0)}, {CB}\nv_lshl_add_u32 {vr(RW)}, v0, 4, {sr(T0)}')
    A(f's_lshl_b32 {sr(T0)}, {sr(S_IDX)}, 14\ns_add_u32 {sr(T0)}, {sr(T0)}, {PART}')
    lane_pat(A, VL, TMP, sr(T0))
    out_voff(A, RO, TMP, 0)
    A(f'v_mov_b32 v2, {sr(S_TAG)}\nv_lshlrev_b32 v3, 2, v0')
    A(f's_waitcnt vmcnt({2 * cfg.p1pre})')
    A.vm = A.vm[len(A.vm) - 2 * cfg.p1pre:]
    A('s_mov_b32 exec_hi, 0')
    A.vmem(f'buffer_store_dword v2, v3, {sr(R_WS, 4)}, {sr(S_GFL)} offen {cfg.ffl}', 'fl')
    A('s_mov_b64 exec, -1')
    post(A, VPW, VPT, E_ACK)
    A.stamp('guflag')

    def late(lo, hi):
        if lo >= hi:
            return
        if cfg.prio and cfg.p1lo:
            A('s_setprio 0')
        for n in range(lo, hi):
            dma_wd(A, n, VD, R_E)
        if cfg.prio and cfg.p1lo:
            A('s_setprio 3')
    mid = min(11, cfg.p1d + cfg.p1pre + cfg.p1mid)
    late(cfg.p1d + cfg.p1pre, mid)
    if cfg.p1d < 11 and mid == 11:
        dpost(A, E_D, G4)
    A.stamp('dma')
    spoll(A, 'gu', cfg, FL4)
    post(A, VPW, VPT, E_GU)
    A.stamp('gupoll')
    late(mid, 11)
    if mid < 11:
        dpost(A, E_D, G4)
    if 'p' in cfg.touch:
        for b, o in FL3:
            A(f's_load_dword s14, {sr(b, 2)}, {o} glc')
    if cfg.prio:
        A('s_setprio 0')
    if cfg.endbar:
        A('s_barrier')
    else:
        await_(A, 'sf', VPW, VPT, G3 - G1, E_SF)
    for k in range(2):
        A.ds(f'ds_read_b128 {vr(OWN + 4 * k, 4)}, {vr(RW)} offset:{1024 * k}')
    spoll(A, 'pp', cfg, FL3)
    post(A, VPW, VPT, E_PP)
    finish(A, cfg, 0, OWN, VL, RO, PB)
    A(f's_cmp_lg_u32 {sr(S_IDX)}, {60 * 16}\ns_cbranch_scc1 L_p1_done')
    A(f'v_mov_b32 v1, {sr(S_TAG)}\nv_mov_b32 v2, {GW}\ns_mov_b64 exec, 1')
    A(f'buffer_store_dword v1, v2, {sr(R_WS, 4)}, 0 offen sc1\ns_mov_b64 exec, -1')
    A.label('L_p1_done')
    A.stamp('stored')
    if cfg.stamps:
        A.wait_vm_all()
        A.stamp('done')
    A.dump_stamps(0)
    A('s_endpgm')

    if cfg.epi_at == 2:
        A.label('L_j3')
        post(A, VPW, VPT, E_EPI)
        A('s_branch L_no_u2')
    for b in range(1, 8):
        A.label(f'L_slow{b}')
        if cfg.stamps:
            A(f's_add_u32 s13, s13, {1 << (4 * b)}')
        A(f'ds_read_b32 {vr(VPT)}, {vr(VPR)} offset:{need(b)[0]}\ns_waitcnt lgkmcnt(0)')
        A(f'v_cmp_gt_u32 vcc, {need(b)[1]}, {vr(VPT)}\ns_cbranch_vccnz L_slow{b}\ns_branch L_back{b}')

    return A


def gen_p2(cfg):
    A = WS(cfg, 31)
    VC, VD, VST, VPF, VXS, AC, VPW, VPR, VPT, VA, RW, VG, RO, VL, VS, VF, DS = 1, 5, 7, 8, 10, 11, 15, 16, 17, 18, 19, 20, 21, 22, 23, 26, 28
    U, V = 32, 48
    VPK, XA, VAF, AW, VEXM = 14, 13, 27, 240, 30
    SC = 64
    LR, LI, L16R, L16I, L32R, L32I, KR, KI, LCR, LCI = range(80, 90)
    WQ, WSR, WSI, SEL, VW, VPQ, VEX, VEXW, VPUB = 90, 94, 95, 96, 104, 107, 109, 110, 111
    TMP = 112
    AX, AB = 128, 136
    FB = (144, 192)
    A.label('L_p2')
    if cfg.stamps:
        A('v_mov_b32 v31, 0')
    A.stamp('start')
    rho_pre(A, cfg, S_RHO, T0)
    A(f'v_and_b32 {vr(TMP + 4)}, 15, v0\nv_lshlrev_b32 {vr(TMP + 4)}, 2, {vr(TMP + 4)}\nv_add_u32 {vr(TMP + 4)}, {X_CNT}, {vr(TMP + 4)}\nv_mov_b32 {vr(TMP + 6)}, 0')
    A.ds(f'ds_write_b32 {vr(TMP + 4)}, {vr(TMP + 6)}')
    frag_addr(A, AB, TMP + 8)
    A(f's_lshl_b32 {sr(S_MB)}, {sr(S_W)}, 12')
    for s in range(4):
        A(f'v_add_u32 {vr(AX + s)}, {sr(S_MB)}, {vr(AB + s)}')
        A(f'v_add_u32 {vr(AX + 4 + s)}, {2 * SLOT}, {vr(AX + s)}')
        A(f'v_add_u32 {vr(AB + 4 + s)}, {2 * SLOT}, {vr(AB + s)}')
    A.wait_lg_all()
    load_tag(A)
    map2(A, cfg)
    srd(A, R_O, 28, 1376 * 1024)
    srd(A, R_WG, 24, 512 * 2752)
    srd(A, R_WU, 26, 512 * 2752)
    srd(A, R_WS, 36, WS_SIZE)
    srd(A, R_X, 4, 2048 * 1024)
    srd(A, R_B, 14, 512 * 1024)
    srd(A, R_E, 16, 512 * 1024)
    consts(A)
    first_unit(A)
    N0, N1, NS = TMP + 4, TMP + 5, TMP + 6
    LRE, LIM, DT, A2, BR = TMP + 1, TMP + 2, TMP + 3, TMP + 7, TMP + 12
    t0, t1, t2, t3 = TMP + 8, TMP + 9, TMP + 10, TMP + 11

    def setup_a():
        A(f'v_and_b32 {vr(TMP)}, 0x13, v0\nv_bfe_u32 {vr(t0)}, v0, 2, 1\nv_lshl_add_u32 {vr(TMP)}, {vr(t0)}, 3, {vr(TMP)}\nv_bfe_u32 {vr(t0)}, v0, 3, 1\nv_lshl_add_u32 {vr(TMP)}, {vr(t0)}, 2, {vr(TMP)}')
        A(f'v_lshlrev_b32 {vr(TMP)}, 1, {vr(TMP)}\nv_add_u32 {vr(TMP)}, {X_PAR}, {vr(TMP)}')
        if not cfg.selfw:
            wffn_voffs(A, VW, t0)
        A(f's_mul_i32 {sr(S_MB2)}, {sr(S_W)}, 3072')
        A(f'v_and_b32 {vr(VEX)}, 31, v0\nv_lshlrev_b32 {vr(VEX)}, 4, {vr(VEX)}\nv_add_u32 {vr(VEX)}, {X_EX}, {vr(VEX)}')
        A(f's_lshl_b32 {sr(T0)}, {sr(S_W)}, 9\nv_add_u32 {vr(VEXW)}, {sr(T0)}, {vr(VEX)}')
        if cfg.ex1:
            A(f'v_lshlrev_b32 {vr(VEXM)}, 5, v0\nv_add_u32 {vr(VEXM)}, {X_EX + 24}, {vr(VEXM)}\nv_mov_b32 {vr(t0)}, 0')
            A.ds(f'ds_write_b32 {vr(VEXW)}, {vr(t0)} offset:8')
            A.ds(f'ds_write_b32 {vr(VEXW)}, {vr(t0)} offset:{8 + X_EX2 - X_EX}')
        A(f's_lshl_b32 {sr(T0)}, {sr(S_W)}, 2\ns_lshl_b32 {sr(T1)}, {sr(S_CG)}, 14\ns_add_u32 {sr(T1)}, {sr(T1)}, {AGG}')
        A(f'v_and_b32 {vr(t0)}, 15, v0\nv_lshl_add_u32 {vr(t0)}, {vr(t0)}, 4, {sr(T1)}\nv_bfe_u32 {vr(t3)}, v0, 4, 1\nv_lshl_add_u32 {vr(t0)}, {vr(t3)}, 9, {vr(t0)}')
        A(f'v_lshrrev_b32 {vr(t3)}, 5, v0')
        A(f'v_mov_b32 {vr(t2)}, {OOB}')
        for j in range(2):
            A(f'v_add_u32 {vr(t1)}, {sr(T0)}, {vr(t3)}')
            if j:
                A(f'v_add_u32 {vr(t1)}, 2, {vr(t1)}')
            A(f'v_cmp_gt_u32 vcc, {sr(S_RT)}, {vr(t1)}')
            A(f'v_lshl_add_u32 {vr(VPQ + j)}, {vr(t1)}, 10, {vr(t0)}')
            A(f'v_sub_u32 {vr(N0 + j)}, {sr(S_RT)}, {vr(t1)}')
            A(f'v_cndmask_b32 {vr(VPQ + j)}, {vr(t2)}, {vr(VPQ + j)}, vcc')
            A(f'v_add_u32 {vr(N0 + j)}, -1, {vr(N0 + j)}\nv_max_i32 {vr(N0 + j)}, 0, {vr(N0 + j)}\nv_lshlrev_b32 {vr(N0 + j)}, 7, {vr(N0 + j)}\nv_cvt_f32_i32 {vr(N0 + j)}, {vr(N0 + j)}')
        A(f's_lshl_b32 {sr(T0)}, {sr(S_W)}, 5\nv_lshl_add_u32 {vr(NS)}, {vr(t3)}, 4, {sr(T0)}\nv_cvt_f32_i32 {vr(NS)}, {vr(NS)}')
        A(f's_lshl4_add_u32 {sr(T0)}, {sr(S_CG)}, {sr(S_RT)}\ns_lshl_b32 {sr(T0)}, {sr(T0)}, 10\ns_add_u32 {sr(T0)}, {sr(T0)}, {AGG}')
        A(f's_cmp_eq_u32 {sr(S_W)}, 0\ns_cselect_b32 {sr(T0)}, {sr(T0)}, {OOB}')
        lane_pat(A, VPUB, t0, sr(T0))
        prog_addrs(A, VPW, VPR, G2)
        A(f's_lshl_b32 {sr(T0)}, s2, 4\ns_mul_i32 {sr(T1)}, s2, 43\ns_and_b32 {sr(T2)}, {sr(S_W)}, 1\ns_mul_i32 {sr(T2)}, {sr(T2)}, 22\ns_add_u32 {sr(T1)}, {sr(T1)}, {sr(T2)}')
        A(f's_cmp_ge_u32 {sr(S_W)}, 2\ns_cselect_b32 {sr(T0)}, {sr(T1)}, {sr(T0)}\ns_cselect_b32 {sr(T1)}, 21, 15\ns_lshl_b32 {sr(T0)}, {sr(T0)}, 7')
        A(f'v_min_u32 {vr(VPF)}, {sr(T1)}, v0\nv_lshl_add_u32 {vr(VPF)}, {vr(VPF)}, 7, {sr(T0)}')
        A(f's_cmp_eq_u32 {sr(S_W)}, 1\ns_cselect_b32 s16, s16, s14\ns_cselect_b32 s17, s17, s15\ns_cmp_ge_u32 {sr(S_W)}, 2\ns_cselect_b32 s16, s28, s16\ns_cselect_b32 s17, s29, s17')
        A(f's_cselect_b32 s18, {sr(R_O + 2)}, {sr(R_B + 2)}\ns_mov_b32 s19, 0x20000')

    def setup_b():
        flag_addr(A, S_GFL, HF)
        poll_bases(A, HF, 0)
        A(f'v_bfe_u32 {vr(t0)}, v0, 3, 2\nv_bfe_u32 {vr(t1)}, v0, 1, 1\nv_lshl_add_u32 {vr(t0)}, {vr(t0)}, 1, {vr(t1)}')
        A(f'v_bfe_u32 {vr(t1)}, v0, 2, 1\nv_lshrrev_b32 {vr(t2)}, 5, v0\nv_xor_b32 {vr(t1)}, {vr(t1)}, {vr(t2)}\nv_lshl_add_u32 {vr(t0)}, {vr(t1)}, 3, {vr(t0)}')
        A(f'v_and_b32 {vr(t1)}, 1, v0\nv_lshlrev_b32 {vr(t1)}, 4, {vr(t1)}\nv_mov_b32 {vr(t2)}, 0xffff\nv_lshlrev_b32 {vr(t1)}, {vr(t1)}, {vr(t2)}')
        for r in range(0, 8, 2):
            A(f'v_cmp_eq_u32 vcc, {r}, {vr(t0)}\nv_cmp_eq_u32 s[8:9], {r + 1}, {vr(t0)}\ns_nop 0')
            A(f'v_cndmask_b32 {vr(SEL + r)}, 0, {vr(t1)}, vcc\nv_cndmask_b32 {vr(SEL + r + 1)}, 0, {vr(t1)}, s[8:9]')
        A(f's_mul_i32 {sr(T1)}, {sr(S_MG)}, {KSP}')
        A(f's_and_b32 {sr(T0)}, {sr(S_CG)}, 14\ns_lshl2_add_u32 {sr(T1)}, {sr(T0)}, {sr(T1)}\ns_and_b32 {sr(T0)}, {sr(S_CG)}, 1\ns_lshl1_add_u32 {sr(T1)}, {sr(T0)}, {sr(T1)}\ns_lshl_b32 {sr(T1)}, {sr(T1)}, 11')
        A(f'v_and_b32 {vr(t0)}, 15, v0\nv_lshl_add_u32 {vr(t0)}, {vr(t0)}, 4, {sr(T1)}\nv_bfe_u32 {vr(t1)}, v0, 4, 1\nv_lshl_add_u32 {vr(t0)}, {vr(t1)}, 11, {vr(t0)}')
        A(f'v_lshrrev_b32 {vr(t1)}, 5, v0\nv_lshl_add_u32 {vr(VST)}, {vr(t1)}, 9, {vr(t0)}')

    def setup_c():
        swz_consts(A, t0, t1, t2, t3)
        A(f's_xor_b32 {sr(T0)}, {sr(S_W)}, {sr(S_Q)}\ns_lshl2_add_u32 {sr(T0)}, {sr(S_J)}, {sr(T0)}\ns_lshl_b32 {sr(T0)}, {sr(T0)}, 15\ns_lshl_b32 {sr(T1)}, {sr(S_Q)}, 8\ns_add_u32 {sr(T0)}, {sr(T0)}, {sr(T1)}')
        A(f'v_lshl_add_u32 {vr(t3)}, {vr(t0)}, 10, {sr(T0)}')
        A(f'v_add_u32 {vr(VC)}, {vr(t3)}, {vr(t1)}\nv_add_u32 {vr(VC + 1)}, {vr(t3)}, {vr(t2)}')
        A(f'v_add_u32 {vr(VC + 2)}, {2 * 7168}, {vr(VC)}\nv_add_u32 {vr(VC + 3)}, {3 * 7168}, {vr(VC + 1)}\nv_add_u32 {vr(VC + 1)}, 7168, {vr(VC + 1)}')
        wd_voffs(A, VD, t0)
        frag16_addr(A, AC, t0)
        A(f'v_add_u32 {vr(AC)}, {CB}, {vr(AC)}\nv_add_u32 {vr(AC + 1)}, {CB}, {vr(AC + 1)}')
        act_voff(A, VA, t0, 16, 0)
        A(f's_lshl_b32 {sr(T0)}, {sr(S_W)}, 11\ns_add_u32 {sr(T0)}, {sr(T0)}, {CB}\nv_lshl_add_u32 {vr(RW)}, v0, 4, {sr(T0)}')
        A(f'v_bfe_u32 {vr(t1)}, v0, 3, 2\ns_and_b32 {sr(T0)}, {sr(S_Q)}, 1\ns_lshl_b32 {sr(T0)}, {sr(T0)}, 1\nv_xor_b32 {vr(t1)}, {sr(T0)}, {vr(t1)}')
        A(f'v_lshlrev_b32 {vr(t1)}, 5, {vr(t1)}\nv_bfe_u32 {vr(t0)}, v0, 2, 3\nv_lshl_add_u32 {vr(t0)}, {vr(t0)}, 7, {vr(t1)}')
        A(f'v_and_b32 {vr(t1)}, 3, v0\nv_lshl_add_u32 {vr(t0)}, {vr(t1)}, 3, {vr(t0)}\nv_lshrrev_b32 {vr(t1)}, 5, v0\nv_lshl_add_u32 {vr(AW)}, {vr(t1)}, 11, {vr(t0)}\nv_add_u32 {vr(AW)}, {2 * SLOT}, {vr(AW)}')
        for n in range(4):
            if n:
                A(f'v_xor_b32 {vr(AW + n)}, {n << 5}, {vr(AW)}')
            A(f'v_add_u32 {vr(AW + 4 + n)}, {2 * SLOT}, {vr(AW + n)}')
        act_voff(A, VAF, t0, 22, 64)
        A(f's_lshl_b32 {sr(T0)}, {sr(S_W)}, 7\ns_add_u32 {sr(T0)}, {sr(T0)}, {X_GT}\nv_lshrrev_b32 {vr(VG)}, 4, v0\nv_lshl_add_u32 {vr(VG)}, {vr(VG)}, 4, {sr(T0)}')
        out_voff(A, RO, t0, 1)
        A(f's_lshl2_add_u32 {sr(T1)}, {sr(S_J)}, {sr(S_Q)}\ns_lshl_b32 {sr(T1)}, {sr(T1)}, 6\nv_and_b32 {vr(t1)}, 15, v0')
        A(f's_lshl_b32 {sr(T0)}, {sr(S_MG)}, 15\ns_add_u32 {sr(T0)}, {sr(T0)}, {sr(T1)}\nv_and_b32 {vr(t0)}, 3, v0\nv_lshl_add_u32 {vr(t0)}, {vr(t0)}, 4, {sr(T0)}')
        A(f'v_lshrrev_b32 {vr(VXS)}, 2, v0\nv_lshl_add_u32 {vr(VXS)}, {vr(VXS)}, 10, {vr(t0)}')
        row0(A, XA, t0)
        A(f's_add_u32 {sr(T0)}, {sr(S_WDO)}, {WDA[0]}\nv_lshl_add_u32 {vr(t1)}, {vr(t1)}, 1, {sr(T0)}\nv_lshl_add_u32 {vr(XA)}, {vr(XA)}, 6, {vr(t1)}')
        part_addrs(A, VL, VS, VF, t0, 0)

    setup_a()
    A(f's_lshl2_add_u32 {sr(T1)}, {sr(S_J)}, {sr(S_Q)}\ns_lshl_b32 {sr(T1)}, {sr(T1)}, 6\nv_and_b32 {vr(t1)}, 15, v0\nv_lshl_add_u32 {vr(DS)}, {vr(t1)}, 1, {sr(T1)}')
    if 'w' in cfg.early:
        A(f's_lshr_b32 {sr(S_STAG)}, s2, 3\ns_and_b32 {sr(T0)}, s2, 1\ns_mul_i32 {sr(T0)}, {sr(T0)}, {cfg.nstag // 2}\ns_add_u32 {sr(S_STAG)}, {sr(S_STAG)}, {sr(T0)}')
        A(f's_and_b32 {sr(S_STAG)}, {sr(S_STAG)}, {cfg.nstag - 1}')
    A(f'v_add_u32 {vr(DS)}, {X_DS}, {vr(DS)}')
    table_srd(A)
    if 'p' in cfg.early:
        A.vmem(f'buffer_load_dword {vr(VPF + 1)}, {vr(VPF)}, s[16:19], 0 offen')
    if 'a' in cfg.early:
        for j in range(2):
            A.vmem(f'buffer_load_dword {vr(SC + j)}, {vr(VPQ + j)}, {sr(R_WS, 4)}, 0 offen sc1')
    A.wait_lg_all()
    A(f's_add_u32 {sr(S_TAG)}, {sr(S_TAG)}, 0x9E3779B1')
    A.stamp('setup')

    def cpow(dr, di, n):
        A(f'v_mul_f32 {vr(t0)}, {n}, {vr(A2)}\nv_mul_f32 {vr(t1)}, {n}, {vr(BR)}')
        A(f'v_exp_f32 {vr(t0)}, {vr(t0)}\nv_fract_f32 {vr(t1)}, {vr(t1)}')
        A(f'v_cos_f32 {vr(dr)}, {vr(t1)}\nv_sin_f32 {vr(di)}, {vr(t1)}')
        A(f'v_mul_f32 {vr(dr)}, {vr(t0)}, {vr(dr)}\nv_mul_f32 {vr(di)}, {vr(t0)}, {vr(di)}')

    def lam(i):
        if i == 0:
            for r in (LRE, LIM, DT):
                A(f'v_lshlrev_b32 {vr(r)}, 16, {vr(r)}')
            A(f'v_mul_f32 {vr(DT)}, {LOG2E}, {vr(DT)}\nv_exp_f32 {vr(DT)}, {vr(DT)}\ns_nop 0')
            A(f'v_cvt_pk_bf16_f32 {vr(DT)}, {vr(DT)}, {vr(DT)}\nv_lshlrev_b32 {vr(DT)}, 16, {vr(DT)}')
            A(f'v_mul_f32 {vr(A2)}, {vr(DT)}, {vr(LRE)}\nv_mul_f32 {vr(BR)}, {vr(DT)}, {vr(LIM)}')
            A(f'v_mul_f32 {vr(A2)}, {LOG2E}, {vr(A2)}\nv_mul_f32 {vr(BR)}, {INV2PI}, {vr(BR)}')
            cpow(LR, LI, '1.0')
            cpow(L16R, L16I, '0x41800000')
        if i == 1:
            cpow(L32R, L32I, '0x42000000')
        if i == 2:
            cpow(WQ, WQ + 1, vr(N0))
        if i == 3:
            cpow(WQ + 2, WQ + 3, vr(N1))
        if i == 4:
            cpow(WSR, WSI, vr(NS))
        if i == 5:
            A(f'v_mul_f32 {vr(t0)}, {vr(LRE)}, {vr(LRE)}\nv_fmac_f32 {vr(t0)}, {vr(LIM)}, {vr(LIM)}\nv_rcp_f32 {vr(t0)}, {vr(t0)}')
            A(f'v_add_f32 {vr(t1)}, -1.0, {vr(LR)}\nv_add_f32 {vr(t0)}, {vr(t0)}, {vr(t0)}')
            A(f'v_mul_f32 {vr(KR)}, {vr(t1)}, {vr(LRE)}\nv_fmac_f32 {vr(KR)}, {vr(LI)}, {vr(LIM)}')
            A(f'v_mul_f32 {vr(KI)}, {vr(LI)}, {vr(LRE)}\nv_fma_f32 {vr(KI)}, -{vr(t1)}, {vr(LIM)}, {vr(KI)}')
            A(f'v_mul_f32 {vr(KR)}, {vr(t0)}, {vr(KR)}\nv_mul_f32 {vr(KI)}, {vr(t0)}, {vr(KI)}')

    l0 = len(A.lines)
    setup_b()
    setup_c()
    nfree = len(A.lines) - l0
    for i in range(6):
        lam(i)
    work = A.lines[l0:]
    del A.lines[l0:]
    st = {'n': 0, 'ok': False}

    def fill(k):
        while k and work and (st['ok'] or st['n'] < nfree):
            A(work.pop(0))
            st['n'] += 1
            k -= 1

    def mm(i, s):
        xf, bf = FB[i % 2], FB[i % 2] + 16
        A.wait_lg(f'a{i}{s}')
        mfma(A, U, xf + 4 * s, bf + 8 * s, i == 0 and s == 0)
        fill(cfg.nfill)
        A.wait_lg(f'b{i}{s}')
        mfma(A, V, xf + 4 * s, bf + 8 * s + 4, i == 0 and s == 0)
        fill(cfg.nfill if s < 2 else cfg.nfill - 3)
    for i in range(8):
        if i == cfg.es and cfg.prio:
            A(f's_setprio {cfg.p2b}')
        A('s_barrier')
        so = (i % 2) * SLOT
        hi = (i >> 1) & 1
        xf, bf = FB[i % 2], FB[i % 2] + 16
        for s in range(4):
            A.ds(f'ds_read_b128 {vr(xf + 4 * s, 4)}, {vr(AX + 4 * hi + s)} offset:{so}', f'a{i}{s}')
            A.ds(f'ds_read_b128 {vr(bf + 8 * s, 4)}, {vr(AB + 4 * hi + s)} offset:{so + 16384}', f'a{i}{s}')
            A.ds(f'ds_read_b128 {vr(bf + 8 * s + 4, 4)}, {vr(AB + 4 * hi + s)} offset:{so + 20480}', f'b{i}{s}')
            if i and s < 2:
                mm(i - 1, 2 + s)
        if i == 1:
            for j, r in enumerate((LRE, LIM, DT)):
                A.ds(f'ds_read_u16 {vr(r)}, {vr(TMP)} offset:{256 * j}')
        if i == 2:
            A.ds(f'ds_read_u16 {vr(DS + 1)}, {vr(DS)} offset:32')
            A.ds(f'ds_read_u16 {vr(DS)}, {vr(DS)}')
        mm(i, 0)
        mm(i, 1)
        A.wait_lg_all()
        if 'w' in cfg.early and cfg.stag0 <= i < cfg.stag0 + cfg.nstag:
            A(f's_mov_b32 s15, scc\ns_cmp_lg_u32 {sr(S_STAG)}, {i - cfg.stag0}\ns_cbranch_scc1 L_nopf_{i}')
            A(f'buffer_load_dword {vr(VPF + 1)}, {vr(VPF)}, s[16:19], 0 offen')
            A.label(f'L_nopf_{i}')
            A('s_cmp_lg_u32 s15, 0')
        if i == 0:
            fill(cfg.fill0)
        if i == 1:
            st['ok'] = True
        if i == 6:
            fill(1000)
    GR = SC + 12
    E0R, E0I, E1R, E1I = TMP + 2, TMP + 3, TMP + 4, TMP + 5
    EW = SC
    PA = SC + 8
    PW = TMP + 10
    PQ = SC
    Q = TMP
    PK = SC
    done = []

    def cfma(dr, di, ar, ai, br, bi, cr, ci):
        A(f'v_fma_f32 {vr(dr)}, {vr(ar)}, {vr(br)}, {vr(cr)}\nv_fma_f32 {vr(di)}, {vr(ar)}, {vr(bi)}, {vr(ci)}')
        A(f'v_fma_f32 {vr(dr)}, -{vr(ai)}, {vr(bi)}, {vr(dr)}\nv_fma_f32 {vr(di)}, {vr(ai)}, {vr(br)}, {vr(di)}')
        A.tick()

    def scale(rs):
        for r in rs:
            t = TMP + (r & 1)
            A(f'v_mul_f32 {vr(t)}, {vr(KI)}, {vr(V + r)}\nv_mul_f32 {vr(V + r)}, {vr(KR)}, {vr(V + r)}')
            A(f'v_fmac_f32 {vr(V + r)}, {vr(KI)}, {vr(U + r)}\nv_fma_f32 {vr(U + r)}, {vr(KR)}, {vr(U + r)}, -{vr(t)}')
            A.tick()

    def pl_agg():
        for j in range(2):
            A.vmem(f'buffer_load_dwordx4 {vr(PQ + 4 * j, 4)}, {vr(VPQ + j)}, {sr(R_WS, 4)}, 0 offen sc1', 'pagg')

    def ck_agg():
        for j in range(2):
            A(f'v_cmp_eq_u32 {sr(S_C0, 2)}, {sr(S_TAG)}, {vr(PQ + 4 * j + 1)}\nv_cmp_eq_u32 {sr(8, 2)}, {sr(S_TAG)}, {vr(PQ + 4 * j + 3)}')
            A(f'v_cmp_eq_u32 vcc, {OOB}, {vr(VPQ + j)}')
            A(f's_and_b64 {sr(S_C0, 2)}, {sr(S_C0, 2)}, {sr(8, 2)}\ns_or_b64 {sr(S_C0, 2)}, {sr(S_C0, 2)}, vcc')
            if j == 0:
                A(f's_mov_b64 {sr(T2, 2)}, {sr(S_C0, 2)}')
        A(f's_and_b64 {sr(S_C0, 2)}, {sr(S_C0, 2)}, {sr(T2, 2)}\ns_cmp_eq_u64 {sr(S_C0, 2)}, -1')

    ACT0, FBS, XS, GV = 128, 192, 216, 232

    def pass2(rs):
        for r in rs:
            pr, pi = (TMP, TMP + 1) if r == 0 else (U + r - 1, V + r - 1)
            cfma(U + r, V + r, LR, LI, pr, pi, U + r, V + r)
            if r % 2:
                A(f'v_cvt_pk_bf16_f32 {vr(PK + r // 2)}, {vr(U + r - 1)}, {vr(U + r)}')
                A(f'v_cvt_pk_bf16_f32 {vr(PK + 8 + r // 2)}, -{vr(V + r - 1)}, -{vr(V + r)}')

    def gather(name, off, ev):
        if not cfg.ex1:
            await_(A, name, VPR, VPT, G3, ev)
            for w in range(4):
                A.ds(f'ds_read_b64 {vr(EW + 2 * w, 2)}, {vr(VEX)} offset:{off + 512 * w}')
            A.wait_lg_all()
            return
        A.label(f'L_{name}')
        A.ds(f'ds_read_b32 {vr(VPT)}, {vr(VEXM)} offset:{off}')
        for w in range(4):
            A.ds(f'ds_read_b64 {vr(EW + 2 * w, 2)}, {vr(VEX)} offset:{off + 512 * w}')
        Stream.wait_lg_all(A)
        A(f'v_cmp_ne_u32 vcc, 1, {vr(VPT)}\ns_cbranch_vccnz L_{name}')
        A.flush()

    def after(*deps):
        for d in deps:
            assert d in done, (act, d)

    for act in cfg.sched.replace(',', ' ').split():
        bgd = act[0] == '+'
        act = act.lstrip('+')
        if act == '!':
            A.drain()
            continue
        if act[0] == '!':
            A.low(lambda: [A.pop_bg() for _ in range(min(int(act[1:]), len(A.bg)))])
            continue
        if act == '?':
            A.ds(f'ds_read_b32 {vr(VPK)}, {vr(VPR)} offset:{G1}', 'peek')
            st['peek'] = True
            continue

        def pwait(v):
            if st.pop('peek', False):
                check_(A, f'pa{v}', VPR, VPK, G1, v)
            else:
                await_(A, f'pa{v}', VPR, VPT, G1, v)
        assert act not in done, act
        k, n = act[0], int(act[1:]) if act[1:].isdigit() else None

        def emit(fn):
            if bgd:
                A.defer(fn)
            else:
                A.drain()
                A.low(fn)
        if k == 'w' and n is not None:
            if any(t == f'blk{8 + n}' for _, t in A.bg):
                A.drain()

        def pa(v):
            if v > st.get('pa', 0):
                after('B0')
                assert v - 1 < cfg.p2w or st.get('w', 0) >= min(v - 1, 7)
                while any(t == 'dp' and int(l[-2].split()[-2]) // 4 <= v - 1 for l, t in A.bg):
                    A.pop_bg()
                pwait(v)
                st['pa'] = v
        if k == 'c' and n is not None:
            pa((4, 5, 5, 6)[n])

            def f():
                A(f's_add_u32 m0, {sr(S_MB)}, {CB + n * 16384}\ns_mov_b32 {sr(S_OA)}, {128 * (n >> 1)}')
                for j in range(4):
                    A.vmem(f'buffer_load_dwordx4 {vr(VC + j)}, {sr(R_E if n & 1 else R_B, 4)}, {sr(S_OA)} offen offset:{1024 * j} lds', f'c{n}')
            emit(f)
        elif k == 'W':
            if n >= 4:
                after('B0', 'pub')
            if n >= 6:
                pa(n - 4)
            assert n == st.get('w', cfg.p2w - 1) + 1
            st['w'] = n
            emit(lambda: (issue_w(A, 8 + n, VW, S_MB2), dpost(A, n, G2)))
        elif k == 'd' and n is not None:
            if n == 0:
                after('xr')
                A.wait_lg('xr11')
            if n >= 1:
                pa({1: 6, 2: 7, 3: 7, 4: 7, 5: 8, 6: 8, 7: 8}.get(n, 9))

            assert n < cfg.p1d
            lastd = all(f'd{x}' in done for x in range(cfg.p1d) if x != n)
            if lastd:
                after('ec')
            emit(lambda: (dma_wd(A, n, VD, R_O), dpost(A, E_WD, G2) if lastd else None))
        elif act == 'ec':
            after('c0', 'c1', 'c2', 'c3', 'W7')
            emit(lambda: dpost(A, E_C, G2))
        elif act == 'pf':
            if cfg.w2pf and 'p' not in cfg.early and 'w' not in cfg.early:
                emit(lambda: A.vmem(f'buffer_load_dword {vr(VPF + 1)}, {vr(VPF)}, s[16:19], 0 offen'))
        elif act == 'g1':
            after('B0')
            tg = TMP + 12
            A(f's_lshl_b32 {sr(T1)}, {sr(S_W)}, 7\ns_add_u32 {sr(T1)}, {sr(T1)}, {X_GT}\nv_and_b32 {vr(tg)}, 31, v0\nv_lshl_add_u32 {vr(tg)}, {vr(tg)}, 2, {sr(T1)}')
            A.ds(f'ds_read_b32 {vr(tg)}, {vr(tg)}')
            A.wait_lg_all()
            A(f'v_mul_f32 {vr(tg)}, {NLOG2E}, {vr(tg)}\nv_exp_f32 {vr(tg)}, {vr(tg)}\ns_nop 0\nv_add_f32 {vr(tg)}, 1.0, {vr(tg)}\nv_rcp_f32 {vr(tg)}, {vr(tg)}\ns_nop 0')
            A(f'v_cvt_pk_bf16_f32 {vr(tg)}, {vr(tg)}, {vr(tg)}')
            for r in range(8):
                A(f'v_and_b32 {vr(SEL + r)}, {vr(tg)}, {vr(SEL + r)}')
        elif act == 'gs':
            after('mm', 'B0')
            for a in range(2):
                A.ds(f'ds_read_b128 {vr(GV + 4 * a, 4)}, {vr(VG)} offset:{64 * a}')
            A.wait_lg_all()
            for r in range(8):
                A(f'v_mul_f32 {vr(GV + r)}, {NLOG2E}, {vr(GV + r)}')
            A.tick()
            A.tick()
            for r in range(8):
                A(f'v_exp_f32 {vr(GV + r)}, {vr(GV + r)}')
            A.tick()
            A.tick()
            for r in range(8):
                A(f'v_add_f32 {vr(GV + r)}, 1.0, {vr(GV + r)}')
            A.tick()
            A.tick()
            for r in range(8):
                A(f'v_rcp_f32 {vr(GV + r)}, {vr(GV + r)}')
            A.tick()
            A.tick()
        elif act == 'B0':
            pwait(1)
        elif act == 'mm':
            mm(7, 2)
            mm(7, 3)
            A(f'v_mov_b32 {vr(GR + 1)}, {sr(S_TAG)}\nv_mov_b32 {vr(GR + 3)}, {sr(S_TAG)}\ns_nop 9')
        elif act == 'p1':
            after('mm')
            pr, pi = U, V
            for r in range(1, 16):
                dr, di = TMP + 2 * (r % 2), TMP + 2 * (r % 2) + 1
                cfma(dr, di, LR, LI, pr, pi, U + r, V + r)
                pr, pi = dr, di
            assert (pr, pi) == (E0R, E0I)
            A(f'v_mov_b32 {vr(E1R)}, {vr(E0R)}\nv_mov_b32 {vr(E1I)}, {vr(E0I)}\ns_nop 1')
            A(f'v_permlane32_swap_b32 {vr(E0R)}, {vr(E1R)}\nv_permlane32_swap_b32 {vr(E0I)}, {vr(E1I)}')
            cfma(TMP + 6, TMP + 7, L16R, L16I, E0R, E0I, E1R, E1I)
            if cfg.ex1:
                A(f'v_mov_b32 {vr(TMP + 8)}, 1')
                A.ds(f'ds_write_b96 {vr(VEXW)}, {vr(TMP + 6, 3)}')
            else:
                A.ds(f'ds_write_b64 {vr(VEXW)}, {vr(TMP + 6, 2)}')
                post(A, VPW, VPT, E_EX, G3 - G2)
        elif act == 'pub':
            after('p1')
            gather('ex', 0, E_EX)
            cfma(PA, PA + 1, L32R, L32I, EW, EW + 1, EW + 2, EW + 3)
            cfma(PA + 2, PA + 3, L32R, L32I, PA, PA + 1, EW + 4, EW + 5)
            cfma(GR, GR + 2, L32R, L32I, PA + 2, PA + 3, EW + 6, EW + 7)
            A('s_mov_b32 exec_hi, 0')
            A.vmem(f'buffer_store_dwordx4 {vr(GR, 4)}, {vr(VPUB)}, {sr(R_WS, 4)}, 0 offen sc1')
            A('s_mov_b64 exec, -1')
        elif act == 'lc':
            after('pub')
            A(f'v_mov_b32 {vr(PW)}, 0\nv_mov_b32 {vr(PW + 1)}, 0')
            for w, src in ((1, EW), (2, PA), (3, PA + 2)):
                A(f's_cmp_eq_u32 {sr(S_W)}, {w}\ns_cselect_b64 vcc, -1, 0')
                A(f'v_cndmask_b32 {vr(PW)}, {vr(PW)}, {vr(src)}, vcc\nv_cndmask_b32 {vr(PW + 1)}, {vr(PW + 1)}, {vr(src + 1)}, vcc')
            cfma(LCR, LCI, L16R, L16I, PW, PW + 1, E0R, E0I)
            A('s_mov_b32 vcc_lo, -1\ns_mov_b32 vcc_hi, 0')
            A(f'v_cndmask_b32 {vr(LCR)}, {vr(LCR)}, {vr(PW)}, vcc\nv_cndmask_b32 {vr(LCI)}, {vr(LCI)}, {vr(PW + 1)}, vcc')
        elif k == 's':
            after('p1')
            assert 'car' not in done
            scale(range(8 * n, 8 * n + 8))
        elif act == 'poll':
            after('lc')
            pl_agg()
        elif act == 'q':
            after('poll', 'B0')
            A.wait_vm('pagg')
            spin(A, 'agg', pl_agg, ck_agg, cfg)
            A(f'v_mul_f32 {vr(Q)}, {vr(WQ)}, {vr(PQ)}\nv_mul_f32 {vr(Q + 1)}, {vr(WQ)}, {vr(PQ + 2)}')
            A(f'v_fma_f32 {vr(Q)}, -{vr(WQ + 1)}, {vr(PQ + 2)}, {vr(Q)}\nv_fmac_f32 {vr(Q + 1)}, {vr(WQ + 1)}, {vr(PQ)}')
            cfma(Q, Q + 1, WQ + 2, WQ + 3, PQ + 4, PQ + 6, Q, Q + 1)
            A(f'v_mov_b32 {vr(Q + 2)}, {vr(Q)}\nv_mov_b32 {vr(Q + 3)}, {vr(Q + 1)}\ns_nop 1')
            A(f'v_permlane32_swap_b32 {vr(Q)}, {vr(Q + 2)}\nv_permlane32_swap_b32 {vr(Q + 1)}, {vr(Q + 3)}')
            A(f'v_add_f32 {vr(Q)}, {vr(Q)}, {vr(Q + 2)}\nv_add_f32 {vr(Q + 1)}, {vr(Q + 1)}, {vr(Q + 3)}')
            if cfg.ex1:
                A(f'v_mov_b32 {vr(Q + 2)}, 1')
                A.ds(f'ds_write_b96 {vr(VEXW)}, {vr(Q, 3)} offset:{X_EX2 - X_EX}')
            else:
                A.ds(f'ds_write_b64 {vr(VEXW)}, {vr(Q, 2)} offset:{X_EX2 - X_EX}')
                post(A, VPW, VPT, E_EX2, G3 - G2)
        elif act == 'car':
            after('q', 's0', 's1')
            gather('ex2', X_EX2 - X_EX, E_EX2)
            for o in (0, 1):
                A(f'v_add_f32 {vr(EW + o)}, {vr(EW + o)}, {vr(EW + 2 + o)}\nv_add_f32 {vr(EW + 4 + o)}, {vr(EW + 4 + o)}, {vr(EW + 6 + o)}')
            A(f'v_add_f32 {vr(EW)}, {vr(EW)}, {vr(EW + 4)}\nv_add_f32 {vr(EW + 1)}, {vr(EW + 1)}, {vr(EW + 5)}')
            cfma(LCR, LCI, WSR, WSI, EW, EW + 1, LCR, LCI)
            A(f'v_mul_f32 {vr(TMP)}, {vr(KR)}, {vr(LCR)}\nv_mul_f32 {vr(TMP + 1)}, {vr(KR)}, {vr(LCI)}')
            A(f'v_fma_f32 {vr(TMP)}, -{vr(KI)}, {vr(LCI)}, {vr(TMP)}\nv_fmac_f32 {vr(TMP + 1)}, {vr(KI)}, {vr(LCR)}')
        elif act == 'pa':
            after('car')
            pass2(range(0, 8))
        elif act == 'pb':
            after('pa')
            pass2(range(8, 16))
        elif act == 'tr':
            after('pb', 'g1')
            for s in range(2):
                for part, d in ((0, U), (1, V)):
                    mfma(A, d, PK + 8 * part + 4 * s, SEL + 4 * s, s == 0)
            A('s_nop 10')
            for part, d in ((0, U), (1, V)):
                for m in range(2):
                    for e in range(4):
                        A(f'v_cvt_pk_bf16_f32 {vr(PK + 8 * part + 4 * m + e)}, {vr(d + 8 * m + 2 * e)}, {vr(d + 8 * m + 2 * e + 1)}')
                    A.vmem(f'buffer_store_dwordx4 {vr(PK + 8 * part + 4 * m, 4)}, {vr(VST)}, {sr(R_WS, 4)}, {k4(2 * part)} offen offset:{1024 * m} {cfg.fact}', 'h')
        elif act == 'hf':
            after('tr')
            A(f'v_mov_b32 {vr(TMP + 2)}, {sr(S_TAG)}\nv_lshlrev_b32 {vr(TMP + 3)}, 2, v0')
            A.wait_vm('h')
            A('s_mov_b32 exec_hi, 0')
            A.vmem(f'buffer_store_dword {vr(TMP + 2)}, {vr(TMP + 3)}, {sr(R_WS, 4)}, {sr(S_GFL)} offen {cfg.ffl}', 'fl')
            A('s_mov_b64 exec, -1')
        elif act == 'hs':
            after('hf', 'mm' if cfg.selfw else 'W7')
            A.drain()
            spoll(A, 'hs', cfg, FL4, mode='issue')
        elif act == 'th':
            if 'h' in cfg.touch:
                for b, o in FL4:
                    A(f's_load_dword s13, {sr(b, 2)}, {o} glc')
        elif act == 'ha':
            after('hs')
            A.drain()
            spoll(A, 'hs', cfg, FL4, mode='check')
            A.stamp('hpoll')
            for f in range(16):
                A.vmem(f'buffer_load_dwordx4 {vr(ACT0 + 4 * f, 4)}, {vr(VA)}, {sr(R_WS, 4)}, {fo(f)} {cfg.fld}', f'act{f // 2}')
        elif act == 'xs':
            assert 'd0' not in done

            def f():
                A(f's_add_u32 m0, {sr(S_WDO)}, {WDA[0]}\ns_mov_b32 {sr(S_OA)}, {15 * 1024}')
                A.vmem(f'buffer_load_dwordx4 {vr(VXS)}, {sr(R_X, 4)}, 0 offen lds', 'xs')
                A.vmem(f'buffer_load_dwordx4 {vr(VXS)}, {sr(R_X, 4)}, {sr(S_OA)} offen offset:1024 lds', 'xs')
            emit(f)
        elif act == 'xm':
            after('xr', 'gs')
            A.wait_lg('xr11')
            A(f'v_lshlrev_b32 {vr(DS)}, 16, {vr(DS)}\nv_lshlrev_b32 {vr(DS + 1)}, 16, {vr(DS + 1)}')
            for r in range(16):
                A(f'v_lshlrev_b32 {vr(XS + r)}, 16, {vr(XS + r)}')
                A(f'v_mul_f32 {vr(XS + r)}, {vr(XS + r)}, {vr(DS + ((r >> 2) & 1))}')
                A(f'v_mul_f32 {vr(XS + r)}, {vr(XS + r)}, {vr(GV + 4 * (r >> 3) + (r & 3))}')
                A.tick()
        elif act == 'xr':
            after('xs', 'mm')
            if any(t == 'xs' for _, t in A.bg):
                A.drain()
            A.wait_vm('xs')
            for c in range(2):
                for a in range(2):
                    for r in range(4):
                        A.ds(f'ds_read_u16 {vr(XS + 8 * a + 4 * c + r)}, {vr(XA)} offset:{512 * a + 64 * r + 32 * c}', f'xr{c}{a}')
                    if c:
                        A.wait_lg(f'xr0{a}')
        else:
            raise AssertionError(act)
        done.append(act)
        if act in cfg.p2st.split(','):
            A.stamp(act)
    A.drain()
    after(*(f'd{i}' for i in range(cfg.p1d)), 'ha', 'xm', 'ec', 'pf', 'gs')
    ACC2, OA, PK, PB = 32, 96, 216, 128
    srd(A, R_O, 32, 2048 * 2048)
    if 'g' in cfg.touch:
        for b, o in FL4:
            A(f's_load_dword s13, {sr(b, 2)}, {o + GF - HF} glc')
    A(f'v_subrev_u32 {vr(VPF)}, {G2 - G1}, {vr(VPW)}')
    A(f'v_mov_b32 {vr(DS)}, {sr(S_TAG)}\nv_mov_b32 {vr(DS + 1)}, {sr(S_TAG)}')
    for p in range(11):
        unit_off(A, 48 + p, p, 12)
    await_(A, 'call', VPR, VPT, G2, E_C)
    if cfg.sgate:
        await_(A, 'epi', VPF, VPT, 0, E_EPI)
    if cfg.prio:
        A(f's_setprio {cfg.pS}')
    A.stamp('S0')

    def areg(p, a):
        return OA + 8 * p + 4 * a if p < 3 else ACT0 + 8 * (p - 3) + 4 * a

    def ld_act(p, track=True):
        saved = list(A.vm)
        for a in range(2):
            A.vmem(f'buffer_load_dwordx4 {vr(areg(p, a), 4)}, {vr(VAF)}, {sr(R_WS, 4)}, {sr(48 + p)} offen offset:{2048 * a} {cfg.fld}', f'fa{p}')
        if not track:
            A.vm = saved

    NT = cfg.ntail
    NO = max(NT, cfg.nown)
    items = [('s', t, n) for t in range(8) for n in range(8)] + [('f', p, n) for p in range(11 - NT) for n in range(0 if p < 11 - NO else 2, 8)]
    t0 = len(items)
    items += [('f', p, 2 * m + c) for m in (1, 2, 3) for p in range(11 - NT, 11) for c in range(2)]
    items += [('f', p, c) for p in range(11 - NO, 11) for c in range(2)]
    i2 = items.index([x for x in items if x[:2] == ('f', 2)][0])
    G = 2 * NT
    N = len(items)
    ifd = min([i for i, (k, p, n) in enumerate(items) if k == 'f' and p >= cfg.p1d] + [1000])
    assert G >= 8

    def rd(i, r):
        k, p, n = items[i]
        if k == 's':
            if r == 0:
                A.ds(f'ds_read_b128 {vr(FBS + 4 * (i % 6), 4)}, {vr(AC + (p & 1))} offset:{16384 * (p >> 1) + 2048 * n}', f's{i}')
            return
        hi = WDA[p] >= 4 * SLOT
        off = WDA[p] - (4 * SLOT if hi else 2 * SLOT) + 4096 * r + 1024 * (n >> 2)
        A.ds(f'ds_read_b64_tr_b16 {vr(FBS + 4 * (i % 6) + 2 * r, 2)}, {vr(AW + (n & 3) + 4 * hi)} offset:{off}', f's{i}')

    def look(i, at, name, va, off, val):
        if i == at - 4:
            A.ds(f'ds_read_b32 {vr(VPK)}, {vr(va)} offset:{off}', 'peek')
        if i == at:
            check_(A, name, va, VPK, off, val)
        return i == at

    def extra(i):
        if look(i, cfg.own_at, 'ack', VPF, 0, E_ACK):
            A.stamp('ack')
            A(f's_cmp_eq_u32 {sr(S_J)}, 3\ns_cbranch_scc1 L_no_l2a')
            ld_act(2, False)
            A.label('L_no_l2a')
            A.defer(lambda: ld_act(0))
            A.defer(lambda: ld_act(1))
        look(i, 58, 'wd', VPR, G2, E_WD)
        if look(i, cfg.gu_at, 'gu', VPF, 0, E_GU):
            A.stamp('gu')
            assert not A.bg
            A(f's_cmp_lg_u32 {sr(S_J)}, 3\ns_cbranch_scc1 L_no_l2b')
            ld_act(2, False)
            A.label('L_no_l2b')
            for p in range(3, 11):
                A.defer(lambda: ld_act(p))
        elif A.bg and i % cfg.fweave == 0:
            tag = A.bg[0][1]
            if int(tag[2:]) < 3 or 8 * (int(tag[2:]) - 2) <= i:
                A.pop_bg()
        if i == 64:
            A.stamp('Send')
        if i == t0 + 1:
            dpost(A, E_SD, G3)
        if i == i2 - 1:
            first = min([x for x, t in enumerate(A.vm) if t and t.startswith('fa') and int(t[2:]) >= 3] + [len(A.vm)])
            A(f's_waitcnt vmcnt({len(A.vm) - first})')
        look(i, ifd - 6, 'dall', VPR, G4, E_D)
        look(i, N - 3, 'sd', VPR, G3, E_SD)
        if t0 + G <= i < t0 + 4 * G:
            m, k = (i - t0) // G, (i - t0) % G
            if 2 <= k < 6:
                for e in (2 * (k - 2), 2 * (k - 2) + 1):
                    A(f'v_cvt_pk_bf16_f32 {vr(PK + 8 * (m - 1) + e)}, {vr(ACC2 + 16 * m + 2 * e)}, {vr(ACC2 + 16 * m + 2 * e + 1)}')
            if k in (4, 6):
                c = (k - 4) // 2
                A.vmem(f'buffer_store_dwordx4 {vr(PK + 8 * (m - 1) + 4 * c, 4)}, {vr(VS + m - 1)}, {sr(R_WS, 4)}, 0 offen offset:{2048 * c} sc1', 'ps')
        if i == N - cfg.fl_at:
            A.wait_vm('ps')
            A.vmem(f'buffer_store_dwordx2 {vr(DS, 2)}, {vr(VF)}, {sr(R_WS, 4)}, 0 offen sc1', 'fl')
            A.stamp('pflag')
        if cfg.fine and i % 16 == 0:
            A.stamp(f'F{i}')
    pts = sorted([cfg.own_at, 58, cfg.gu_at, ifd - 6, N - 3])
    assert all(y - x > 4 for x, y in zip(pts, pts[1:])) and cfg.own_at < 58 and cfg.gu_at < i2 - 1
    for i in range(5):
        rd(i, 0)
    for i, (k, p, n) in enumerate(items):
        if i % 2 == 0:
            A.wait_lg(f's{i + 1}')
        tag = f'act{p}' if k == 's' else f'fa{p}'
        assert not any(t == tag for _, t in A.bg)
        A.wait_vm(tag)
        for a in range(2):
            o = 16 * (n >> 1) + 8 * a + 4 * (n & 1)
            c = vr(ACC2 + o, 4) if i >= 8 else ('0' if n >= 2 else vr(XS + o, 4))
            A(f'v_mfma_f32_16x16x32_bf16 {vr(ACC2 + o, 4)}, {vr(ACT0 + 8 * p + 4 * a if k == "s" else areg(p, a), 4)}, {vr(FBS + 4 * (i % 6), 4)}, {c}')
            if i + 5 < N:
                rd(i + 5, a)
            if a == 0:
                extra(i)
    A.stamp('Fend')
    A('s_nop 6')
    for k in range(2):
        A.ds(f'ds_write_b128 {vr(RW)}, {vr(ACC2 + 4 * k, 4)} offset:{1024 * k}')
    if not cfg.endbar:
        post(A, VPW, VPT, E_SF, G3 - G2)
    if not cfg.fl_at:
        A.wait_vm('ps')
        A.vmem(f'buffer_store_dwordx2 {vr(DS, 2)}, {vr(VF)}, {sr(R_WS, 4)}, 0 offen sc1', 'fl')
        A.stamp('pflag')
    assert N - cfg.fl_at > t0 + 3 * G + 6
    if cfg.endbar:
        A.wait_lg_all()
        A('s_barrier')
    await_(A, 'pp', VPF, VPT, 0, E_PP)
    finish(A, cfg, 1, ACC2 + 8, VL, RO, PB)
    A.label('L_p2_done')
    if cfg.stamps:
        A.wait_vm_all()
    A.dump_stamps(1)
    A.label('L_end')
    A('s_endpgm')
    A('.p2align 6')
    A.label('L_tab')
    A('.long ' + ', '.join(str(i) for i in range(16)))
    A.label('L_codeend')
    return A


HEADER = open(os.path.join(os.path.dirname(os.path.abspath(__file__)), '..', 'cdna_kernels',
                           'gated_mix__ssm_conv_s5__swiglu_ffn__prompt.s.ref')).read().split('; Override launch')[0]


def generate(cfg):
    e, p1, p2 = gen_entry(cfg), gen_p1(cfg), gen_p2(cfg)
    if cfg.dbg:
        i0 = [i for i, l in enumerate(p2.lines) if l == 's_barrier'][7]
        i1 = p2.lines.index('L_hs_try:')
        for i in range(i0, i1):
            l = p2.lines[i]
            if 'nofma' in cfg.dbg and l.startswith(('v_fma', 'v_mul_f32', 'v_cvt_pk')):
                p2.lines[i] = 's_nop 1'
            if 'nodma' in cfg.dbg and l.endswith(' lds') and 'dwordx4' in l:
                p2.lines[i] = 's_nop 3'
            if 'nods' in cfg.dbg and l.startswith(('ds_read_b128', 'ds_write_b128', 'ds_read_b64_tr')):
                p2.lines[i] = 's_nop 1'
            if 'nodw' in cfg.dbg and l.startswith('ds_write_b128'):
                p2.lines[i] = 's_nop 1'
            if 'nodr' in cfg.dbg and l.startswith('ds_read_b128'):
                p2.lines[i] = 's_nop 1'
            if 'nou16' in cfg.dbg and l.startswith('ds_read_u16'):
                p2.lines[i] = 's_nop 1'
            if 'nomf' in cfg.dbg and l.startswith('v_mfma'):
                p2.lines[i] = 's_nop 1'
            if 'noval' in cfg.dbg and l.startswith(('v_fma', 'v_mul_f32', 'v_cvt_pk', 'v_exp', 'v_rcp', 'v_add_f32', 'v_lshlrev_b32 v2', 'v_and_b32 v9', 'v_and_b32 v10', 'v_cndmask')):
                p2.lines[i] = 's_nop 1'
            if 'vld' in cfg.dbg and l.endswith(' lds') and 'dwordx4' in l:
                p2.lines[i] = l[:-4].replace('buffer_load_dwordx4 ', 'buffer_load_dwordx4 v[248:251], ')
            if 'v1ld' in cfg.dbg and l.endswith(' lds'):
                p2.lines[i] = l[:-4].replace('buffer_load_dwordx4 ', 'buffer_load_dword v248, ')
            if 'oob' in cfg.dbg and l.endswith(' lds'):
                import re
                p2.lines[i] = re.sub(r'\], \S+ offen', '], 2.0 offen', l)
            if 'noW' in cfg.dbg and l.endswith(' lds') and ('s[56:59]' in l or 's[60:63]' in l):
                p2.lines[i] = 's_nop 3'
            if 'noC' in cfg.dbg and l.endswith(' lds') and not ('s[56:59]' in l or 's[60:63]' in l):
                p2.lines[i] = 's_nop 3'
            if 'now64' in cfg.dbg and l.startswith('ds_write_b64'):
                p2.lines[i] = 's_nop 1'
            if 'nom0' in cfg.dbg and ' m0,' in l:
                p2.lines[i] = 's_nop 0'
            if 'spdma' in cfg.dbg and l.endswith(' lds'):
                p2.lines[i] = l + '\n    s_nop 7'
            if 'nost' in cfg.dbg and l.startswith('buffer_store_dwordx4') and 'offset' in l:
                p2.lines[i] = 's_nop 1'
    probs = check_hazards(e.lines + p1.lines, 'p1') + (check_hazards(e.lines + p2.lines, 'p2') if not cfg.dbg else [])
    for p in probs:
        print('HAZARD', p, file=sys.stderr)
    assert not probs
    nb1 = sum(l == 's_barrier' for l in p1.lines)
    nb2 = sum(l == 's_barrier' for l in p2.lines)
    assert nb1 == nb2, (nb1, nb2)
    txt = HEADER + f'; @launch grid=(256,1,1) block=(512,1,1) lds={LDS}\n'
    txt += f'.amdgcn_target "amdgcn-amd-amdhsa--gfx950"\n.text\n.globl {K}\n.p2align 8\n.type {K},@function\n{K}:\n'
    txt += e.text() + p1.text() + p2.text()
    txt += f'''.section .rodata,"a"
.p2align 6
.amdhsa_kernel {K}
  .amdhsa_next_free_vgpr 256
  .amdhsa_next_free_sgpr 102
  .amdhsa_accum_offset 256
  .amdhsa_group_segment_fixed_size 0
  .amdhsa_kernarg_size 136
  .amdhsa_user_sgpr_count 2
  .amdhsa_user_sgpr_kernarg_segment_ptr 1
  .amdhsa_system_sgpr_workgroup_id_x 1
.end_amdhsa_kernel
'''
    return txt, (p1.names, p2.names)


if __name__ == '__main__':
    cfg = Cfg()
    out = sys.argv[1]
    for kv in sys.argv[2:]:
        k, v = kv.split('=')
        old = getattr(cfg, k)
        setattr(cfg, k, (v not in ('0', 'False')) if isinstance(old, bool) else type(old)(v))
    txt, names = generate(cfg)
    open(out, 'w').write(txt)
    if cfg.stamps:
        import json
        json.dump(names, open(out + '.names', 'w'))
```

```python
import sys, os
sys.path.insert(0, os.path.dirname(os.path.abspath(__file__)))
from asmlib import Stream, vr, sr, check_hazards

K = 'gated_mix__ssm_conv_s5__swiglu_ffn__prompt_kernel'

ACT = 0
KSP = 160
AGG = 0x1400000
HF = 0x1480000
GF = 0x14C0000
GW = 0x1500000
PF = 0x1600000
PART = 0x1800000
WS_SIZE = 0x2800000
STAMP = 0xF000000
OOB = 0x40000000
SLOT = 24576
CB = 0
WSLOT = [4, 5, 0, 1, 2, 3, 4, 5]
XB = 6 * SLOT
WDA = [XB] + [65536 + 8192 * i for i in range(10)]
X_EX, X_EX2, X_CNT, X_GT = XB + 8192, XB + 14336, XB + 10240, XB + 10496
X_PAR = XB + 11264
X_GW, X_DS = X_PAR + 1024, X_PAR + 2048
LDS = XB + 16384
S_RT, S_CG, S_Q, S_J, S_W, S_TAG = 38, 39, 40, 41, 42, 43
R_WS, R_X, R_B, R_WG, R_WU, R_E, R_O = 44, 48, 52, 56, 60, 64, 68
S_OA, S_OW = 72, 73
S_K4 = 73
T0, T1, T2, T3 = 3, 81, 0, 1
S_MB = 82
S_MB2 = 83
S_C0 = 84
S_C1 = 86
S_CNT = 88
S_RHO, S_STAG = 87, 23
S_GST, S_GFL, S_WDO = 34, 35, 22
S_MG, S_IDX, S_UR, S_U0 = 10, 11, 12, 27
S_ST0 = 90
LOG2E = 0x3fb8aa3b
NLOG2E = 0xbfb8aa3b
INV2PI = 0x3e22f983


class Cfg:
    mapping = '84'
    weave = 2
    sched = 'mm +W3 +pf p1 pub B0 +W4 +xs lc s0 s1 poll W5 g1 q W6 car +W7 th pa pb tr c0 c1 xr hf c2 c3 ec d0 d1 gs hs xm d2 d3 d4 ha'
    rot = True
    stag0 = 0
    nstag = 4
    rotx = 0
    swap = True
    w2pf = 1
    fx = ''
    fb = ''
    fw = ''
    probe = ''
    stamps = 0
    D = 3
    post_exec = False
    es = 7
    ew = 6
    post0 = 10
    fact = 'sc1'
    ffl = 'sc1'
    fld = 'sc1'
    dp1 = True
    p2w = 3
    nfill = 5
    fill0 = 50
    ntail = 6
    p2st = 'pub,q,tr,hf,ha'
    fine = False
    dbg = ''
    p1b = 2
    p2b = 3
    p2lo = 1
    pS = 1
    pO = 2
    pF = 2
    p1d = 5
    p1pre = 0
    p1mid = 11
    ex1 = False
    nown = 11
    allack = True
    pE = 3
    gweave = 1
    fl_at = 0
    own_at = 32
    gu_at = 68
    nfirst = 0
    fweave = 1
    endbar = True
    p1lo = True
    touch = 'hpG'
    epi_at = 2
    early = 'd'
    selfw = False
    vp = 'x'
    sgate = True
    post_at = 1
    peek_at = 11
    spin = 1 << 15
    code_pf = True
    out_flags = 'nt'
    prio = True


class WS(Stream):
    def __init__(self, cfg, vst):
        super().__init__()
        self.cfg, self.vst = cfg, vst
        self.pend, self.names, self.nst = [], [], 0
        self.bg, self.ticks = [], 0

    def defer(self, fn):
        l0, v0 = len(self.lines), len(self.vm)
        fn()
        lines, tags = self.lines[l0:], self.vm[v0:]
        del self.lines[l0:], self.vm[v0:]
        cur = []
        for ln in lines:
            cur.append(ln)
            if ln == 's_mov_b64 exec, -1':
                self.bg[-1][0].extend(cur)
                cur = []
            elif ln.startswith('buffer_'):
                self.bg.append((cur, tags.pop(0)))
                cur = []
        assert not cur and not tags

    def pop_bg(self):
        lines, tag = self.bg.pop(0)
        self.lines += lines
        self.vm.append(tag)

    def low(self, fn):
        if self.cfg.p2lo != self.cfg.p2b:
            self(f's_setprio {self.cfg.p2lo}')
        fn()
        if self.cfg.p2lo != self.cfg.p2b:
            self(f's_setprio {self.cfg.p2b}')

    def tick(self):
        self.ticks += 1
        if self.bg and self.ticks >= self.cfg.weave:
            self.ticks = 0
            self.low(self.pop_bg)

    def drain(self):
        if self.bg:
            self.low(lambda: [self.pop_bg() for _ in list(self.bg)])

    def stamp(self, name):
        role = '1' if self.vst == 7 else '2'
        if self.cfg.probe and self.cfg.probe[0] == role and (name == 'start' or self.cfg.probe[2:] == name):
            self('s_memrealtime s[98:99]')
        if self.cfg.stamps == 4:
            if name in ('start', 'A0', 'A4', 'A7', 'B0', 'B4', 'E', 'epi', 'guflag', 'wdok', 'gupoll', 'F0', 'Fend', 'X2', 'done', 'pub', 'q', 'tr', 'hf', 'hpoll', 'S0', 'Send', 'Sfin', 'wd1', 'own', 'ppoll', 'ps1', 'ps3', 'pflag', 'e1', 'pld', 'stored', 'sflag', 'spoll', 'gu', 'ack'):
                self._stamp(name, 's_memrealtime')
            return
        if self.cfg.stamps == 3:
            if name in ('start', 'A0', 'A4', 'B0', 'B4', 'E', 'guflag', 'F0', 'done') and role == '1':
                self._stamp(name, 's_memtime')
                self._stamp(name + '_ns', 's_memrealtime')
            return
        if self.cfg.stamps != 1:
            return
        self._stamp(name, 's_memtime')

    def _stamp(self, name, op):
        if len(self.pend) == 6:
            self('s_waitcnt lgkmcnt(0)')
            self.lg = []
            self.flush()
        used = {p for p, _ in self.pend}
        p = [x for x in range(6) if x not in used][0]
        self(f'{op} {sr(S_ST0 + 2 * p, 2)}')
        self.pend.append((p, self.nst))
        self.names.append(name)
        self.nst += 1

    def flush(self):
        for p, i in self.pend:
            self(f'v_writelane_b32 {vr(self.vst)}, {sr(S_ST0 + 2 * p)}, {i}')
        self.pend = []

    def wait_lg_all(self):
        super().wait_lg_all()
        self.flush()

    def dump_stamps(self, role):
        if self.cfg.probe and int(self.cfg.probe[0]) == role + 1:
            self('s_waitcnt lgkmcnt(0)\ns_add_u32 s98, s98, 3000')
            self.label('L_hold')
            self('s_memrealtime s[96:97]\ns_waitcnt lgkmcnt(0)\ns_sub_u32 s96, s96, s98\ns_cmp_lt_i32 s96, 0\ns_cbranch_scc1 L_hold')
        if not self.cfg.stamps:
            return
        self(f's_memrealtime {sr(S_C0, 2)}')
        self.wait_lg_all()
        self(f'v_writelane_b32 {vr(self.vst)}, {sr(S_C0)}, 62')
        self(f'v_writelane_b32 {vr(self.vst)}, s89, 63')
        self(f's_lshl_b32 {sr(T0)}, s2, 3\ns_add_u32 {sr(T0)}, {sr(T0)}, {sr(S_W)}\ns_add_u32 {sr(T0)}, {sr(T0)}, {4 * role}')
        self(f's_lshl_b32 {sr(T0)}, {sr(T0)}, 8\ns_add_u32 {sr(T0)}, {sr(T0)}, {STAMP}')
        self(f's_add_u32 s36, s36, {sr(T0)}\ns_addc_u32 s37, s37, 0')
        self('v_lshlrev_b32 v1, 2, v0')
        self(f'global_store_dword v1, {vr(self.vst)}, s[36:37]')


def srd(A, r, ptr, size):
    A(f's_mov_b32 {sr(r)}, {sr(ptr)}\ns_mov_b32 {sr(r + 1)}, {sr(ptr + 1)}\ns_mov_b32 {sr(r + 2)}, {size}\ns_mov_b32 {sr(r + 3)}, 0x20000')


def k4(k):
    return '0' if k == 0 else sr(S_K4 + k if k < 8 else 16 + k)


def fo(n):
    return f'{k4(n // 2)} offen offset:{2048 * (n % 2)}'


def lane_pat(A, d, t, base):
    A(f'v_and_b32 {vr(t)}, 15, v0\nv_lshl_add_u32 {vr(t)}, {vr(t)}, 4, {base}\nv_lshrrev_b32 {vr(d)}, 4, v0\nv_lshl_add_u32 {vr(d)}, {vr(d)}, 9, {vr(t)}')


def swz_consts(A, vq8, vcA, vcB, t):
    A(f'v_lshrrev_b32 {vr(vq8)}, 3, v0')
    A(f'v_lshrrev_b32 {vr(t)}, 4, v0')
    A(f'v_and_b32 {vr(vcA)}, 7, v0')
    A(f'v_xor_b32 {vr(vcA)}, {vr(vcA)}, {vr(t)}')
    A(f'v_lshlrev_b32 {vr(vcA)}, 4, {vr(vcA)}')
    A(f'v_xor_b32 {vr(vcB)}, 64, {vr(vcA)}')


def frag_addr(A, a0, t):
    A(f'v_and_b32 {vr(a0)}, 31, v0')
    A(f'v_bfe_u32 {vr(t)}, v0, 1, 3')
    A(f'v_lshrrev_b32 {vr(a0 + 1)}, 5, v0')
    A(f'v_xor_b32 {vr(t)}, {vr(t)}, {vr(a0 + 1)}')
    A(f'v_lshlrev_b32 {vr(t)}, 4, {vr(t)}')
    A(f'v_lshl_add_u32 {vr(a0)}, {vr(a0)}, 7, {vr(t)}')
    for s in (1, 2, 3):
        A(f'v_xor_b32 {vr(a0 + s)}, {s << 5}, {vr(a0)}')


def first_unit(A):
    A(f's_lshr_b32 {sr(T0)}, {sr(S_CG)}, 2\ns_mul_i32 {sr(S_U0)}, {sr(S_CG)}, 3\ns_sub_u32 {sr(S_U0)}, {sr(S_U0)}, {sr(T0)}')


def frag16_addr(A, a0, t):
    A(f'v_bfe_u32 {vr(t)}, v0, 1, 3\nv_lshrrev_b32 {vr(a0)}, 4, v0\nv_xor_b32 {vr(t)}, {vr(t)}, {vr(a0)}\nv_lshlrev_b32 {vr(t)}, 4, {vr(t)}')
    A(f'v_and_b32 {vr(a0)}, 15, v0\nv_lshl_add_u32 {vr(a0)}, {vr(a0)}, 7, {vr(t)}\nv_xor_b32 {vr(a0 + 1)}, 64, {vr(a0)}')


def wffn_voffs(A, vw, t):
    A(f's_mul_i32 {sr(T0)}, {sr(S_W)}, {16 * 2752}\ns_lshl_b32 {sr(T1)}, {sr(S_U0)}, 6\ns_add_u32 {sr(T0)}, {sr(T0)}, {sr(T1)}')
    A(f's_and_b32 {sr(T1)}, {sr(S_CG)}, 3\ns_cmp_eq_u32 {sr(T1)}, 3\ns_cselect_b32 {sr(T1)}, 8, 12\ns_cmp_eq_u32 {sr(S_CG)}, 15\ns_cselect_b32 {sr(T1)}, 4, {sr(T1)}')
    A(f'v_mov_b32 {vr(t + 3)}, {OOB}')
    for j in range(3):
        A(f'v_add_u32 {vr(t)}, {64 * j}, v0')
        A(f'v_mul_u32_u24 {vr(t + 1)}, 171, {vr(t)}')
        A(f'v_lshrrev_b32 {vr(t + 1)}, 11, {vr(t + 1)}')
        A(f'v_mul_u32_u24 {vr(t + 2)}, 12, {vr(t + 1)}')
        A(f'v_sub_u32 {vr(t)}, {vr(t)}, {vr(t + 2)}')
        A(f'v_cmp_gt_i32 vcc, {sr(T1)}, {vr(t)}')
        A(f'v_lshrrev_b32 {vr(t + 2)}, 2, {vr(t + 1)}\nv_and_b32 {vr(t + 2)}, 2, {vr(t + 2)}\nv_xor_b32 {vr(t)}, {vr(t)}, {vr(t + 2)}')
        A(f'v_mul_u32_u24 {vr(t + 1)}, 2752, {vr(t + 1)}')
        A(f'v_lshl_add_u32 {vr(t + 1)}, {vr(t)}, 4, {vr(t + 1)}')
        if j:
            A(f'v_subrev_u32 {vr(t + 1)}, {1024 * j}, {vr(t + 1)}')
        A(f'v_add_u32 {vr(t + 1)}, {sr(T0)}, {vr(t + 1)}')
        A(f'v_cndmask_b32 {vr(vw + j)}, {vr(t + 3)}, {vr(t + 1)}, vcc')


def issue_a(A, b, vx, vb):
    sl = (b % 4) * SLOT
    A(f's_add_u32 m0, {sr(S_MB)}, {sl}')
    if b:
        pass
    A(f's_bfe_u32 {sr(S_OA)}, {sr(S_RHO)}, {(3 << 16) | (4 * b)}\ns_lshl_b32 {sr(S_OA)}, {sr(S_OA)}, 7')
    for j in range(4):
        A.vmem(f'buffer_load_dwordx4 {vr(vx + j)}, {sr(R_X, 4)}, {sr(S_OA)} offen offset:{1024 * j} {A.cfg.fx} lds', f'blk{b}')
    A(f's_add_u32 m0, {sr(S_MB2)}, {sl + 16384}\ns_nop 0')
    for j in range(2):
        A.vmem(f'buffer_load_dwordx4 {vr(vb + j)}, {sr(R_B, 4)}, {sr(S_OA)} offen offset:{1024 * j} {A.cfg.fb} lds', f'blk{b}')


def issue_w(A, b, vw, smb):
    sl = WSLOT[b - 8] * SLOT
    A(f's_add_u32 m0, {sr(smb)}, {sl}')
    A(f's_bfe_u32 {sr(S_OW)}, {sr(S_RHO)}, {(3 << 16) | (4 * (b - 8))}\ns_mul_i32 {sr(S_OW)}, {sr(S_OW)}, {64 * 2752}')
    for j in range(3):
        A.vmem(f'buffer_load_dwordx4 {vr(vw + j)}, {sr(R_WG, 4)}, {sr(S_OW)} offen offset:{1024 * j} {A.cfg.fw} lds', f'blk{b}')
    A(f's_add_u32 m0, {sr(smb)}, {sl + 12288}\ns_nop 0')
    for j in range(3):
        A.vmem(f'buffer_load_dwordx4 {vr(vw + j)}, {sr(R_WU, 4)}, {sr(S_OW)} offen offset:{1024 * j} {A.cfg.fw} lds', f'blk{b}')


def spin(A, name, loads, check, cfg, extra=None):
    A(f's_mov_b32 {sr(S_CNT)}, {cfg.spin}')
    A.label(f'L_{name}_chk')
    check()
    A(f's_cbranch_scc1 L_{name}_ok')
    A(f's_sub_u32 {sr(S_CNT)}, {sr(S_CNT)}, 1\ns_cmp_eq_u32 {sr(S_CNT)}, 0\ns_cbranch_scc1 L_{name}_ok')
    saved = list(A.vm)
    loads()
    A('s_waitcnt vmcnt(0)')
    A.vm = saved
    if extra:
        lg = list(A.lg)
        extra()
        A.lg = lg
    A(f's_branch L_{name}_chk')
    A.label(f'L_{name}_ok')


G1, G2, G3, G4 = 0, 16, 32, 48
E_W4, E_W5, E_W6, E_W7, E_C, E_WD = 4, 5, 6, 7, 8, 9
E_EX, E_EX2, E_SD, E_SF = 1, 2, 3, 4
E_EPI, E_ACK, E_GU, E_D, E_PP = 10, 11, 12, 13, 14


def prog_addrs(A, vw, vrd, own):
    A(f's_lshl2_add_u32 {sr(T0)}, {sr(S_W)}, {X_CNT + own}\nv_mov_b32 {vr(vw)}, {sr(T0)}')
    A(f'v_and_b32 {vr(vrd)}, 3, v0\nv_lshlrev_b32 {vr(vrd)}, 2, {vr(vrd)}\nv_add_u32 {vr(vrd)}, {X_CNT}, {vr(vrd)}')


def post(A, vw, vt, val, off=0):
    A(f'v_mov_b32 {vr(vt)}, {val}')
    if A.cfg.post_exec:
        A('s_mov_b64 exec, 1')
    A.ds(f'ds_write_b32 {vr(vw)}, {vr(vt)} offset:{off}')
    if A.cfg.post_exec:
        A('s_mov_b64 exec, -1')


R_T, S_PW = 28, 26


def table_srd(A):
    A(f's_add_u32 {sr(R_T)}, s84, L_tab-L_pc\ns_addc_u32 {sr(R_T + 1)}, s85, 0\ns_mov_b32 {sr(R_T + 2)}, 64\ns_mov_b32 {sr(R_T + 3)}, 0x20000')
    A(f's_lshl2_add_u32 {sr(S_PW)}, {sr(S_W)}, {X_CNT}')


def dpost(A, val, off, m0=True):
    if m0:
        A(f's_add_u32 m0, {sr(S_PW)}, {off}')
    A('s_mov_b64 exec, 1')
    A.vmem(f'buffer_load_dword off, {sr(R_T, 4)}, {4 * val} lds', 'dp')
    A('s_mov_b64 exec, -1')


def await_(A, name, vrd, vt, off, val):
    A.label(f'L_{name}')
    A.ds(f'ds_read_b32 {vr(vt)}, {vr(vrd)} offset:{off}')
    Stream.wait_lg_all(A)
    A(f'v_cmp_gt_u32 vcc, {val}, {vr(vt)}\ns_cbranch_vccnz L_{name}')
    A.flush()


def check_(A, name, vrd, vt, off, val):
    A.wait_lg('peek')
    A(f'v_cmp_gt_u32 vcc, {val}, {vr(vt)}\ns_cbranch_vccz L_{name}_go')
    saved = list(A.lg)
    A.label(f'L_{name}')
    A(f'ds_read_b32 {vr(vt)}, {vr(vrd)} offset:{off}\ns_waitcnt lgkmcnt(0)')
    A(f'v_cmp_gt_u32 vcc, {val}, {vr(vt)}\ns_cbranch_vccnz L_{name}')
    A.label(f'L_{name}_go')
    A.lg = saved


def rho0(A, cfg, t):
    if not cfg.rot:
        A(f's_mov_b32 {sr(t)}, 0')
        return
    assert cfg.mapping == '84'
    if cfg.rotx:
        A(f's_lshl1_add_u32 {sr(t)}, {sr(S_CG)}, {sr(S_RT)}')
    else:
        A(f's_and_b32 {sr(t)}, s2, 6\ns_add_u32 {sr(t)}, {sr(t)}, {sr(S_RT)}')
    A(f's_and_b32 {sr(t)}, {sr(t)}, 7')


def rho_pre(A, cfg, d, t):
    def pack(o):
        return sum(v << (4 * i) for i, v in enumerate(o))
    tabs = [[0, 1, 2, 3, 5, 4, 6, 7], [0, 2, 1, 3, 4, 6, 5, 7], [0, 1, 3, 2, 4, 5, 7, 6], [0, 1, 2, 4, 3, 5, 6, 7]]
    if cfg.swap:
        A(f's_and_b32 {sr(t)}, {sr(S_CG)}, 3\ns_mov_b32 {sr(d)}, {pack(tabs[0])}')
        for j in (1, 2, 3):
            A(f's_cmp_eq_u32 {sr(t)}, {j}\ns_cselect_b32 {sr(d)}, {pack(tabs[j])}, {sr(d)}')
    else:
        A(f's_mov_b32 {sr(d)}, 0x76543210')
    rho0(A, cfg, t)
    A(f's_mul_i32 {sr(t)}, {sr(t)}, 0x11111111\ns_add_u32 {sr(d)}, {sr(d)}, {sr(t)}')


def spoll(A, name, cfg, loads, extra=None, mode='both'):
    SP = 56

    def issue():
        for i, (b, o) in enumerate(loads):
            A(f's_load_dword {sr(SP + i if i < 8 else 76 + i)}, {sr(b, 2)}, {o} glc')
    if mode == 'issue':
        issue()
        return
    A(f's_mov_b32 {sr(S_CNT)}, {cfg.spin}')
    if mode == 'check':
        A(f's_branch L_{name}_wait')
    A.label(f'L_{name}_try')
    issue()
    A.label(f'L_{name}_wait')
    Stream.wait_lg_all(A)
    for i in range(len(loads)):
        r = SP + i if i < 8 else 76 + i
        A(f's_xor_b32 {sr(r)}, {sr(r)}, {sr(S_TAG)}')
        if i:
            A(f's_or_b32 {sr(SP)}, {sr(SP)}, {sr(r)}')
    A(f's_cbranch_scc0 L_{name}_ok')
    if extra:
        saved = list(A.vm), list(A.lg)
        extra()
        A.vm, A.lg = saved
    A(f's_sub_u32 {sr(S_CNT)}, {sr(S_CNT)}, 1\ns_cmp_lg_u32 {sr(S_CNT)}, 0\ns_cbranch_scc1 L_{name}_try')
    A.label(f'L_{name}_ok')
    A.flush()


def flag_addr(A, d, base):
    A(f's_lshl_b32 {sr(d)}, {sr(S_IDX)}, 8\ns_add_u32 {sr(d)}, {sr(d)}, {base}')


def act_voff(A, VA, t, mul, add):
    A(f's_mul_i32 {sr(T0)}, {sr(S_MG)}, {KSP}\ns_mul_i32 {sr(T1)}, {sr(S_Q)}, {mul}\ns_add_u32 {sr(T0)}, {sr(T0)}, {sr(T1)}\ns_add_u32 {sr(T0)}, {sr(T0)}, {add}\ns_lshl_b32 {sr(T0)}, {sr(T0)}, 11')
    lane_pat(A, VA, t, sr(T0))


def row0(A, d, t):
    A(f'v_bfe_u32 {vr(d)}, v0, 4, 1\nv_lshrrev_b32 {vr(t)}, 5, v0\nv_lshlrev_b32 {vr(t)}, 2, {vr(t)}\nv_lshl_add_u32 {vr(d)}, {vr(d)}, 4, {vr(t)}')


def out_voff(A, d, t, a):
    A(f's_lshl2_add_u32 {sr(T1)}, {sr(S_J)}, {sr(S_Q)}\ns_lshl_b32 {sr(T1)}, {sr(T1)}, 7\ns_lshl_b32 {sr(T0)}, {sr(S_MG)}, 16\ns_add_u32 {sr(T0)}, {sr(T0)}, {sr(T1)}')
    if a:
        A(f's_add_u32 {sr(T0)}, {sr(T0)}, 16384')
    A(f'v_and_b32 {vr(t)}, 31, v0\nv_lshl_add_u32 {vr(t)}, {vr(t)}, 2, {sr(T0)}\nv_lshrrev_b32 {vr(d)}, 5, v0\nv_lshl_add_u32 {vr(d)}, {vr(d)}, 13, {vr(t)}')


def part_addrs(A, VL, VS, VF, t, kind):
    A(f's_lshl_b32 {sr(T0)}, {sr(S_IDX)}, 14\ns_add_u32 {sr(T0)}, {sr(T0)}, {PART + (kind << 24)}')
    lane_pat(A, VL, t, sr(T0))
    for m in (1, 2, 3):
        A(f'v_xor_b32 {vr(VS + m - 1)}, {(m << 16) | (m << 12)}, {vr(VL)}')
    A(f'v_lshrrev_b32 {vr(t)}, 4, v0\nv_mul_u32_u24 {vr(t)}, 0x1100, {vr(t)}\ns_lshl_b32 {sr(T0)}, {sr(S_IDX)}, 10\nv_xor_b32 {vr(t)}, {sr(T0)}, {vr(t)}')
    A(f'v_and_b32 {vr(VF)}, 15, v0\nv_lshl_add_u32 {vr(t)}, {vr(VF)}, 3, {vr(t)}\nv_add_u32 {vr(VF)}, {PF + (kind << 20)}, {vr(t)}')


def wd_voffs(A, VD, t):
    A(f'v_lshrrev_b32 {vr(t)}, 3, v0\nv_and_b32 {vr(t + 1)}, 6, {vr(t)}\nv_and_b32 {vr(VD)}, 7, v0\nv_xor_b32 {vr(t + 1)}, {vr(t + 1)}, {vr(VD)}\nv_lshlrev_b32 {vr(t + 1)}, 4, {vr(t + 1)}\nv_lshl_add_u32 {vr(t)}, {vr(t)}, 10, {vr(t + 1)}')
    A(f's_mul_i32 {sr(T0)}, {sr(S_Q)}, 44\ns_add_u32 {sr(T0)}, {sr(T0)}, {sr(S_W)}\ns_lshl_b32 {sr(T0)}, {sr(T0)}, 13')
    A(f's_lshr_b32 {sr(T1)}, {sr(S_Q)}, 1\ns_lshl1_add_u32 {sr(T1)}, {sr(S_J)}, {sr(T1)}\ns_lshl_b32 {sr(T1)}, {sr(T1)}, 7\ns_add_u32 {sr(T0)}, {sr(T0)}, {sr(T1)}')
    A(f'v_add_u32 {vr(VD)}, {sr(T0)}, {vr(t)}\nv_xor_b32 {vr(VD + 1)}, 0x80, {vr(VD)}')
    A(f's_lshl_b32 {sr(S_WDO)}, {sr(S_W)}, 11')


def dma_wd(A, n, VD, r):
    unit_off(A, S_OW, n, 15)
    for hh in range(2):
        A(f's_add_u32 m0, {sr(S_WDO)}, {WDA[n] + 1024 * hh}\ns_nop 0')
        A.vmem(f'buffer_load_dwordx4 {vr(VD + hh)}, {sr(r, 4)}, {sr(S_OW)} offen lds', f'wd{n}')


def poll_bases(A, base, kind):
    A(f's_and_b32 {sr(T0)}, {sr(S_IDX)}, -4\ns_lshl_b32 {sr(T0)}, {sr(T0)}, 8\ns_add_u32 {sr(T0)}, {sr(T0)}, {base}')
    A(f's_add_u32 s4, s36, {sr(T0)}\ns_addc_u32 s5, s37, 0')
    A(f's_lshl_b32 {sr(T0)}, {sr(S_IDX)}, 10\ns_add_u32 {sr(T0)}, {sr(T0)}, {PF + (kind << 20)}\ns_add_u32 s6, s36, {sr(T0)}\ns_addc_u32 s7, s37, 0')


FL4 = [(4, 256 * j) for j in range(4)]
FL3 = [(6, 256 * j) for j in (1, 2, 3)]


def vpoll(A, name, cfg, base, lo, t):
    A(f'v_and_b32 {vr(t)}, 3, v0\nv_max_u32 {vr(t)}, {lo}, {vr(t)}\nv_lshlrev_b32 {vr(t)}, 8, {vr(t)}')
    A(f's_mov_b32 {sr(S_CNT)}, {cfg.spin}')
    A.label(f'L_{name}_try')
    A(f'global_load_dword {vr(t + 1)}, {vr(t)}, {sr(base, 2)} sc1')
    A(f's_sub_u32 {sr(S_CNT)}, {sr(S_CNT)}, 1\ns_cbranch_scc1 L_{name}_ok')
    A.wait_vm_all()
    A(f'v_cmp_ne_u32 vcc, {sr(S_TAG)}, {vr(t + 1)}\ns_cbranch_vccnz L_{name}_try')
    A.label(f'L_{name}_ok')


def finish(A, cfg, c, own, VL, RO, PB):
    A.stamp('ppoll')
    for m in (1, 2, 3):
        A.vmem(f'buffer_load_dwordx4 {vr(PB + 4 * (m - 1), 4)}, {vr(VL)}, {sr(R_WS, 4)}, {k4(m)} offen offset:{2048 * c} sc1', f'pp{m}')
    for m in (1, 2, 3):
        A.wait_vm(f'pp{m}')
        if m == 3:
            A.stamp('pld')
        for e in range(4):
            s = PB + 4 * (m - 1) + e
            A(f'v_lshlrev_b32 {vr(PB + 12 + 2 * e)}, 16, {vr(s)}\nv_and_b32 {vr(PB + 13 + 2 * e)}, 0xffff0000, {vr(s)}')
        for e in range(4):
            A(f'v_pk_add_f32 {vr(own + 2 * e, 2)}, {vr(own + 2 * e, 2)}, {vr(PB + 12 + 2 * e, 2)}')
    A('s_nop 0')
    for r in range(4):
        A(f'v_permlane16_swap_b32 {vr(own + r)}, {vr(own + 4 + r)}')
        for y in range(2):
            A.vmem(f'buffer_store_dword {vr(own + 4 * y + r)}, {vr(RO)}, {sr(R_O, 4)}, {k4(8 * y + (r >> 1))} offen offset:{2048 * (r & 1)} {cfg.out_flags}')


def mf16(A, d, a, b, first):
    A(f'v_mfma_f32_16x16x32_bf16 {vr(d, 4)}, {vr(a, 4)}, {vr(b, 4)}, {"0" if first else vr(d, 4)}')


def mfma(A, d, a, b, first):
    A(f'v_mfma_f32_32x32x16_bf16 {vr(d, 16)}, {vr(a, 4)}, {vr(b, 4)}, {"0" if first else vr(d, 16)}')


def gen_entry(cfg):
    A = Stream()
    A('s_load_dwordx16 s[4:19], s[0:1], 0\ns_load_dwordx16 s[20:35], s[0:1], 64\ns_load_dwordx2 s[36:37], s[0:1], 128')
    A('s_cmp_ge_u32 s2, 256\ns_cbranch_scc1 L_end')
    if cfg.stamps:
        A('s_memrealtime s[88:89]')
    A('s_lshr_b32 s82, s2, 3')
    if cfg.code_pf:
        A('s_getpc_b64 s[84:85]')
        A.label('L_pc')
        A(f's_and_b32 s83, s82, 3\ns_mul_i32 s83, s83, {60 * 128}\nv_min_u32 v1, 59, v0\nv_lshl_add_u32 v1, v1, 7, s83')
        A(f'v_min_u32 v1, L_codeend-L_pc-4, v1')
        A('global_load_dword v255, v1, s[84:85]')
    A('v_lshrrev_b32 v1, 6, v0\nv_and_b32 v0, 63, v0\nv_readfirstlane_b32 s3, v1')
    if cfg.mapping == '48':
        A(f's_bfe_u32 {sr(S_RT)}, s2, 0x20001\ns_lshl_b32 {sr(S_RT)}, {sr(S_RT)}, 2\ns_and_b32 s83, s82, 3\ns_add_u32 {sr(S_RT)}, {sr(S_RT)}, s83')
        A(f's_and_b32 {sr(S_CG)}, s2, 1\ns_lshl_b32 {sr(S_CG)}, {sr(S_CG)}, 3\ns_lshr_b32 s83, s82, 2\ns_add_u32 {sr(S_CG)}, {sr(S_CG)}, s83')
    else:
        A(f's_and_b32 {sr(S_RT)}, s2, 1\ns_and_b32 s83, s82, 7\ns_lshl3_add_u32 {sr(S_RT)}, {sr(S_RT)}, s83')
        A(f's_and_b32 {sr(S_CG)}, s2, 6\ns_lshr_b32 s83, s82, 3\ns_lshl1_add_u32 {sr(S_CG)}, {sr(S_CG)}, s83')
    A(f's_and_b32 {sr(S_W)}, s3, 3')
    A('s_cmp_ge_u32 s3, 4\ns_cbranch_scc1 L_p2')
    return A


def map2(A, cfg):
    A(f's_lshr_b32 {sr(S_Q)}, {sr(S_CG)}, 2\ns_and_b32 {sr(S_J)}, {sr(S_CG)}, 3\ns_mul_i32 {sr(S_UR)}, {sr(S_J)}, 3')
    A(f's_lshl2_add_u32 {sr(S_MG)}, {sr(S_RT)}, {sr(S_W)}\ns_lshl4_add_u32 {sr(S_IDX)}, {sr(S_MG)}, {sr(S_CG)}')


def unit_off(A, d, p, sh):
    A(f's_add_u32 {sr(d)}, {sr(S_UR)}, {p}\ns_sub_u32 {sr(T0)}, {sr(d)}, 11\ns_cselect_b32 {sr(d)}, {sr(d)}, {sr(T0)}\ns_lshl_b32 {sr(d)}, {sr(d)}, {sh}')


def load_tag(A):
    if A.cfg.stamps:
        A('s_mov_b32 s89, s88')
    A(f's_add_u32 {sr(T2)}, s36, {GW}\ns_addc_u32 {sr(T3)}, s37, 0')
    A(f's_load_dword {sr(S_TAG)}, {sr(T2, 2)}, 0')


def consts(A):
    for k in range(1, 10):
        A(f's_mov_b32 {k4(k)}, {4096 * k}')


def gen_p1(cfg):
    A = WS(cfg, 7)
    TB = 0
    VPW, VPR, VPT = 4, 5, 6
    WB = 8
    ACC = 32
    XR = 128
    VX, VB, AX, TMP = 32, 36, 44, 52
    GL, GWF, VW, AXH, AG = 96, 104, 120, 123, 125
    D = cfg.D
    if cfg.stamps:
        A('v_mov_b32 v7, 0')
    A.stamp('start')
    swz_consts(A, TMP, TMP + 1, TMP + 2, TMP + 3)
    A(f's_lshl2_add_u32 {sr(T1)}, {sr(S_RT)}, {sr(S_W)}\ns_lshl_b32 {sr(T1)}, {sr(T1)}, 15')
    A(f'v_lshrrev_b32 {vr(TMP + 5)}, 5, v0')
    A(f'v_and_b32 {vr(TMP + 4)}, 3, {vr(TMP)}')
    A(f'v_lshl_add_u32 {vr(TMP + 3)}, {vr(TMP + 5)}, 4, {vr(TMP + 4)}')
    A(f'v_lshl_add_u32 {vr(TMP + 3)}, {vr(TMP + 3)}, 10, {sr(T1)}')
    A(f'v_add_u32 {vr(VX)}, {vr(TMP + 3)}, {vr(TMP + 1)}')
    A(f'v_add_u32 {vr(VX + 1)}, {vr(TMP + 3)}, {vr(TMP + 2)}')
    A(f'v_add_u32 {vr(VX + 2)}, {2 * 3072}, {vr(VX)}')
    A(f'v_add_u32 {vr(VX + 3)}, {3 * 3072}, {vr(VX + 1)}')
    A(f'v_add_u32 {vr(VX + 1)}, 3072, {vr(VX + 1)}')
    A(f's_lshl_b32 {sr(S_MB)}, {sr(S_W)}, 12\ns_mov_b32 m0, {sr(S_MB)}')
    rho0(A, cfg, S_OA)
    A(f's_lshl_b32 {sr(S_OA)}, {sr(S_OA)}, 7')
    A(f's_mov_b32 {sr(R_X + 2)}, {2048 * 1024}\ns_mov_b32 {sr(R_X + 3)}, 0x20000')
    A.wait_lg_all()
    A(f's_mov_b32 {sr(R_X)}, s4\ns_mov_b32 {sr(R_X + 1)}, s5')
    A.stamp('karg')
    for j in range(4):
        A.vmem(f'buffer_load_dwordx4 {vr(VX + j)}, {sr(R_X, 4)}, {sr(S_OA)} offen offset:{1024 * j} {A.cfg.fx} lds', 'blk0')
    A(f's_and_b32 {sr(T0)}, {sr(S_W)}, 1\ns_lshl1_add_u32 {sr(T1)}, {sr(S_CG)}, {sr(T0)}\ns_lshl_b32 {sr(T1)}, {sr(T1)}, 14')
    A(f'v_lshl_add_u32 {vr(TMP + 3)}, {vr(TMP + 5)}, 3, {vr(TMP + 4)}')
    A(f'v_lshl_add_u32 {vr(TMP + 3)}, {vr(TMP + 3)}, 10, {sr(T1)}')
    A(f'v_add_u32 {vr(VB)}, {vr(TMP + 3)}, {vr(TMP + 1)}')
    A(f'v_add_u32 {vr(VB + 1)}, {vr(TMP + 3)}, {vr(TMP + 2)}')
    A(f'v_add_u32 {vr(VB + 1)}, 3072, {vr(VB + 1)}')
    A(f's_lshl_b32 {sr(S_MB2)}, {sr(S_W)}, 11\ns_add_u32 m0, {sr(S_MB2)}, 16384')
    A(f's_cmp_ge_u32 {sr(S_W)}, 2')
    A(f's_cselect_b32 {sr(R_B)}, s12, s10\ns_cselect_b32 {sr(R_B + 1)}, s13, s11\ns_mov_b32 {sr(R_B + 2)}, {512 * 1024}\ns_mov_b32 {sr(R_B + 3)}, 0x20000')
    for j in range(2):
        A.vmem(f'buffer_load_dwordx4 {vr(VB + j)}, {sr(R_B, 4)}, {sr(S_OA)} offen offset:{1024 * j} {A.cfg.fb} lds', 'blk0')
    rho_pre(A, cfg, S_RHO, T0)
    for b in range(1, D):
        issue_a(A, b, VX, VB)
        if b == 1:
            A(f's_lshl_b32 {sr(T0)}, {sr(S_CG)}, 6\ns_cmp_eq_u32 {sr(S_W)}, 3\ns_cselect_b32 {sr(T0)}, 0, {sr(T0)}\ns_cselect_b32 {sr(T1)}, 63, 3')
            A(f's_cselect_b32 {sr(R_E)}, s30, s18\ns_cselect_b32 {sr(R_E + 1)}, s31, s19')
            A(f'v_and_b32 {vr(TMP + 5)}, {sr(T1)}, v0\nv_lshl_add_u32 {vr(TMP + 5)}, {vr(TMP + 5)}, 4, {sr(T0)}')
            A(f's_mov_b32 {sr(R_E + 2)}, 1024\ns_mov_b32 {sr(R_E + 3)}, 0x20000')
            A(f's_cmp_eq_u32 {sr(S_W)}, 0\ns_cselect_b32 {sr(R_E)}, s6, {sr(R_E)}\ns_cselect_b32 {sr(R_E + 1)}, s7, {sr(R_E + 1)}')
            A(f's_cmp_eq_u32 {sr(S_W)}, 1\ns_cselect_b32 {sr(R_E)}, s8, {sr(R_E)}\ns_cselect_b32 {sr(R_E + 1)}, s9, {sr(R_E + 1)}')
            A(f's_cmp_eq_u32 {sr(S_W)}, 3\ns_cselect_b32 {sr(T0)}, 4, {sr(S_W)}\ns_cselect_b64 exec, -1, 15\ns_lshl_b32 {sr(T0)}, {sr(T0)}, 8\ns_add_u32 m0, {sr(T0)}, {X_PAR}\ns_nop 0')
            A.vmem(f'buffer_load_dwordx4 {vr(TMP + 5)}, {sr(R_E, 4)}, 0 offen lds', 'blk1')
            A('s_mov_b64 exec, -1')
            A(f's_cmp_lg_u32 {sr(S_W)}, 0\ns_cbranch_scc1 L_no_ds\ns_mov_b32 {sr(R_E)}, s20\ns_mov_b32 {sr(R_E + 1)}, s21\ns_mov_b32 m0, {X_DS}\nv_lshlrev_b32 {vr(TMP + 5)}, 4, v0')
            A(f'buffer_load_dwordx4 {vr(TMP + 5)}, {sr(R_E, 4)}, 0 offen lds')
            A.label('L_no_ds')
            load_tag(A)
            srd(A, R_WG, 24, 512 * 2752)
            srd(A, R_WU, 26, 512 * 2752)
            srd(A, R_WS, 36, WS_SIZE)
            srd(A, R_O, 32, 2048 * 2048)
            srd(A, R_E, 28, 1376 * 1024)
            table_srd(A)
            consts(A)
            first_unit(A)
            wffn_voffs(A, VW, TMP)
            frag16_addr(A, AX, TMP)
            for s in range(2):
                A(f'v_add_u32 {vr(AX + s)}, {sr(S_MB)}, {vr(AX + s)}')
                A(f'v_add_u32 {vr(AXH + s)}, {2 * SLOT}, {vr(AX + s)}')
            prog_addrs(A, VPW, VPR, G1)
            A(f'v_lshrrev_b32 {vr(AG)}, 4, v0\nv_lshlrev_b32 {vr(AG)}, 4, {vr(AG)}\nv_add_u32 {vr(AG)}, {X_GW}, {vr(AG)}')
            A(f's_lshl_b32 {sr(S_WDO)}, {sr(S_W)}, 7\ns_add_u32 {sr(S_WDO)}, {sr(S_WDO)}, {X_GT}\nv_and_b32 {vr(AG + 2)}, 31, v0\nv_lshl_add_u32 {vr(AG + 2)}, {vr(AG + 2)}, 2, {sr(S_WDO)}')
            A(f'v_lshrrev_b32 {vr(TMP)}, 4, v0\nv_bfe_u32 {vr(TMP + 1)}, v0, 2, 2\nv_lshl_add_u32 {vr(TMP)}, {vr(TMP)}, 3, {vr(TMP + 1)}')
            A(f'v_mul_u32_u24 {vr(TMP)}, 192, {vr(TMP)}\nv_bfe_u32 {vr(TMP + 1)}, v0, 4, 1\nv_lshl_add_u32 {vr(TMP)}, {vr(TMP + 1)}, 5, {vr(TMP)}')
            A(f'v_and_b32 {vr(TMP + 1)}, 3, v0\nv_lshl_add_u32 {vr(TB)}, {vr(TMP + 1)}, 3, {vr(TMP)}')
            A(f'v_xor_b32 {vr(TB + 1)}, 32, {vr(TB)}\nv_add_u32 {vr(TB + 2)}, {4 * SLOT}, {vr(TB)}\nv_add_u32 {vr(TB + 3)}, {4 * SLOT}, {vr(TB + 1)}')
            A(f's_mul_i32 {sr(S_C1)}, {sr(S_W)}, 3072')
            map2(A, cfg)
            A(f's_lshr_b32 {sr(S_STAG)}, s2, 3\ns_and_b32 {sr(T0)}, s2, 1\ns_mul_i32 {sr(T0)}, {sr(T0)}, {cfg.nstag // 2}\ns_add_u32 {sr(S_STAG)}, {sr(S_STAG)}, {sr(T0)}')
            A(f's_and_b32 {sr(S_STAG)}, {sr(S_STAG)}, {cfg.nstag - 1}')
            A(f's_mul_i32 {sr(T1)}, {sr(S_MG)}, {KSP}')
            A(f's_lshl1_add_u32 {sr(T1)}, {sr(S_U0)}, {sr(T1)}\ns_add_u32 {sr(T1)}, {sr(T1)}, 64\ns_lshl_b32 {sr(S_GST)}, {sr(T1)}, 11')
            flag_addr(A, S_GFL, GF)
            poll_bases(A, GF, 0)
    A.stamp('issued0')
    A.wait_lg_all()
    A(f's_add_u32 {sr(S_TAG)}, {sr(S_TAG)}, 0x9E3779B1')
    def g_rd(i):
        A(f's_bfe_u32 {sr(T0)}, {sr(S_RHO)}, {(3 << 16) | (4 * i)}\ns_lshl_b32 {sr(T0)}, {sr(T0)}, 7\nv_add_u32 {vr(AG + 1)}, {sr(T0)}, {vr(AG)}')
        for kk in range(2):
            A.ds(f'ds_read_b128 {vr(GWF + 8 * (i % 2) + 4 * kk, 4)}, {vr(AG + 1)} offset:{64 * kk}', 'x')

    def g_mm(i):
        for kk in range(2):
            for a in range(2):
                mf16(A, GL + 4 * a, GWF + 8 * (i % 2) + 4 * kk, XR + 16 * i + 8 * kk + 4 * a, i == 0 and kk == 0)

    seq = [(0, kk, j) for kk in range(2) for j in range(8)] + [(0, kk, j) for kk in range(2) for j in range(8, 12)]
    seq += [(b, kk, j) for b in range(1, 8) for kk in range(2) for j in range(12)]
    st = {'n': 0}
    house = {}

    def need(b):
        return (G4, b) if b < cfg.p2w else (G2, b)

    def rd(n, r):
        b, kk, j = seq[n]
        u, mat, fh = j >> 2, (j >> 1) & 1, j & 1
        if n % 24 == 0 and r == 0:
            if b:
                if 'nochk' not in cfg.dbg:
                    A(f's_cbranch_vccnz L_slow{b}')
                A.label(f'L_back{b}')
            if b == 4:
                A(f'v_add_u32 {vr(TB)}, {2 * SLOT}, {vr(TB)}\nv_add_u32 {vr(TB + 1)}, {2 * SLOT}, {vr(TB + 1)}')
            if b in (0, 1, 2, 4, 5, 7):
                A.stamp(f'B{b}')
        slot = WSLOT[b]
        off = (slot % 2) * SLOT + mat * 12288 + (32 * kk + 4 * r) * 192 + u * 64
        A.ds(f'ds_read_b64_tr_b16 {vr(WB + 4 * (n % 6) + 2 * r, 2)}, {vr(TB + 2 * (slot // 4) + fh)} offset:{off}', f'w{n}')

    def adv(k):
        for n in range(st['n'], st['n'] + k):
            b, kk, j = seq[n]
            ks = 2 * b + kk
            acc = ACC + 32 * (j >> 2) + 16 * ((j >> 1) & 1) + 4 * (j & 1)
            if n % 2 == 0:
                A.wait_lg(f'w{n + 1}')
            mf16(A, acc, WB + 4 * (n % 6), XR + 8 * ks, ks == 0)
            if n + 5 < 192:
                rd(n + 5, 0)
            if n in house:
                house[n]()
            mf16(A, acc + 8, WB + 4 * (n % 6), XR + 8 * ks + 4, ks == 0)
            if n + 5 < 192:
                rd(n + 5, 1)
        st['n'] += k

    def plan(b, post_at, peek_at):
        if b == 7 and cfg.p1d <= 5:
            pass
        elif cfg.dp1:
            house[24 * b + post_at] = lambda: (A.wait_lg('gt'), dpost(A, b + 1, G1, b == 0))
        else:
            house[24 * b + post_at] = lambda: A(f'v_mov_b32 {vr(VPT)}, {b + 1}')
            house[24 * b + post_at + 1] = lambda: A.ds(f'ds_write_b32 {vr(VPW)}, {vr(VPT)}')
        if b < 7:
            house[24 * b + peek_at] = lambda: A.ds(f'ds_read_b32 {vr(VPT)}, {vr(VPR)} offset:{need(b + 1)[0]}', 'pg')
            house[24 * b + 18] = lambda: (A.wait_lg('pg'), A(f'v_cmp_gt_u32 vcc, {need(b + 1)[1]}, {vr(VPT)}'))
    for b in range(1, 8):
        plan(b, cfg.post_at, cfg.peek_at)
    assert cfg.p2w == 3 and cfg.stag0 + cfg.nstag + 2 <= cfg.es
    for i in range(8):
        A.wait_vm(f'blk{i}')
        A.wait_lg('x')
        if i <= cfg.es:
            A.flush()
        A('s_barrier')
        A.stamp(f'A{i}')
        b = i + D
        if i < cfg.es and cfg.gweave:
            if b < 8:
                A.defer(lambda: issue_a(A, b, VX, VB))
            elif b + 1 - 8 < cfg.p2w:
                A.defer(lambda: (issue_w(A, b + 1, VW, S_C1), dpost(A, b + 1 - 8, G4)))
        jobs = [lambda: [A.ds(f'ds_read_b128 {vr(XR + 16 * i + 8 * kk + 4 * a, 4)}, {vr((AXH if i & 2 else AX) + kk)} offset:{(i % 2) * SLOT + 2048 * a}', 'x')
                         for kk in range(2) for a in range(2)]]
        if i == 2:
            jobs.append(lambda: g_mm(0))
        if i >= 2:
            jobs.append(lambda: g_mm(i - 1))
        if i == 1:
            jobs.append(lambda: g_rd(0))
        if i >= 1:
            jobs.append(lambda: g_rd(i))
        for job in jobs:
            for _ in range(cfg.gweave):
                if A.bg:
                    A.pop_bg()
            job()
        while A.bg:
            A.pop_bg()
        if i == cfg.es:
            if cfg.stamps:
                A('s_mov_b32 s13, 0')
            A.wait_lg('x')
            for n in range(5):
                rd(n, 0)
                rd(n, 1)
        if i < cfg.es and cfg.gweave:
            pass
        elif b < 8:
            issue_a(A, b, VX, VB)
        elif b + 1 - 8 < cfg.p2w:
            if i < cfg.es:
                issue_w(A, b + 1, VW, S_C1)
                dpost(A, b + 1 - 8, G4)
            else:
                A.defer(lambda: issue_w(A, b + 1, VW, S_C1))
                for k in range(6):
                    A.pop_bg()
                    adv((cfg.ew * (k + 1)) // 6 - (cfg.ew * k) // 6)
                dpost(A, b + 1 - 8, G4)
        if cfg.stag0 <= i < cfg.stag0 + cfg.nstag:
            A(f's_cmp_lg_u32 {sr(S_STAG)}, {i - cfg.stag0}\ns_cbranch_scc1 L_now0_{i}')
            saved = list(A.vm)
            issue_w(A, 8, VW, S_C1)
            A.vm = saved
            A.label(f'L_now0_{i}')
    if cfg.p1b:
        A(f's_setprio {cfg.p1b}')
    n0 = st['n']
    assert n0 <= 8
    house[n0 + 1] = lambda: (A.wait_lg('x'), g_mm(7), A('s_mov_b32 vcc_lo, 0xffff0000\ns_mov_b32 vcc_hi, 0xffff0000'))
    house[n0 + 3] = lambda: A(f'v_cndmask_b32 {vr(GL)}, {vr(GL)}, {vr(GL + 4)}, vcc')
    house[n0 + 4] = lambda: A.ds(f'ds_write_b32 {vr(AG + 2)}, {vr(GL)}', 'gt')
    p0 = max(n0 + 5, cfg.post0)
    plan(0, p0, max(p0 + 2, 14))
    adv(192 - n0)
    if not (cfg.allack and cfg.p1d <= 8):
        A.wait_vm('dp')
        post(A, VPW, VPT, 9)
    if cfg.p1b:
        A(f's_setprio {cfg.pE}')
    A.stamp('E')
    if cfg.stamps:
        A('v_writelane_b32 v7, s13, 61')
    VST = 1
    A('v_mbcnt_lo_u32_b32 v0, -1, 0\nv_mbcnt_hi_u32_b32 v0, -1, v0')
    A(f'v_and_b32 v1, 15, v0\nv_lshl_add_u32 v1, v1, 2, {sr(S_WDO)}')
    A.ds('ds_read_b32 v2, v1')
    A.ds('ds_read_b32 v3, v1 offset:64')
    lane_pat(A, VST, VPT, sr(S_GST))
    A(f's_mov_b32 {sr(S_C0)}, {NLOG2E}\ns_mov_b32 {sr(S_C0 + 1)}, {NLOG2E}')
    for u in range(3):
        G, U, P = ACC + 32 * u, ACC + 32 * u + 16, WB + 8 * u
        if u == 2:
            A(f's_cmp_eq_u32 {sr(S_J)}, 3\ns_cbranch_scc1 {"L_j3" if cfg.epi_at == 2 else "L_no_u2"}')
        pk = u <= cfg.epi_at

        def mul(d, x, y):
            for r in range(0, 16, 2):
                if pk:
                    A(f'v_pk_mul_f32 {vr(d + r, 2)}, {vr(x + r, 2)}, {vr(y + r, 2) if y else sr(S_C0, 2)}')
                else:
                    for e in (r, r + 1):
                        A(f'v_mul_f32 {vr(d + e)}, {vr(y + e) if y else sr(S_C0)}, {vr(x + e)}')
        mul(U, G, U)
        mul(G, G, None)
        if u == 0:
            A.wait_lg_all()
            A(f'v_mul_f32 v2, {LOG2E}, v2\nv_mul_f32 v3, {LOG2E}, v3\nv_exp_f32 v2, v2\nv_exp_f32 v3, v3')
        for r in range(16):
            A(f'v_exp_f32 {vr(G + r)}, {vr(G + r)}')
        if u == 0:
            A('v_add_f32 v2, 1.0, v2\nv_add_f32 v3, 1.0, v3')
            for r in range(4):
                A(f'v_min_f32 {vr(XR + r)}, 0x7149f2ca, {vr(2 + r // 2)}')
        for r in range(0, 16, 2):
            iv = XR + 2 * (r // 8)
            if pk:
                A(f'v_pk_fma_f32 {vr(G + r, 2)}, {vr(G + r, 2)}, {vr(iv, 2)}, {vr(iv, 2)}')
            else:
                for e in (r, r + 1):
                    A(f'v_fma_f32 {vr(G + e)}, {vr(G + e)}, {vr(iv)}, {vr(iv)}')
        for r in range(16):
            A(f'v_rcp_f32 {vr(G + r)}, {vr(G + r)}')
        mul(U, G, U)
        if u == 0:
            A.wait_vm('dp')
        if u == cfg.epi_at:
            post(A, VPW, VPT, E_EPI)
        for r in range(0, 16, 2):
            A(f'v_cvt_pk_bf16_f32 {vr(P + r // 2)}, {vr(U + r)}, {vr(U + r + 1)}')
        if cfg.fine:
            A.stamp(f'u{u}')
        if cfg.prio and cfg.pE != 3:
            A('s_setprio 3')
        for n in range(2 * u, 2 * u + 2):
            A.vmem(f'buffer_store_dwordx4 {vr(WB + 4 * n, 4)}, {vr(VST)}, {sr(R_WS, 4)}, {fo(n)} {cfg.fact}', 'gu')
        if cfg.prio and cfg.pE != 3:
            A(f's_setprio {cfg.pE}')
    A.label('L_no_u2')
    A.stamp('epi')
    OWN, VD, RW, VL, RO, PB, TMP = 32, 40, 42, 43, 44, 48, 72
    if cfg.prio:
        A('s_setprio 3')
    if cfg.p1d < 11:
        wd_voffs(A, VD, TMP)
        if not cfg.allack:
            await_(A, 'pa9', VPR, VPT, G1, 9)
    if 'G' in cfg.touch:
        for b, o in FL4:
            A(f's_load_dword s14, {sr(b, 2)}, {o} glc')
    for n in range(cfg.p1d, cfg.p1d + cfg.p1pre):
        dma_wd(A, n, VD, R_E)
    A(f's_lshl_b32 {sr(T0)}, {sr(S_W)}, 11\ns_add_u32 {sr(T0)}, {sr(T0)}, {CB}\nv_lshl_add_u32 {vr(RW)}, v0, 4, {sr(T0)}')
    A(f's_lshl_b32 {sr(T0)}, {sr(S_IDX)}, 14\ns_add_u32 {sr(T0)}, {sr(T0)}, {PART}')
    lane_pat(A, VL, TMP, sr(T0))
    out_voff(A, RO, TMP, 0)
    A(f'v_mov_b32 v2, {sr(S_TAG)}\nv_lshlrev_b32 v3, 2, v0')
    A(f's_waitcnt vmcnt({2 * cfg.p1pre})')
    A.vm = A.vm[len(A.vm) - 2 * cfg.p1pre:]
    A('s_mov_b32 exec_hi, 0')
    A.vmem(f'buffer_store_dword v2, v3, {sr(R_WS, 4)}, {sr(S_GFL)} offen {cfg.ffl}', 'fl')
    A('s_mov_b64 exec, -1')
    post(A, VPW, VPT, E_ACK)
    A.stamp('guflag')

    def late(lo, hi):
        if lo >= hi:
            return
        if cfg.prio and cfg.p1lo:
            A('s_setprio 0')
        for n in range(lo, hi):
            dma_wd(A, n, VD, R_E)
        if cfg.prio and cfg.p1lo:
            A('s_setprio 3')
    mid = min(11, cfg.p1d + cfg.p1pre + cfg.p1mid)
    if cfg.allack:
        assert cfg.p1pre == 0
        await_(A, 'allack', VPR, VPT, G1, E_ACK)
    late(cfg.p1d + cfg.p1pre, mid)
    if cfg.p1d < 11 and mid == 11:
        dpost(A, E_D, G4)
    A.stamp('dma')
    spoll(A, 'gu', cfg, FL4)
    post(A, VPW, VPT, E_GU)
    A.stamp('gupoll')
    late(mid, 11)
    if mid < 11:
        dpost(A, E_D, G4)
    if 'p' in cfg.touch:
        for b, o in FL3:
            A(f's_load_dword s14, {sr(b, 2)}, {o} glc')
    if cfg.prio:
        A('s_setprio 0')
    if cfg.endbar:
        A('s_barrier')
    else:
        await_(A, 'sf', VPW, VPT, G3 - G1, E_SF)
    for k in range(2):
        A.ds(f'ds_read_b128 {vr(OWN + 4 * k, 4)}, {vr(RW)} offset:{1024 * k}')
    spoll(A, 'pp', cfg, FL3)
    post(A, VPW, VPT, E_PP)
    finish(A, cfg, 0, OWN, VL, RO, PB)
    A(f's_cmp_lg_u32 {sr(S_IDX)}, {60 * 16}\ns_cbranch_scc1 L_p1_done')
    A(f'v_mov_b32 v1, {sr(S_TAG)}\nv_mov_b32 v2, {GW}\ns_mov_b64 exec, 1')
    A(f'buffer_store_dword v1, v2, {sr(R_WS, 4)}, 0 offen sc1\ns_mov_b64 exec, -1')
    A.label('L_p1_done')
    A.stamp('stored')
    if cfg.stamps:
        A.wait_vm_all()
        A.stamp('done')
    A.dump_stamps(0)
    A('s_endpgm')

    if cfg.epi_at == 2:
        A.label('L_j3')
        post(A, VPW, VPT, E_EPI)
        A('s_branch L_no_u2')
    for b in range(1, 8):
        A.label(f'L_slow{b}')
        if cfg.stamps:
            A(f's_add_u32 s13, s13, {1 << (4 * b)}')
        A(f'ds_read_b32 {vr(VPT)}, {vr(VPR)} offset:{need(b)[0]}\ns_waitcnt lgkmcnt(0)')
        A(f'v_cmp_gt_u32 vcc, {need(b)[1]}, {vr(VPT)}\ns_cbranch_vccnz L_slow{b}\ns_branch L_back{b}')

    return A


def gen_p2(cfg):
    A = WS(cfg, 31)
    VC, VD, VST, VPF, VXS, AC, VPW, VPR, VPT, VA, RW, VG, RO, VL, VS, VF, DS = 1, 5, 7, 8, 10, 11, 15, 16, 17, 18, 19, 20, 21, 22, 23, 26, 28
    U, V = 32, 48
    VPK, XA, VAF, AW, VEXM = 14, 13, 27, 240, 30
    SC = 64
    LR, LI, L16R, L16I, L32R, L32I, KR, KI, LCR, LCI = range(80, 90)
    WQ, WSR, WSI, SEL, VW, VPQ, VEX, VEXW, VPUB = 90, 94, 95, 96, 104, 107, 109, 110, 111
    TMP = 112
    AX, AB = 128, 136
    FB = (144, 192)
    A.label('L_p2')
    if cfg.stamps:
        A('v_mov_b32 v31, 0')
    A.stamp('start')
    rho_pre(A, cfg, S_RHO, T0)
    A(f'v_and_b32 {vr(TMP + 4)}, 15, v0\nv_lshlrev_b32 {vr(TMP + 4)}, 2, {vr(TMP + 4)}\nv_add_u32 {vr(TMP + 4)}, {X_CNT}, {vr(TMP + 4)}\nv_mov_b32 {vr(TMP + 6)}, 0')
    A.ds(f'ds_write_b32 {vr(TMP + 4)}, {vr(TMP + 6)}')
    frag_addr(A, AB, TMP + 8)
    A(f's_lshl_b32 {sr(S_MB)}, {sr(S_W)}, 12')
    for s in range(4):
        A(f'v_add_u32 {vr(AX + s)}, {sr(S_MB)}, {vr(AB + s)}')
        A(f'v_add_u32 {vr(AX + 4 + s)}, {2 * SLOT}, {vr(AX + s)}')
        A(f'v_add_u32 {vr(AB + 4 + s)}, {2 * SLOT}, {vr(AB + s)}')
    A.wait_lg_all()
    load_tag(A)
    map2(A, cfg)
    srd(A, R_O, 28, 1376 * 1024)
    srd(A, R_WG, 24, 512 * 2752)
    srd(A, R_WU, 26, 512 * 2752)
    srd(A, R_WS, 36, WS_SIZE)
    srd(A, R_X, 4, 2048 * 1024)
    srd(A, R_B, 14, 512 * 1024)
    srd(A, R_E, 16, 512 * 1024)
    consts(A)
    first_unit(A)
    N0, N1, NS = TMP + 4, TMP + 5, TMP + 6
    LRE, LIM, DT, A2, BR = TMP + 1, TMP + 2, TMP + 3, TMP + 7, TMP + 12
    t0, t1, t2, t3 = TMP + 8, TMP + 9, TMP + 10, TMP + 11

    def setup_a():
        A(f'v_and_b32 {vr(TMP)}, 0x13, v0\nv_bfe_u32 {vr(t0)}, v0, 2, 1\nv_lshl_add_u32 {vr(TMP)}, {vr(t0)}, 3, {vr(TMP)}\nv_bfe_u32 {vr(t0)}, v0, 3, 1\nv_lshl_add_u32 {vr(TMP)}, {vr(t0)}, 2, {vr(TMP)}')
        A(f'v_lshlrev_b32 {vr(TMP)}, 1, {vr(TMP)}\nv_add_u32 {vr(TMP)}, {X_PAR}, {vr(TMP)}')
        if not cfg.selfw:
            wffn_voffs(A, VW, t0)
        A(f's_mul_i32 {sr(S_MB2)}, {sr(S_W)}, 3072')
        A(f'v_and_b32 {vr(VEX)}, 31, v0\nv_lshlrev_b32 {vr(VEX)}, 4, {vr(VEX)}\nv_add_u32 {vr(VEX)}, {X_EX}, {vr(VEX)}')
        A(f's_lshl_b32 {sr(T0)}, {sr(S_W)}, 9\nv_add_u32 {vr(VEXW)}, {sr(T0)}, {vr(VEX)}')
        if cfg.ex1:
            A(f'v_lshlrev_b32 {vr(VEXM)}, 5, v0\nv_add_u32 {vr(VEXM)}, {X_EX + 24}, {vr(VEXM)}\nv_mov_b32 {vr(t0)}, 0')
            A.ds(f'ds_write_b32 {vr(VEXW)}, {vr(t0)} offset:8')
            A.ds(f'ds_write_b32 {vr(VEXW)}, {vr(t0)} offset:{8 + X_EX2 - X_EX}')
        A(f's_lshl_b32 {sr(T0)}, {sr(S_W)}, 2\ns_lshl_b32 {sr(T1)}, {sr(S_CG)}, 14\ns_add_u32 {sr(T1)}, {sr(T1)}, {AGG}')
        A(f'v_and_b32 {vr(t0)}, 15, v0\nv_lshl_add_u32 {vr(t0)}, {vr(t0)}, 4, {sr(T1)}\nv_bfe_u32 {vr(t3)}, v0, 4, 1\nv_lshl_add_u32 {vr(t0)}, {vr(t3)}, 9, {vr(t0)}')
        A(f'v_lshrrev_b32 {vr(t3)}, 5, v0')
        A(f'v_mov_b32 {vr(t2)}, {OOB}')
        for j in range(2):
            A(f'v_add_u32 {vr(t1)}, {sr(T0)}, {vr(t3)}')
            if j:
                A(f'v_add_u32 {vr(t1)}, 2, {vr(t1)}')
            A(f'v_cmp_gt_u32 vcc, {sr(S_RT)}, {vr(t1)}')
            A(f'v_lshl_add_u32 {vr(VPQ + j)}, {vr(t1)}, 10, {vr(t0)}')
            A(f'v_sub_u32 {vr(N0 + j)}, {sr(S_RT)}, {vr(t1)}')
            A(f'v_cndmask_b32 {vr(VPQ + j)}, {vr(t2)}, {vr(VPQ + j)}, vcc')
            A(f'v_add_u32 {vr(N0 + j)}, -1, {vr(N0 + j)}\nv_max_i32 {vr(N0 + j)}, 0, {vr(N0 + j)}\nv_lshlrev_b32 {vr(N0 + j)}, 7, {vr(N0 + j)}\nv_cvt_f32_i32 {vr(N0 + j)}, {vr(N0 + j)}')
        A(f's_lshl_b32 {sr(T0)}, {sr(S_W)}, 5\nv_lshl_add_u32 {vr(NS)}, {vr(t3)}, 4, {sr(T0)}\nv_cvt_f32_i32 {vr(NS)}, {vr(NS)}')
        A(f's_lshl4_add_u32 {sr(T0)}, {sr(S_CG)}, {sr(S_RT)}\ns_lshl_b32 {sr(T0)}, {sr(T0)}, 10\ns_add_u32 {sr(T0)}, {sr(T0)}, {AGG}')
        A(f's_cmp_eq_u32 {sr(S_W)}, 0\ns_cselect_b32 {sr(T0)}, {sr(T0)}, {OOB}')
        lane_pat(A, VPUB, t0, sr(T0))
        prog_addrs(A, VPW, VPR, G2)
        A(f's_lshl_b32 {sr(T0)}, s2, 4\ns_mul_i32 {sr(T1)}, s2, 43\ns_and_b32 {sr(T2)}, {sr(S_W)}, 1\ns_mul_i32 {sr(T2)}, {sr(T2)}, 22\ns_add_u32 {sr(T1)}, {sr(T1)}, {sr(T2)}')
        A(f's_cmp_ge_u32 {sr(S_W)}, 2\ns_cselect_b32 {sr(T0)}, {sr(T1)}, {sr(T0)}\ns_cselect_b32 {sr(T1)}, 21, 15\ns_lshl_b32 {sr(T0)}, {sr(T0)}, 7')
        A(f'v_min_u32 {vr(VPF)}, {sr(T1)}, v0\nv_lshl_add_u32 {vr(VPF)}, {vr(VPF)}, 7, {sr(T0)}')
        A(f's_cmp_eq_u32 {sr(S_W)}, 1\ns_cselect_b32 s16, s16, s14\ns_cselect_b32 s17, s17, s15\ns_cmp_ge_u32 {sr(S_W)}, 2\ns_cselect_b32 s16, s28, s16\ns_cselect_b32 s17, s29, s17')
        A(f's_cselect_b32 s18, {sr(R_O + 2)}, {sr(R_B + 2)}\ns_mov_b32 s19, 0x20000')

    def setup_b():
        flag_addr(A, S_GFL, HF)
        poll_bases(A, HF, 0)
        A(f'v_bfe_u32 {vr(t0)}, v0, 3, 2\nv_bfe_u32 {vr(t1)}, v0, 1, 1\nv_lshl_add_u32 {vr(t0)}, {vr(t0)}, 1, {vr(t1)}')
        A(f'v_bfe_u32 {vr(t1)}, v0, 2, 1\nv_lshrrev_b32 {vr(t2)}, 5, v0\nv_xor_b32 {vr(t1)}, {vr(t1)}, {vr(t2)}\nv_lshl_add_u32 {vr(t0)}, {vr(t1)}, 3, {vr(t0)}')
        A(f'v_and_b32 {vr(t1)}, 1, v0\nv_lshlrev_b32 {vr(t1)}, 4, {vr(t1)}\nv_mov_b32 {vr(t2)}, 0xffff\nv_lshlrev_b32 {vr(t1)}, {vr(t1)}, {vr(t2)}')
        for r in range(0, 8, 2):
            A(f'v_cmp_eq_u32 vcc, {r}, {vr(t0)}\nv_cmp_eq_u32 s[8:9], {r + 1}, {vr(t0)}\ns_nop 0')
            A(f'v_cndmask_b32 {vr(SEL + r)}, 0, {vr(t1)}, vcc\nv_cndmask_b32 {vr(SEL + r + 1)}, 0, {vr(t1)}, s[8:9]')
        A(f's_mul_i32 {sr(T1)}, {sr(S_MG)}, {KSP}')
        A(f's_and_b32 {sr(T0)}, {sr(S_CG)}, 14\ns_lshl2_add_u32 {sr(T1)}, {sr(T0)}, {sr(T1)}\ns_and_b32 {sr(T0)}, {sr(S_CG)}, 1\ns_lshl1_add_u32 {sr(T1)}, {sr(T0)}, {sr(T1)}\ns_lshl_b32 {sr(T1)}, {sr(T1)}, 11')
        lane_pat(A, VST, t0, sr(T1))

    def setup_c():
        swz_consts(A, t0, t1, t2, t3)
        A(f's_xor_b32 {sr(T0)}, {sr(S_W)}, {sr(S_Q)}\ns_lshl2_add_u32 {sr(T0)}, {sr(S_J)}, {sr(T0)}\ns_lshl_b32 {sr(T0)}, {sr(T0)}, 15\ns_lshl_b32 {sr(T1)}, {sr(S_Q)}, 8\ns_add_u32 {sr(T0)}, {sr(T0)}, {sr(T1)}')
        A(f'v_lshl_add_u32 {vr(t3)}, {vr(t0)}, 10, {sr(T0)}')
        A(f'v_add_u32 {vr(VC)}, {vr(t3)}, {vr(t1)}\nv_add_u32 {vr(VC + 1)}, {vr(t3)}, {vr(t2)}')
        A(f'v_add_u32 {vr(VC + 2)}, {2 * 7168}, {vr(VC)}\nv_add_u32 {vr(VC + 3)}, {3 * 7168}, {vr(VC + 1)}\nv_add_u32 {vr(VC + 1)}, 7168, {vr(VC + 1)}')
        wd_voffs(A, VD, t0)
        frag16_addr(A, AC, t0)
        assert CB == 0
        A(f's_and_b32 {sr(T0)}, {sr(S_J)}, 1\ns_lshl_b32 {sr(T0)}, {sr(T0)}, 6\nv_xor_b32 {vr(AC)}, {sr(T0)}, {vr(AC)}\nv_xor_b32 {vr(AC + 1)}, {sr(T0)}, {vr(AC + 1)}')
        A(f's_lshr_b32 {sr(S_GST)}, {sr(S_J)}, 1\ns_lshl_b32 {sr(S_GST)}, {sr(S_GST)}, 7')
        act_voff(A, VA, t0, 16, 0)
        A(f's_lshl_b32 {sr(T0)}, {sr(S_W)}, 11\ns_add_u32 {sr(T0)}, {sr(T0)}, {CB}\nv_lshl_add_u32 {vr(RW)}, v0, 4, {sr(T0)}')
        A(f'v_bfe_u32 {vr(t1)}, v0, 3, 2\ns_and_b32 {sr(T0)}, {sr(S_Q)}, 1\ns_lshl_b32 {sr(T0)}, {sr(T0)}, 1\nv_xor_b32 {vr(t1)}, {sr(T0)}, {vr(t1)}')
        A(f'v_lshlrev_b32 {vr(t1)}, 5, {vr(t1)}\nv_bfe_u32 {vr(t0)}, v0, 2, 3\nv_lshl_add_u32 {vr(t0)}, {vr(t0)}, 7, {vr(t1)}')
        A(f'v_and_b32 {vr(t1)}, 3, v0\nv_lshl_add_u32 {vr(t0)}, {vr(t1)}, 3, {vr(t0)}\nv_lshrrev_b32 {vr(t1)}, 5, v0\nv_lshl_add_u32 {vr(AW)}, {vr(t1)}, 11, {vr(t0)}\nv_add_u32 {vr(AW)}, {2 * SLOT}, {vr(AW)}')
        for n in range(4):
            if n:
                A(f'v_xor_b32 {vr(AW + n)}, {n << 5}, {vr(AW)}')
            A(f'v_add_u32 {vr(AW + 4 + n)}, {2 * SLOT}, {vr(AW + n)}')
        act_voff(A, VAF, t0, 22, 64)
        A(f's_lshl_b32 {sr(T0)}, {sr(S_W)}, 7\ns_add_u32 {sr(T0)}, {sr(T0)}, {X_GT}\nv_lshrrev_b32 {vr(VG)}, 4, v0\nv_lshl_add_u32 {vr(VG)}, {vr(VG)}, 4, {sr(T0)}')
        out_voff(A, RO, t0, 1)
        A(f's_lshl2_add_u32 {sr(T1)}, {sr(S_J)}, {sr(S_Q)}\ns_lshl_b32 {sr(T1)}, {sr(T1)}, 6\nv_and_b32 {vr(t1)}, 15, v0')
        A(f's_lshl_b32 {sr(T0)}, {sr(S_MG)}, 15\ns_add_u32 {sr(T0)}, {sr(T0)}, {sr(T1)}\nv_and_b32 {vr(t0)}, 3, v0\nv_lshl_add_u32 {vr(t0)}, {vr(t0)}, 4, {sr(T0)}')
        A(f'v_lshrrev_b32 {vr(VXS)}, 2, v0\nv_lshl_add_u32 {vr(VXS)}, {vr(VXS)}, 10, {vr(t0)}')
        row0(A, XA, t0)
        A(f's_add_u32 {sr(T0)}, {sr(S_WDO)}, {WDA[0]}\nv_lshl_add_u32 {vr(t1)}, {vr(t1)}, 1, {sr(T0)}\nv_lshl_add_u32 {vr(XA)}, {vr(XA)}, 6, {vr(t1)}')
        part_addrs(A, VL, VS, VF, t0, 0)

    setup_a()
    A(f's_lshl2_add_u32 {sr(T1)}, {sr(S_J)}, {sr(S_Q)}\ns_lshl_b32 {sr(T1)}, {sr(T1)}, 6\nv_and_b32 {vr(t1)}, 15, v0\nv_lshl_add_u32 {vr(DS)}, {vr(t1)}, 1, {sr(T1)}')
    if 'w' in cfg.early:
        A(f's_lshr_b32 {sr(S_STAG)}, s2, 3\ns_and_b32 {sr(T0)}, s2, 1\ns_mul_i32 {sr(T0)}, {sr(T0)}, {cfg.nstag // 2}\ns_add_u32 {sr(S_STAG)}, {sr(S_STAG)}, {sr(T0)}')
        A(f's_and_b32 {sr(S_STAG)}, {sr(S_STAG)}, {cfg.nstag - 1}')
    A(f'v_add_u32 {vr(DS)}, {X_DS}, {vr(DS)}')
    table_srd(A)
    if 'p' in cfg.early:
        A.vmem(f'buffer_load_dword {vr(VPF + 1)}, {vr(VPF)}, s[16:19], 0 offen')
    if 'a' in cfg.early:
        for j in range(2):
            A.vmem(f'buffer_load_dword {vr(SC + j)}, {vr(VPQ + j)}, {sr(R_WS, 4)}, 0 offen sc1')
    A.wait_lg_all()
    A(f's_add_u32 {sr(S_TAG)}, {sr(S_TAG)}, 0x9E3779B1')
    A.stamp('setup')

    def cpow(dr, di, n):
        A(f'v_mul_f32 {vr(t0)}, {n}, {vr(A2)}\nv_mul_f32 {vr(t1)}, {n}, {vr(BR)}')
        A(f'v_exp_f32 {vr(t0)}, {vr(t0)}\nv_fract_f32 {vr(t1)}, {vr(t1)}')
        A(f'v_cos_f32 {vr(dr)}, {vr(t1)}\nv_sin_f32 {vr(di)}, {vr(t1)}')
        A(f'v_mul_f32 {vr(dr)}, {vr(t0)}, {vr(dr)}\nv_mul_f32 {vr(di)}, {vr(t0)}, {vr(di)}')

    def lam(i):
        if i == 0:
            for r in (LRE, LIM, DT):
                A(f'v_lshlrev_b32 {vr(r)}, 16, {vr(r)}')
            A(f'v_mul_f32 {vr(DT)}, {LOG2E}, {vr(DT)}\nv_exp_f32 {vr(DT)}, {vr(DT)}\ns_nop 0')
            A(f'v_cvt_pk_bf16_f32 {vr(DT)}, {vr(DT)}, {vr(DT)}\nv_lshlrev_b32 {vr(DT)}, 16, {vr(DT)}')
            A(f'v_mul_f32 {vr(A2)}, {vr(DT)}, {vr(LRE)}\nv_mul_f32 {vr(BR)}, {vr(DT)}, {vr(LIM)}')
            A(f'v_mul_f32 {vr(A2)}, {LOG2E}, {vr(A2)}\nv_mul_f32 {vr(BR)}, {INV2PI}, {vr(BR)}')
            cpow(LR, LI, '1.0')
            cpow(L16R, L16I, '0x41800000')
        if i == 1:
            cpow(L32R, L32I, '0x42000000')
        if i == 2:
            cpow(WQ, WQ + 1, vr(N0))
        if i == 3:
            cpow(WQ + 2, WQ + 3, vr(N1))
        if i == 4:
            cpow(WSR, WSI, vr(NS))
        if i == 5:
            A(f'v_mul_f32 {vr(t0)}, {vr(LRE)}, {vr(LRE)}\nv_fmac_f32 {vr(t0)}, {vr(LIM)}, {vr(LIM)}\nv_rcp_f32 {vr(t0)}, {vr(t0)}')
            A(f'v_add_f32 {vr(t1)}, -1.0, {vr(LR)}\nv_add_f32 {vr(t0)}, {vr(t0)}, {vr(t0)}')
            A(f'v_mul_f32 {vr(KR)}, {vr(t1)}, {vr(LRE)}\nv_fmac_f32 {vr(KR)}, {vr(LI)}, {vr(LIM)}')
            A(f'v_mul_f32 {vr(KI)}, {vr(LI)}, {vr(LRE)}\nv_fma_f32 {vr(KI)}, -{vr(t1)}, {vr(LIM)}, {vr(KI)}')
            A(f'v_mul_f32 {vr(KR)}, {vr(t0)}, {vr(KR)}\nv_mul_f32 {vr(KI)}, {vr(t0)}, {vr(KI)}')

    l0 = len(A.lines)
    setup_b()
    setup_c()
    nfree = len(A.lines) - l0
    for i in range(6):
        lam(i)
    work = A.lines[l0:]
    del A.lines[l0:]
    st = {'n': 0, 'ok': False}

    def fill(k):
        while k and work and (st['ok'] or st['n'] < nfree):
            A(work.pop(0))
            st['n'] += 1
            k -= 1

    def mm(i, s):
        xf, bf = FB[i % 2], FB[i % 2] + 16
        A.wait_lg(f'a{i}{s}')
        mfma(A, U, xf + 4 * s, bf + 8 * s, i == 0 and s == 0)
        fill(cfg.nfill)
        A.wait_lg(f'b{i}{s}')
        mfma(A, V, xf + 4 * s, bf + 8 * s + 4, i == 0 and s == 0)
        fill(cfg.nfill if s < 2 else cfg.nfill - 3)
    for i in range(8):
        if i == cfg.es and cfg.prio:
            A(f's_setprio {cfg.p2b}')
        A('s_barrier')
        so = (i % 2) * SLOT
        hi = (i >> 1) & 1
        xf, bf = FB[i % 2], FB[i % 2] + 16
        for s in range(4):
            A.ds(f'ds_read_b128 {vr(xf + 4 * s, 4)}, {vr(AX + 4 * hi + s)} offset:{so}', f'a{i}{s}')
            A.ds(f'ds_read_b128 {vr(bf + 8 * s, 4)}, {vr(AB + 4 * hi + s)} offset:{so + 16384}', f'a{i}{s}')
            A.ds(f'ds_read_b128 {vr(bf + 8 * s + 4, 4)}, {vr(AB + 4 * hi + s)} offset:{so + 20480}', f'b{i}{s}')
            if i and s < 2:
                mm(i - 1, 2 + s)
        if i == 1:
            for j, r in enumerate((LRE, LIM, DT)):
                A.ds(f'ds_read_u16 {vr(r)}, {vr(TMP)} offset:{256 * j}')
        if i == 2:
            A.ds(f'ds_read_u16 {vr(DS + 1)}, {vr(DS)} offset:32')
            A.ds(f'ds_read_u16 {vr(DS)}, {vr(DS)}')
        mm(i, 0)
        mm(i, 1)
        A.wait_lg_all()
        if 'w' in cfg.early and cfg.stag0 <= i < cfg.stag0 + cfg.nstag:
            A(f's_mov_b32 s15, scc\ns_cmp_lg_u32 {sr(S_STAG)}, {i - cfg.stag0}\ns_cbranch_scc1 L_nopf_{i}')
            A(f'buffer_load_dword {vr(VPF + 1)}, {vr(VPF)}, s[16:19], 0 offen')
            A.label(f'L_nopf_{i}')
            A('s_cmp_lg_u32 s15, 0')
        if i == 0:
            fill(cfg.fill0)
        if i == 1:
            st['ok'] = True
        if i == 6:
            fill(1000)
    GR = SC + 12
    E0R, E0I, E1R, E1I = TMP + 2, TMP + 3, TMP + 4, TMP + 5
    EW = SC
    PA = SC + 8
    PW = TMP + 10
    PQ = SC
    Q = TMP
    PK = SC
    done = []

    def cfma(dr, di, ar, ai, br, bi, cr, ci):
        A(f'v_fma_f32 {vr(dr)}, {vr(ar)}, {vr(br)}, {vr(cr)}\nv_fma_f32 {vr(di)}, {vr(ar)}, {vr(bi)}, {vr(ci)}')
        A(f'v_fma_f32 {vr(dr)}, -{vr(ai)}, {vr(bi)}, {vr(dr)}\nv_fma_f32 {vr(di)}, {vr(ai)}, {vr(br)}, {vr(di)}')
        A.tick()

    def scale(rs):
        for r in rs:
            t = TMP + (r & 1)
            A(f'v_mul_f32 {vr(t)}, {vr(KI)}, {vr(V + r)}\nv_mul_f32 {vr(V + r)}, {vr(KR)}, {vr(V + r)}')
            A(f'v_fmac_f32 {vr(V + r)}, {vr(KI)}, {vr(U + r)}\nv_fma_f32 {vr(U + r)}, {vr(KR)}, {vr(U + r)}, -{vr(t)}')
            A.tick()

    def pl_agg():
        for j in range(2):
            A.vmem(f'buffer_load_dwordx4 {vr(PQ + 4 * j, 4)}, {vr(VPQ + j)}, {sr(R_WS, 4)}, 0 offen sc1', 'pagg')

    def ck_agg():
        for j in range(2):
            A(f'v_cmp_eq_u32 {sr(S_C0, 2)}, {sr(S_TAG)}, {vr(PQ + 4 * j + 1)}\nv_cmp_eq_u32 {sr(8, 2)}, {sr(S_TAG)}, {vr(PQ + 4 * j + 3)}')
            A(f'v_cmp_eq_u32 vcc, {OOB}, {vr(VPQ + j)}')
            A(f's_and_b64 {sr(S_C0, 2)}, {sr(S_C0, 2)}, {sr(8, 2)}\ns_or_b64 {sr(S_C0, 2)}, {sr(S_C0, 2)}, vcc')
            if j == 0:
                A(f's_mov_b64 {sr(T2, 2)}, {sr(S_C0, 2)}')
        A(f's_and_b64 {sr(S_C0, 2)}, {sr(S_C0, 2)}, {sr(T2, 2)}\ns_cmp_eq_u64 {sr(S_C0, 2)}, -1')

    ACT0, FBS, XS, GV = 128, 192, 216, 232
    SST = [(0, 0), (1, 0), (0, 1), (1, 1), (2, 0), (2, 1), (3, 0), (3, 1)]

    def pass2(rs):
        for r in rs:
            pr, pi = (TMP, TMP + 1) if r == 0 else (U + r - 1, V + r - 1)
            cfma(U + r, V + r, LR, LI, pr, pi, U + r, V + r)
            if r % 2:
                A(f'v_cvt_pk_bf16_f32 {vr(PK + r // 2)}, {vr(U + r - 1)}, {vr(U + r)}')
                A(f'v_cvt_pk_bf16_f32 {vr(PK + 8 + r // 2)}, -{vr(V + r - 1)}, -{vr(V + r)}')

    def gather(name, off, ev):
        if not cfg.ex1:
            await_(A, name, VPR, VPT, G3, ev)
            for w in range(4):
                A.ds(f'ds_read_b64 {vr(EW + 2 * w, 2)}, {vr(VEX)} offset:{off + 512 * w}')
            A.wait_lg_all()
            return
        A.label(f'L_{name}')
        A.ds(f'ds_read_b32 {vr(VPT)}, {vr(VEXM)} offset:{off}')
        for w in range(4):
            A.ds(f'ds_read_b64 {vr(EW + 2 * w, 2)}, {vr(VEX)} offset:{off + 512 * w}')
        Stream.wait_lg_all(A)
        A(f'v_cmp_ne_u32 vcc, 1, {vr(VPT)}\ns_cbranch_vccnz L_{name}')
        A.flush()

    def after(*deps):
        for d in deps:
            assert d in done, (act, d)

    for act in cfg.sched.replace(',', ' ').split():
        bgd = act[0] == '+'
        act = act.lstrip('+')
        if act == '!':
            A.drain()
            continue
        if act[0] == '!':
            A.low(lambda: [A.pop_bg() for _ in range(min(int(act[1:]), len(A.bg)))])
            continue
        if act == '?':
            A.ds(f'ds_read_b32 {vr(VPK)}, {vr(VPR)} offset:{G1}', 'peek')
            st['peek'] = True
            continue

        def pwait(v):
            if st.pop('peek', False):
                check_(A, f'pa{v}', VPR, VPK, G1, v)
            else:
                await_(A, f'pa{v}', VPR, VPT, G1, v)
        assert act not in done, act
        k, n = act[0], int(act[1:]) if act[1:].isdigit() else None

        def emit(fn):
            if bgd:
                A.defer(fn)
            else:
                A.drain()
                A.low(fn)
        if k == 'w' and n is not None:
            if any(t == f'blk{8 + n}' for _, t in A.bg):
                A.drain()

        def pa(v):
            if v > st.get('pa', 0):
                after('B0')
                assert v - 1 < cfg.p2w or st.get('w', 0) >= min(v - 1, 7)
                while any(t == 'dp' and int(l[-2].split()[-2]) // 4 <= v - 1 for l, t in A.bg):
                    A.pop_bg()
                pwait(v)
                st['pa'] = v
        if k == 'c' and n is not None:
            pa((4, 5, 5, 6)[n])

            def f():
                A(f's_add_u32 m0, {sr(S_MB)}, {CB + n * 16384}\ns_xor_b32 {sr(S_OA)}, {sr(S_GST)}, {128 * (n >> 1)}')
                for j in range(4):
                    A.vmem(f'buffer_load_dwordx4 {vr(VC + j)}, {sr(R_E if n & 1 else R_B, 4)}, {sr(S_OA)} offen offset:{1024 * j} lds', f'c{n}')
            emit(f)
        elif k == 'W':
            if n >= 4:
                after('B0', 'pub')
            if n >= 6:
                pa(n - 4)
            assert n == st.get('w', cfg.p2w - 1) + 1
            st['w'] = n
            emit(lambda: (issue_w(A, 8 + n, VW, S_MB2), dpost(A, n, G2)))
        elif k == 'd' and n is not None:
            if n == 0:
                after('xr')
                A.wait_lg('xr11')
            if n >= 1:
                pa({1: 6, 2: 7, 3: 7, 4: 7, 5: 8, 6: 8, 7: 8}.get(n, 9))

            assert n < cfg.p1d
            lastd = all(f'd{x}' in done for x in range(cfg.p1d) if x != n)
            if lastd:
                after('ec')
            emit(lambda: (dma_wd(A, n, VD, R_O), dpost(A, E_WD, G2) if lastd else None))
        elif act == 'ec':
            after('c0', 'c1', 'c2', 'c3', 'W7')
            emit(lambda: dpost(A, E_C, G2))
        elif act == 'pf':
            if cfg.w2pf and 'p' not in cfg.early and 'w' not in cfg.early:
                emit(lambda: A.vmem(f'buffer_load_dword {vr(VPF + 1)}, {vr(VPF)}, s[16:19], 0 offen'))
        elif act == 'g1':
            after('B0')
            tg = TMP + 12
            A(f's_lshl_b32 {sr(T1)}, {sr(S_W)}, 7\ns_add_u32 {sr(T1)}, {sr(T1)}, {X_GT}\nv_and_b32 {vr(tg)}, 31, v0\nv_lshl_add_u32 {vr(tg)}, {vr(tg)}, 2, {sr(T1)}')
            A.ds(f'ds_read_b32 {vr(tg)}, {vr(tg)}')
            A.wait_lg_all()
            A(f'v_mul_f32 {vr(tg)}, {NLOG2E}, {vr(tg)}\nv_exp_f32 {vr(tg)}, {vr(tg)}\ns_nop 0\nv_add_f32 {vr(tg)}, 1.0, {vr(tg)}\nv_rcp_f32 {vr(tg)}, {vr(tg)}\ns_nop 0')
            A(f'v_cvt_pk_bf16_f32 {vr(tg)}, {vr(tg)}, {vr(tg)}')
            for r in range(8):
                A(f'v_and_b32 {vr(SEL + r)}, {vr(tg)}, {vr(SEL + r)}')
        elif act == 'gs':
            after('mm', 'B0')
            for a in range(2):
                A.ds(f'ds_read_b128 {vr(GV + 4 * a, 4)}, {vr(VG)} offset:{64 * a}')
            A.wait_lg_all()
            for r in range(8):
                A(f'v_mul_f32 {vr(GV + r)}, {NLOG2E}, {vr(GV + r)}')
            A.tick()
            A.tick()
            for r in range(8):
                A(f'v_exp_f32 {vr(GV + r)}, {vr(GV + r)}')
            A.tick()
            A.tick()
            for r in range(8):
                A(f'v_add_f32 {vr(GV + r)}, 1.0, {vr(GV + r)}')
            A.tick()
            A.tick()
            for r in range(8):
                A(f'v_rcp_f32 {vr(GV + r)}, {vr(GV + r)}')
            A.tick()
            A.tick()
        elif act == 'B0':
            pwait(1)
        elif act == 'mm':
            mm(7, 2)
            mm(7, 3)
            A(f'v_mov_b32 {vr(GR + 1)}, {sr(S_TAG)}\nv_mov_b32 {vr(GR + 3)}, {sr(S_TAG)}\ns_nop 9')
        elif act == 'p1':
            after('mm')
            pr, pi = U, V
            for r in range(1, 16):
                dr, di = TMP + 2 * (r % 2), TMP + 2 * (r % 2) + 1
                cfma(dr, di, LR, LI, pr, pi, U + r, V + r)
                pr, pi = dr, di
            assert (pr, pi) == (E0R, E0I)
            A(f'v_mov_b32 {vr(E1R)}, {vr(E0R)}\nv_mov_b32 {vr(E1I)}, {vr(E0I)}\ns_nop 1')
            A(f'v_permlane32_swap_b32 {vr(E0R)}, {vr(E1R)}\nv_permlane32_swap_b32 {vr(E0I)}, {vr(E1I)}')
            cfma(TMP + 6, TMP + 7, L16R, L16I, E0R, E0I, E1R, E1I)
            if cfg.ex1:
                A(f'v_mov_b32 {vr(TMP + 8)}, 1')
                A.ds(f'ds_write_b96 {vr(VEXW)}, {vr(TMP + 6, 3)}')
            else:
                A.ds(f'ds_write_b64 {vr(VEXW)}, {vr(TMP + 6, 2)}')
                post(A, VPW, VPT, E_EX, G3 - G2)
        elif act == 'pub':
            after('p1')
            gather('ex', 0, E_EX)
            cfma(PA, PA + 1, L32R, L32I, EW, EW + 1, EW + 2, EW + 3)
            cfma(PA + 2, PA + 3, L32R, L32I, PA, PA + 1, EW + 4, EW + 5)
            cfma(GR, GR + 2, L32R, L32I, PA + 2, PA + 3, EW + 6, EW + 7)
            A('s_mov_b32 exec_hi, 0')
            A.vmem(f'buffer_store_dwordx4 {vr(GR, 4)}, {vr(VPUB)}, {sr(R_WS, 4)}, 0 offen sc1')
            A('s_mov_b64 exec, -1')
        elif act == 'lc':
            after('pub')
            A(f'v_mov_b32 {vr(PW)}, 0\nv_mov_b32 {vr(PW + 1)}, 0')
            for w, src in ((1, EW), (2, PA), (3, PA + 2)):
                A(f's_cmp_eq_u32 {sr(S_W)}, {w}\ns_cselect_b64 vcc, -1, 0')
                A(f'v_cndmask_b32 {vr(PW)}, {vr(PW)}, {vr(src)}, vcc\nv_cndmask_b32 {vr(PW + 1)}, {vr(PW + 1)}, {vr(src + 1)}, vcc')
            cfma(LCR, LCI, L16R, L16I, PW, PW + 1, E0R, E0I)
            A('s_mov_b32 vcc_lo, -1\ns_mov_b32 vcc_hi, 0')
            A(f'v_cndmask_b32 {vr(LCR)}, {vr(LCR)}, {vr(PW)}, vcc\nv_cndmask_b32 {vr(LCI)}, {vr(LCI)}, {vr(PW + 1)}, vcc')
        elif k == 's':
            after('p1')
            assert 'car' not in done
            scale(range(8 * n, 8 * n + 8))
        elif act == 'poll':
            after('lc')
            pl_agg()
        elif act == 'q':
            after('poll', 'B0')
            A.wait_vm('pagg')
            spin(A, 'agg', pl_agg, ck_agg, cfg)
            A(f'v_mul_f32 {vr(Q)}, {vr(WQ)}, {vr(PQ)}\nv_mul_f32 {vr(Q + 1)}, {vr(WQ)}, {vr(PQ + 2)}')
            A(f'v_fma_f32 {vr(Q)}, -{vr(WQ + 1)}, {vr(PQ + 2)}, {vr(Q)}\nv_fmac_f32 {vr(Q + 1)}, {vr(WQ + 1)}, {vr(PQ)}')
            cfma(Q, Q + 1, WQ + 2, WQ + 3, PQ + 4, PQ + 6, Q, Q + 1)
            A(f'v_mov_b32 {vr(Q + 2)}, {vr(Q)}\nv_mov_b32 {vr(Q + 3)}, {vr(Q + 1)}\ns_nop 1')
            A(f'v_permlane32_swap_b32 {vr(Q)}, {vr(Q + 2)}\nv_permlane32_swap_b32 {vr(Q + 1)}, {vr(Q + 3)}')
            A(f'v_add_f32 {vr(Q)}, {vr(Q)}, {vr(Q + 2)}\nv_add_f32 {vr(Q + 1)}, {vr(Q + 1)}, {vr(Q + 3)}')
            if cfg.ex1:
                A(f'v_mov_b32 {vr(Q + 2)}, 1')
                A.ds(f'ds_write_b96 {vr(VEXW)}, {vr(Q, 3)} offset:{X_EX2 - X_EX}')
            else:
                A.ds(f'ds_write_b64 {vr(VEXW)}, {vr(Q, 2)} offset:{X_EX2 - X_EX}')
                post(A, VPW, VPT, E_EX2, G3 - G2)
        elif act == 'car':
            after('q', 's0', 's1')
            gather('ex2', X_EX2 - X_EX, E_EX2)
            for o in (0, 1):
                A(f'v_add_f32 {vr(EW + o)}, {vr(EW + o)}, {vr(EW + 2 + o)}\nv_add_f32 {vr(EW + 4 + o)}, {vr(EW + 4 + o)}, {vr(EW + 6 + o)}')
            A(f'v_add_f32 {vr(EW)}, {vr(EW)}, {vr(EW + 4)}\nv_add_f32 {vr(EW + 1)}, {vr(EW + 1)}, {vr(EW + 5)}')
            cfma(LCR, LCI, WSR, WSI, EW, EW + 1, LCR, LCI)
            A(f'v_mul_f32 {vr(TMP)}, {vr(KR)}, {vr(LCR)}\nv_mul_f32 {vr(TMP + 1)}, {vr(KR)}, {vr(LCI)}')
            A(f'v_fma_f32 {vr(TMP)}, -{vr(KI)}, {vr(LCI)}, {vr(TMP)}\nv_fmac_f32 {vr(TMP + 1)}, {vr(KI)}, {vr(LCR)}')
        elif act == 'pa':
            after('car')
            pass2(range(0, 8))
        elif act == 'pb':
            after('pa')
            pass2(range(8, 16))
        elif act == 'tr':
            after('pb', 'g1')
            for s in range(2):
                for part, d in ((0, U), (1, V)):
                    mfma(A, d, PK + 8 * part + 4 * s, SEL + 4 * s, s == 0)
            A('s_nop 10')
            for part, d in ((0, U), (1, V)):
                o = ACT0 + 8 * part
                for e in range(8):
                    A(f'v_cvt_pk_bf16_f32 {vr(o + e)}, {vr(d + 2 * e)}, {vr(d + 2 * e + 1)}')
                for op in (32, 16):
                    for e in range(4):
                        A(f'v_permlane{op}_swap_b32 {vr(o + e)}, {vr(o + 4 + e)}')
                for a in range(2):
                    A.vmem(f'buffer_store_dwordx4 {vr(o + 4 * a, 4)}, {vr(VST)}, {sr(R_WS, 4)}, {k4(2 * part)} offen offset:{2048 * a} {cfg.fact}', 'h')
        elif act == 'hf':
            after('tr')
            A(f'v_mov_b32 {vr(TMP + 2)}, {sr(S_TAG)}\nv_lshlrev_b32 {vr(TMP + 3)}, 2, v0')
            A.wait_vm('h')
            A('s_mov_b32 exec_hi, 0')
            A.vmem(f'buffer_store_dword {vr(TMP + 2)}, {vr(TMP + 3)}, {sr(R_WS, 4)}, {sr(S_GFL)} offen {cfg.ffl}', 'fl')
            A('s_mov_b64 exec, -1')
        elif act == 'hs':
            after('hf', 'mm' if cfg.selfw else 'W7')
            A.drain()
            spoll(A, 'hs', cfg, FL4, mode='issue')
        elif act == 'th':
            if 'h' in cfg.touch:
                for b, o in FL4:
                    A(f's_load_dword s13, {sr(b, 2)}, {o} glc')
        elif act == 'ha':
            after('hs')
            A.drain()
            spoll(A, 'hs', cfg, FL4, mode='check')
            A.stamp('hpoll')
            A(f's_and_b32 {sr(T1)}, {sr(S_J)}, 1\ns_lshl_b32 {sr(T1)}, {sr(T1)}, 12\ns_lshl_b32 {sr(T0)}, {sr(S_GST)}, 7\ns_add_u32 {sr(T1)}, {sr(T1)}, {sr(T0)}')
            for t in range(2, 8):
                A(f's_xor_b32 {sr(S_OA)}, {sr(T1)}, {8192 * SST[t][0] + 4096 * SST[t][1]}')
                for a in range(2):
                    A.vmem(f'buffer_load_dwordx4 {vr(ACT0 + 8 * t + 4 * a, 4)}, {vr(VA)}, {sr(R_WS, 4)}, {sr(S_OA)} offen offset:{2048 * a} {cfg.fld}', f'act{t}')
        elif act == 'xs':
            assert 'd0' not in done

            def f():
                A(f's_add_u32 m0, {sr(S_WDO)}, {WDA[0]}\ns_mov_b32 {sr(S_OA)}, {15 * 1024}')
                A.vmem(f'buffer_load_dwordx4 {vr(VXS)}, {sr(R_X, 4)}, 0 offen lds', 'xs')
                A.vmem(f'buffer_load_dwordx4 {vr(VXS)}, {sr(R_X, 4)}, {sr(S_OA)} offen offset:1024 lds', 'xs')
            emit(f)
        elif act == 'xm':
            after('xr', 'gs')
            A.wait_lg('xr11')
            A(f'v_lshlrev_b32 {vr(DS)}, 16, {vr(DS)}\nv_lshlrev_b32 {vr(DS + 1)}, 16, {vr(DS + 1)}')
            for r in range(16):
                A(f'v_lshlrev_b32 {vr(XS + r)}, 16, {vr(XS + r)}')
                A(f'v_mul_f32 {vr(XS + r)}, {vr(XS + r)}, {vr(DS + ((r >> 2) & 1))}')
                A(f'v_mul_f32 {vr(XS + r)}, {vr(XS + r)}, {vr(GV + 4 * (r >> 3) + (r & 3))}')
                A.tick()
        elif act == 'xr':
            after('xs', 'mm')
            if any(t == 'xs' for _, t in A.bg):
                A.drain()
            A.wait_vm('xs')
            for c in range(2):
                for a in range(2):
                    for r in range(4):
                        A.ds(f'ds_read_u16 {vr(XS + 8 * a + 4 * c + r)}, {vr(XA)} offset:{512 * a + 64 * r + 32 * c}', f'xr{c}{a}')
                    if c:
                        A.wait_lg(f'xr0{a}')
        else:
            raise AssertionError(act)
        done.append(act)
        if act in cfg.p2st.split(','):
            A.stamp(act)
    A.drain()
    after(*(f'd{i}' for i in range(cfg.p1d)), 'ha', 'xm', 'ec', 'pf', 'gs')
    ACC2, OA, PK, PB = 32, 96, 216, 128
    srd(A, R_O, 32, 2048 * 2048)
    if 'g' in cfg.touch:
        for b, o in FL4:
            A(f's_load_dword s13, {sr(b, 2)}, {o + GF - HF} glc')
    A(f'v_subrev_u32 {vr(VPF)}, {G2 - G1}, {vr(VPW)}')
    A(f'v_mov_b32 {vr(DS)}, {sr(S_TAG)}\nv_mov_b32 {vr(DS + 1)}, {sr(S_TAG)}')
    uo = Stream()
    for p in range(11):
        unit_off(uo, 48 + p, p, 12)
    await_(A, 'call', VPR, VPT, G2, E_C)
    if cfg.sgate:
        await_(A, 'epi', VPF, VPT, 0, E_EPI)
    if cfg.prio:
        A(f's_setprio {cfg.pS}')
    A.stamp('S0')

    def areg(p, a):
        return OA + 8 * p + 4 * a if p < 3 else ACT0 + 8 * (p - 3) + 4 * a

    def ld_act(p, track=True):
        saved = list(A.vm)
        for a in range(2):
            A.vmem(f'buffer_load_dwordx4 {vr(areg(p, a), 4)}, {vr(VAF)}, {sr(R_WS, 4)}, {sr(48 + p)} offen offset:{2048 * a} {cfg.fld}', f'fa{p}')
        if not track:
            A.vm = saved

    NT = cfg.ntail
    NO = max(NT, cfg.nown)
    items = [('s', t, n) for t in range(8) for n in range(8)] + [('f', p, n) for p in range(11 - NT) for n in range(0 if p < 11 - NO else 2, 8)]
    t0 = len(items)
    items += [('f', p, 2 * m + c) for m in (1, 2, 3) for p in range(11 - NT, 11) for c in range(2)]
    items += [('f', p, c) for p in range(11 - NO, 11) for c in range(2)]
    i2 = items.index([x for x in items if x[:2] == ('f', 2)][0])
    G = 2 * NT
    N = len(items)
    ifd = min([i for i, (k, p, n) in enumerate(items) if k == 'f' and p >= cfg.p1d] + [1000])
    assert G >= 8

    def rd(i, r):
        k, p, n = items[i]
        if k == 's':
            if r == 0:
                A.ds(f'ds_read_b128 {vr(FBS + 4 * (i % 6), 4)}, {vr(AC + SST[p][1])} offset:{16384 * SST[p][0] + 2048 * n}', f's{i}')
            return
        hi = WDA[p] >= 4 * SLOT
        off = WDA[p] - (4 * SLOT if hi else 2 * SLOT) + 4096 * r + 1024 * (n >> 2)
        A.ds(f'ds_read_b64_tr_b16 {vr(FBS + 4 * (i % 6) + 2 * r, 2)}, {vr(AW + (n & 3) + 4 * hi)} offset:{off}', f's{i}')

    def look(i, at, name, va, off, val):
        if i == at - 4:
            A.ds(f'ds_read_b32 {vr(VPK)}, {vr(va)} offset:{off}', 'peek')
        if i == at:
            check_(A, name, va, VPK, off, val)
        return i == at

    def extra(i):
        if i < 22:
            A(uo.lines[2 * i])
        if look(i, cfg.own_at, 'ack', VPF, 0, E_ACK):
            A.stamp('ack')
            A(f's_cmp_eq_u32 {sr(S_J)}, 3\ns_cbranch_scc1 L_no_l2a')
            ld_act(2, False)
            A.label('L_no_l2a')
            A.defer(lambda: ld_act(0))
            A.defer(lambda: ld_act(1))
        look(i, 58, 'wd', VPR, G2, E_WD)
        if look(i, cfg.gu_at, 'gu', VPF, 0, E_GU):
            A.stamp('gu')
            assert not A.bg
            A(f's_cmp_lg_u32 {sr(S_J)}, 3\ns_cbranch_scc1 L_no_l2b')
            ld_act(2, False)
            A.label('L_no_l2b')
            for p in range(3, 11):
                A.defer(lambda: ld_act(p))
        elif A.bg and i % cfg.fweave == 0:
            tag = A.bg[0][1]
            if int(tag[2:]) < 3 or 8 * (int(tag[2:]) - 2) <= i:
                A.pop_bg()
        if i == 64:
            A.stamp('Send')
        if i == t0 + 1:
            dpost(A, E_SD, G3)
        if i == i2 - 1:
            first = min([x for x, t in enumerate(A.vm) if t and t.startswith('fa') and int(t[2:]) >= 3] + [len(A.vm)])
            A(f's_waitcnt vmcnt({len(A.vm) - first})')
        look(i, ifd - 6, 'dall', VPR, G4, E_D)
        look(i, N - 3, 'sd', VPR, G3, E_SD)
        if t0 + G <= i < t0 + 4 * G:
            m, k = (i - t0) // G, (i - t0) % G
            if 2 <= k < 6:
                for e in (2 * (k - 2), 2 * (k - 2) + 1):
                    A(f'v_cvt_pk_bf16_f32 {vr(PK + 8 * (m - 1) + e)}, {vr(ACC2 + 16 * m + 2 * e)}, {vr(ACC2 + 16 * m + 2 * e + 1)}')
            if k in (4, 6):
                c = (k - 4) // 2
                A.vmem(f'buffer_store_dwordx4 {vr(PK + 8 * (m - 1) + 4 * c, 4)}, {vr(VS + m - 1)}, {sr(R_WS, 4)}, 0 offen offset:{2048 * c} sc1', 'ps')
        if i == N - cfg.fl_at:
            A.wait_vm('ps')
            A.vmem(f'buffer_store_dwordx2 {vr(DS, 2)}, {vr(VF)}, {sr(R_WS, 4)}, 0 offen sc1', 'fl')
            A.stamp('pflag')
        if cfg.fine and i % 16 == 0:
            A.stamp(f'F{i}')
    pts = sorted([cfg.own_at, 58, cfg.gu_at, ifd - 6, N - 3])
    assert all(y - x > 4 for x, y in zip(pts, pts[1:])) and 22 <= cfg.own_at < 58 and cfg.gu_at < i2 - 1
    for i in range(5):
        rd(i, 0)
    for i, (k, p, n) in enumerate(items):
        if i % 2 == 0:
            A.wait_lg(f's{i + 1}')
        tag = f'act{p}' if k == 's' else f'fa{p}'
        assert not any(t == tag for _, t in A.bg)
        A.wait_vm(tag)
        for a in range(2):
            o = 16 * (n >> 1) + 8 * a + 4 * (n & 1)
            c = vr(ACC2 + o, 4) if i >= 8 else ('0' if n >= 2 else vr(XS + o, 4))
            A(f'v_mfma_f32_16x16x32_bf16 {vr(ACC2 + o, 4)}, {vr(ACT0 + 8 * p + 4 * a if k == "s" else areg(p, a), 4)}, {vr(FBS + 4 * (i % 6), 4)}, {c}')
            if i + 5 < N:
                rd(i + 5, a)
            if a == 0:
                extra(i)
            elif i < 22:
                A(uo.lines[2 * i + 1])
    A.stamp('Fend')
    A('s_nop 6')
    for k in range(2):
        A.ds(f'ds_write_b128 {vr(RW)}, {vr(ACC2 + 4 * k, 4)} offset:{1024 * k}')
    if not cfg.endbar:
        post(A, VPW, VPT, E_SF, G3 - G2)
    if not cfg.fl_at:
        A.wait_vm('ps')
        A.vmem(f'buffer_store_dwordx2 {vr(DS, 2)}, {vr(VF)}, {sr(R_WS, 4)}, 0 offen sc1', 'fl')
        A.stamp('pflag')
    assert N - cfg.fl_at > t0 + 3 * G + 6
    if cfg.endbar:
        A.wait_lg_all()
        A('s_barrier')
    await_(A, 'pp', VPF, VPT, 0, E_PP)
    finish(A, cfg, 1, ACC2 + 8, VL, RO, PB)
    A.label('L_p2_done')
    if cfg.stamps:
        A.wait_vm_all()
    A.dump_stamps(1)
    A.label('L_end')
    A('s_endpgm')
    A('.p2align 6')
    A.label('L_tab')
    A('.long ' + ', '.join(str(i) for i in range(16)))
    A.label('L_codeend')
    return A


HEADER = open(os.path.join(os.path.dirname(os.path.abspath(__file__)), '..', 'cdna_kernels',
                           'gated_mix__ssm_conv_s5__swiglu_ffn__prompt.s.ref')).read().split('; Override launch')[0]


def generate(cfg):
    e, p1, p2 = gen_entry(cfg), gen_p1(cfg), gen_p2(cfg)
    if cfg.dbg:
        i0 = [i for i, l in enumerate(p2.lines) if l == 's_barrier'][7]
        i1 = p2.lines.index('L_hs_try:')
        for i in range(i0, i1):
            l = p2.lines[i]
            if 'nofma' in cfg.dbg and l.startswith(('v_fma', 'v_mul_f32', 'v_cvt_pk')):
                p2.lines[i] = 's_nop 1'
            if 'nodma' in cfg.dbg and l.endswith(' lds') and 'dwordx4' in l:
                p2.lines[i] = 's_nop 3'
            if 'nods' in cfg.dbg and l.startswith(('ds_read_b128', 'ds_write_b128', 'ds_read_b64_tr')):
                p2.lines[i] = 's_nop 1'
            if 'nodw' in cfg.dbg and l.startswith('ds_write_b128'):
                p2.lines[i] = 's_nop 1'
            if 'nodr' in cfg.dbg and l.startswith('ds_read_b128'):
                p2.lines[i] = 's_nop 1'
            if 'nou16' in cfg.dbg and l.startswith('ds_read_u16'):
                p2.lines[i] = 's_nop 1'
            if 'nomf' in cfg.dbg and l.startswith('v_mfma'):
                p2.lines[i] = 's_nop 1'
            if 'noval' in cfg.dbg and l.startswith(('v_fma', 'v_mul_f32', 'v_cvt_pk', 'v_exp', 'v_rcp', 'v_add_f32', 'v_lshlrev_b32 v2', 'v_and_b32 v9', 'v_and_b32 v10', 'v_cndmask')):
                p2.lines[i] = 's_nop 1'
            if 'vld' in cfg.dbg and l.endswith(' lds') and 'dwordx4' in l:
                p2.lines[i] = l[:-4].replace('buffer_load_dwordx4 ', 'buffer_load_dwordx4 v[248:251], ')
            if 'v1ld' in cfg.dbg and l.endswith(' lds'):
                p2.lines[i] = l[:-4].replace('buffer_load_dwordx4 ', 'buffer_load_dword v248, ')
            if 'oob' in cfg.dbg and l.endswith(' lds'):
                import re
                p2.lines[i] = re.sub(r'\], \S+ offen', '], 2.0 offen', l)
            if 'noW' in cfg.dbg and l.endswith(' lds') and ('s[56:59]' in l or 's[60:63]' in l):
                p2.lines[i] = 's_nop 3'
            if 'noC' in cfg.dbg and l.endswith(' lds') and not ('s[56:59]' in l or 's[60:63]' in l):
                p2.lines[i] = 's_nop 3'
            if 'now64' in cfg.dbg and l.startswith('ds_write_b64'):
                p2.lines[i] = 's_nop 1'
            if 'nom0' in cfg.dbg and ' m0,' in l:
                p2.lines[i] = 's_nop 0'
            if 'spdma' in cfg.dbg and l.endswith(' lds'):
                p2.lines[i] = l + '\n    s_nop 7'
            if 'nost' in cfg.dbg and l.startswith('buffer_store_dwordx4') and 'offset' in l:
                p2.lines[i] = 's_nop 1'
    probs = check_hazards(e.lines + p1.lines, 'p1') + (check_hazards(e.lines + p2.lines, 'p2') if not cfg.dbg else [])
    for p in probs:
        print('HAZARD', p, file=sys.stderr)
    assert not probs
    nb1 = sum(l == 's_barrier' for l in p1.lines)
    nb2 = sum(l == 's_barrier' for l in p2.lines)
    assert nb1 == nb2, (nb1, nb2)
    txt = HEADER + f'; @launch grid=(256,1,1) block=(512,1,1) lds={LDS}\n'
    txt += f'.amdgcn_target "amdgcn-amd-amdhsa--gfx950"\n.text\n.globl {K}\n.p2align 8\n.type {K},@function\n{K}:\n'
    txt += e.text() + p1.text() + p2.text()
    txt += f'''.section .rodata,"a"
.p2align 6
.amdhsa_kernel {K}
  .amdhsa_next_free_vgpr 256
  .amdhsa_next_free_sgpr 102
  .amdhsa_accum_offset 256
  .amdhsa_group_segment_fixed_size 0
  .amdhsa_kernarg_size 136
  .amdhsa_user_sgpr_count 2
  .amdhsa_user_sgpr_kernarg_segment_ptr 1
  .amdhsa_system_sgpr_workgroup_id_x 1
.end_amdhsa_kernel
'''
    return txt, (p1.names, p2.names)


if __name__ == '__main__':
    cfg = Cfg()
    out = sys.argv[1]
    for kv in sys.argv[2:]:
        k, v = kv.split('=')
        old = getattr(cfg, k)
        setattr(cfg, k, (v not in ('0', 'False')) if isinstance(old, bool) else type(old)(v))
    txt, names = generate(cfg)
    open(out, 'w').write(txt)
    if cfg.stamps:
        import json
        json.dump(names, open(out + '.names', 'w'))
```
